```python
import torch

def _softmax(x, axis=-1):
    return torch.softmax(x, dim=axis)
def _gelu(x):
    return torch.nn.functional.gelu(x, approximate="tanh")
def _silu(x):
    return torch.nn.functional.silu(x)
def _sigmoid(x):
    return torch.sigmoid(x)
def _layernorm(x, axis=-1, eps=1e-5):
    m = x.mean(dim=axis, keepdim=True)
    v = x.var(dim=axis, keepdim=True, unbiased=False)
    return (x - m) / torch.sqrt(v + eps)
def _scatter_add(tgt, idx, src, axis=0):
    return tgt.clone().index_add_(axis, idx, src)
def _segment_sum(src, seg, n):
    out = torch.zeros((n,) + src.shape[1:], dtype=src.dtype)
    return out.index_add_(0, seg, src)
def _pad(x, pw):
    flat = tuple(v for pair in reversed(pw) for v in pair)
    return torch.nn.functional.pad(x, flat)

kernel_name = 'standalone__gqa_softmax__near_ridge'

def setup_inputs():

    _w = (lambda a: (lambda t: t.to(torch.bfloat16) if t.is_floating_point() else t)(torch.as_tensor(a)))
    B, Hq, Hkv, Sq, Sk, D = 8, 32, 32, 768, 512, 192
    return {
        "q": _w((lambda *s: torch.randn(*s, dtype=torch.bfloat16) * 0.8)(B, Hq, Sq, D)),
        "k": _w((lambda *s: torch.randn(*s, dtype=torch.bfloat16) * 0.8)(B, Hkv, Sk, D)),
        "v": _w((lambda *s: torch.randn(*s, dtype=torch.bfloat16) * 0.05)(B, Hkv, Sk, D)),
    }

def reference(q, k, v):
    B, Hq, Sq, D = q.shape
    Hkv = k.shape[1]
    rep = Hq // Hkv
    k = (lambda x, n, axis: torch.repeat_interleave(x, n, dim=axis))(k, rep, axis=1)
    v = (lambda x, n, axis: torch.repeat_interleave(x, n, dim=axis))(v, rep, axis=1)
    scale = D ** -0.5
    scores = torch.einsum("bhqd,bhkd->bhqk", q, k) * scale
    p = _softmax(scores, axis=-1)
    return torch.einsum("bhqk,bhkd->bhqd", p, v)
```

```python
import re


def rl(f, lo, n=1):
    return [f"{f}{lo + i}" for i in range(n)]


class Reg:
    def __init__(self, f, lo, n=1):
        self.f, self.lo, self.n = f, lo, n

    def __getitem__(self, i):
        if isinstance(i, slice):
            a = i.start or 0
            b = i.stop if i.stop is not None else self.n
            assert 0 <= a < b <= self.n, (a, b, self.n)
            return Reg(self.f, self.lo + a, b - a)
        assert 0 <= i < self.n, (i, self.n)
        return Reg(self.f, self.lo + i, 1)

    def __str__(self):
        if self.n == 1:
            return f"{self.f}{self.lo}"
        return f"{self.f}[{self.lo}:{self.lo + self.n - 1}]"

    def names(self):
        return rl(self.f, self.lo, self.n)


def names(*xs):
    out = []
    for x in xs:
        if isinstance(x, Reg):
            out += x.names()
        elif isinstance(x, str):
            if re.fullmatch(r"[vas]\d+|vcc|scc|m0|exec", x):
                out.append(x)
        elif isinstance(x, (list, tuple)):
            out += names(*x)
    return out


COST = dict(mfma=8, valu=4, trans=8, ds=4, vmem=20, salu=4, wait=4, nop=4, branch=4, barrier=12, label=0)


class I:
    def __init__(self, text, kind, rd=(), wr=(), tag=None, waitl=None, waitv=None, cost=None,
                 srcc=None, ab=None, earliest=None, latest=None, states=1, flags=()):
        self.text, self.kind = text, kind
        self.rd, self.wr = names(rd), names(wr)
        self.tag, self.waitl, self.waitv = tag, waitl, waitv
        self.cost = COST[kind] if cost is None else cost
        self.srcc = names(srcc) if srcc is not None else []
        self.ab = names(ab) if ab is not None else []
        self.earliest, self.latest = earliest, latest
        self.states = 0 if kind == "label" else states
        self.flags = set(flags)

    def __repr__(self):
        return f"<{self.text}>"


def mfma(d, a, b, c):
    cs = str(c) if isinstance(c, Reg) else "0"
    return I(f"v_mfma_f32_32x32x16_bf16 {d}, {a}, {b}, {cs}", "mfma", rd=[a, b] + ([c] if isinstance(c, Reg) else []),
             wr=[d], srcc=[c] if isinstance(c, Reg) else [], ab=[a, b])


def valu(op, d, *src, kind="valu", extra_rd=(), extra_wr=(), **kw):
    ops = ", ".join(str(x) for x in (d,) + src)
    rd = [re.sub(r"^-", "", s) if isinstance(s, str) else s for s in src]
    return I(f"{op} {ops}", kind, rd=list(rd) + list(extra_rd), wr=[d] + list(extra_wr), **kw)


def trans(op, d, s, **kw):
    return valu(op, d, s, kind="trans", **kw)


def salu(op, d, *src, scc_w=False, scc_r=False, **kw):
    ops = ", ".join(str(x) for x in (d,) + src)
    return I(f"{op} {ops}", "salu", rd=list(src) + (["scc"] if scc_r else []), wr=[d] + (["scc"] if scc_w else []), **kw)


def nop(n=0):
    return I(f"s_nop {n}", "nop", states=n + 1, cost=4 * (n + 1))


def label(name):
    return I(f"{name}:", "label")


def waitl(*tags):
    return I("s_waitcnt lgkmcnt(?)", "wait", waitl=list(tags))


def waitv(*tags):
    return I("s_waitcnt vmcnt(?)", "wait", waitv=list(tags))


def barrier():
    return I("s_barrier", "barrier")


class Stream:
    def __init__(self, items, start, end, prio=0):
        self.items, self.start, self.end, self.prio = list(items), start, end, prio
        self.pos = 0
        self.total = sum(i.cost for i in self.items)
        self.done = 0


class Unit:
    def __init__(self, name):
        self.name = name
        self.pre = []
        self.heads = []
        self.pin = []
        self.tail = []
        self.streams = []
        self.post = []

    def add_gap(self, m):
        self.heads.append(m)
        self.pin.append([])
        self.tail.append([])
        return len(self.heads) - 1

    def schedule(self, budget=24, window=24, verbose=False):
        n = len(self.heads)
        fixed = [sum(i.cost for i in self.pin[k]) + sum(i.cost for i in self.tail[k]) for k in range(n)]
        target = [budget] * n
        demand = [float(f) for f in fixed]
        for s in self.streams:
            ln = s.end - s.start + 1
            for k in range(s.start, s.end + 1):
                demand[k] += s.total / ln
        for w0 in range(0, n, window):
            w1 = min(n, w0 + window)
            avg = sum(demand[w0:w1]) / (w1 - w0)
            t = budget
            while t < avg + 1.0:
                t += 4
            for k in range(w0, w1):
                target[k] = t
        free = [max(0, target[k] - fixed[k]) for k in range(n)]
        out = list(self.pre)
        used = []
        for k in range(n):
            if self.heads[k] is not None:
                out.append(self.heads[k])
            out += self.pin[k]
            rem = free[k]
            u = fixed[k]
            while True:
                best, bestlag, forced = None, None, False
                for s in self.streams:
                    if s.pos >= len(s.items) or k < s.start:
                        continue
                    it = s.items[s.pos]
                    if it.earliest is not None and k < it.earliest:
                        continue
                    dl = min([x.latest for x in s.items[s.pos:] if x.latest is not None] + [s.end])
                    f = dl <= k
                    cap_tot = sum(free[s.start:s.end + 1]) or 1
                    cap_el = sum(free[s.start:min(k, s.end) + 1])
                    lag = cap_el / cap_tot - s.done / s.total + s.prio
                    if f:
                        lag += 100
                    elif it.cost > rem or lag - s.prio <= -0.02:
                        continue
                    if best is None or lag > bestlag:
                        best, bestlag, forced = s, lag, f
                if best is None:
                    break
                it = best.items[best.pos]
                best.pos += 1
                best.done += it.cost
                rem -= it.cost
                u += it.cost
                out.append(it)
            out += self.tail[k]
            used.append(u)
        for s in self.streams:
            assert s.pos == len(s.items), (self.name, "stream not drained", s.items[s.pos])
        out += self.post
        self.used = used
        if verbose:
            est = sum(max(32, 8 + u) if self.heads[k] is not None else u for k, u in enumerate(used))
        return out


def resolve_waits(trace):
    res = {}
    ds_idx, vm_idx = {}, {}
    nds = nvm = 0
    for key, ins in trace:
        if ins.kind == "ds":
            nds += 1
            if ins.tag is not None:
                ds_idx[ins.tag] = nds
        elif ins.kind == "vmem":
            nvm += 1
            if ins.tag is not None:
                vm_idx[ins.tag] = nvm
        elif ins.kind == "wait":
            l = v = None
            if ins.waitl is not None:
                need = max(ds_idx[t] for t in ins.waitl)
                l = min(15, nds - need)
            if ins.waitv is not None:
                need = max(vm_idx[t] for t in ins.waitv)
                v = min(63, nvm - need)
            if key in res:
                pl, pv = res[key]
                if (pl, pv) != (l, v):
                    res.setdefault("_mismatch", []).append((key, (pl, pv), (l, v)))
                l = None if l is None else min(l, pl)
                v = None if v is None else min(v, pv)
            res[key] = (l, v)
    return res


def is_valu(i):
    return i.kind in ("valu", "trans")


def hazards(seq):
    out = []
    n = len(seq)
    for j in range(n):
        c = seq[j]
        if c.kind in ("label", "nop", "wait", "barrier"):
            continue
        crd, cwr = set(c.rd), set(c.wr)
        dist = 0
        i = j - 1
        while i >= 0 and dist < 20:
            p = seq[i]
            pw = set(p.wr)
            need = 0
            why = ""
            if is_valu(p):
                if c.kind == "mfma" and pw & crd:
                    need, why = 2, "valu->mfma"
                if p.kind == "trans" and c.kind == "valu" and pw & crd:
                    need, why = max(need, 1), "trans->valu"
                if "permlane" in c.text and pw & (crd | cwr):
                    need, why = max(need, 2), "valu->permlane"
                if ("readfirstlane" in c.text or "readlane" in c.text) and pw & crd:
                    need, why = max(need, 1), "valu->readlane"
                sw = {x for x in pw if x[0] == "s" or x == "vcc"}
                if sw & crd:
                    if is_valu(c):
                        need, why = max(need, 2), "valu sgpr->valu"
                    elif c.kind == "vmem":
                        need, why = max(need, 5), "valu sgpr->vmem"
            elif p.kind == "mfma":
                if c.kind == "mfma":
                    if pw & set(c.ab):
                        need, why = 12, "mfma D->AB"
                    elif pw & set(c.srcc) and set(c.srcc) != pw:
                        need, why = 10, "mfma D->C partial"
                    elif pw & cwr and not (set(c.srcc) == pw):
                        need = 0
                elif is_valu(c) or c.kind in ("ds", "vmem"):
                    if pw & (crd | cwr):
                        need, why = 12, "mfma D->other"
                    if is_valu(c) and set(p.srcc) & cwr:
                        need, why = max(need, 7), "mfma C WAR"
            elif p.kind == "salu":
                if "m0" in pw and c.kind == "vmem" and "m0" in crd:
                    need, why = 1, "m0->dma"
            elif p.kind == "vmem" and "store" in p.text:
                if set(p.flags) & {"wide"} and (set(p.rd) & cwr):
                    need, why = 2, "store data WAR"
            if need > dist:
                out.append((j, need - dist, why + f" [{p.text}] -> [{c.text}]"))
            dist += p.states
            i -= 1
    return out
```

```python
import sys, struct, math, os
sys.path.insert(0, os.path.dirname(os.path.abspath(__file__)))
from asmlib import *

KNAME = "standalone__gqa_softmax__near_ridge_kernel"
OPT = dict(
    store_iters=[1, 2, 3, 4, 5, 6],
    qload_iters=[7, 8, 9, 10, 11, 12],
    xgaps=[14, 18, 38, 42],
    kgaps=[2, 6, 10], vgaps=[26, 30, 34],
    bar_gap=46,
    thr=4096.0,
    stamp=0,
    codewarm=1,
    kv_nt="", q_nt="", o_nt="",
)
for a in sys.argv[1:]:
    if "=" in a:
        k, v = a.split("=", 1)
        OPT[k] = eval(v)

TILE = 12288
KSLOT = [0, 1, 2, 3, 4, 0, 1, 2, 3, 4, 0, 1, 2, 3, 4, 5]
VSLOT = [0, 1, 2, 3] * 4
KBASE, VBASE = 0, 6 * TILE
LDS_BYTES = 10 * TILE
KD, VD = 5, 3


def f2u(x):
    return struct.unpack("<I", struct.pack("<f", x))[0]


v = lambda lo, n=1: Reg("v", lo, n)
a = lambda lo, n=1: Reg("a", lo, n)
s = lambda lo, n=1: Reg("s", lo, n)

vQO = v(1)
vK = [v(2 + i) for i in range(4)]
vV = [v(6), v(7)]
vDK = [v(8 + i) for i in range(3)]
vDV = [v(11 + i) for i in range(3)]
negmc = [v(14), v(15)]
lsum = [v(16), v(17)]
ts = v(18)
rinv = [v(19), v(20)]
X = [v(21 + i) for i in range(7)]
E = [v(28 + i) for i in range(4)]
FR = [a(240, 4), a(244, 4), a(248, 4), a(252, 4), v(32, 4), v(36, 4)]
PA = [v(40, 8), v(48, 8)]
PB = v(56, 8)
SA = v(64, 16)
SB = [v(80, 16), v(96, 16)]
STG = v(160, 96)
Qc = a(144, 96)
OT = [a(16 * e, 16) for e in range(9)] + [v(112 + 16 * i, 16) for i in range(3)]

ptrQ, ptrK, ptrV, ptrO = s(4, 2), s(6, 2), s(8, 2), s(10, 2)
srdK, srdV, srdQ, srdO = s(12, 4), s(16, 4), s(20, 4), s(24, 4)
sBG, sH, sKO, sQO, sQOcur, sNrec, sTrip, sC, sNegC, sThr, sMagic, sW = [s(28 + i) for i in range(12)]
sRet = s(40, 2)
m0K = [s(42 + i) for i in range(6)]
m0V = [s(48 + i) for i in range(4)]
sT = ["0"] + [s(51 + t) for t in range(1, 16)]
srdD = s(68, 4)
sStamp = s(72, 2)
sPC = s(76, 2)

SCALE_C = math.log2(math.e) / math.sqrt(192.0)


def Qreg(base, ks, x):
    return base[ks * 8 + x * 4: ks * 8 + x * 4 + 4]


def dma(srd, voff, soff, c, tag):
    off = f" offset:{c * 1024}" if c else ""
    return I(f"buffer_load_dwordx4 {voff}, {srd}, {soff} offen{off}{OPT['kv_nt']} lds", "vmem",
             rd=[voff, srd, soff, "m0"], tag=tag)


def setm0(x):
    return salu("s_mov_b32", "m0", x)


def qload(dst, ks, x, tag):
    off = f" offset:{ks * 32}" if ks else ""
    return I(f"buffer_load_dwordx4 {dst}, {vQO}, {srdQ}, {sT[x]} offen{off}{OPT['q_nt']}", "vmem",
             rd=[vQO, srdQ, sT[x]], wr=[dst], tag=tag)


def ostore(e, j):
    t, x = e // 2, e % 2
    src = STG[e * 8 + j * 4: e * 8 + j * 4 + 4]
    ch = 2 * t + j
    off = f" offset:{ch * 32}" if ch else ""
    return I(f"buffer_store_dwordx4 {src}, {vQO}, {srdO}, {sT[x]} offen{off}{OPT['o_nt']}", "vmem",
             rd=[src, vQO, srdO, sT[x]], flags=["wide"], cost=24)


def kread(g, f, tile):
    ks = f
    off = KBASE + KSLOT[tile % 16] * TILE + (ks // 4) * 128
    d = FR[f % 6]
    return [I(f"ds_read_b128 {d}, {vK[ks % 4]} offset:{off}", "ds", rd=[vK[ks % 4]], wr=[d], tag=("F", g, f))]


def vread(g, f, tile):
    idx = f - 12
    t, st = idx // 2, idx % 2
    d = FR[f % 6]
    out = []
    for jj in range(2):
        off = VSLOT[tile % 16] * TILE + (16 * st + 8 * jj) * 384 + t * 64
        out.append(I(f"ds_read_b64_tr_b16 {d[2 * jj:2 * jj + 2]}, {vV[t % 2]} offset:{off}", "ds", rd=[vV[t % 2]],
                     wr=[d[2 * jj:2 * jj + 2]], tag=("F", g, f) if jj == 1 else None))
    return out


def max_tree(S, u, w):
    return [
        valu("v_max3_f32", u, S[0], S[1], S[2]),
        valu("v_max3_f32", w, S[3], S[4], S[5]),
        valu("v_max3_f32", u, u, S[6], S[7]),
        valu("v_max3_f32", w, w, S[8], S[9]),
        valu("v_max3_f32", u, u, S[10], S[11]),
        valu("v_max3_f32", w, w, S[12], S[13]),
        valu("v_max3_f32", u, u, S[14], S[15]),
        valu("v_max_f32", u, u, w),
    ]


def swap(u, w):
    return I(f"v_permlane32_swap_b32 {u}, {w}", "valu", rd=[u, w], wr=[u, w])


def max_init(x, S):
    u, w = E[0], E[1]
    return max_tree(S, u, w) + [
        valu("v_mov_b32", w, u),
        nop(1),
        swap(u, w),
        valu("v_max_f32", u, u, w),
        valu("v_mul_f32", negmc[x], sNegC, u),
    ]


def exp_stream(x, S, P, acc):
    out = []
    T = lambda i: X[i % 6]
    for i in range(16 + 3):
        if i < 16:
            out.append(valu("v_fma_f32", T(i), S[i], sC, negmc[x]))
        if 0 <= i - 1 < 16:
            out.append(trans("v_exp_f32", T(i - 1), T(i - 1)))
        j = i - 3
        if 0 <= j < 16:
            if j == 1:
                out.append(valu("v_add_f32", acc, T(0), T(1)))
            elif j >= 2:
                out.append(valu("v_add_f32", acc, acc, T(j)))
            if j % 2 == 1:
                out.append(valu("v_cvt_pk_bf16_f32", P[j // 2], T(j - 1), T(j)))
    return out


TRAMPS = []


def softmax(x, tile, site):
    par = tile % 2
    S = SA if x == 0 else SB[par]
    P = PA[par] if x == 0 else PB
    if tile == 0:
        return max_init(x, S) + exp_stream(x, S, P, lsum[x]), []
    items = exp_stream(x, S, P, ts)
    name = f"{site}_{'AB'[x]}"
    if (name, x, par) not in TRAMPS:
        TRAMPS.append((name, x, par))
    items.append(I(f"v_cmp_nge_f32 vcc, {sThr}, {ts}", "valu", rd=[sThr, ts], wr=["vcc"]))
    tail = [
        I(f"s_cbranch_vccnz L_tr_{name}", "branch", rd=["vcc"]),
        label(f"L_ret_{name}"),
        valu("v_add_f32", lsum[x], lsum[x], ts),
    ]
    return items, tail


def rinv_stream(x):
    u = E[2]
    return [
        valu("v_mov_b32", u, lsum[x]),
        nop(1),
        swap(u, lsum[x]),
        valu("v_add_f32", u, u, lsum[x]),
        trans("v_rcp_f32", rinv[x], u),
    ]


def epi_tile(e, earliest=None, latest=None):
    x = e % 2
    O = OT[e]
    D = STG[e * 8: e * 8 + 8]
    out = []
    if O.f == "a":
        T = STG[(e + 1) * 8: (e + 3) * 8]
        for i in range(16 + 4):
            if i < 16:
                out.append(valu("v_accvgpr_read_b32", T[i], O[i], latest=latest))
            j = i - 2
            if 0 <= j < 16:
                out.append(valu("v_mul_f32", T[j], T[j], rinv[x]))
            j = i - 4
            if 0 <= j < 16 and j % 2 == 1:
                out.append(valu("v_cvt_pk_bf16_f32", D[j // 2], T[j - 1], T[j]))
    else:
        for i in range(16 + 2):
            if i < 16:
                out.append(valu("v_mul_f32", O[i], O[i], rinv[x], latest=latest))
            j = i - 2
            if 0 <= j < 16 and j % 2 == 1:
                out.append(valu("v_cvt_pk_bf16_f32", D[j // 2], O[j - 1], O[j], latest=latest))
    out[0].earliest = earliest
    return out


def rare(x, par):
    S = SA if x == 0 else SB[par]
    P = PA[par] if x == 0 else PB
    u, w, f = X[0], X[1], X[6]
    o = [label(f"L_rare_{'AB'[x]}{par}"), nop(15)]
    o += max_tree(S, u, w)
    o += [valu("v_fma_f32", u, u, sC, negmc[x]), valu("v_mov_b32", w, u), nop(1), swap(u, w),
          valu("v_max3_f32", u, u, w, "0"),
          valu("v_sub_f32", negmc[x], negmc[x], u),
          trans("v_exp_f32", f, f"-{u}", extra_rd=[u]), nop(0),
          valu("v_mul_f32", lsum[x], lsum[x], f)]
    for t in range(6):
        O = OT[2 * t + x]
        for i in range(16):
            if O.f == "a":
                tt = X[i % 4]
                o += [valu("v_accvgpr_read_b32", tt, O[i]), valu("v_mul_f32", tt, tt, f),
                      valu("v_accvgpr_write_b32", O[i], tt)]
            else:
                o.append(valu("v_mul_f32", O[i], O[i], f))
    o += exp_stream(x, S, P, ts)
    o += [nop(3), I(f"s_setpc_b64 {sRet}", "branch", rd=[sRet])]
    return o


def add_qk(u, g, tile, qwait=None):
    base = len(u.heads)
    Sb = SB[tile % 2]
    for ks in range(12):
        fr = FR[ks % 6]
        u.add_gap(mfma(SA, fr, Qreg(Qc, ks, 0), SA if ks else 0))
        u.add_gap(mfma(Sb, fr, Qreg(Qc, ks, 1), Sb if ks else 0))
    return base


def add_pv(u, g, t):
    base = len(u.heads)
    for tt in range(6):
        for st in range(2):
            fr = FR[(12 + tt * 2 + st) % 6]
            z = (t == 0 and st == 0)
            oa, ob = OT[2 * tt], OT[2 * tt + 1]
            u.add_gap(mfma(oa, fr, PA[t % 2][4 * st:4 * st + 4], 0 if z else oa))
            u.add_gap(mfma(ob, fr, PB[4 * st:4 * st + 4], 0 if z else ob))
    return base


def frag_read(g, t, f):
    if f < 12:
        return kread(g, f, t + 1)
    if f < 24:
        return vread(g, f, t)
    return kread(g + 1, f - 24, t + 2)


def ftag(g, f):
    return ("F", g, f) if f < 24 else ("F", g + 1, f - 24)


def stamp(idx):
    if not OPT["stamp"]:
        return []
    return [I(f"s_memtime {sStamp}", "salu", wr=[sStamp]), I("s_waitcnt lgkmcnt(0)", "salu"),
            valu("v_mov_b32", E[3], sStamp[0]),
            I(f"buffer_store_dword {E[3]}, v0, {srdD}, {sH} offen offset:{idx * 4}", "vmem", rd=[E[3], "v0", srdD])]


def add_iter(u, b, t, site):
    g = b * 16 + t
    base = add_qk(u, g, (t + 1) % 16)
    add_pv(u, g, t)
    for f in range(24):
        k = base + 2 * f + 1
        u.pin[k] += frag_read(g, t, f + 6)
        if f % 2 == 1:
            u.pin[k].append(waitl(ftag(g, f + 1), ftag(g, f + 2)))
    tk, tv = (t + KD) % 16, (t + VD) % 16
    u.tail[base + OPT["kgaps"][0] - 1].append(setm0(m0K[KSLOT[tk]]))
    for c, k in enumerate(OPT["kgaps"]):
        u.pin[base + k].append(dma(srdK, vDK[c], sT[tk], c, ("K", g + KD)))
    u.tail[base + OPT["vgaps"][0] - 1].append(setm0(m0V[VSLOT[tv]]))
    for c, k in enumerate(OPT["vgaps"]):
        u.pin[base + k].append(dma(srdV, vDV[c], sT[tv], c, ("V", g + VD)))
    if t in OPT["store_iters"]:
        n = OPT["store_iters"].index(t)
        for i, k in enumerate(OPT["xgaps"]):
            idx = n * 4 + i
            u.pin[base + k].append(ostore(idx // 2, idx % 2))
    if t in OPT["qload_iters"]:
        n = OPT["qload_iters"].index(t)
        L, x = n // 2, n % 2
        for i, k in enumerate(OPT["xgaps"]):
            ks = 4 * L + i
            u.pin[base + k].append(qload(Qreg(STG, ks, x), ks, x, ("Q", b + 1, n)))
    u.pin[base + OPT["bar_gap"]] += [waitv(("K", g + 3), ("V", g + 1)), barrier()]
    it, tl = softmax(1, t, site)
    u.streams.append(Stream(it, base + 0, base + 23, prio=0.05))
    u.tail[base + 23] += tl
    it, tl = softmax(0, (t + 1) % 16, site)
    u.streams.append(Stream(it, base + 25, base + 47, prio=0.05))
    u.tail[base + 47] += tl
    if t == 1:
        sl = [salu("s_mov_b32", sQOcur, sQO),
              salu("s_add_u32", sBG, sBG, "32", scc_w=True),
              salu("s_mul_hi_u32", sKO, sBG, sMagic),
              salu("s_mul_i32", sKO, sKO, "196608"),
              salu("s_mul_i32", sQO, sBG, "98304"),
              I(f"s_cmp_lt_u32 {sTrip}, 2", "salu", rd=[sTrip], wr=["scc"]),
              salu("s_cselect_b32", sNrec, "196608", "0", scc_r=True),
              salu("s_cselect_b32", srdQ[2], "98304", "0", scc_r=True),
              salu("s_add_u32", srdQ[0], ptrQ[0], sQO, scc_w=True),
              salu("s_addc_u32", srdQ[1], ptrQ[1], "0", scc_w=True, scc_r=True)]
        u.streams.append(Stream(sl, base + 12, base + 40))
    if t == 15 - KD:
        sl = [salu("s_add_u32", srdK[0], ptrK[0], sKO, scc_w=True),
              salu("s_addc_u32", srdK[1], ptrK[1], "0", scc_w=True, scc_r=True),
              salu("s_mov_b32", srdK[2], sNrec)]
        u.streams.append(Stream(sl, base + OPT["kgaps"][-1] + 1, base + 40))
    if t == 15 - VD:
        sl = [salu("s_add_u32", srdV[0], ptrV[0], sKO, scc_w=True),
              salu("s_addc_u32", srdV[1], ptrV[1], "0", scc_w=True, scc_r=True),
              salu("s_mov_b32", srdV[2], sNrec)]
        u.streams.append(Stream(sl, base + OPT["vgaps"][-1] + 1, base + 46))
    return base


def qcopy(ks_list, earliest_fn, latest_fn):
    out = []
    for ks in ks_list:
        for x in range(2):
            for i in range(4):
                out.append(valu("v_accvgpr_write_b32", Qreg(Qc, ks, x)[i], Qreg(STG, ks, x)[i],
                                earliest=earliest_fn(ks, x), latest=latest_fn(ks, x)))
    return out


def set_osrd():
    return [salu("s_add_u32", srdO[0], ptrO[0], sQOcur, scc_w=True),
            salu("s_addc_u32", srdO[1], ptrO[1], "0", scc_w=True, scc_r=True),
            salu("s_mov_b32", srdO[2], "98304")]


QC_SPLIT = 8


def unit_mid(b, t):
    u = Unit(f"T{t}")
    if t == 1:
        u.pre.append(label("L_loop"))
    u.pre += stamp_at(t)
    base = add_iter(u, b, t, f"T{t}")
    if t == 14:
        u.pin[base + 0].append(waitv(*[("Q", b + 1, n) for n in range(6)]))
        u.streams.append(Stream(qcopy(range(QC_SPLIT), lambda ks, x: base + 2 * ks + x, lambda ks, x: None),
                                base + 1, base + 47))
        u.post += [I(f"s_cmp_eq_u32 {sTrip}, 2", "salu", rd=[sTrip], wr=["scc"]),
                   I("s_cbranch_scc1 L_fin", "branch", rd=["scc"])]
    return u


def stamp_at(t):
    return stamp(t)


def unit_x(b):
    u = Unit("X")
    u.pre += stamp_at(15)
    b15 = add_iter(u, b, 15, "T15")
    b0 = add_iter(u, b + 1, 0, "T0")
    u.streams.append(Stream(qcopy(range(QC_SPLIT, 12), lambda ks, x: None, lambda ks, x: b15 + 2 * ks + x - 2),
                            b15 + 0, b15 + 20))
    u.streams.append(Stream(rinv_stream(0), b15 + 2, b15 + 20))
    u.streams.append(Stream(rinv_stream(1), b15 + 24, b15 + 27, prio=0.5))
    ep = []
    for e in range(12):
        tt, x = e // 2, e % 2
        ep += epi_tile(e, earliest=max(b15 + 24 + 4 * tt + 2 + x + 3, b15 + 28), latest=b0 + 24 + 4 * tt + x - 1)
    u.streams.append(Stream(ep, b15 + 29, b0 + 44))
    sl = set_osrd() + [salu("s_add_u32", sTrip, sTrip, "1", scc_w=True)]
    if OPT["stamp"]:
        sl.append(salu("s_add_u32", sH, sH, "64", scc_w=True))
    u.streams.append(Stream(sl, b0 + 2, b0 + 40))
    u.post.append(I("s_branch L_loop", "branch"))
    return u


def unit_pro():
    u = Unit("PRO")
    P = u.pre
    tid, lane, q32, h, t0, t1, t2 = v(0), X[0], X[1], X[2], X[3], X[4], X[5]
    P += [I("s_cmp_ge_u32 s2, 256", "salu", rd=["s2"], wr=["scc"]),
          I("s_cbranch_scc1 L_end", "branch", rd=["scc"]),
          I("s_load_dwordx4 s[4:7], s[0:1], 0", "salu", wr=[s(4, 4)]),
          I("s_load_dwordx4 s[8:11], s[0:1], 16", "salu", wr=[s(8, 4)])]
    if OPT["stamp"]:
        P += [I(f"s_load_dwordx2 {srdD[0:2]}, s[0:1], 40", "salu")]
    P += [salu("s_and_b32", sBG, "s2", "7", scc_w=True),
          salu("s_mul_i32", sBG, sBG, "96"),
          salu("s_lshr_b32", sH, "s2", "3", scc_w=True),
          salu("s_add_u32", sBG, sBG, sH, scc_w=True),
          salu("s_mov_b32", sMagic, "0x55555556"),
          salu("s_mul_hi_u32", sKO, sBG, sMagic),
          salu("s_mul_i32", sKO, sKO, "196608"),
          salu("s_mul_i32", sQO, sBG, "98304")]
    P += [valu("v_lshrrev_b32", t0, "6", tid), valu("v_and_b32", lane, "63", tid),
          I(f"v_readfirstlane_b32 {sW}, {t0}", "valu", rd=[t0], wr=[sW]),
          valu("v_lshlrev_b32", t1, "4", lane)]
    P += [nop(0), salu("s_mul_i32", sW, sW, "3072")]
    for c in range(3):
        P += [valu("v_add_u32", t0, sW, t1) if c == 0 else valu("v_add_u32", t0, "1024", t0),
              valu("v_lshrrev_b32", t2, "7", t0),
              valu("v_mul_u32_u24", t2, "171", t2),
              valu("v_lshrrev_b32", t2, "10", t2),
              valu("v_and_b32", vDK[c], "7", t2),
              valu("v_lshlrev_b32", vDK[c], "4", vDK[c]),
              valu("v_xor_b32", vDK[c], vDK[c], t0),
              valu("v_and_b32", vDV[c], "1", t2),
              valu("v_lshlrev_b32", vDV[c], "6", vDV[c]),
              valu("v_xor_b32", vDV[c], vDV[c], t0)]
        if c:
            P += [valu("v_subrev_u32", vDK[c], str(c * 1024), vDK[c]),
                  valu("v_subrev_u32", vDV[c], str(c * 1024), vDV[c])]
    P += [valu("v_and_b32", q32, "31", lane), valu("v_lshrrev_b32", h, "5", lane),
          valu("v_mul_u32_u24", t0, "384", q32),
          valu("v_lshlrev_b32", t2, "4", h),
          valu("v_add_u32", vQO, t0, t2),
          salu("s_lshl_b32", sH, sW, "3", scc_w=True),
          valu("v_add_u32", vQO, sH, vQO)]
    for i in range(6):
        P.append(salu("s_add_u32", m0K[i], sW, str(KBASE + i * TILE), scc_w=True))
    for i in range(4):
        P.append(salu("s_add_u32", m0V[i], sW, str(VBASE + i * TILE), scc_w=True))
    for t in range(1, 16):
        P.append(salu("s_mov_b32", sT[t], str(t * TILE)))
    P += [I("s_waitcnt lgkmcnt(0)", "salu")]
    for srd, ptr, off, n in ((srdK, ptrK, sKO, 196608), (srdQ, ptrQ, sQO, 98304), (srdV, ptrV, sKO, 196608)):
        P += [salu("s_add_u32", srd[0], ptr[0], off, scc_w=True),
              salu("s_addc_u32", srd[1], ptr[1], "0", scc_w=True, scc_r=True),
              salu("s_mov_b32", srd[2], str(n)), salu("s_mov_b32", srd[3], "0x00020000")]

    def ktile(t):
        return [setm0(m0K[KSLOT[t]]), nop(0)] + [dma(srdK, vDK[c], sT[t], c, ("K", t)) for c in range(3)]

    def vtile(t):
        return [setm0(m0V[VSLOT[t]]), nop(0)] + [dma(srdV, vDV[c], sT[t], c, ("V", t)) for c in range(3)]

    P += ktile(0)
    for n in range(6):
        L, x = n // 2, n % 2
        for i in range(4):
            ks = 4 * L + i
            P.append(qload(Qreg(Qc, ks, x), ks, x, ("Q", 0, n)))
    P += ktile(1) + vtile(0) + ktile(2)
    if OPT["codewarm"]:
        P += [I(f"s_getpc_b64 {sPC}", "salu", wr=[sPC]),
              label("L_pc"),
              I(f"s_sub_u32 {sPC[0]}, {sPC[0]}, L_pc-{KNAME}", "salu", rd=[sPC], wr=[sPC, "scc"]),
              I(f"s_subb_u32 {sPC[1]}, {sPC[1]}, 0", "salu", rd=[sPC, "scc"], wr=[sPC, "scc"]),
              salu("s_lshr_b32", sH, "s2", "3", scc_w=True),
              salu("s_lshl_b32", sH, sH, "11", scc_w=True),
              valu("v_lshlrev_b32", t2, "3", tid),
              valu("v_add_u32", t2, sH, t2),
              I(f"v_min_u32 {t2}, L_code_end-{KNAME}-8, {t2}", "valu", rd=[t2], wr=[t2]),
              I(f"global_load_dwordx2 {STG[0:2]}, {t2}, {sPC}", "vmem", rd=[t2, sPC], wr=[STG[0:2]])]
    P += vtile(1) + ktile(3) + vtile(2) + ktile(4)
    P += [salu("s_mov_b32", srdO[0], ptrO[0]), salu("s_mov_b32", srdO[1], ptrO[1]),
          salu("s_mov_b32", srdO[2], "0"), salu("s_mov_b32", srdO[3], "0x00020000"),
          salu("s_mov_b32", sTrip, "0"),
          salu("s_mov_b32", sC, hex(f2u(SCALE_C))), salu("s_mov_b32", sNegC, hex(f2u(-SCALE_C))),
          salu("s_mov_b32", sThr, hex(f2u(OPT["thr"])))]
    P += [valu("v_lshrrev_b32", t1, "1", q32), valu("v_and_b32", t1, "7", t1), valu("v_xor_b32", t1, t1, h)]
    for i in range(4):
        P += [valu("v_xor_b32", t2, str(2 * i), t1), valu("v_lshlrev_b32", t2, "4", t2),
              valu("v_add_u32", vK[i], t0, t2)]
    r, g_, xx = q32, t1, t2
    P += [valu("v_bfe_u32", r, lane, "2", "2"),
          valu("v_lshl_add_u32", t0, h, "2", r),
          valu("v_mul_u32_u24", t0, "384", t0),
          valu("v_bfe_u32", g_, lane, "4", "1"), valu("v_lshlrev_b32", g_, "5", g_),
          valu("v_add_u32", t0, t0, g_),
          valu("v_and_b32", g_, "1", lane), valu("v_lshlrev_b32", g_, "4", g_),
          valu("v_add_u32", t0, t0, g_),
          valu("v_bfe_u32", g_, lane, "1", "1"), valu("v_lshlrev_b32", g_, "3", g_),
          valu("v_add_u32", t0, t0, g_),
          valu("v_add_u32", t0, str(VBASE), t0),
          valu("v_lshrrev_b32", xx, "1", r), valu("v_lshlrev_b32", xx, "6", xx),
          valu("v_add_u32", vV[0], t0, xx), valu("v_sub_u32", vV[1], t0, xx)]
    if OPT["stamp"]:
        P += [salu("s_mov_b32", srdD[2], "0x1000000"), salu("s_mov_b32", srdD[3], "0x00020000"),
              valu("v_lshrrev_b32", tid, "6", tid), valu("v_lshlrev_b32", tid, "8", tid),
              salu("s_lshl_b32", sH, "s2", "10", scc_w=True), valu("v_add_u32", tid, sH, tid),
              salu("s_mov_b32", sH, "0")]
    P += stamp(60)
    P += [waitv(("K", 0)), barrier()]
    for f in range(6):
        P += kread(-1, f, 0)
    P += [waitv(("Q", 0, 0), ("Q", 0, 1)), waitl(("F", -1, 0), ("F", -1, 1))]
    P += stamp(61)
    base = add_qk(u, -1, 0)
    for f in range(12):
        k = base + 2 * f + 1
        if f + 6 < 12:
            u.pin[k] += kread(-1, f + 6, 0)
        if f % 2 == 1 and f + 1 < 12:
            u.pin[k].append(waitl(("F", -1, f + 1), ("F", -1, f + 2)))
        if f in (3, 7):
            L = (f + 1) // 4
            u.pin[k].append(waitv(("Q", 0, 2 * L), ("Q", 0, 2 * L + 1)))
    k = u.add_gap(None)
    u.pin[k] += [waitv(("K", 1), ("K", 2), ("V", 0)), barrier()]
    for f in range(6):
        u.pin[k] += kread(0, f, 1)
    it, tl = softmax(0, 0, "PRO")
    u.pin[k] += it + [waitl(("F", 0, 0), ("F", 0, 1))]
    u.pin[k] += stamp(0)
    add_iter(u, 0, 0, "T0p")
    return u


def unit_fin(b):
    u = Unit("FIN")
    g, t = b * 16 + 15, 15
    u.pre.append(label("L_fin"))
    u.pre += stamp_at(15)
    for f in range(12, 18):
        u.pre += vread(g, f, t)
    it, tl = softmax(1, 15, "T15f")
    u.pre += rinv_stream(0) + set_osrd() + it + tl + [waitl(("F", g, 12), ("F", g, 13))]
    base = add_pv(u, g, t)
    for f in range(12, 24):
        k = base + 2 * (f - 12) + 1
        if f + 6 < 24:
            u.pin[k] += vread(g, f + 6, t)
        if f % 2 == 1 and f + 1 < 24:
            u.pin[k].append(waitl(("F", g, f + 1), ("F", g, f + 2)))
    last = u.add_gap(None)
    u.streams.append(Stream(rinv_stream(1), base, base + 3, prio=0.5))
    ep = []
    for e in range(12):
        tt, x = e // 2, e % 2
        ep += epi_tile(e, earliest=min(last, max(base + 4 * tt + 2 + x + 3, base + 4)))
        ep += [ostore(e, 0), ostore(e, 1)]
    st = Stream(ep, base + 4, last, prio=1.0)
    u.streams.append(st)
    u.post += stamp(62)
    u.post += [label("L_end"), I("s_endpgm", "branch")]
    return u


def build(extra):
    cache = {}

    def get(name, fn, first):
        u = fn()
        if name == "FIN":
            ins = u.schedule(verbose=first and VERB, window=1000, budget=24)
        else:
            ins = u.schedule(verbose=first and VERB)
        out = []
        for idx, i in enumerate(ins):
            n = extra.get((name, idx), 0)
            if n:
                out.append(((name, idx, "nop"), nop(n - 1)))
            out.append(((name, idx), i))
        if first:
            cache[name] = out
        return out

    trace = list(get("PRO", unit_pro, True))
    for b in range(3):
        for t in range(1, 15):
            trace += get(f"T{t}", lambda: unit_mid(b, t), b == 0)
        if b < 2:
            trace += get("X", lambda: unit_x(b), b == 0)
    trace += get("FIN", lambda: unit_fin(2), True)
    order = ["PRO"] + [f"T{t}" for t in range(1, 15)] + ["X", "FIN"]
    return [(n, cache[n]) for n in order], trace


VERB = False
extra = {}
for it in range(20):
    static, trace = build(extra)
    hz = hazards([i for _, i in trace])
    if not hz:
        break
    upd = {}
    for j, need, why in hz:
        key = trace[j][0]
        upd[key] = max(upd.get(key, 0), need)
        if OPT.get("showhz"):
            print("; hazard:", key, need, why, file=sys.stderr)
    for k, n in upd.items():
        extra[k] = extra.get(k, 0) + n
else:
    raise SystemExit("hazards did not converge")
if OPT.get("verb"):
    VERB = True
    _so = sys.stdout
    sys.stdout = sys.stderr
    build(extra)
    sys.stdout = _so
    print("; nops inserted:", extra, file=sys.stderr)
W = resolve_waits(trace)
if OPT.get("verb") and "_mismatch" in W:
    print("; wait mismatches:", W["_mismatch"], file=sys.stderr)

out = []
A = out.append
A(open(os.path.join(os.path.dirname(os.path.abspath(__file__)), "header.txt")).read().rstrip())
A(f"; @launch grid=(256,1,1) block=(256,1,1) lds={LDS_BYTES}")
A('.amdgcn_target "amdgcn-amd-amdhsa--gfx950"')
A(".text")
A(f".globl {KNAME}")
A(".p2align 8")
A(f".type {KNAME},@function")
A(f"{KNAME}:")
for name, ins in static:
    A(f"; ---- {name} ----")
    for key, i in ins:
        t = i.text
        if i.kind == "wait":
            l, vv = W[key]
            t = "s_waitcnt " + (f"lgkmcnt({l})" if l is not None else f"vmcnt({vv})")
        A(t if i.kind == "label" else "    " + t)
for name, x, par in TRAMPS:
    A(f"L_tr_{name}:")
    A(f"    s_call_b64 {sRet}, L_rare_{'AB'[x]}{par}")
    A(f"    s_branch L_ret_{name}")
for x in range(2):
    for par in range(2):
        r = rare(x, par)
        hz = hazards(r)
        assert not hz, hz
        for i in r:
            A(i.text if i.kind == "label" else "    " + i.text)
A("L_code_end:")
A("    s_endpgm")
A(f""".section .rodata,"a"
.p2align 6
.amdhsa_kernel {KNAME}
  .amdhsa_next_free_vgpr 512
  .amdhsa_next_free_sgpr 96
  .amdhsa_accum_offset 256
  .amdhsa_group_segment_fixed_size 0
  .amdhsa_kernarg_size 48
  .amdhsa_user_sgpr_count 2
  .amdhsa_user_sgpr_kernarg_segment_ptr 1
  .amdhsa_system_sgpr_workgroup_id_x 1
  .amdhsa_float_denorm_mode_32 3
.end_amdhsa_kernel""")
print("\n".join(out))
```

```python
import re


def rl(f, lo, n=1):
    return [f"{f}{lo + i}" for i in range(n)]


class Reg:
    def __init__(self, f, lo, n=1):
        self.f, self.lo, self.n = f, lo, n

    def __getitem__(self, i):
        if isinstance(i, slice):
            a = i.start or 0
            b = i.stop if i.stop is not None else self.n
            assert 0 <= a < b <= self.n, (a, b, self.n)
            return Reg(self.f, self.lo + a, b - a)
        assert 0 <= i < self.n, (i, self.n)
        return Reg(self.f, self.lo + i, 1)

    def __str__(self):
        if self.n == 1:
            return f"{self.f}{self.lo}"
        return f"{self.f}[{self.lo}:{self.lo + self.n - 1}]"

    def names(self):
        return rl(self.f, self.lo, self.n)


def names(*xs):
    out = []
    for x in xs:
        if isinstance(x, Reg):
            out += x.names()
        elif isinstance(x, str):
            if re.fullmatch(r"[vas]\d+|vcc|scc|m0|exec", x):
                out.append(x)
        elif isinstance(x, (list, tuple)):
            out += names(*x)
    return out


COST = dict(mfma=8, valu=4, trans=8, ds=4, vmem=12, salu=4, wait=4, nop=4, branch=4, barrier=8, label=0)


class I:
    def __init__(self, text, kind, rd=(), wr=(), tag=None, waitl=None, waitv=None, cost=None,
                 srcc=None, ab=None, earliest=None, latest=None, states=1, flags=(), needl=None, needv=None):
        self.text, self.kind = text, kind
        self.rd, self.wr = names(rd), names(wr)
        self.tag, self.waitl, self.waitv = tag, waitl, waitv
        self.cost = COST[kind] if cost is None else cost
        self.srcc = names(srcc) if srcc is not None else []
        self.ab = names(ab) if ab is not None else []
        self.earliest, self.latest = earliest, latest
        self.states = 0 if kind == "label" else states
        self.flags = set(flags)
        self.needl, self.needv = needl, needv

    def __repr__(self):
        return f"<{self.text}>"


def mfma(d, a, b, c):
    cs = str(c) if isinstance(c, Reg) else "0"
    return I(f"v_mfma_f32_32x32x16_bf16 {d}, {a}, {b}, {cs}", "mfma", rd=[a, b] + ([c] if isinstance(c, Reg) else []),
             wr=[d], srcc=[c] if isinstance(c, Reg) else [], ab=[a, b])


def valu(op, d, *src, kind="valu", extra_rd=(), extra_wr=(), **kw):
    ops = ", ".join(str(x) for x in (d,) + src)
    rd = [re.sub(r"^-", "", s) if isinstance(s, str) else s for s in src]
    return I(f"{op} {ops}", kind, rd=list(rd) + list(extra_rd), wr=[d] + list(extra_wr), **kw)


def trans(op, d, s, **kw):
    return valu(op, d, s, kind="trans", **kw)


def salu(op, d, *src, scc_w=False, scc_r=False, **kw):
    ops = ", ".join(str(x) for x in (d,) + src)
    return I(f"{op} {ops}", "salu", rd=list(src) + (["scc"] if scc_r else []), wr=[d] + (["scc"] if scc_w else []), **kw)


def nop(n=0):
    return I(f"s_nop {n}", "nop", states=n + 1, cost=4 * (n + 1))


def label(name):
    return I(f"{name}:", "label")


def waitl(*tags):
    return I("s_waitcnt lgkmcnt(?)", "wait", waitl=list(tags))


def waitv(*tags):
    return I("s_waitcnt vmcnt(?)", "wait", waitv=list(tags))


def barrier():
    return I("s_barrier", "barrier")


class Stream:
    def __init__(self, items, start, end, prio=0):
        self.items, self.start, self.end, self.prio = list(items), start, end, prio
        self.pos = 0
        self.total = sum(i.cost for i in self.items)
        self.done = 0


class Unit:
    def __init__(self, name):
        self.name = name
        self.pre = []
        self.heads = []
        self.pin = []
        self.tail = []
        self.streams = []
        self.post = []
        self.win0 = 0
        self.fixed_budget = False

    def add_gap(self, m):
        self.heads.append(m)
        self.pin.append([])
        self.tail.append([])
        return len(self.heads) - 1

    def schedule(self, budget=24, window=24, verbose=False):
        n = len(self.heads)
        fixed = [sum(i.cost for i in self.pin[k]) + sum(i.cost for i in self.tail[k]) for k in range(n)]
        target = [budget] * n
        demand = [float(f) for f in fixed]
        for s in self.streams:
            ln = s.end - s.start + 1
            for k in range(s.start, s.end + 1):
                demand[k] += s.total / ln
        for w0 in range(self.win0, n, window):
            if self.fixed_budget:
                break
            w1 = min(n, w0 + window)
            avg = sum(demand[w0:w1]) / (w1 - w0)
            t = budget
            while t < avg + 1.0:
                t += 4
            for k in range(w0, w1):
                target[k] = t
        free = [max(0, target[k] - fixed[k]) for k in range(n)]
        out = list(self.pre)
        used = []
        for k in range(n):
            if self.heads[k] is not None:
                out.append(self.heads[k])
            out += self.pin[k]
            rem = free[k]
            u = fixed[k]
            while True:
                best, bestlag, forced = None, None, False
                for s in self.streams:
                    if s.pos >= len(s.items) or k < s.start:
                        continue
                    it = s.items[s.pos]
                    if it.earliest is not None and k < it.earliest:
                        continue
                    dl = min([x.latest for x in s.items[s.pos:] if x.latest is not None] + [s.end])
                    f = dl <= k
                    cap_tot = sum(free[s.start:s.end + 1]) or 1
                    cap_el = sum(free[s.start:min(k, s.end) + 1])
                    lag = cap_el / cap_tot - s.done / s.total + s.prio
                    if f:
                        lag += 100
                    elif it.cost > rem or (lag - s.prio <= -0.02 and not self.fixed_budget):
                        continue
                    if best is None or lag > bestlag:
                        best, bestlag, forced = s, lag, f
                if best is None:
                    break
                it = best.items[best.pos]
                best.pos += 1
                best.done += it.cost
                rem -= it.cost
                u += it.cost
                out.append(it)
            out += self.tail[k]
            used.append(u)
        for s in self.streams:
            assert s.pos == len(s.items), (self.name, "stream not drained", s.items[s.pos])
        out += self.post
        self.used = used
        if verbose:
            est = sum(max(32, 8 + u) if self.heads[k] is not None else u for k, u in enumerate(used))
        return out


def resolve_waits(trace):
    res = {}
    ds_idx, vm_idx = {}, {}
    nds = nvm = 0
    for key, ins in trace:
        if ins.kind == "ds":
            nds += 1
            if ins.tag is not None:
                ds_idx[ins.tag] = nds
        elif ins.kind == "vmem":
            nvm += 1
            if ins.tag is not None:
                vm_idx[ins.tag] = nvm
        elif ins.kind == "wait":
            l = v = None
            if ins.waitl is not None:
                need = max(ds_idx[t] for t in ins.waitl)
                l = min(15, nds - need)
            if ins.waitv is not None:
                need = max(vm_idx[t] for t in ins.waitv)
                v = min(63, nvm - need)
            if key in res:
                pl, pv = res[key]
                if (pl, pv) != (l, v):
                    res.setdefault("_mismatch", []).append((key, (pl, pv), (l, v)))
                l = None if l is None else min(l, pl)
                v = None if v is None else min(v, pv)
            res[key] = (l, v)
    return res


def is_valu(i):
    return i.kind in ("valu", "trans")


def hazards(seq):
    out = []
    n = len(seq)
    for j in range(n):
        c = seq[j]
        if c.kind in ("label", "nop", "wait", "barrier"):
            continue
        crd, cwr = set(c.rd), set(c.wr)
        dist = 0
        i = j - 1
        while i >= 0 and dist < 20:
            p = seq[i]
            pw = set(p.wr)
            need = 0
            why = ""
            if is_valu(p):
                if c.kind == "mfma" and pw & crd:
                    need, why = 2, "valu->mfma"
                if p.kind == "trans" and c.kind == "valu" and pw & crd:
                    need, why = max(need, 1), "trans->valu"
                if "permlane" in c.text and pw & (crd | cwr):
                    need, why = max(need, 2), "valu->permlane"
                if ("readfirstlane" in c.text or "readlane" in c.text) and pw & crd:
                    need, why = max(need, 1), "valu->readlane"
                sw = {x for x in pw if x[0] == "s" or x == "vcc"}
                if sw & crd:
                    if is_valu(c):
                        need, why = max(need, 2), "valu sgpr->valu"
                    elif c.kind == "vmem":
                        need, why = max(need, 5), "valu sgpr->vmem"
            elif p.kind == "mfma":
                if c.kind == "mfma":
                    if pw & set(c.ab):
                        need, why = 12, "mfma D->AB"
                    elif pw & set(c.srcc) and set(c.srcc) != pw:
                        need, why = 10, "mfma D->C partial"
                    elif pw & cwr and not (set(c.srcc) == pw):
                        need = 0
                elif is_valu(c) or c.kind in ("ds", "vmem"):
                    if pw & (crd | cwr):
                        need, why = 12, "mfma D->other"
                    if is_valu(c) and set(p.srcc) & cwr:
                        need, why = max(need, 7), "mfma C WAR"
            elif p.kind == "salu":
                if "m0" in pw and c.kind == "vmem" and "m0" in crd:
                    need, why = 1, "m0->dma"
            elif p.kind == "vmem" and "store" in p.text:
                if set(p.flags) & {"wide"} and (set(p.rd) & cwr):
                    need, why = 2, "store data WAR"
            if need > dist:
                out.append((j, need - dist, why + f" [{p.text}] -> [{c.text}]"))
            dist += p.states
            i -= 1
    return out


def check_coverage(trace, W):
    ds_idx, vm_idx = {}, {}
    nds = nvm = 0
    dsdone = vmdone = 0
    bad = []
    for key, ins in trace:
        for t in (ins.needl or []):
            if t in ds_idx and ds_idx[t] > dsdone:
                bad.append((key, ins.text, "lgkm", t))
            if t not in ds_idx and not (isinstance(t, tuple) and t[1] < 0):
                bad.append((key, ins.text, "lgkm-missing", t))
        for t in (ins.needv or []):
            if t in vm_idx and vm_idx[t] > vmdone:
                bad.append((key, ins.text, "vm", t))
        if ins.kind == "ds":
            nds += 1
            if ins.tag is not None:
                ds_idx[ins.tag] = nds
        elif ins.kind == "vmem":
            nvm += 1
            if ins.tag is not None:
                vm_idx[ins.tag] = nvm
        elif ins.kind == "wait":
            l, v = W[key]
            if l is not None:
                dsdone = max(dsdone, nds - l)
            if v is not None:
                vmdone = max(vmdone, nvm - v)
        elif ins.text.startswith("s_waitcnt lgkmcnt(0)"):
            dsdone = nds
    return bad
```

```python
import sys, struct, math, os
sys.path.insert(0, os.path.dirname(os.path.abspath(__file__)))
from asmlib import *

KNAME = "standalone__gqa_softmax__near_ridge_kernel"
OPT = dict(
    sgaps=[[10, 14, 18], [36, 40, 44]],
    rgaps=[[38, 42, 46], [20, 22, 24]],
    oa_slots=[3, 4, 5, 6], ob_slots=[9, 10, 11, 12], qa_slots=[13, 14, 15, 16], qb_slots=[21, 22, 23, 24],
    obw={3: [8, 12, 16, 20, 30, 36, 40, 44], 4: [8, 10, 14, 18]},
    qar_iter=10,
    kgaps=[2, 4, 6], vgaps=[24, 28, 32],
    bar_gap=46,
    thr=4096.0,
    stamp=0,
    codewarm=1,
    kv_nt=" nt", q_nt=" nt", o_nt=" nt",
)
for a in sys.argv[1:]:
    if "=" in a:
        k, v = a.split("=", 1)
        OPT[k] = eval(v)

TILE = 12288
KSLOT = [0, 1, 2, 3] * 4
VSLOT = [0, 1, 2, 3] * 4
KBASE, VBASE, STAGE, SPARE = 0, 4 * TILE, 8 * TILE, 12 * TILE
LDS_BYTES = 13 * TILE
KD, VD = 4, 3


def f2u(x):
    return struct.unpack("<I", struct.pack("<f", x))[0]


v = lambda lo, n=1: Reg("v", lo, n)
a = lambda lo, n=1: Reg("a", lo, n)
s = lambda lo, n=1: Reg("s", lo, n)

vLin = [v(1), v(27)]
vK = [v(2 + i) for i in range(4)]
vV = [v(6), v(7)]
vDK = [v(8 + i) for i in range(3)]
vDV = [v(11 + i) for i in range(3)]
negmc = [v(14), v(15)]
lsum = [v(16), v(17)]
ts = v(18)
rinv = [v(19), v(20)]
X = [v(21 + i) for i in range(6)]
E = [v(28 + i) for i in range(4)]
vS = [v(32 + i) for i in range(4)]
vDX = [v(36 + i) for i in range(3)]
ET = [v(39), E[2], E[3]]
PA = [v(40, 8), v(48, 8)]
PB = v(56, 8)
SA = v(64, 16)
SB = [v(80, 16), v(96, 16)]
STG = v(208, 48)
Qc = a(96, 96)
FR = [a(192 + 4 * i, 4) for i in range(6)]
SQ = [a(216 + 4 * i, 4) for i in range(8)]
OT = []
for _t in range(6):
    OT += [v(112 + 16 * _t, 16), a(16 * _t, 16)]

ptrQ, ptrK, ptrV, ptrO = s(4, 2), s(6, 2), s(8, 2), s(10, 2)
srdK, srdV, srdQ, srdO = s(12, 4), s(16, 4), s(20, 4), s(24, 4)
sBG, sH, sKO, sQO, sQOcur, sNrec, sTrip, sC, sNegC, sThr, sMagic, sW = [s(28 + i) for i in range(12)]
sRet = s(40, 2)
m0K = [s(42 + i) for i in range(4)]
sStage, sQB = s(46), s(47)
m0V = [s(48 + i) for i in range(4)]
sT = ["0"] + [s(51 + t) for t in range(1, 16)]
srdD = s(68, 4)
sStamp = s(72, 2)
sPC = s(76, 2)
sG = [[s(80 + 4 * x + j) for j in range(4)] for x in range(2)]
sM = [s(88 + j) for j in range(4)]
sTmp = s(92)

SCALE_C = math.log2(math.e) / math.sqrt(192.0)


def Qreg(base, ks, x):
    return base[ks * 8 + x * 4: ks * 8 + x * 4 + 4]


def dma(srd, voff, soff, c, tag):
    off = f" offset:{c * 1024}" if c else ""
    return I(f"buffer_load_dwordx4 {voff}, {srd}, {soff} offen{off}{OPT['kv_nt']} lds", "vmem",
             rd=[voff, srd, soff, "m0"], tag=tag)


def setm0(x):
    return salu("s_mov_b32", "m0", x)


def gvoff(jj, c):
    return vDX[c] if jj & 1 else vDK[c]


def qdma(x, jj, c, tag, need=None):
    off = f" offset:{c * 1024}" if c else ""
    vo = gvoff(jj, c)
    return I(f"buffer_load_dwordx4 {vo}, {srdQ}, {sG[x][jj]} offen{off}{OPT['q_nt']} lds", "vmem",
             rd=[vo, srdQ, sG[x][jj], "m0"], tag=tag, needl=need)


def qread(dst, ks, addr, tag, need=None):
    off = (ks // 4) * 128
    return I(f"ds_read_b128 {dst}, {addr[ks % 4]} offset:{off}", "ds", rd=[addr[ks % 4]], wr=[dst], tag=tag, needv=need)


def owrite(src, ch):
    off = (ch // 4) * 128
    return I(f"ds_write_b128 {vS[ch % 4]}, {src} offset:{off}", "ds", rd=[vS[ch % 4], src], cost=24)


def oread(dst, jj, c, tag):
    return I(f"ds_read_b128 {dst}, {vLin[jj & 1]} offset:{jj * 3072 + c * 1024}", "ds", rd=[vLin[jj & 1]], wr=[dst], tag=tag)


def ostore(src, x, jj, c, need):
    off = f" offset:{c * 1024}" if c else ""
    vo = gvoff(jj, c)
    return I(f"buffer_store_dwordx4 {src}, {vo}, {srdO}, {sG[x][jj]} offen{off}{OPT['o_nt']}", "vmem",
             rd=[src, vo, srdO, sG[x][jj]], flags=["wide"], cost=20, needl=need)


def kread(g, f, tile):
    ks = f
    off = KBASE + KSLOT[tile % 16] * TILE + (ks // 4) * 128
    d = FR[f % 6]
    return [I(f"ds_read_b128 {d}, {vK[ks % 4]} offset:{off}", "ds", rd=[vK[ks % 4]], wr=[d], tag=("F", g, f))]


def vread(g, f, tile):
    idx = f - 12
    t, st = idx // 2, idx % 2
    d = FR[f % 6]
    out = []
    for jj in range(2):
        off = VSLOT[tile % 16] * TILE + (16 * st + 8 * jj) * 384 + t * 64
        out.append(I(f"ds_read_b64_tr_b16 {d[2 * jj:2 * jj + 2]}, {vV[t % 2]} offset:{off}", "ds", rd=[vV[t % 2]],
                     wr=[d[2 * jj:2 * jj + 2]], tag=("F", g, f) if jj == 1 else None))
    return out


def max_tree(S, u, w):
    return [
        valu("v_max3_f32", u, S[0], S[1], S[2]),
        valu("v_max3_f32", w, S[3], S[4], S[5]),
        valu("v_max3_f32", u, u, S[6], S[7]),
        valu("v_max3_f32", w, w, S[8], S[9]),
        valu("v_max3_f32", u, u, S[10], S[11]),
        valu("v_max3_f32", w, w, S[12], S[13]),
        valu("v_max3_f32", u, u, S[14], S[15]),
        valu("v_max_f32", u, u, w),
    ]


def swap(u, w):
    return I(f"v_permlane32_swap_b32 {u}, {w}", "valu", rd=[u, w], wr=[u, w])


def max_init(x, S):
    u, w = E[0], E[1]
    return max_tree(S, u, w) + [
        valu("v_mov_b32", w, u),
        nop(1),
        swap(u, w),
        valu("v_max_f32", u, u, w),
        valu("v_mul_f32", negmc[x], sNegC, u),
    ]


def exp_stream(x, S, P, acc):
    out = []
    T = lambda i: X[i % 6]
    for i in range(16 + 3):
        if i < 16:
            out.append(valu("v_fma_f32", T(i), S[i], sC, negmc[x]))
        if 0 <= i - 1 < 16:
            out.append(trans("v_exp_f32", T(i - 1), T(i - 1)))
        j = i - 3
        if 0 <= j < 16:
            if j == 1:
                out.append(valu("v_add_f32", acc, T(0), T(1)))
            elif j >= 2:
                out.append(valu("v_add_f32", acc, acc, T(j)))
            if j % 2 == 1:
                out.append(valu("v_cvt_pk_bf16_f32", P[j // 2], T(j - 1), T(j)))
    return out


TRAMPS = []


def softmax(x, tile, site):
    par = tile % 2
    S = SA if x == 0 else SB[par]
    P = PA[par] if x == 0 else PB
    if tile == 0:
        return max_init(x, S) + exp_stream(x, S, P, lsum[x]), []
    items = exp_stream(x, S, P, ts)
    name = f"{site}_{'AB'[x]}"
    if (name, x, par) not in TRAMPS:
        TRAMPS.append((name, x, par))
    items.append(I(f"v_cmp_nge_f32 vcc, {sThr}, {ts}", "valu", rd=[sThr, ts], wr=["vcc"]))
    tail = [
        I(f"s_cbranch_vccnz L_tr_{name}", "branch", rd=["vcc"]),
        label(f"L_ret_{name}"),
        valu("v_add_f32", lsum[x], lsum[x], ts),
    ]
    return items, tail


def rinv_stream(x):
    u = E[2]
    return [
        valu("v_mov_b32", u, lsum[x]),
        nop(1),
        swap(u, lsum[x]),
        valu("v_add_f32", u, u, lsum[x]),
        trans("v_rcp_f32", rinv[x], u),
    ]


def epi_tile(e, earliest=None, latest=None):
    t, x = e // 2, e % 2
    O = OT[e]
    out = []
    if O.f == "a":
        D = STG[t * 8: t * 8 + 8]
        for i in range(8 + 2):
            if i < 8:
                out.append(valu("v_accvgpr_read_b32", D[i], O[2 * i], latest=latest))
                out.append(valu("v_accvgpr_read_b32", ET[i % 3], O[2 * i + 1], latest=latest))
            j = i - 2
            if 0 <= j < 8:
                out.append(valu("v_cvt_pk_bf16_f32", D[j], D[j], ET[j % 3]))
            j = i - 1
            if 0 <= j < 8:
                out.append(valu("v_mul_f32", D[j], D[j], rinv[x]))
                out.append(valu("v_mul_f32", ET[j % 3], ET[j % 3], rinv[x]))
    else:
        for i in range(16 + 3):
            if i < 16:
                out.append(valu("v_mul_f32", O[i], O[i], rinv[x], latest=latest))
            j = i - 2
            if 0 <= j < 16 and j % 2 == 1:
                out.append(valu("v_cvt_pk_bf16_f32", O[j // 2], O[j - 1], O[j], latest=latest))
            if i == 11 or i == 18:
                jj = 0 if i == 11 else 1
                w = owrite(O[4 * jj: 4 * jj + 4], 2 * t + jj)
                w.latest = latest
                out.append(w)
    out[0].earliest = earliest
    return out


def rare(x, par):
    S = SA if x == 0 else SB[par]
    P = PA[par] if x == 0 else PB
    u, w, f = X[0], X[1], X[5]
    o = [label(f"L_rare_{'AB'[x]}{par}"), nop(15)]
    o += max_tree(S, u, w)
    o += [valu("v_fma_f32", u, u, sC, negmc[x]), valu("v_mov_b32", w, u), nop(1), swap(u, w),
          valu("v_max3_f32", u, u, w, "0"),
          valu("v_sub_f32", negmc[x], negmc[x], u),
          trans("v_exp_f32", f, f"-{u}", extra_rd=[u]), nop(0),
          valu("v_mul_f32", lsum[x], lsum[x], f)]
    for t in range(6):
        O = OT[2 * t + x]
        for i in range(16):
            if O.f == "a":
                tt = X[i % 4]
                o += [valu("v_accvgpr_read_b32", tt, O[i]), valu("v_mul_f32", tt, tt, f),
                      valu("v_accvgpr_write_b32", O[i], tt)]
            else:
                o.append(valu("v_mul_f32", O[i], O[i], f))
    o += exp_stream(x, S, P, ts)
    o += [nop(3), I(f"s_setpc_b64 {sRet}", "branch", rd=[sRet])]
    return o


def add_qk(u, g, tile, qwait=None):
    base = len(u.heads)
    Sb = SB[tile % 2]
    for ks in range(12):
        fr = FR[ks % 6]
        u.add_gap(mfma(SA, fr, Qreg(Qc, ks, 0), SA if ks else 0))
        m = mfma(Sb, fr, Qreg(Qc, ks, 1), Sb if ks else 0)
        if tile == 0:
            m.needl = [("QB", (g + 1) // 16, ks)]
        u.add_gap(m)
    return base


def add_pv(u, g, t):
    base = len(u.heads)
    for tt in range(6):
        for st in range(2):
            fr = FR[(12 + tt * 2 + st) % 6]
            z = (t == 0 and st == 0)
            oa, ob = OT[2 * tt], OT[2 * tt + 1]
            u.add_gap(mfma(oa, fr, PA[t % 2][4 * st:4 * st + 4], 0 if z else oa))
            u.add_gap(mfma(ob, fr, PB[4 * st:4 * st + 4], 0 if z else ob))
    return base


def frag_read(g, t, f):
    if f < 12:
        return kread(g, f, t + 1)
    if f < 24:
        return vread(g, f, t)
    return kread(g + 1, f - 24, t + 2)


def ftag(g, f):
    return ("F", g, f) if f < 24 else ("F", g + 1, f - 24)


def stamp(idx, real=False):
    if not OPT["stamp"]:
        return []
    if OPT["stamp"] == 2 and idx not in (0, 1, 15, 16, 17, 18, 19, 56, 60, 61):
        return []
    op = "s_memrealtime" if real else "s_memtime"
    return [I(f"{op} {sStamp}", "salu", wr=[sStamp]), I("s_waitcnt lgkmcnt(0)", "salu"),
            valu("v_mov_b32", E[3], sStamp[0]),
            I(f"buffer_store_dword {E[3]}, v0, {srdD}, {sH} offen offset:{idx * 4}", "vmem", rd=[E[3], "v0", srdD])]


def add_iter(u, b, t, site):
    g = b * 16 + t
    base = add_qk(u, g, (t + 1) % 16)
    add_pv(u, g, t)
    for f in range(24):
        k = base + 2 * f + 1
        u.pin[k] += frag_read(g, t, f + 6)
        if f % 2 == 1:
            u.pin[k].append(waitl(ftag(g, f + 1), ftag(g, f + 2)))
    tk, tv = (t + KD) % 16, (t + VD) % 16
    u.tail[base + OPT["kgaps"][0] - 1].append(setm0(m0K[KSLOT[tk]]))
    for c, k in enumerate(OPT["kgaps"]):
        u.pin[base + k].append(dma(srdK, vDK[c], sT[tk], c, ("K", g + KD)))
    u.tail[base + OPT["vgaps"][0] - 1].append(setm0(m0V[VSLOT[tv]]))
    for c, k in enumerate(OPT["vgaps"]):
        u.pin[base + k].append(dma(srdV, vDV[c], sT[tv], c, ("V", g + VD)))
    def drain_reads(n, gaps):
        for x, key in ((0, "oa_slots"), (1, "ob_slots")):
            if n in OPT[key]:
                jj = OPT[key].index(n)
                for c, k in enumerate(gaps):
                    u.pin[base + k].insert(0, oread(SQ[(jj * 3 + c) % 8], jj, c, ("OR", b, x, jj, c)))
    drain_reads(2 * t + 1, OPT["rgaps"][1])
    drain_reads(2 * t + 2, OPT["rgaps"][0])
    for half in range(2):
        n = 2 * t + half
        gaps = OPT["sgaps"][half]
        for x, key in ((0, "oa_slots"), (1, "ob_slots")):
            if n in OPT[key]:
                jj = OPT[key].index(n)
                for c, k in enumerate(gaps):
                    u.pin[base + k].append(ostore(SQ[(jj * 3 + c) % 8], x, jj, c, [("OR", b, x, jj, c)]))
        for x, key in ((0, "qa_slots"), (1, "qb_slots")):
            if n in OPT[key]:
                jj = OPT[key].index(n)
                u.tail[base + gaps[0] - 1].append(setm0(sM[jj]))
                need = [("OR", b, 1, 3, 2)] if x == 0 else [("QA", b + 1, 11)]
                for c, k in enumerate(gaps):
                    u.pin[base + k].append(qdma(x, jj, c, ("QD", b + 1, x), need))
    if t in OPT["obw"]:
        n0 = sum(len(OPT["obw"][tt]) for tt in OPT["obw"] if tt < t)
        for i, k in enumerate(OPT["obw"][t]):
            ch = n0 + i
            u.pin[base + k].insert(0, owrite(STG[ch * 4: ch * 4 + 4], ch))
    if t == OPT["qar_iter"]:
        u.pin[base + 0].append(waitv(("QD", b + 1, 0)))
        for ks in range(12):
            u.pin[base + 2 * ks].append(qread(STG[ks * 4: ks * 4 + 4], ks, vS, ("QA", b + 1, ks), [("QD", b + 1, 0)]))
    if t == 14:
        u.pin[base + 24].append(waitv(("QD", b + 1, 1)))
        for ks in range(12):
            u.pin[base + 24 + 2 * ks].append(qread(Qreg(Qc, ks, 1), ks, vS, ("QB", b + 1, ks), [("QD", b + 1, 1)]))
    u.pin[base + OPT["bar_gap"]] += [waitv(("K", g + 3), ("V", g + 1)), barrier()]
    it, tl = softmax(1, t, site)
    u.streams.append(Stream(it, base + 0, base + 23, prio=0.05))
    u.tail[base + 23] += tl
    it, tl = softmax(0, (t + 1) % 16, site)
    u.streams.append(Stream(it, base + 25, base + 47, prio=0.05))
    u.tail[base + 47] += tl
    if t == 1:
        sl = [salu("s_mov_b32", sQOcur, sQO),
              salu("s_add_u32", sBG, sBG, "32", scc_w=True),
              salu("s_mul_hi_u32", sKO, sBG, sMagic),
              salu("s_mul_i32", sKO, sKO, "196608"),
              salu("s_mul_i32", sQO, sBG, "98304"),
              I(f"s_cmp_lt_u32 {sTrip}, 2", "salu", rd=[sTrip], wr=["scc"]),
              salu("s_cselect_b32", sNrec, "196608", "0", scc_r=True),
              salu("s_cselect_b32", srdQ[2], "98304", "0", scc_r=True),
              salu("s_add_u32", srdQ[0], ptrQ[0], sQO, scc_w=True),
              salu("s_addc_u32", srdQ[1], ptrQ[1], "0", scc_w=True, scc_r=True)]
        u.streams.append(Stream(sl, base + 12, base + 40))
    if t == 15 - KD:
        sl = [salu("s_add_u32", srdK[0], ptrK[0], sKO, scc_w=True),
              salu("s_addc_u32", srdK[1], ptrK[1], "0", scc_w=True, scc_r=True),
              salu("s_mov_b32", srdK[2], sNrec)]
        u.streams.append(Stream(sl, base + OPT["kgaps"][-1] + 1, base + 40))
    if t == 15 - VD:
        sl = [salu("s_add_u32", srdV[0], ptrV[0], sKO, scc_w=True),
              salu("s_addc_u32", srdV[1], ptrV[1], "0", scc_w=True, scc_r=True),
              salu("s_mov_b32", srdV[2], sNrec)]
        u.streams.append(Stream(sl, base + OPT["vgaps"][-1] + 1, base + 46))
    return base


def qcopy(ks_list, earliest_fn, latest_fn):
    out = []
    for ks in ks_list:
        for i in range(4):
            out.append(valu("v_accvgpr_write_b32", Qreg(Qc, ks, 0)[i], STG[ks * 4 + i],
                            earliest=earliest_fn(ks, 0), latest=latest_fn(ks, 0)))
    return out


def set_osrd():
    return [salu("s_add_u32", srdO[0], ptrO[0], sQOcur, scc_w=True),
            salu("s_addc_u32", srdO[1], ptrO[1], "0", scc_w=True, scc_r=True),
            salu("s_mov_b32", srdO[2], "98304")]


QC_SPLIT = 8


def unit_mid(b, t):
    u = Unit(f"T{t}")
    if t == 1:
        u.pre.append(label("L_loop"))
    u.pre += stamp_at(t)
    base = add_iter(u, b, t, f"T{t}")
    if t == 14:
        u.streams.append(Stream(qcopy(range(QC_SPLIT), lambda ks, x: base + 2 * ks + x, lambda ks, x: None),
                                base + 1, base + 47))
        u.post += [I(f"s_cmp_eq_u32 {sTrip}, 2", "salu", rd=[sTrip], wr=["scc"]),
                   I("s_cbranch_scc1 L_fin", "branch", rd=["scc"])]
    return u


def stamp_at(t):
    return stamp(t)


def unit_x(b):
    u = Unit("X")
    u.pre += stamp_at(15)
    b15 = add_iter(u, b, 15, "T15")
    b0 = add_iter(u, b + 1, 0, "T0")
    u.streams.append(Stream(qcopy(range(QC_SPLIT, 12), lambda ks, x: None, lambda ks, x: b15 + 2 * ks + x - 2),
                            b15 + 0, b15 + 20))
    u.streams.append(Stream(rinv_stream(0), b15 + 2, b15 + 20))
    u.streams.append(Stream(rinv_stream(1), b15 + 24, b15 + 27, prio=0.5))
    ep = []
    for e in range(12):
        tt, x = e // 2, e % 2
        ep += epi_tile(e, earliest=max(b15 + 24 + 4 * tt + 2 + x + 3, b15 + 28), latest=b0 + 24 + 4 * tt + x - 1)
    u.streams.append(Stream(ep, b15 + 29, b0 + 44))
    sl = set_osrd() + [salu("s_add_u32", sTrip, sTrip, "1", scc_w=True)]
    if OPT["stamp"]:
        sl.append(salu("s_add_u32", sH, sH, "64", scc_w=True))
    u.streams.append(Stream(sl, b0 + 2, b0 + 40))
    u.post.append(I("s_branch L_loop", "branch"))
    return u


def unit_pro():
    u = Unit("PRO")
    P = u.pre
    tid, lane, q32, h, t0, t1, t2 = v(0), X[0], X[1], X[2], X[3], X[4], X[5]
    sP = sNrec
    P += [I("s_cmp_ge_u32 s2, 256", "salu", rd=["s2"], wr=["scc"]),
          I("s_cbranch_scc1 L_end", "branch", rd=["scc"]),
          I("s_load_dwordx4 s[4:7], s[0:1], 0", "salu", wr=[s(4, 4)]),
          I("s_load_dwordx4 s[8:11], s[0:1], 16", "salu", wr=[s(8, 4)])]
    if OPT["stamp"]:
        P += [I(f"s_load_dwordx2 {srdD[0:2]}, s[0:1], 40", "salu"), I(f"s_memrealtime {s(94, 2)}", "salu")]
    P += [valu("v_lshrrev_b32", t0, "6", tid), valu("v_and_b32", lane, "63", tid),
          I(f"v_readfirstlane_b32 {sW}, {t0}", "valu", rd=[t0], wr=[sW]),
          valu("v_lshlrev_b32", t1, "4", lane)]
    P += [salu("s_and_b32", sBG, "s2", "7", scc_w=True),
          salu("s_mul_i32", sBG, sBG, "96"),
          salu("s_lshr_b32", sH, "s2", "3", scc_w=True),
          salu("s_add_u32", sBG, sBG, sH, scc_w=True),
          salu("s_mov_b32", sMagic, "0x55555556"),
          salu("s_mul_hi_u32", sKO, sBG, sMagic),
          salu("s_mul_i32", sKO, sKO, "196608"),
          salu("s_mul_i32", sQO, sBG, "98304")]
    P += [salu("s_and_b32", sP, sW, "1", scc_w=True), salu("s_mul_i32", sP, sP, "3072"),
          salu("s_mov_b32", sQB, str(VBASE + 2 * TILE)),
          I(f"s_cmp_eq_u32 {sW}, 0", "salu", rd=[sW], wr=["scc"]),
          salu("s_cselect_b32", sQB, str(KBASE + 3 * TILE), sQB, scc_r=True),
          I(f"s_cmp_eq_u32 {sW}, 2", "salu", rd=[sW], wr=["scc"]),
          salu("s_cselect_b32", sQB, str(VBASE + 3 * TILE), sQB, scc_r=True),
          I(f"s_cmp_eq_u32 {sW}, 3", "salu", rd=[sW], wr=["scc"]),
          salu("s_cselect_b32", sQB, str(SPARE), sQB, scc_r=True),
          salu("s_mul_i32", sW, sW, "3072")]
    for c in range(3):
        P += [valu("v_add_u32", t0, sW, t1) if c == 0 else valu("v_add_u32", t0, "1024", t0),
              valu("v_lshrrev_b32", t2, "7", t0),
              valu("v_mul_u32_u24", t2, "171", t2),
              valu("v_lshrrev_b32", t2, "10", t2),
              valu("v_and_b32", vDK[c], "7", t2),
              valu("v_lshlrev_b32", vDK[c], "4", vDK[c]),
              valu("v_xor_b32", vDK[c], vDK[c], t0),
              valu("v_and_b32", vDV[c], "1", t2),
              valu("v_lshlrev_b32", vDV[c], "6", vDV[c]),
              valu("v_xor_b32", vDV[c], vDV[c], t0)]
        if c:
            P += [valu("v_subrev_u32", vDK[c], str(c * 1024), vDK[c]),
                  valu("v_subrev_u32", vDV[c], str(c * 1024), vDV[c])]
        P.append(valu("v_xor_b32", vDX[c], "64", vDK[c]))
    P += [salu("s_lshl_b32", sStage, sW, "2", scc_w=True),
          salu("s_add_u32", sStage, sStage, str(STAGE), scc_w=True),
          salu("s_mul_i32", sH, sW, "7")]
    for jj in range(4):
        op = "s_sub_u32" if jj & 1 else "s_add_u32"
        P += [salu(op, sTmp, str(jj * 3072), sP, scc_w=True),
              salu("s_add_u32", sM[jj], sStage, sTmp, scc_w=True),
              salu("s_add_u32", sG[0][jj], sH, sTmp, scc_w=True),
              salu("s_add_u32", sG[1][jj], sG[0][jj], str(TILE), scc_w=True)]
    P += [salu("s_sub_u32", sTmp, sQB, sStage, scc_w=True)]
    for i in range(4):
        P.append(salu("s_add_u32", m0K[i], sW, str(KBASE + i * TILE), scc_w=True))
    P += [I("s_waitcnt lgkmcnt(0)", "salu")]
    for srd, ptr, off, n in ((srdK, ptrK, sKO, 196608), (srdQ, ptrQ, sQO, 98304), (srdV, ptrV, sKO, 196608)):
        P += [salu("s_add_u32", srd[0], ptr[0], off, scc_w=True),
              salu("s_addc_u32", srd[1], ptr[1], "0", scc_w=True, scc_r=True),
              salu("s_mov_b32", srd[2], str(n)), salu("s_mov_b32", srd[3], "0x00020000")]

    def ktile(t):
        return [setm0(m0K[KSLOT[t]]), nop(0)] + [dma(srdK, vDK[c], sT[t], c, ("K", t)) for c in range(3)]

    def vtile(t):
        return [setm0(m0V[VSLOT[t]]), nop(0)] + [dma(srdV, vDV[c], sT[t], c, ("V", t)) for c in range(3)]

    P += ktile(0)
    for jj in range(4):
        P += [setm0(sM[jj]), nop(0)] + [qdma(0, jj, c, ("QD", 0, 0)) for c in range(3)]
    for jj in range(4):
        P += [salu("s_add_u32", "m0", sM[jj], sTmp, scc_w=True), nop(0)] + [qdma(1, jj, c, ("QD", 0, 1)) for c in range(3)]
    for i in range(4):
        P.append(salu("s_add_u32", m0V[i], sW, str(VBASE + i * TILE), scc_w=True))
    for t in range(1, 16):
        P.append(salu("s_mov_b32", sT[t], str(t * TILE)))
    P += ktile(1) + vtile(0) + ktile(2)
    if OPT["codewarm"]:
        P += [I(f"s_getpc_b64 {sPC}", "salu", wr=[sPC]),
              label("L_pc"),
              I(f"s_sub_u32 {sPC[0]}, {sPC[0]}, L_pc-{KNAME}", "salu", rd=[sPC], wr=[sPC, "scc"]),
              I(f"s_subb_u32 {sPC[1]}, {sPC[1]}, 0", "salu", rd=[sPC, "scc"], wr=[sPC, "scc"]),
              salu("s_lshr_b32", sH, "s2", "3", scc_w=True),
              salu("s_lshl_b32", sH, sH, "11", scc_w=True),
              valu("v_lshlrev_b32", t2, "3", tid),
              valu("v_add_u32", t2, sH, t2),
              I(f"v_min_u32 {t2}, L_code_end-{KNAME}-8, {t2}", "valu", rd=[t2], wr=[t2]),
              I(f"global_load_dwordx2 {SQ[7][0:2]}, {t2}, {sPC}", "vmem", rd=[t2, sPC], wr=[SQ[7][0:2]])]
    P += vtile(1)
    P += [salu("s_mov_b32", srdO[0], ptrO[0]), salu("s_mov_b32", srdO[1], ptrO[1]),
          salu("s_mov_b32", srdO[2], "0"), salu("s_mov_b32", srdO[3], "0x00020000"),
          salu("s_mov_b32", sTrip, "0"),
          salu("s_mov_b32", sC, hex(f2u(SCALE_C))), salu("s_mov_b32", sNegC, hex(f2u(-SCALE_C))),
          salu("s_mov_b32", sThr, hex(f2u(OPT["thr"])))]
    P += [valu("v_add_u32", t1, sStage, t1), valu("v_add_u32", vLin[0], sP, t1), valu("v_subrev_u32", vLin[1], sP, t1)]
    P += [valu("v_and_b32", q32, "31", lane), valu("v_lshrrev_b32", h, "5", lane),
          valu("v_mul_u32_u24", t0, "384", q32)]
    P += [valu("v_lshrrev_b32", t1, "1", q32), valu("v_and_b32", t1, "7", t1), valu("v_xor_b32", t1, t1, h)]
    for i in range(4):
        P += [valu("v_xor_b32", t2, str(2 * i), t1), valu("v_lshlrev_b32", t2, "4", t2),
              valu("v_add_u32", vK[i], t0, t2), valu("v_add_u32", vS[i], sStage, vK[i]),
              valu("v_add_u32", STG[i], sQB, vK[i])]
    r, g_, xx = q32, t1, t2
    P += [valu("v_bfe_u32", r, lane, "2", "2"),
          valu("v_lshl_add_u32", t0, h, "2", r),
          valu("v_mul_u32_u24", t0, "384", t0),
          valu("v_bfe_u32", g_, lane, "4", "1"), valu("v_lshlrev_b32", g_, "5", g_),
          valu("v_add_u32", t0, t0, g_),
          valu("v_and_b32", g_, "1", lane), valu("v_lshlrev_b32", g_, "4", g_),
          valu("v_add_u32", t0, t0, g_),
          valu("v_bfe_u32", g_, lane, "1", "1"), valu("v_lshlrev_b32", g_, "3", g_),
          valu("v_add_u32", t0, t0, g_),
          valu("v_add_u32", t0, str(VBASE), t0),
          valu("v_lshrrev_b32", xx, "1", r), valu("v_lshlrev_b32", xx, "6", xx),
          valu("v_add_u32", vV[0], t0, xx), valu("v_sub_u32", vV[1], t0, xx)]
    if OPT["stamp"]:
        P += [salu("s_mov_b32", srdD[2], "0x1000000"), salu("s_mov_b32", srdD[3], "0x00020000"),
              valu("v_lshrrev_b32", tid, "6", tid), valu("v_lshlrev_b32", tid, "8", tid),
              salu("s_lshl_b32", sH, "s2", "10", scc_w=True), valu("v_add_u32", tid, sH, tid),
              salu("s_mov_b32", sH, "0"),
              valu("v_mov_b32", E[3], s(94)),
              I(f"buffer_store_dword {E[3]}, v0, {srdD}, 0 offen offset:{57 * 4}", "vmem", rd=[E[3], "v0", srdD])]
    P += stamp(60) + stamp(56, True)
    P += [waitv(("QD", 0, 0))]
    for ks in range(12):
        P.append(qread(Qreg(Qc, ks, 0), ks, vS, ("QA", 0, ks)))
    P += [waitv(("QD", 0, 1))]
    for ks in range(12):
        P.append(qread(Qreg(Qc, ks, 1), ks, [STG[i] for i in range(4)], ("QB", 0, ks)))
    P += [waitl(("QB", 0, 11)), barrier()]
    for f in range(6):
        P += kread(-1, f, 0)
    P += ktile(3) + vtile(2)
    P += [waitl(("F", -1, 0), ("F", -1, 1))]
    P += stamp(61)
    base = add_qk(u, -1, 0)
    for f in range(12):
        k = base + 2 * f + 1
        if f + 6 < 12:
            u.pin[k] += kread(-1, f + 6, 0)
        if f % 2 == 1 and f + 1 < 12:
            u.pin[k].append(waitl(("F", -1, f + 1), ("F", -1, f + 2)))
    k = u.add_gap(None)
    u.pin[k] += [waitv(("K", 1), ("K", 2), ("V", 0)), barrier()]
    for f in range(6):
        u.pin[k] += kread(0, f, 1)
    it, tl = softmax(0, 0, "PRO")
    u.pin[k] += it + [waitl(("F", 0, 0), ("F", 0, 1))]
    u.pin[k] += stamp(0)
    u.win0 = len(u.heads)
    add_iter(u, 0, 0, "T0p")
    return u


def unit_fin(b):
    u = Unit("FIN")
    g, t = b * 16 + 15, 15
    u.pre.append(label("L_fin"))
    u.pre += stamp_at(15)
    for f in range(12, 18):
        u.pre += vread(g, f, t)
    it, tl = softmax(1, 15, "T15f")
    u.pre += rinv_stream(0) + set_osrd() + it + tl + [waitl(("F", g, 12), ("F", g, 13))]
    base = add_pv(u, g, t)
    for f in range(12, 24):
        k = base + 2 * (f - 12) + 1
        if f + 6 < 24:
            u.pin[k] += vread(g, f + 6, t)
        if f % 2 == 1 and f + 1 < 24:
            u.pin[k].append(waitl(("F", g, f + 1), ("F", g, f + 2)))
    last = u.add_gap(None)
    u.streams.append(Stream(rinv_stream(1), base, base + 3, prio=0.5))
    ep = []
    for tt in range(6):
        ep += epi_tile(2 * tt, earliest=min(last, max(base + 4 * tt + 2 + 3, base + 4)))
    u.streams.append(Stream(ep, base + 4, last, prio=1.0))
    u.fixed_budget = True
    Z = [Qc[4 * i: 4 * i + 4] for i in range(24)]
    po = u.post
    steps = [(jj, c) for jj in range(4) for c in range(3)]
    for n, (jj, c) in enumerate(steps):
        po.append(oread(Z[n], jj, c, ("OR", b + 1, 0, jj, c)))
    for tt in range(6):
        po += epi_tile(2 * tt + 1)
        for n in (2 * tt, 2 * tt + 1):
            jj, c = steps[n]
            if n == 0:
                po.append(waitl(("OR", b + 1, 0, 3, 2)))
            po.append(ostore(Z[n], 0, jj, c, [("OR", b + 1, 0, jj, c)]))
        for ch in (2 * tt, 2 * tt + 1):
            po.append(owrite(STG[ch * 4: ch * 4 + 4], ch))
    for n, (jj, c) in enumerate(steps):
        po.append(oread(Z[12 + n], jj, c, ("OR", b + 1, 1, jj, c)))
    for n, (jj, c) in enumerate(steps):
        po.append(waitl(("OR", b + 1, 1, jj, c)))
        po.append(ostore(Z[12 + n], 1, jj, c, [("OR", b + 1, 1, jj, c)]))
    u.post += stamp(16) + stamp(17, True)
    if OPT["stamp"]:
        u.post += [I("s_waitcnt vmcnt(0)", "salu")] + stamp(18) + stamp(19, True)
    u.post += [label("L_end"), I("s_endpgm", "branch")]
    return u


def build(extra):
    cache = {}

    def get(name, fn, first):
        u = fn()
        ins = u.schedule(verbose=first and VERB)
        out = []
        for idx, i in enumerate(ins):
            n = extra.get((name, idx), 0)
            if n:
                out.append(((name, idx, "nop"), nop(n - 1)))
            out.append(((name, idx), i))
        if first:
            cache[name] = out
        return out

    trace = list(get("PRO", unit_pro, True))
    for b in range(3):
        for t in range(1, 15):
            trace += get(f"T{t}", lambda: unit_mid(b, t), b == 0)
        if b < 2:
            trace += get("X", lambda: unit_x(b), b == 0)
    trace += get("FIN", lambda: unit_fin(2), True)
    order = ["PRO"] + [f"T{t}" for t in range(1, 15)] + ["X", "FIN"]
    return [(n, cache[n]) for n in order], trace


VERB = False
extra = {}
for it in range(60):
    static, trace = build(extra)
    hz = hazards([i for _, i in trace])
    if not hz:
        break
    upd = {}
    lastj = -100
    for j, need, why in hz:
        key = trace[j][0]
        if j != lastj and j - lastj < 24:
            continue
        lastj = j
        upd[key] = max(upd.get(key, 0), need)
        if OPT.get("showhz"):
            print("; hazard:", key, need, why, file=sys.stderr)
    for k, n in upd.items():
        extra[k] = extra.get(k, 0) + n
else:
    raise SystemExit("hazards did not converge")
if OPT.get("verb"):
    VERB = True
    _so = sys.stdout
    sys.stdout = sys.stderr
    build(extra)
    sys.stdout = _so
    print("; nops inserted:", extra, file=sys.stderr)
W = resolve_waits(trace)
_bad = check_coverage(trace, W)
assert not _bad, _bad[:10]
if OPT.get("verb") and "_mismatch" in W:
    print("; wait mismatches:", W["_mismatch"], file=sys.stderr)

out = []
A = out.append
A(open(os.path.join(os.path.dirname(os.path.abspath(__file__)), "header.txt")).read().rstrip())
A(f"; @launch grid=(256,1,1) block=(256,1,1) lds={LDS_BYTES}")
A('.amdgcn_target "amdgcn-amd-amdhsa--gfx950"')
A(".text")
A(f".globl {KNAME}")
A(".p2align 8")
A(f".type {KNAME},@function")
A(f"{KNAME}:")
for name, ins in static:
    A(f"; ---- {name} ----")
    for key, i in ins:
        t = i.text
        if i.kind == "wait":
            l, vv = W[key]
            t = "s_waitcnt " + (f"lgkmcnt({l})" if l is not None else f"vmcnt({vv})")
        A(t if i.kind == "label" else "    " + t)
for name, x, par in TRAMPS:
    A(f"L_tr_{name}:")
    A(f"    s_call_b64 {sRet}, L_rare_{'AB'[x]}{par}")
    A(f"    s_branch L_ret_{name}")
for x in range(2):
    for par in range(2):
        r = rare(x, par)
        hz = hazards(r)
        assert not hz, hz
        for i in r:
            A(i.text if i.kind == "label" else "    " + i.text)
A("L_code_end:")
A("    s_endpgm")
A(f""".section .rodata,"a"
.p2align 6
.amdhsa_kernel {KNAME}
  .amdhsa_next_free_vgpr 512
  .amdhsa_next_free_sgpr 100
  .amdhsa_accum_offset 256
  .amdhsa_group_segment_fixed_size 0
  .amdhsa_kernarg_size 48
  .amdhsa_user_sgpr_count 2
  .amdhsa_user_sgpr_kernarg_segment_ptr 1
  .amdhsa_system_sgpr_workgroup_id_x 1
  .amdhsa_float_denorm_mode_32 3
.end_amdhsa_kernel""")
print("\n".join(out))
```

```python
import sys, struct, math, os
sys.path.insert(0, os.path.dirname(os.path.abspath(__file__)))
from asmlib import *

KNAME = "standalone__gqa_softmax__near_ridge_kernel"
OPT = dict(
    sgaps=[[10, 14, 18], [36, 40, 44]],
    rgaps=[[38, 42, 46], [20, 22, 24]],
    oa_slots=[3, 4, 5, 6], ob_slots=[9, 10, 11, 12], qa_slots=[13, 14, 15, 16], qb_slots=[21, 22, 23, 24],
    obw={3: [8, 12, 16, 20, 30, 36, 40, 44], 4: [8, 10, 14, 18]},
    qar_iter=10,
    kgaps=[2, 4, 6], vgaps=[24, 28, 32],
    bar_gap=46,
    thr=4096.0,
    stamp=0,
    codewarm=1,
    kv_nt=" nt", q_nt=" nt", o_nt=" nt",
)
for a in sys.argv[1:]:
    if "=" in a:
        k, v = a.split("=", 1)
        OPT[k] = eval(v)

TILE = 12288
KSLOT = [0, 1, 2, 3] * 4
VSLOT = [0, 1, 2, 3] * 4
KBASE, VBASE, STAGE, SPARE = 0, 4 * TILE, 8 * TILE, 12 * TILE
LDS_BYTES = 13 * TILE
KD, VD = 4, 3


def f2u(x):
    return struct.unpack("<I", struct.pack("<f", x))[0]


v = lambda lo, n=1: Reg("v", lo, n)
a = lambda lo, n=1: Reg("a", lo, n)
s = lambda lo, n=1: Reg("s", lo, n)

vLin = [v(1), v(27)]
vK = [v(2 + i) for i in range(4)]
vV = [v(6), v(7)]
vDK = [v(8 + i) for i in range(3)]
vDV = [v(11 + i) for i in range(3)]
negmc = [v(14), v(15)]
lsum = [v(16), v(17)]
ts = v(18)
rinv = [v(19), v(20)]
X = [v(21 + i) for i in range(6)]
E = [v(28 + i) for i in range(4)]
vS = [v(32 + i) for i in range(4)]
vDX = [v(36 + i) for i in range(3)]
ET = [v(39), E[2], E[3]]
PA = [v(40, 8), v(48, 8)]
PB = v(56, 8)
SA = v(64, 16)
SB = [v(80, 16), v(96, 16)]
STG = v(208, 48)
Qc = a(96, 96)
FR = [a(192 + 4 * i, 4) for i in range(6)]
SQ = [a(216 + 4 * i, 4) for i in range(8)]
OT = []
for _t in range(6):
    OT += [v(112 + 16 * _t, 16), a(16 * _t, 16)]

ptrQ, ptrK, ptrV, ptrO = s(4, 2), s(6, 2), s(8, 2), s(10, 2)
srdK, srdV, srdQ, srdO = s(12, 4), s(16, 4), s(20, 4), s(24, 4)
sBG, sH, sKO, sQO, sQOcur, sNrec, sTrip, sC, sNegC, sThr, sMagic, sW = [s(28 + i) for i in range(12)]
sRet = s(40, 2)
m0K = [s(42 + i) for i in range(4)]
sStage, sQB = s(46), s(47)
m0V = [s(48 + i) for i in range(4)]
sT = ["0"] + [s(51 + t) for t in range(1, 16)]
srdD = s(68, 4)
sStamp = s(72, 2)
sPC = s(76, 2)
sG = [[s(80 + 4 * x + j) for j in range(4)] for x in range(2)]
sM = [s(88 + j) for j in range(4)]
sTmp = s(92)

SCALE_C = math.log2(math.e) / math.sqrt(192.0)


def Qreg(base, ks, x):
    return base[ks * 8 + x * 4: ks * 8 + x * 4 + 4]


def dma(srd, voff, soff, c, tag):
    off = f" offset:{c * 1024}" if c else ""
    return I(f"buffer_load_dwordx4 {voff}, {srd}, {soff} offen{off}{OPT['kv_nt']} lds", "vmem",
             rd=[voff, srd, soff, "m0"], tag=tag)


def setm0(x):
    return salu("s_mov_b32", "m0", x)


def gvoff(jj, c):
    return vDX[c] if jj & 1 else vDK[c]


def qdma(x, jj, c, tag, need=None):
    off = f" offset:{c * 1024}" if c else ""
    vo = gvoff(jj, c)
    return I(f"buffer_load_dwordx4 {vo}, {srdQ}, {sG[x][jj]} offen{off}{OPT['q_nt']} lds", "vmem",
             rd=[vo, srdQ, sG[x][jj], "m0"], tag=tag, needl=need)


def qread(dst, ks, addr, tag, need=None):
    off = (ks // 4) * 128
    return I(f"ds_read_b128 {dst}, {addr[ks % 4]} offset:{off}", "ds", rd=[addr[ks % 4]], wr=[dst], tag=tag, needv=need)


def owrite(src, ch):
    off = (ch // 4) * 128
    return I(f"ds_write_b128 {vS[ch % 4]}, {src} offset:{off}", "ds", rd=[vS[ch % 4], src], cost=24)


def oread(dst, jj, c, tag):
    return I(f"ds_read_b128 {dst}, {vLin[jj & 1]} offset:{jj * 3072 + c * 1024}", "ds", rd=[vLin[jj & 1]], wr=[dst], tag=tag)


def ostore(src, x, jj, c, need):
    off = f" offset:{c * 1024}" if c else ""
    vo = gvoff(jj, c)
    return I(f"buffer_store_dwordx4 {src}, {vo}, {srdO}, {sG[x][jj]} offen{off}{OPT['o_nt']}", "vmem",
             rd=[src, vo, srdO, sG[x][jj]], flags=["wide"], cost=20, needl=need)


def kread(g, f, tile):
    ks = f
    off = KBASE + KSLOT[tile % 16] * TILE + (ks // 4) * 128
    d = FR[f % 6]
    return [I(f"ds_read_b128 {d}, {vK[ks % 4]} offset:{off}", "ds", rd=[vK[ks % 4]], wr=[d], tag=("F", g, f))]


def vread(g, f, tile):
    idx = f - 12
    t, st = idx // 2, idx % 2
    d = FR[f % 6]
    out = []
    for jj in range(2):
        off = VSLOT[tile % 16] * TILE + (16 * st + 8 * jj) * 384 + t * 64
        out.append(I(f"ds_read_b64_tr_b16 {d[2 * jj:2 * jj + 2]}, {vV[t % 2]} offset:{off}", "ds", rd=[vV[t % 2]],
                     wr=[d[2 * jj:2 * jj + 2]], tag=("F", g, f) if jj == 1 else None))
    return out


def max_tree(S, u, w):
    return [
        valu("v_max3_f32", u, S[0], S[1], S[2]),
        valu("v_max3_f32", w, S[3], S[4], S[5]),
        valu("v_max3_f32", u, u, S[6], S[7]),
        valu("v_max3_f32", w, w, S[8], S[9]),
        valu("v_max3_f32", u, u, S[10], S[11]),
        valu("v_max3_f32", w, w, S[12], S[13]),
        valu("v_max3_f32", u, u, S[14], S[15]),
        valu("v_max_f32", u, u, w),
    ]


def swap(u, w):
    return I(f"v_permlane32_swap_b32 {u}, {w}", "valu", rd=[u, w], wr=[u, w])


def max_init(x, S):
    u, w = E[0], E[1]
    return max_tree(S, u, w) + [
        valu("v_mov_b32", w, u),
        nop(1),
        swap(u, w),
        valu("v_max_f32", u, u, w),
        valu("v_mul_f32", negmc[x], sNegC, u),
    ]


def exp_stream(x, S, P, acc):
    out = []
    T = lambda i: X[i % 6]
    for i in range(16 + 3):
        if i < 16:
            out.append(valu("v_fma_f32", T(i), S[i], sC, negmc[x]))
        if 0 <= i - 1 < 16:
            out.append(trans("v_exp_f32", T(i - 1), T(i - 1)))
        j = i - 3
        if 0 <= j < 16:
            if j == 1:
                out.append(valu("v_add_f32", acc, T(0), T(1)))
            elif j >= 2:
                out.append(valu("v_add_f32", acc, acc, T(j)))
            if j % 2 == 1:
                out.append(valu("v_cvt_pk_bf16_f32", P[j // 2], T(j - 1), T(j)))
    return out


TRAMPS = []


def softmax(x, tile, site):
    par = tile % 2
    S = SA if x == 0 else SB[par]
    P = PA[par] if x == 0 else PB
    if tile == 0:
        return max_init(x, S) + exp_stream(x, S, P, lsum[x]), []
    items = exp_stream(x, S, P, ts)
    name = f"{site}_{'AB'[x]}"
    if (name, x, par) not in TRAMPS:
        TRAMPS.append((name, x, par))
    items.append(I(f"v_cmp_nge_f32 vcc, {sThr}, {ts}", "valu", rd=[sThr, ts], wr=["vcc"]))
    tail = [
        I(f"s_cbranch_vccnz L_tr_{name}", "branch", rd=["vcc"]),
        label(f"L_ret_{name}"),
        valu("v_add_f32", lsum[x], lsum[x], ts),
    ]
    return items, tail


def rinv_stream(x):
    u = E[2]
    return [
        valu("v_mov_b32", u, lsum[x]),
        nop(1),
        swap(u, lsum[x]),
        valu("v_add_f32", u, u, lsum[x]),
        trans("v_rcp_f32", rinv[x], u),
    ]


def epi_tile(e, earliest=None, latest=None):
    t, x = e // 2, e % 2
    O = OT[e]
    out = []
    if O.f == "a":
        D = STG[t * 8: t * 8 + 8]
        for i in range(8 + 2):
            if i < 8:
                out.append(valu("v_accvgpr_read_b32", D[i], O[2 * i], latest=latest))
                out.append(valu("v_accvgpr_read_b32", ET[i % 3], O[2 * i + 1], latest=latest))
            j = i - 2
            if 0 <= j < 8:
                out.append(valu("v_cvt_pk_bf16_f32", D[j], D[j], ET[j % 3]))
            j = i - 1
            if 0 <= j < 8:
                out.append(valu("v_mul_f32", D[j], D[j], rinv[x]))
                out.append(valu("v_mul_f32", ET[j % 3], ET[j % 3], rinv[x]))
    else:
        for i in range(16 + 3):
            if i < 16:
                out.append(valu("v_mul_f32", O[i], O[i], rinv[x], latest=latest))
            j = i - 2
            if 0 <= j < 16 and j % 2 == 1:
                out.append(valu("v_cvt_pk_bf16_f32", O[j // 2], O[j - 1], O[j], latest=latest))
            if i == 11 or i == 18:
                jj = 0 if i == 11 else 1
                w = owrite(O[4 * jj: 4 * jj + 4], 2 * t + jj)
                w.latest = latest
                out.append(w)
    out[0].earliest = earliest
    return out


def rare(x, par):
    S = SA if x == 0 else SB[par]
    P = PA[par] if x == 0 else PB
    u, w, f = X[0], X[1], X[5]
    o = [label(f"L_rare_{'AB'[x]}{par}"), nop(15)]
    o += max_tree(S, u, w)
    o += [valu("v_fma_f32", u, u, sC, negmc[x]), valu("v_mov_b32", w, u), nop(1), swap(u, w),
          valu("v_max3_f32", u, u, w, "0"),
          valu("v_sub_f32", negmc[x], negmc[x], u),
          trans("v_exp_f32", f, f"-{u}", extra_rd=[u]), nop(0),
          valu("v_mul_f32", lsum[x], lsum[x], f)]
    for t in range(6):
        O = OT[2 * t + x]
        for i in range(16):
            if O.f == "a":
                tt = X[i % 4]
                o += [valu("v_accvgpr_read_b32", tt, O[i]), valu("v_mul_f32", tt, tt, f),
                      valu("v_accvgpr_write_b32", O[i], tt)]
            else:
                o.append(valu("v_mul_f32", O[i], O[i], f))
    o += exp_stream(x, S, P, ts)
    o += [nop(3), I(f"s_setpc_b64 {sRet}", "branch", rd=[sRet])]
    return o


def add_qk(u, g, tile, qwait=None):
    base = len(u.heads)
    Sb = SB[tile % 2]
    for ks in range(12):
        fr = FR[ks % 6]
        u.add_gap(mfma(SA, fr, Qreg(Qc, ks, 0), SA if ks else 0))
        m = mfma(Sb, fr, Qreg(Qc, ks, 1), Sb if ks else 0)
        if tile == 0:
            m.needl = [("QB", (g + 1) // 16, ks)]
        u.add_gap(m)
    return base


def add_pv(u, g, t):
    base = len(u.heads)
    for tt in range(6):
        for st in range(2):
            fr = FR[(12 + tt * 2 + st) % 6]
            z = (t == 0 and st == 0)
            oa, ob = OT[2 * tt], OT[2 * tt + 1]
            u.add_gap(mfma(oa, fr, PA[t % 2][4 * st:4 * st + 4], 0 if z else oa))
            u.add_gap(mfma(ob, fr, PB[4 * st:4 * st + 4], 0 if z else ob))
    return base


def frag_read(g, t, f):
    if f < 12:
        return kread(g, f, t + 1)
    if f < 24:
        return vread(g, f, t)
    return kread(g + 1, f - 24, t + 2)


def ftag(g, f):
    return ("F", g, f) if f < 24 else ("F", g + 1, f - 24)


def stamp(idx, real=False):
    if not OPT["stamp"]:
        return []
    if OPT["stamp"] == 2 and idx not in (0, 1, 15, 16, 17, 18, 19, 56, 60, 61):
        return []
    op = "s_memrealtime" if real else "s_memtime"
    return [I(f"{op} {sStamp}", "salu", wr=[sStamp]), I("s_waitcnt lgkmcnt(0)", "salu"),
            valu("v_mov_b32", E[3], sStamp[0]),
            I(f"buffer_store_dword {E[3]}, v0, {srdD}, {sH} offen offset:{idx * 4}", "vmem", rd=[E[3], "v0", srdD])]


def add_iter(u, b, t, site):
    g = b * 16 + t
    base = add_qk(u, g, (t + 1) % 16)
    add_pv(u, g, t)
    for f in range(24):
        k = base + 2 * f + 1
        u.pin[k] += frag_read(g, t, f + 6)
        if f % 2 == 1:
            u.pin[k].append(waitl(ftag(g, f + 1), ftag(g, f + 2)))
    tk, tv = (t + KD) % 16, (t + VD) % 16
    u.tail[base + OPT["kgaps"][0] - 1].append(setm0(m0K[KSLOT[tk]]))
    for c, k in enumerate(OPT["kgaps"]):
        u.pin[base + k].append(dma(srdK, vDK[c], sT[tk], c, ("K", g + KD)))
    u.tail[base + OPT["vgaps"][0] - 1].append(setm0(m0V[VSLOT[tv]]))
    for c, k in enumerate(OPT["vgaps"]):
        u.pin[base + k].append(dma(srdV, vDV[c], sT[tv], c, ("V", g + VD)))
    def drain_reads(n, gaps):
        for x, key in ((0, "oa_slots"), (1, "ob_slots")):
            if n in OPT[key]:
                jj = OPT[key].index(n)
                for c, k in enumerate(gaps):
                    u.pin[base + k].insert(0, oread(SQ[(jj * 3 + c) % 8], jj, c, ("OR", b, x, jj, c)))
    drain_reads(2 * t + 1, OPT["rgaps"][1])
    drain_reads(2 * t + 2, OPT["rgaps"][0])
    for half in range(2):
        n = 2 * t + half
        gaps = OPT["sgaps"][half]
        for x, key in ((0, "oa_slots"), (1, "ob_slots")):
            if n in OPT[key]:
                jj = OPT[key].index(n)
                for c, k in enumerate(gaps):
                    u.pin[base + k].append(ostore(SQ[(jj * 3 + c) % 8], x, jj, c, [("OR", b, x, jj, c)]))
        for x, key in ((0, "qa_slots"), (1, "qb_slots")):
            if n in OPT[key]:
                jj = OPT[key].index(n)
                u.tail[base + gaps[0] - 1].append(setm0(sM[jj]))
                need = [("OR", b, 1, 3, 2)] if x == 0 else [("QA", b + 1, 11)]
                for c, k in enumerate(gaps):
                    u.pin[base + k].append(qdma(x, jj, c, ("QD", b + 1, x), need))
    if t in OPT["obw"]:
        n0 = sum(len(OPT["obw"][tt]) for tt in OPT["obw"] if tt < t)
        for i, k in enumerate(OPT["obw"][t]):
            ch = n0 + i
            u.pin[base + k].insert(0, owrite(STG[ch * 4: ch * 4 + 4], ch))
    if t == OPT["qar_iter"]:
        u.pin[base + 0].append(waitv(("QD", b + 1, 0)))
        for ks in range(12):
            u.pin[base + 2 * ks].append(qread(STG[ks * 4: ks * 4 + 4], ks, vS, ("QA", b + 1, ks), [("QD", b + 1, 0)]))
    if t == 14:
        u.pin[base + 24].append(waitv(("QD", b + 1, 1)))
        for ks in range(12):
            u.pin[base + 24 + 2 * ks].append(qread(Qreg(Qc, ks, 1), ks, vS, ("QB", b + 1, ks), [("QD", b + 1, 1)]))
    u.pin[base + OPT["bar_gap"]] += [waitv(("K", g + 3), ("V", g + 1)), barrier()]
    it, tl = softmax(1, t, site)
    u.streams.append(Stream(it, base + 0, base + 23, prio=0.05))
    u.tail[base + 23] += tl
    it, tl = softmax(0, (t + 1) % 16, site)
    u.streams.append(Stream(it, base + 25, base + 47, prio=0.05))
    u.tail[base + 47] += tl
    if t == 1:
        sl = [salu("s_mov_b32", sQOcur, sQO),
              salu("s_add_u32", sBG, sBG, "32", scc_w=True),
              salu("s_mul_hi_u32", sKO, sBG, sMagic),
              salu("s_mul_i32", sKO, sKO, "196608"),
              salu("s_mul_i32", sQO, sBG, "98304"),
              I(f"s_cmp_lt_u32 {sTrip}, 2", "salu", rd=[sTrip], wr=["scc"]),
              salu("s_cselect_b32", sNrec, "196608", "0", scc_r=True),
              salu("s_cselect_b32", srdQ[2], "98304", "0", scc_r=True),
              salu("s_add_u32", srdQ[0], ptrQ[0], sQO, scc_w=True),
              salu("s_addc_u32", srdQ[1], ptrQ[1], "0", scc_w=True, scc_r=True)]
        u.streams.append(Stream(sl, base + 12, base + 40))
    if t == 15 - KD:
        sl = [salu("s_add_u32", srdK[0], ptrK[0], sKO, scc_w=True),
              salu("s_addc_u32", srdK[1], ptrK[1], "0", scc_w=True, scc_r=True),
              salu("s_mov_b32", srdK[2], sNrec)]
        u.streams.append(Stream(sl, base + OPT["kgaps"][-1] + 1, base + 40))
    if t == 15 - VD:
        sl = [salu("s_add_u32", srdV[0], ptrV[0], sKO, scc_w=True),
              salu("s_addc_u32", srdV[1], ptrV[1], "0", scc_w=True, scc_r=True),
              salu("s_mov_b32", srdV[2], sNrec)]
        u.streams.append(Stream(sl, base + OPT["vgaps"][-1] + 1, base + 46))
    return base


def qcopy(ks_list, earliest_fn, latest_fn):
    out = []
    for ks in ks_list:
        for i in range(4):
            out.append(valu("v_accvgpr_write_b32", Qreg(Qc, ks, 0)[i], STG[ks * 4 + i],
                            earliest=earliest_fn(ks, 0), latest=latest_fn(ks, 0)))
    return out


def set_osrd():
    return [salu("s_add_u32", srdO[0], ptrO[0], sQOcur, scc_w=True),
            salu("s_addc_u32", srdO[1], ptrO[1], "0", scc_w=True, scc_r=True),
            salu("s_mov_b32", srdO[2], "98304")]


QC_SPLIT = 8


def unit_mid(b, t):
    u = Unit(f"T{t}")
    if t == 1:
        u.pre.append(label("L_loop"))
    u.pre += stamp_at(t)
    base = add_iter(u, b, t, f"T{t}")
    if t == 14:
        u.streams.append(Stream(qcopy(range(QC_SPLIT), lambda ks, x: base + 2 * ks + x, lambda ks, x: None),
                                base + 1, base + 47))
        u.post += [I(f"s_cmp_eq_u32 {sTrip}, 2", "salu", rd=[sTrip], wr=["scc"]),
                   I("s_cbranch_scc1 L_fin", "branch", rd=["scc"])]
    return u


def stamp_at(t):
    return stamp(t)


def unit_x(b):
    u = Unit("X")
    u.pre += stamp_at(15)
    b15 = add_iter(u, b, 15, "T15")
    b0 = add_iter(u, b + 1, 0, "T0")
    u.streams.append(Stream(qcopy(range(QC_SPLIT, 12), lambda ks, x: None, lambda ks, x: b15 + 2 * ks + x - 2),
                            b15 + 0, b15 + 20))
    u.streams.append(Stream(rinv_stream(0), b15 + 2, b15 + 20))
    u.streams.append(Stream(rinv_stream(1), b15 + 24, b15 + 27, prio=0.5))
    ep = []
    for e in range(12):
        tt, x = e // 2, e % 2
        ep += epi_tile(e, earliest=max(b15 + 24 + 4 * tt + 2 + x + 3, b15 + 28), latest=b0 + 24 + 4 * tt + x - 1)
    u.streams.append(Stream(ep, b15 + 29, b0 + 44))
    sl = set_osrd() + [salu("s_add_u32", sTrip, sTrip, "1", scc_w=True)]
    if OPT["stamp"]:
        sl.append(salu("s_add_u32", sH, sH, "64", scc_w=True))
    u.streams.append(Stream(sl, b0 + 2, b0 + 40))
    u.post.append(I("s_branch L_loop", "branch"))
    return u


def unit_pro():
    u = Unit("PRO")
    P = u.pre
    tid, lane, q32, h, t0, t1, t2 = v(0), X[0], X[1], X[2], X[3], X[4], X[5]
    sP = sNrec
    P += [I("s_cmp_ge_u32 s2, 256", "salu", rd=["s2"], wr=["scc"]),
          I("s_cbranch_scc1 L_end", "branch", rd=["scc"]),
          I("s_load_dwordx4 s[4:7], s[0:1], 0", "salu", wr=[s(4, 4)]),
          I("s_load_dwordx4 s[8:11], s[0:1], 16", "salu", wr=[s(8, 4)])]
    if OPT["stamp"]:
        P += [I(f"s_load_dwordx2 {srdD[0:2]}, s[0:1], 40", "salu"), I(f"s_memrealtime {s(94, 2)}", "salu")]
    if OPT.get("dbg"):
        P += [I(f"s_load_dwordx2 {srdD[0:2]}, s[0:1], 32", "salu"), I(f"s_memrealtime {s(94, 2)}", "salu"),
              I(f"s_memtime {s(96, 2)}", "salu")]
    P += [valu("v_lshrrev_b32", t0, "6", tid), valu("v_and_b32", lane, "63", tid),
          I(f"v_readfirstlane_b32 {sW}, {t0}", "valu", rd=[t0], wr=[sW]),
          valu("v_lshlrev_b32", t1, "4", lane)]
    P += [salu("s_and_b32", sBG, "s2", "7", scc_w=True),
          salu("s_mul_i32", sBG, sBG, "96"),
          salu("s_lshr_b32", sH, "s2", "3", scc_w=True),
          salu("s_add_u32", sBG, sBG, sH, scc_w=True),
          salu("s_mov_b32", sMagic, "0x55555556"),
          salu("s_mul_hi_u32", sKO, sBG, sMagic),
          salu("s_mul_i32", sKO, sKO, "196608"),
          salu("s_mul_i32", sQO, sBG, "98304")]
    P += [salu("s_and_b32", sP, sW, "1", scc_w=True), salu("s_mul_i32", sP, sP, "3072"),
          salu("s_mov_b32", sQB, str(VBASE + 2 * TILE)),
          I(f"s_cmp_eq_u32 {sW}, 0", "salu", rd=[sW], wr=["scc"]),
          salu("s_cselect_b32", sQB, str(KBASE + 3 * TILE), sQB, scc_r=True),
          I(f"s_cmp_eq_u32 {sW}, 2", "salu", rd=[sW], wr=["scc"]),
          salu("s_cselect_b32", sQB, str(VBASE + 3 * TILE), sQB, scc_r=True),
          I(f"s_cmp_eq_u32 {sW}, 3", "salu", rd=[sW], wr=["scc"]),
          salu("s_cselect_b32", sQB, str(SPARE), sQB, scc_r=True),
          salu("s_mul_i32", sW, sW, "3072")]
    for c in range(3):
        P += [valu("v_add_u32", t0, sW, t1) if c == 0 else valu("v_add_u32", t0, "1024", t0),
              valu("v_lshrrev_b32", t2, "7", t0),
              valu("v_mul_u32_u24", t2, "171", t2),
              valu("v_lshrrev_b32", t2, "10", t2),
              valu("v_and_b32", vDK[c], "7", t2),
              valu("v_lshlrev_b32", vDK[c], "4", vDK[c]),
              valu("v_xor_b32", vDK[c], vDK[c], t0),
              valu("v_and_b32", vDV[c], "1", t2),
              valu("v_lshlrev_b32", vDV[c], "6", vDV[c]),
              valu("v_xor_b32", vDV[c], vDV[c], t0)]
        if c:
            P += [valu("v_subrev_u32", vDK[c], str(c * 1024), vDK[c]),
                  valu("v_subrev_u32", vDV[c], str(c * 1024), vDV[c])]
        P.append(valu("v_xor_b32", vDX[c], "64", vDK[c]))
    P += [salu("s_lshl_b32", sStage, sW, "2", scc_w=True),
          salu("s_add_u32", sStage, sStage, str(STAGE), scc_w=True),
          salu("s_mul_i32", sH, sW, "7")]
    for jj in range(4):
        op = "s_sub_u32" if jj & 1 else "s_add_u32"
        P += [salu(op, sTmp, str(jj * 3072), sP, scc_w=True),
              salu("s_add_u32", sM[jj], sStage, sTmp, scc_w=True),
              salu("s_add_u32", sG[0][jj], sH, sTmp, scc_w=True),
              salu("s_add_u32", sG[1][jj], sG[0][jj], str(TILE), scc_w=True)]
    P += [salu("s_sub_u32", sTmp, sQB, sStage, scc_w=True)]
    for i in range(4):
        P.append(salu("s_add_u32", m0K[i], sW, str(KBASE + i * TILE), scc_w=True))
    P += [I("s_waitcnt lgkmcnt(0)", "salu")]
    for srd, ptr, off, n in ((srdK, ptrK, sKO, 196608), (srdQ, ptrQ, sQO, 98304), (srdV, ptrV, sKO, 196608)):
        P += [salu("s_add_u32", srd[0], ptr[0], off, scc_w=True),
              salu("s_addc_u32", srd[1], ptr[1], "0", scc_w=True, scc_r=True),
              salu("s_mov_b32", srd[2], str(n)), salu("s_mov_b32", srd[3], "0x00020000")]

    def ktile(t):
        return [setm0(m0K[KSLOT[t]]), nop(0)] + [dma(srdK, vDK[c], sT[t], c, ("K", t)) for c in range(3)]

    def vtile(t):
        return [setm0(m0V[VSLOT[t]]), nop(0)] + [dma(srdV, vDV[c], sT[t], c, ("V", t)) for c in range(3)]

    P += ktile(0)
    for jj in range(4):
        P += [setm0(sM[jj]), nop(0)] + [qdma(0, jj, c, ("QD", 0, 0)) for c in range(3)]
    for jj in range(4):
        P += [salu("s_add_u32", "m0", sM[jj], sTmp, scc_w=True), nop(0)] + [qdma(1, jj, c, ("QD", 0, 1)) for c in range(3)]
    for i in range(4):
        P.append(salu("s_add_u32", m0V[i], sW, str(VBASE + i * TILE), scc_w=True))
    for t in range(1, 16):
        P.append(salu("s_mov_b32", sT[t], str(t * TILE)))
    P += ktile(1) + vtile(0) + ktile(2)
    if OPT["codewarm"]:
        P += [I(f"s_getpc_b64 {sPC}", "salu", wr=[sPC]),
              label("L_pc"),
              I(f"s_sub_u32 {sPC[0]}, {sPC[0]}, L_pc-{KNAME}", "salu", rd=[sPC], wr=[sPC, "scc"]),
              I(f"s_subb_u32 {sPC[1]}, {sPC[1]}, 0", "salu", rd=[sPC, "scc"], wr=[sPC, "scc"]),
              salu("s_lshr_b32", sH, "s2", "3", scc_w=True),
              salu("s_lshl_b32", sH, sH, "11", scc_w=True),
              valu("v_lshlrev_b32", t2, "3", tid),
              valu("v_add_u32", t2, sH, t2),
              I(f"v_min_u32 {t2}, L_code_end-{KNAME}-8, {t2}", "valu", rd=[t2], wr=[t2]),
              I(f"global_load_dwordx2 {SQ[7][0:2]}, {t2}, {sPC}", "vmem", rd=[t2, sPC], wr=[SQ[7][0:2]])]
    P += vtile(1)
    P += [salu("s_mov_b32", srdO[0], ptrO[0]), salu("s_mov_b32", srdO[1], ptrO[1]),
          salu("s_mov_b32", srdO[2], "0"), salu("s_mov_b32", srdO[3], "0x00020000"),
          salu("s_mov_b32", sTrip, "0"),
          salu("s_mov_b32", sC, hex(f2u(SCALE_C))), salu("s_mov_b32", sNegC, hex(f2u(-SCALE_C))),
          salu("s_mov_b32", sThr, hex(f2u(OPT["thr"])))]
    P += [valu("v_add_u32", t1, sStage, t1), valu("v_add_u32", vLin[0], sP, t1), valu("v_subrev_u32", vLin[1], sP, t1)]
    P += [valu("v_and_b32", q32, "31", lane), valu("v_lshrrev_b32", h, "5", lane),
          valu("v_mul_u32_u24", t0, "384", q32)]
    P += [valu("v_lshrrev_b32", t1, "1", q32), valu("v_and_b32", t1, "7", t1), valu("v_xor_b32", t1, t1, h)]
    for i in range(4):
        P += [valu("v_xor_b32", t2, str(2 * i), t1), valu("v_lshlrev_b32", t2, "4", t2),
              valu("v_add_u32", vK[i], t0, t2), valu("v_add_u32", vS[i], sStage, vK[i]),
              valu("v_add_u32", STG[i], sQB, vK[i])]
    r, g_, xx = q32, t1, t2
    P += [valu("v_bfe_u32", r, lane, "2", "2"),
          valu("v_lshl_add_u32", t0, h, "2", r),
          valu("v_mul_u32_u24", t0, "384", t0),
          valu("v_bfe_u32", g_, lane, "4", "1"), valu("v_lshlrev_b32", g_, "5", g_),
          valu("v_add_u32", t0, t0, g_),
          valu("v_and_b32", g_, "1", lane), valu("v_lshlrev_b32", g_, "4", g_),
          valu("v_add_u32", t0, t0, g_),
          valu("v_bfe_u32", g_, lane, "1", "1"), valu("v_lshlrev_b32", g_, "3", g_),
          valu("v_add_u32", t0, t0, g_),
          valu("v_add_u32", t0, str(VBASE), t0),
          valu("v_lshrrev_b32", xx, "1", r), valu("v_lshlrev_b32", xx, "6", xx),
          valu("v_add_u32", vV[0], t0, xx), valu("v_sub_u32", vV[1], t0, xx)]
    if OPT["stamp"]:
        P += [salu("s_mov_b32", srdD[2], "0x1000000"), salu("s_mov_b32", srdD[3], "0x00020000"),
              valu("v_lshrrev_b32", tid, "6", tid), valu("v_lshlrev_b32", tid, "8", tid),
              salu("s_lshl_b32", sH, "s2", "10", scc_w=True), valu("v_add_u32", tid, sH, tid),
              salu("s_mov_b32", sH, "0"),
              valu("v_mov_b32", E[3], s(94)),
              I(f"buffer_store_dword {E[3]}, v0, {srdD}, 0 offen offset:{57 * 4}", "vmem", rd=[E[3], "v0", srdD])]
    P += stamp(60) + stamp(56, True)
    P += [waitv(("QD", 0, 0))]
    for ks in range(12):
        P.append(qread(Qreg(Qc, ks, 0), ks, vS, ("QA", 0, ks)))
    P += [waitv(("QD", 0, 1))]
    for ks in range(12):
        P.append(qread(Qreg(Qc, ks, 1), ks, [STG[i] for i in range(4)], ("QB", 0, ks)))
    P += [waitl(("QB", 0, 11)), barrier()]
    for f in range(6):
        P += kread(-1, f, 0)
    P += ktile(3) + vtile(2)
    P += [waitl(("F", -1, 0), ("F", -1, 1))]
    P += stamp(61)
    if OPT.get("dbg"):
        P += [I(f"s_memrealtime {s(98, 2)}", "salu"), I("s_waitcnt lgkmcnt(0)", "salu")]
    base = add_qk(u, -1, 0)
    for f in range(12):
        k = base + 2 * f + 1
        if f + 6 < 12:
            u.pin[k] += kread(-1, f + 6, 0)
        if f % 2 == 1 and f + 1 < 12:
            u.pin[k].append(waitl(("F", -1, f + 1), ("F", -1, f + 2)))
    k = u.add_gap(None)
    u.pin[k] += [waitv(("K", 1), ("K", 2), ("V", 0)), barrier()]
    for f in range(6):
        u.pin[k] += kread(0, f, 1)
    it, tl = softmax(0, 0, "PRO")
    u.pin[k] += it + [waitl(("F", 0, 0), ("F", 0, 1))]
    u.pin[k] += stamp(0)
    u.win0 = len(u.heads)
    add_iter(u, 0, 0, "T0p")
    return u


def unit_fin(b):
    u = Unit("FIN")
    g, t = b * 16 + 15, 15
    u.pre.append(label("L_fin"))
    u.pre += stamp_at(15)
    for f in range(12, 18):
        u.pre += vread(g, f, t)
    it, tl = softmax(1, 15, "T15f")
    u.pre += rinv_stream(0) + set_osrd() + it + tl + [waitl(("F", g, 12), ("F", g, 13))]
    base = add_pv(u, g, t)
    for f in range(12, 24):
        k = base + 2 * (f - 12) + 1
        if f + 6 < 24:
            u.pin[k] += vread(g, f + 6, t)
        if f % 2 == 1 and f + 1 < 24:
            u.pin[k].append(waitl(("F", g, f + 1), ("F", g, f + 2)))
    last = u.add_gap(None)
    u.streams.append(Stream(rinv_stream(1), base, base + 3, prio=0.5))
    ep = []
    for tt in range(6):
        ep += epi_tile(2 * tt, earliest=min(last, max(base + 4 * tt + 2 + 3, base + 4)))
    u.streams.append(Stream(ep, base + 4, last, prio=1.0))
    u.fixed_budget = True
    Z = [Qc[4 * i: 4 * i + 4] for i in range(24)]
    po = u.post
    steps = [(jj, c) for jj in range(4) for c in range(3)]
    for n, (jj, c) in enumerate(steps):
        po.append(oread(Z[n], jj, c, ("OR", b + 1, 0, jj, c)))
    for tt in range(6):
        po += epi_tile(2 * tt + 1)
        for n in (2 * tt, 2 * tt + 1):
            jj, c = steps[n]
            if n == 0:
                po.append(waitl(("OR", b + 1, 0, 3, 2)))
            po.append(ostore(Z[n], 0, jj, c, [("OR", b + 1, 0, jj, c)]))
        for ch in (2 * tt, 2 * tt + 1):
            po.append(owrite(STG[ch * 4: ch * 4 + 4], ch))
    for n, (jj, c) in enumerate(steps):
        po.append(oread(Z[12 + n], jj, c, ("OR", b + 1, 1, jj, c)))
    for n, (jj, c) in enumerate(steps):
        po.append(waitl(("OR", b + 1, 1, jj, c)))
        po.append(ostore(Z[12 + n], 1, jj, c, [("OR", b + 1, 1, jj, c)]))
    u.post += stamp(16) + stamp(17, True)
    if OPT["stamp"]:
        u.post += [I("s_waitcnt vmcnt(0)", "salu")] + stamp(18) + stamp(19, True)
    if OPT.get("dbg"):
        def amax(val, idx):
            return [valu("v_mov_b32", E[3], val),
                    I(f"buffer_atomic_umax {E[3]}, off, {srdD}, 0 offset:{idx * 4}", "vmem", rd=[E[3], srdD]), nop(1)]
        u.post += [I("s_waitcnt vmcnt(0)", "salu"), I(f"s_memrealtime {sStamp}", "salu"), I(f"s_memtime {sPC}", "salu"),
                   I("s_waitcnt lgkmcnt(0)", "salu"),
                   salu("s_mov_b32", srdD[2], "256"), salu("s_mov_b32", srdD[3], "0x00020000"),
                   I("s_mov_b64 exec, 1", "salu"),
                   salu("s_not_b32", sTmp, s(94))] + amax(sTmp, 0) + amax(sStamp[0], 1)
        u.post += [salu("s_sub_u32", sTmp, sPC[0], s(96))] + amax(sTmp, 2) + [salu("s_not_b32", sTmp, sTmp)] + amax(sTmp, 3)
        u.post += [salu("s_not_b32", sTmp, s(98))] + amax(sTmp, 4) + amax(s(98), 5)
        u.post += [salu("s_not_b32", sTmp, sStamp[0])] + amax(sTmp, 6) + amax(s(94), 7)
    u.post += [label("L_end"), I("s_endpgm", "branch")]
    return u


def build(extra):
    cache = {}

    def get(name, fn, first):
        u = fn()
        ins = u.schedule(verbose=first and VERB)
        out = []
        for idx, i in enumerate(ins):
            n = extra.get((name, idx), 0)
            if n:
                out.append(((name, idx, "nop"), nop(n - 1)))
            out.append(((name, idx), i))
        if first:
            cache[name] = out
        return out

    trace = list(get("PRO", unit_pro, True))
    for b in range(3):
        for t in range(1, 15):
            trace += get(f"T{t}", lambda: unit_mid(b, t), b == 0)
        if b < 2:
            trace += get("X", lambda: unit_x(b), b == 0)
    trace += get("FIN", lambda: unit_fin(2), True)
    order = ["PRO"] + [f"T{t}" for t in range(1, 15)] + ["X", "FIN"]
    return [(n, cache[n]) for n in order], trace


VERB = False
extra = {}
for it in range(60):
    static, trace = build(extra)
    hz = hazards([i for _, i in trace])
    if not hz:
        break
    upd = {}
    lastj = -100
    for j, need, why in hz:
        key = trace[j][0]
        if j != lastj and j - lastj < 24:
            continue
        lastj = j
        upd[key] = max(upd.get(key, 0), need)
        if OPT.get("showhz"):
            print("; hazard:", key, need, why, file=sys.stderr)
    for k, n in upd.items():
        extra[k] = extra.get(k, 0) + n
else:
    raise SystemExit("hazards did not converge")
if OPT.get("verb"):
    VERB = True
    _so = sys.stdout
    sys.stdout = sys.stderr
    build(extra)
    sys.stdout = _so
    print("; nops inserted:", extra, file=sys.stderr)
W = resolve_waits(trace)
_bad = check_coverage(trace, W)
assert not _bad, _bad[:10]
if OPT.get("verb") and "_mismatch" in W:
    print("; wait mismatches:", W["_mismatch"], file=sys.stderr)

out = []
A = out.append
A(open(os.path.join(os.path.dirname(os.path.abspath(__file__)), "header.txt")).read().rstrip())
A(f"; @launch grid=(256,1,1) block=(256,1,1) lds={LDS_BYTES}")
A('.amdgcn_target "amdgcn-amd-amdhsa--gfx950"')
A(".text")
A(f".globl {KNAME}")
A(".p2align 8")
A(f".type {KNAME},@function")
A(f"{KNAME}:")
for name, ins in static:
    A(f"; ---- {name} ----")
    for key, i in ins:
        t = i.text
        if i.kind == "wait":
            l, vv = W[key]
            t = "s_waitcnt " + (f"lgkmcnt({l})" if l is not None else f"vmcnt({vv})")
        A(t if i.kind == "label" else "    " + t)
for name, x, par in TRAMPS:
    A(f"L_tr_{name}:")
    A(f"    s_call_b64 {sRet}, L_rare_{'AB'[x]}{par}")
    A(f"    s_branch L_ret_{name}")
for x in range(2):
    for par in range(2):
        r = rare(x, par)
        hz = hazards(r)
        assert not hz, hz
        for i in r:
            A(i.text if i.kind == "label" else "    " + i.text)
A("L_code_end:")
A("    s_endpgm")
A(f""".section .rodata,"a"
.p2align 6
.amdhsa_kernel {KNAME}
  .amdhsa_next_free_vgpr 512
  .amdhsa_next_free_sgpr 102
  .amdhsa_accum_offset 256
  .amdhsa_group_segment_fixed_size 0
  .amdhsa_kernarg_size 48
  .amdhsa_user_sgpr_count 2
  .amdhsa_user_sgpr_kernarg_segment_ptr 1
  .amdhsa_system_sgpr_workgroup_id_x 1
  .amdhsa_float_denorm_mode_32 3
.end_amdhsa_kernel""")
print("\n".join(out))
```

```python
import sys, struct, math, os
sys.path.insert(0, os.path.dirname(os.path.abspath(__file__)))
from asmlib import *

KNAME = "standalone__gqa_softmax__near_ridge_kernel"
OPT = dict(
    sgaps=[[10, 14, 18], [36, 40, 44]],
    rgaps=[[38, 42, 46], [20, 22, 24]],
    oa_slots=[3, 4, 5, 6], ob_slots=[9, 10, 11, 12], qa_slots=[13, 14, 15, 16], qb_slots=[21, 22, 23, 24],
    obw={3: [8, 12, 16, 20, 30, 36, 40, 44], 4: [8, 10, 14, 18]},
    qar_iter=10,
    kgaps=[2, 4, 6], vgaps=[24, 28, 32],
    bar_gap=46,
    thr=4096.0,
    stamp=0,
    codewarm=1,
    kv_nt=" nt", q_nt=" nt", o_nt=" nt",
)
for a in sys.argv[1:]:
    if "=" in a:
        k, v = a.split("=", 1)
        OPT[k] = eval(v)

TILE = 12288
KSLOT = [0, 1, 2, 3] * 4
VSLOT = [0, 1, 2, 3] * 4
KBASE, VBASE, STAGE, SPARE = 0, 4 * TILE, 8 * TILE, 12 * TILE
LDS_BYTES = 13 * TILE
KD, VD = 4, 3


def f2u(x):
    return struct.unpack("<I", struct.pack("<f", x))[0]


v = lambda lo, n=1: Reg("v", lo, n)
a = lambda lo, n=1: Reg("a", lo, n)
s = lambda lo, n=1: Reg("s", lo, n)

vLin = [v(1), v(27)]
vK = [v(2 + i) for i in range(4)]
vV = [v(6), v(7)]
vDK = [v(8 + i) for i in range(3)]
vDV = [v(11 + i) for i in range(3)]
negmc = [v(14), v(15)]
lsum = [v(16), v(17)]
ts = v(18)
rinv = [v(19), v(20)]
X = [v(21 + i) for i in range(6)]
E = [v(28 + i) for i in range(4)]
vS = [v(32 + i) for i in range(4)]
vDX = [v(36 + i) for i in range(3)]
ET = [v(39), E[2], E[3]]
PA = [v(40, 8), v(48, 8)]
PB = v(56, 8)
SA = v(64, 16)
SB = [v(80, 16), v(96, 16)]
STG = v(208, 48)
Qc = a(96, 96)
FR = [a(192 + 4 * i, 4) for i in range(6)]
SQ = [a(216 + 4 * i, 4) for i in range(8)]
OT = []
for _t in range(6):
    OT += [v(112 + 16 * _t, 16), a(16 * _t, 16)]

ptrQ, ptrK, ptrV, ptrO = s(4, 2), s(6, 2), s(8, 2), s(10, 2)
srdK, srdV, srdQ, srdO = s(12, 4), s(16, 4), s(20, 4), s(24, 4)
sBG, sH, sKO, sQO, sQOcur, sNrec, sTrip, sC, sNegC, sThr, sMagic, sW = [s(28 + i) for i in range(12)]
sRet = s(40, 2)
m0K = [s(42 + i) for i in range(4)]
sStage, sQB = s(46), s(47)
m0V = [s(48 + i) for i in range(4)]
sT = ["0"] + [s(51 + t) for t in range(1, 16)]
srdD = s(68, 4)
sStamp = s(72, 2)
sPC = s(76, 2)
sG = [[s(80 + 4 * x + j) for j in range(4)] for x in range(2)]
sM = [s(88 + j) for j in range(4)]
sTmp = s(92)

SCALE_C = math.log2(math.e) / math.sqrt(192.0)


def Qreg(base, ks, x):
    return base[ks * 8 + x * 4: ks * 8 + x * 4 + 4]


def dma(srd, voff, soff, c, tag):
    off = f" offset:{c * 1024}" if c else ""
    return I(f"buffer_load_dwordx4 {voff}, {srd}, {soff} offen{off}{OPT['kv_nt']} lds", "vmem",
             rd=[voff, srd, soff, "m0"], tag=tag)


def setm0(x):
    return salu("s_mov_b32", "m0", x)


def gvoff(jj, c):
    return vDX[c] if jj & 1 else vDK[c]


def qdma(x, jj, c, tag, need=None):
    off = f" offset:{c * 1024}" if c else ""
    vo = gvoff(jj, c)
    return I(f"buffer_load_dwordx4 {vo}, {srdQ}, {sG[x][jj]} offen{off}{OPT['q_nt']} lds", "vmem",
             rd=[vo, srdQ, sG[x][jj], "m0"], tag=tag, needl=need)


def qread(dst, ks, addr, tag, need=None):
    off = (ks // 4) * 128
    return I(f"ds_read_b128 {dst}, {addr[ks % 4]} offset:{off}", "ds", rd=[addr[ks % 4]], wr=[dst], tag=tag, needv=need)


def owrite(src, ch):
    off = (ch // 4) * 128
    return I(f"ds_write_b128 {vS[ch % 4]}, {src} offset:{off}", "ds", rd=[vS[ch % 4], src], cost=24)


def oread(dst, jj, c, tag):
    return I(f"ds_read_b128 {dst}, {vLin[jj & 1]} offset:{jj * 3072 + c * 1024}", "ds", rd=[vLin[jj & 1]], wr=[dst], tag=tag)


def ostore(src, x, jj, c, need):
    off = f" offset:{c * 1024}" if c else ""
    vo = gvoff(jj, c)
    return I(f"buffer_store_dwordx4 {src}, {vo}, {srdO}, {sG[x][jj]} offen{off}{OPT['o_nt']}", "vmem",
             rd=[src, vo, srdO, sG[x][jj]], flags=["wide"], cost=20, needl=need)


def kread(g, f, tile):
    ks = f
    off = KBASE + KSLOT[tile % 16] * TILE + (ks // 4) * 128
    d = FR[f % 6]
    return [I(f"ds_read_b128 {d}, {vK[ks % 4]} offset:{off}", "ds", rd=[vK[ks % 4]], wr=[d], tag=("F", g, f))]


def vread(g, f, tile):
    idx = f - 12
    t, st = idx // 2, idx % 2
    d = FR[f % 6]
    out = []
    for jj in range(2):
        off = VSLOT[tile % 16] * TILE + (16 * st + 8 * jj) * 384 + t * 64
        out.append(I(f"ds_read_b64_tr_b16 {d[2 * jj:2 * jj + 2]}, {vV[t % 2]} offset:{off}", "ds", rd=[vV[t % 2]],
                     wr=[d[2 * jj:2 * jj + 2]], tag=("F", g, f) if jj == 1 else None))
    return out


def max_tree(S, u, w):
    return [
        valu("v_max3_f32", u, S[0], S[1], S[2]),
        valu("v_max3_f32", w, S[3], S[4], S[5]),
        valu("v_max3_f32", u, u, S[6], S[7]),
        valu("v_max3_f32", w, w, S[8], S[9]),
        valu("v_max3_f32", u, u, S[10], S[11]),
        valu("v_max3_f32", w, w, S[12], S[13]),
        valu("v_max3_f32", u, u, S[14], S[15]),
        valu("v_max_f32", u, u, w),
    ]


def swap(u, w):
    return I(f"v_permlane32_swap_b32 {u}, {w}", "valu", rd=[u, w], wr=[u, w])


def max_init(x, S):
    u, w = E[0], E[1]
    return max_tree(S, u, w) + [
        valu("v_mov_b32", w, u),
        nop(1),
        swap(u, w),
        valu("v_max_f32", u, u, w),
        valu("v_mul_f32", negmc[x], sNegC, u),
    ]


def exp_stream(x, S, P, acc):
    out = []
    T = lambda i: X[i % 6]
    for i in range(16 + 3):
        if i < 16:
            out.append(valu("v_fma_f32", T(i), S[i], sC, negmc[x]))
        if 0 <= i - 1 < 16:
            out.append(trans("v_exp_f32", T(i - 1), T(i - 1)))
        j = i - 3
        if 0 <= j < 16:
            if j == 1:
                out.append(valu("v_add_f32", acc, T(0), T(1)))
            elif j >= 2:
                out.append(valu("v_add_f32", acc, acc, T(j)))
            if j % 2 == 1:
                out.append(valu("v_cvt_pk_bf16_f32", P[j // 2], T(j - 1), T(j)))
    return out


TRAMPS = []


def softmax(x, tile, site):
    par = tile % 2
    S = SA if x == 0 else SB[par]
    P = PA[par] if x == 0 else PB
    if tile == 0:
        return max_init(x, S) + exp_stream(x, S, P, lsum[x]), []
    items = exp_stream(x, S, P, ts)
    name = f"{site}_{'AB'[x]}"
    if (name, x, par) not in TRAMPS:
        TRAMPS.append((name, x, par))
    items.append(I(f"v_cmp_nge_f32 vcc, {sThr}, {ts}", "valu", rd=[sThr, ts], wr=["vcc"]))
    tail = [
        I(f"s_cbranch_vccnz L_tr_{name}", "branch", rd=["vcc"]),
        label(f"L_ret_{name}"),
        valu("v_add_f32", lsum[x], lsum[x], ts),
    ]
    return items, tail


def rinv_stream(x):
    u = E[2]
    return [
        valu("v_mov_b32", u, lsum[x]),
        nop(1),
        swap(u, lsum[x]),
        valu("v_add_f32", u, u, lsum[x]),
        trans("v_rcp_f32", rinv[x], u),
    ]


def epi_tile(e, earliest=None, latest=None):
    t, x = e // 2, e % 2
    O = OT[e]
    out = []
    if O.f == "a":
        D = STG[t * 8: t * 8 + 8]
        for i in range(8 + 2):
            if i < 8:
                out.append(valu("v_accvgpr_read_b32", D[i], O[2 * i], latest=latest))
                out.append(valu("v_accvgpr_read_b32", ET[i % 3], O[2 * i + 1], latest=latest))
            j = i - 2
            if 0 <= j < 8:
                out.append(valu("v_cvt_pk_bf16_f32", D[j], D[j], ET[j % 3]))
            j = i - 1
            if 0 <= j < 8:
                out.append(valu("v_mul_f32", D[j], D[j], rinv[x]))
                out.append(valu("v_mul_f32", ET[j % 3], ET[j % 3], rinv[x]))
    else:
        for i in range(16 + 3):
            if i < 16:
                out.append(valu("v_mul_f32", O[i], O[i], rinv[x], latest=latest))
            j = i - 2
            if 0 <= j < 16 and j % 2 == 1:
                out.append(valu("v_cvt_pk_bf16_f32", O[j // 2], O[j - 1], O[j], latest=latest))
            if i == 11 or i == 18:
                jj = 0 if i == 11 else 1
                w = owrite(O[4 * jj: 4 * jj + 4], 2 * t + jj)
                w.latest = latest
                out.append(w)
    out[0].earliest = earliest
    return out


def rare(x, par):
    S = SA if x == 0 else SB[par]
    P = PA[par] if x == 0 else PB
    u, w, f = X[0], X[1], X[5]
    o = [label(f"L_rare_{'AB'[x]}{par}"), nop(15)]
    o += max_tree(S, u, w)
    o += [valu("v_fma_f32", u, u, sC, negmc[x]), valu("v_mov_b32", w, u), nop(1), swap(u, w),
          valu("v_max3_f32", u, u, w, "0"),
          valu("v_sub_f32", negmc[x], negmc[x], u),
          trans("v_exp_f32", f, f"-{u}", extra_rd=[u]), nop(0),
          valu("v_mul_f32", lsum[x], lsum[x], f)]
    for t in range(6):
        O = OT[2 * t + x]
        for i in range(16):
            if O.f == "a":
                tt = X[i % 4]
                o += [valu("v_accvgpr_read_b32", tt, O[i]), valu("v_mul_f32", tt, tt, f),
                      valu("v_accvgpr_write_b32", O[i], tt)]
            else:
                o.append(valu("v_mul_f32", O[i], O[i], f))
    o += exp_stream(x, S, P, ts)
    o += [nop(3), I(f"s_setpc_b64 {sRet}", "branch", rd=[sRet])]
    return o


def add_qk(u, g, tile, qwait=None):
    base = len(u.heads)
    Sb = SB[tile % 2]
    for ks in range(12):
        fr = FR[ks % 6]
        u.add_gap(mfma(SA, fr, Qreg(Qc, ks, 0), SA if ks else 0))
        m = mfma(Sb, fr, Qreg(Qc, ks, 1), Sb if ks else 0)
        if tile == 0:
            m.needl = [("QB", (g + 1) // 16, ks)]
        u.add_gap(m)
    return base


def add_pv(u, g, t):
    base = len(u.heads)
    for tt in range(6):
        for st in range(2):
            fr = FR[(12 + tt * 2 + st) % 6]
            z = (t == 0 and st == 0)
            oa, ob = OT[2 * tt], OT[2 * tt + 1]
            u.add_gap(mfma(oa, fr, PA[t % 2][4 * st:4 * st + 4], 0 if z else oa))
            u.add_gap(mfma(ob, fr, PB[4 * st:4 * st + 4], 0 if z else ob))
    return base


def frag_read(g, t, f):
    if f < 12:
        return kread(g, f, t + 1)
    if f < 24:
        return vread(g, f, t)
    return kread(g + 1, f - 24, t + 2)


def ftag(g, f):
    return ("F", g, f) if f < 24 else ("F", g + 1, f - 24)


def stamp(idx, real=False):
    if not OPT["stamp"]:
        return []
    if OPT["stamp"] == 2 and idx not in (0, 1, 15, 16, 17, 18, 19, 56, 60, 61):
        return []
    op = "s_memrealtime" if real else "s_memtime"
    return [I(f"{op} {sStamp}", "salu", wr=[sStamp]), I("s_waitcnt lgkmcnt(0)", "salu"),
            valu("v_mov_b32", E[3], sStamp[0]),
            I(f"buffer_store_dword {E[3]}, v0, {srdD}, {sH} offen offset:{idx * 4}", "vmem", rd=[E[3], "v0", srdD])]


def add_iter(u, b, t, site):
    g = b * 16 + t
    base = add_qk(u, g, (t + 1) % 16)
    add_pv(u, g, t)
    for f in range(24):
        k = base + 2 * f + 1
        u.pin[k] += frag_read(g, t, f + 6)
        if f % 2 == 1:
            u.pin[k].append(waitl(ftag(g, f + 1), ftag(g, f + 2)))
    tk, tv = (t + KD) % 16, (t + VD) % 16
    u.tail[base + OPT["kgaps"][0] - 1].append(setm0(m0K[KSLOT[tk]]))
    for c, k in enumerate(OPT["kgaps"]):
        u.pin[base + k].append(dma(srdK, vDK[c], sT[tk], c, ("K", g + KD)))
    u.tail[base + OPT["vgaps"][0] - 1].append(setm0(m0V[VSLOT[tv]]))
    for c, k in enumerate(OPT["vgaps"]):
        u.pin[base + k].append(dma(srdV, vDV[c], sT[tv], c, ("V", g + VD)))
    def drain_reads(n, gaps):
        for x, key in ((0, "oa_slots"), (1, "ob_slots")):
            if n in OPT[key]:
                jj = OPT[key].index(n)
                for c, k in enumerate(gaps):
                    u.pin[base + k].insert(0, oread(SQ[(jj * 3 + c) % 8], jj, c, ("OR", b, x, jj, c)))
    drain_reads(2 * t + 1, OPT["rgaps"][1])
    drain_reads(2 * t + 2, OPT["rgaps"][0])
    for half in range(2):
        n = 2 * t + half
        gaps = OPT["sgaps"][half]
        for x, key in ((0, "oa_slots"), (1, "ob_slots")):
            if n in OPT[key]:
                jj = OPT[key].index(n)
                for c, k in enumerate(gaps):
                    u.pin[base + k].append(ostore(SQ[(jj * 3 + c) % 8], x, jj, c, [("OR", b, x, jj, c)]))
        for x, key in ((0, "qa_slots"), (1, "qb_slots")):
            if n in OPT[key]:
                jj = OPT[key].index(n)
                u.tail[base + gaps[0] - 1].append(setm0(sM[jj]))
                need = [("OR", b, 1, 3, 2)] if x == 0 else [("QA", b + 1, 11)]
                for c, k in enumerate(gaps):
                    u.pin[base + k].append(qdma(x, jj, c, ("QD", b + 1, x), need))
    if t in OPT["obw"]:
        n0 = sum(len(OPT["obw"][tt]) for tt in OPT["obw"] if tt < t)
        for i, k in enumerate(OPT["obw"][t]):
            ch = n0 + i
            u.pin[base + k].insert(0, owrite(STG[ch * 4: ch * 4 + 4], ch))
    if t == OPT["qar_iter"]:
        u.pin[base + 0].append(waitv(("QD", b + 1, 0)))
        for ks in range(12):
            u.pin[base + 2 * ks].append(qread(STG[ks * 4: ks * 4 + 4], ks, vS, ("QA", b + 1, ks), [("QD", b + 1, 0)]))
    if t == 14:
        u.pin[base + 24].append(waitv(("QD", b + 1, 1)))
        for ks in range(12):
            u.pin[base + 24 + 2 * ks].append(qread(Qreg(Qc, ks, 1), ks, vS, ("QB", b + 1, ks), [("QD", b + 1, 1)]))
    u.pin[base + OPT["bar_gap"]] += [waitv(("K", g + 3), ("V", g + 1)), barrier()]
    it, tl = softmax(1, t, site)
    u.streams.append(Stream(it, base + 0, base + 23, prio=0.05))
    u.tail[base + 23] += tl
    it, tl = softmax(0, (t + 1) % 16, site)
    u.streams.append(Stream(it, base + 25, base + 47, prio=0.05))
    u.tail[base + 47] += tl
    if t == 1:
        sl = [salu("s_mov_b32", sQOcur, sQO),
              salu("s_add_u32", sBG, sBG, "32", scc_w=True),
              salu("s_mul_hi_u32", sKO, sBG, sMagic),
              salu("s_mul_i32", sKO, sKO, "196608"),
              salu("s_mul_i32", sQO, sBG, "98304"),
              I(f"s_cmp_lt_u32 {sTrip}, 2", "salu", rd=[sTrip], wr=["scc"]),
              salu("s_cselect_b32", sNrec, "196608", "0", scc_r=True),
              salu("s_cselect_b32", srdQ[2], "98304", "0", scc_r=True),
              salu("s_add_u32", srdQ[0], ptrQ[0], sQO, scc_w=True),
              salu("s_addc_u32", srdQ[1], ptrQ[1], "0", scc_w=True, scc_r=True)]
        u.streams.append(Stream(sl, base + 12, base + 40))
    if t == 15 - KD:
        sl = [salu("s_add_u32", srdK[0], ptrK[0], sKO, scc_w=True),
              salu("s_addc_u32", srdK[1], ptrK[1], "0", scc_w=True, scc_r=True),
              salu("s_mov_b32", srdK[2], sNrec)]
        u.streams.append(Stream(sl, base + OPT["kgaps"][-1] + 1, base + 40))
    if t == 15 - VD:
        sl = [salu("s_add_u32", srdV[0], ptrV[0], sKO, scc_w=True),
              salu("s_addc_u32", srdV[1], ptrV[1], "0", scc_w=True, scc_r=True),
              salu("s_mov_b32", srdV[2], sNrec)]
        u.streams.append(Stream(sl, base + OPT["vgaps"][-1] + 1, base + 46))
    return base


def qcopy(ks_list, earliest_fn, latest_fn):
    out = []
    for ks in ks_list:
        for i in range(4):
            out.append(valu("v_accvgpr_write_b32", Qreg(Qc, ks, 0)[i], STG[ks * 4 + i],
                            earliest=earliest_fn(ks, 0), latest=latest_fn(ks, 0)))
    return out


def set_osrd():
    return [salu("s_add_u32", srdO[0], ptrO[0], sQOcur, scc_w=True),
            salu("s_addc_u32", srdO[1], ptrO[1], "0", scc_w=True, scc_r=True),
            salu("s_mov_b32", srdO[2], "98304")]


QC_SPLIT = 8


def unit_mid(b, t):
    u = Unit(f"T{t}")
    if t == 1:
        u.pre.append(label("L_loop"))
    u.pre += stamp_at(t)
    base = add_iter(u, b, t, f"T{t}")
    if t == 14:
        u.streams.append(Stream(qcopy(range(QC_SPLIT), lambda ks, x: base + 2 * ks + x, lambda ks, x: None),
                                base + 1, base + 47))
        u.post += [I(f"s_cmp_eq_u32 {sTrip}, 2", "salu", rd=[sTrip], wr=["scc"]),
                   I("s_cbranch_scc1 L_fin", "branch", rd=["scc"])]
    return u


def stamp_at(t):
    return stamp(t)


def unit_x(b):
    u = Unit("X")
    u.pre += stamp_at(15)
    b15 = add_iter(u, b, 15, "T15")
    b0 = add_iter(u, b + 1, 0, "T0")
    u.streams.append(Stream(qcopy(range(QC_SPLIT, 12), lambda ks, x: None, lambda ks, x: b15 + 2 * ks + x - 2),
                            b15 + 0, b15 + 20))
    u.streams.append(Stream(rinv_stream(0), b15 + 2, b15 + 20))
    u.streams.append(Stream(rinv_stream(1), b15 + 24, b15 + 27, prio=0.5))
    ep = []
    for e in range(12):
        tt, x = e // 2, e % 2
        ep += epi_tile(e, earliest=max(b15 + 24 + 4 * tt + 2 + x + 3, b15 + 28), latest=b0 + 24 + 4 * tt + x - 1)
    u.streams.append(Stream(ep, b15 + 29, b0 + 44))
    sl = set_osrd() + [salu("s_add_u32", sTrip, sTrip, "1", scc_w=True)]
    if OPT["stamp"]:
        sl.append(salu("s_add_u32", sH, sH, "64", scc_w=True))
    u.streams.append(Stream(sl, b0 + 2, b0 + 40))
    u.post.append(I("s_branch L_loop", "branch"))
    return u


def unit_pro():
    u = Unit("PRO")
    P = u.pre
    tid, lane, q32, h, t0, t1, t2 = v(0), X[0], X[1], X[2], X[3], X[4], X[5]
    sP = sNrec
    P += [I("s_cmp_ge_u32 s2, 256", "salu", rd=["s2"], wr=["scc"]),
          I("s_cbranch_scc1 L_end", "branch", rd=["scc"]),
          I("s_load_dwordx4 s[4:7], s[0:1], 0", "salu", wr=[s(4, 4)]),
          I("s_load_dwordx4 s[8:11], s[0:1], 16", "salu", wr=[s(8, 4)])]
    if OPT["stamp"]:
        P += [I(f"s_load_dwordx2 {srdD[0:2]}, s[0:1], 40", "salu"), I(f"s_memrealtime {s(94, 2)}", "salu")]
    if OPT.get("dbg"):
        P += [I(f"s_load_dwordx2 {srdD[0:2]}, s[0:1], 32", "salu"), I(f"s_memrealtime {s(94, 2)}", "salu"),
              I(f"s_memtime {s(96, 2)}", "salu")]
    P += [valu("v_lshrrev_b32", t0, "6", tid), valu("v_and_b32", lane, "63", tid),
          I(f"v_readfirstlane_b32 {sW}, {t0}", "valu", rd=[t0], wr=[sW]),
          valu("v_lshlrev_b32", t1, "4", lane)]
    P += [salu("s_and_b32", sBG, "s2", "7", scc_w=True),
          salu("s_mul_i32", sBG, sBG, "96"),
          salu("s_lshr_b32", sH, "s2", "3", scc_w=True),
          salu("s_add_u32", sBG, sBG, sH, scc_w=True),
          salu("s_mov_b32", sMagic, "0x55555556"),
          salu("s_mul_hi_u32", sKO, sBG, sMagic),
          salu("s_mul_i32", sKO, sKO, "196608"),
          salu("s_mul_i32", sQO, sBG, "98304")]
    P += [salu("s_and_b32", sP, sW, "1", scc_w=True), salu("s_mul_i32", sP, sP, "3072"),
          salu("s_mov_b32", sQB, str(VBASE + 2 * TILE)),
          I(f"s_cmp_eq_u32 {sW}, 0", "salu", rd=[sW], wr=["scc"]),
          salu("s_cselect_b32", sQB, str(KBASE + 3 * TILE), sQB, scc_r=True),
          I(f"s_cmp_eq_u32 {sW}, 2", "salu", rd=[sW], wr=["scc"]),
          salu("s_cselect_b32", sQB, str(VBASE + 3 * TILE), sQB, scc_r=True),
          I(f"s_cmp_eq_u32 {sW}, 3", "salu", rd=[sW], wr=["scc"]),
          salu("s_cselect_b32", sQB, str(SPARE), sQB, scc_r=True),
          salu("s_mul_i32", sW, sW, "3072")]
    for c in range(3):
        P += [valu("v_add_u32", t0, sW, t1) if c == 0 else valu("v_add_u32", t0, "1024", t0),
              valu("v_lshrrev_b32", t2, "7", t0),
              valu("v_mul_u32_u24", t2, "171", t2),
              valu("v_lshrrev_b32", t2, "10", t2),
              valu("v_and_b32", vDK[c], "7", t2),
              valu("v_lshlrev_b32", vDK[c], "4", vDK[c]),
              valu("v_xor_b32", vDK[c], vDK[c], t0),
              valu("v_and_b32", vDV[c], "1", t2),
              valu("v_lshlrev_b32", vDV[c], "6", vDV[c]),
              valu("v_xor_b32", vDV[c], vDV[c], t0)]
        if c:
            P += [valu("v_subrev_u32", vDK[c], str(c * 1024), vDK[c]),
                  valu("v_subrev_u32", vDV[c], str(c * 1024), vDV[c])]
        P.append(valu("v_xor_b32", vDX[c], "64", vDK[c]))
    P += [salu("s_lshl_b32", sStage, sW, "2", scc_w=True),
          salu("s_add_u32", sStage, sStage, str(STAGE), scc_w=True),
          salu("s_mul_i32", sH, sW, "7")]
    for jj in range(4):
        op = "s_sub_u32" if jj & 1 else "s_add_u32"
        P += [salu(op, sTmp, str(jj * 3072), sP, scc_w=True),
              salu("s_add_u32", sM[jj], sStage, sTmp, scc_w=True),
              salu("s_add_u32", sG[0][jj], sH, sTmp, scc_w=True),
              salu("s_add_u32", sG[1][jj], sG[0][jj], str(TILE), scc_w=True)]
    P += [salu("s_sub_u32", sTmp, sQB, sStage, scc_w=True)]
    for i in range(4):
        P.append(salu("s_add_u32", m0K[i], sW, str(KBASE + i * TILE), scc_w=True))
    P += [I("s_waitcnt lgkmcnt(0)", "salu")]
    for srd, ptr, off, n in ((srdK, ptrK, sKO, 196608), (srdQ, ptrQ, sQO, 98304), (srdV, ptrV, sKO, 196608)):
        P += [salu("s_add_u32", srd[0], ptr[0], off, scc_w=True),
              salu("s_addc_u32", srd[1], ptr[1], "0", scc_w=True, scc_r=True),
              salu("s_mov_b32", srd[2], str(n)), salu("s_mov_b32", srd[3], "0x00020000")]

    def ktile(t):
        return [setm0(m0K[KSLOT[t]]), nop(0)] + [dma(srdK, vDK[c], sT[t], c, ("K", t)) for c in range(3)]

    def vtile(t):
        return [setm0(m0V[VSLOT[t]]), nop(0)] + [dma(srdV, vDV[c], sT[t], c, ("V", t)) for c in range(3)]

    P += ktile(0)
    for jj in range(4):
        P += [setm0(sM[jj]), nop(0)] + [qdma(0, jj, c, ("QD", 0, 0)) for c in range(3)]
    for jj in range(4):
        P += [salu("s_add_u32", "m0", sM[jj], sTmp, scc_w=True), nop(0)] + [qdma(1, jj, c, ("QD", 0, 1)) for c in range(3)]
    for i in range(4):
        P.append(salu("s_add_u32", m0V[i], sW, str(VBASE + i * TILE), scc_w=True))
    for t in range(1, 16):
        P.append(salu("s_mov_b32", sT[t], str(t * TILE)))
    P += ktile(1) + vtile(0) + ktile(2)
    if OPT["codewarm"]:
        P += [I(f"s_getpc_b64 {sPC}", "salu", wr=[sPC]),
              label("L_pc"),
              I(f"s_sub_u32 {sPC[0]}, {sPC[0]}, L_pc-{KNAME}", "salu", rd=[sPC], wr=[sPC, "scc"]),
              I(f"s_subb_u32 {sPC[1]}, {sPC[1]}, 0", "salu", rd=[sPC, "scc"], wr=[sPC, "scc"]),
              salu("s_lshr_b32", sH, "s2", "3", scc_w=True),
              salu("s_lshl_b32", sH, sH, "11", scc_w=True),
              valu("v_lshlrev_b32", t2, "3", tid),
              valu("v_add_u32", t2, sH, t2),
              I(f"v_min_u32 {t2}, L_code_end-{KNAME}-8, {t2}", "valu", rd=[t2], wr=[t2]),
              I(f"global_load_dwordx2 {SQ[7][0:2]}, {t2}, {sPC}", "vmem", rd=[t2, sPC], wr=[SQ[7][0:2]])]
    P += vtile(1)
    P += [salu("s_mov_b32", srdO[0], ptrO[0]), salu("s_mov_b32", srdO[1], ptrO[1]),
          salu("s_mov_b32", srdO[2], "0"), salu("s_mov_b32", srdO[3], "0x00020000"),
          salu("s_mov_b32", sTrip, "0"),
          salu("s_mov_b32", sC, hex(f2u(SCALE_C))), salu("s_mov_b32", sNegC, hex(f2u(-SCALE_C))),
          salu("s_mov_b32", sThr, hex(f2u(OPT["thr"])))]
    P += [valu("v_add_u32", t1, sStage, t1), valu("v_add_u32", vLin[0], sP, t1), valu("v_subrev_u32", vLin[1], sP, t1)]
    P += [valu("v_and_b32", q32, "31", lane), valu("v_lshrrev_b32", h, "5", lane),
          valu("v_mul_u32_u24", t0, "384", q32)]
    P += [valu("v_lshrrev_b32", t1, "1", q32), valu("v_and_b32", t1, "7", t1), valu("v_xor_b32", t1, t1, h)]
    for i in range(4):
        P += [valu("v_xor_b32", t2, str(2 * i), t1), valu("v_lshlrev_b32", t2, "4", t2),
              valu("v_add_u32", vK[i], t0, t2), valu("v_add_u32", vS[i], sStage, vK[i]),
              valu("v_add_u32", STG[i], sQB, vK[i])]
    r, g_, xx = q32, t1, t2
    P += [valu("v_bfe_u32", r, lane, "2", "2"),
          valu("v_lshl_add_u32", t0, h, "2", r),
          valu("v_mul_u32_u24", t0, "384", t0),
          valu("v_bfe_u32", g_, lane, "4", "1"), valu("v_lshlrev_b32", g_, "5", g_),
          valu("v_add_u32", t0, t0, g_),
          valu("v_and_b32", g_, "1", lane), valu("v_lshlrev_b32", g_, "4", g_),
          valu("v_add_u32", t0, t0, g_),
          valu("v_bfe_u32", g_, lane, "1", "1"), valu("v_lshlrev_b32", g_, "3", g_),
          valu("v_add_u32", t0, t0, g_),
          valu("v_add_u32", t0, str(VBASE), t0),
          valu("v_lshrrev_b32", xx, "1", r), valu("v_lshlrev_b32", xx, "6", xx),
          valu("v_add_u32", vV[0], t0, xx), valu("v_sub_u32", vV[1], t0, xx)]
    if OPT["stamp"]:
        P += [salu("s_mov_b32", srdD[2], "0x1000000"), salu("s_mov_b32", srdD[3], "0x00020000"),
              valu("v_lshrrev_b32", tid, "6", tid), valu("v_lshlrev_b32", tid, "8", tid),
              salu("s_lshl_b32", sH, "s2", "10", scc_w=True), valu("v_add_u32", tid, sH, tid),
              salu("s_mov_b32", sH, "0"),
              valu("v_mov_b32", E[3], s(94)),
              I(f"buffer_store_dword {E[3]}, v0, {srdD}, 0 offen offset:{57 * 4}", "vmem", rd=[E[3], "v0", srdD])]
    P += stamp(60) + stamp(56, True)
    P += [waitv(("QD", 0, 0))]
    for ks in range(12):
        P.append(qread(Qreg(Qc, ks, 0), ks, vS, ("QA", 0, ks)))
    P += [waitv(("QD", 0, 1))]
    for ks in range(12):
        P.append(qread(Qreg(Qc, ks, 1), ks, [STG[i] for i in range(4)], ("QB", 0, ks)))
    P += [waitl(("QB", 0, 11)), barrier()]
    for f in range(6):
        P += kread(-1, f, 0)
    P += ktile(3) + vtile(2)
    P += [waitl(("F", -1, 0), ("F", -1, 1))]
    P += stamp(61)
    if OPT.get("dbg"):
        P += [I(f"s_memrealtime {s(98, 2)}", "salu"), I("s_waitcnt lgkmcnt(0)", "salu")]
    base = add_qk(u, -1, 0)
    for f in range(12):
        k = base + 2 * f + 1
        if f + 6 < 12:
            u.pin[k] += kread(-1, f + 6, 0)
        if f % 2 == 1 and f + 1 < 12:
            u.pin[k].append(waitl(("F", -1, f + 1), ("F", -1, f + 2)))
    k = u.add_gap(None)
    u.pin[k] += [waitv(("K", 1), ("K", 2), ("V", 0)), barrier()]
    for f in range(6):
        u.pin[k] += kread(0, f, 1)
    it, tl = softmax(0, 0, "PRO")
    u.pin[k] += it + [waitl(("F", 0, 0), ("F", 0, 1))]
    u.pin[k] += stamp(0)
    u.win0 = len(u.heads)
    add_iter(u, 0, 0, "T0p")
    return u


def unit_fin(b):
    u = Unit("FIN")
    g, t = b * 16 + 15, 15
    u.pre.append(label("L_fin"))
    u.pre += stamp_at(15)
    for f in range(12, 18):
        u.pre += vread(g, f, t)
    it, tl = softmax(1, 15, "T15f")
    u.pre += rinv_stream(0) + set_osrd() + it + tl + [waitl(("F", g, 12), ("F", g, 13))]
    base = add_pv(u, g, t)
    for f in range(12, 24):
        k = base + 2 * (f - 12) + 1
        if f + 6 < 24:
            u.pin[k] += vread(g, f + 6, t)
        if f % 2 == 1 and f + 1 < 24:
            u.pin[k].append(waitl(("F", g, f + 1), ("F", g, f + 2)))
    last = u.add_gap(None)
    u.streams.append(Stream(rinv_stream(1), base, base + 3, prio=0.5))
    ep = []
    for tt in range(6):
        ep += epi_tile(2 * tt, earliest=min(last, max(base + 4 * tt + 2 + 3, base + 4)))
    u.streams.append(Stream(ep, base + 4, last, prio=1.0))
    u.fixed_budget = True
    Z = [Qc[4 * i: 4 * i + 4] for i in range(24)]
    po = u.post
    steps = [(jj, c) for jj in range(4) for c in range(3)]
    for n, (jj, c) in enumerate(steps):
        po.append(oread(Z[n], jj, c, ("OR", b + 1, 0, jj, c)))
    for tt in range(6):
        po += epi_tile(2 * tt + 1)
        for n in (2 * tt, 2 * tt + 1):
            jj, c = steps[n]
            if n == 0:
                po.append(waitl(("OR", b + 1, 0, 3, 2)))
            po.append(ostore(Z[n], 0, jj, c, [("OR", b + 1, 0, jj, c)]))
        for ch in (2 * tt, 2 * tt + 1):
            po.append(owrite(STG[ch * 4: ch * 4 + 4], ch))
    for n, (jj, c) in enumerate(steps):
        po.append(oread(Z[12 + n], jj, c, ("OR", b + 1, 1, jj, c)))
    for n, (jj, c) in enumerate(steps):
        po.append(waitl(("OR", b + 1, 1, jj, c)))
        po.append(ostore(Z[12 + n], 1, jj, c, [("OR", b + 1, 1, jj, c)]))
    u.post += stamp(16) + stamp(17, True)
    if OPT["stamp"]:
        u.post += [I("s_waitcnt vmcnt(0)", "salu")] + stamp(18) + stamp(19, True)
    if OPT.get("dbg"):
        u.post += [I("s_cmp_ge_u32 s2, 8", "salu"), I("s_cbranch_scc1 L_end", "branch"),
                   I(f"s_cmp_lg_u32 {sW}, 0", "salu"), I("s_cbranch_scc1 L_end", "branch"),
                   I("s_waitcnt vmcnt(0)", "salu"), I(f"s_memrealtime {sStamp}", "salu"), I(f"s_memtime {sPC}", "salu"),
                   I("s_waitcnt lgkmcnt(0)", "salu"),
                   salu("s_mov_b32", srdD[2], "256"), salu("s_mov_b32", srdD[3], "0x00020000"),
                   I("s_mov_b64 exec, 1", "salu"),
                   salu("s_sub_u32", sTmp, sStamp[0], s(94)), salu("s_sub_u32", sH, s(98), s(94)),
                   salu("s_mul_i32", sH, sH, "100000"), salu("s_add_u32", sTmp, sTmp, sH),
                   valu("v_mov_b32", E[2], sTmp),
                   salu("s_sub_u32", sTmp, sPC[0], s(96)), valu("v_mov_b32", E[3], sTmp),
                   salu("s_lshl_b32", sTmp, "s2", "3"),
                   I(f"buffer_store_dwordx2 {v(30, 2)}, off, {srdD}, {sTmp}", "vmem", rd=[srdD])]
    u.post += [label("L_end"), I("s_endpgm", "branch")]
    return u


def build(extra):
    cache = {}

    def get(name, fn, first):
        u = fn()
        ins = u.schedule(verbose=first and VERB)
        out = []
        for idx, i in enumerate(ins):
            n = extra.get((name, idx), 0)
            if n:
                out.append(((name, idx, "nop"), nop(n - 1)))
            out.append(((name, idx), i))
        if first:
            cache[name] = out
        return out

    trace = list(get("PRO", unit_pro, True))
    for b in range(3):
        for t in range(1, 15):
            trace += get(f"T{t}", lambda: unit_mid(b, t), b == 0)
        if b < 2:
            trace += get("X", lambda: unit_x(b), b == 0)
    trace += get("FIN", lambda: unit_fin(2), True)
    order = ["PRO"] + [f"T{t}" for t in range(1, 15)] + ["X", "FIN"]
    return [(n, cache[n]) for n in order], trace


VERB = False
extra = {}
for it in range(60):
    static, trace = build(extra)
    hz = hazards([i for _, i in trace])
    if not hz:
        break
    upd = {}
    lastj = -100
    for j, need, why in hz:
        key = trace[j][0]
        if j != lastj and j - lastj < 24:
            continue
        lastj = j
        upd[key] = max(upd.get(key, 0), need)
        if OPT.get("showhz"):
            print("; hazard:", key, need, why, file=sys.stderr)
    for k, n in upd.items():
        extra[k] = extra.get(k, 0) + n
else:
    raise SystemExit("hazards did not converge")
if OPT.get("verb"):
    VERB = True
    _so = sys.stdout
    sys.stdout = sys.stderr
    build(extra)
    sys.stdout = _so
    print("; nops inserted:", extra, file=sys.stderr)
W = resolve_waits(trace)
_bad = check_coverage(trace, W)
assert not _bad, _bad[:10]
if OPT.get("verb") and "_mismatch" in W:
    print("; wait mismatches:", W["_mismatch"], file=sys.stderr)

out = []
A = out.append
A(open(os.path.join(os.path.dirname(os.path.abspath(__file__)), "header.txt")).read().rstrip())
A(f"; @launch grid=(256,1,1) block=(256,1,1) lds={LDS_BYTES}")
A('.amdgcn_target "amdgcn-amd-amdhsa--gfx950"')
A(".text")
A(f".globl {KNAME}")
A(".p2align 8")
A(f".type {KNAME},@function")
A(f"{KNAME}:")
for name, ins in static:
    A(f"; ---- {name} ----")
    for key, i in ins:
        t = i.text
        if i.kind == "wait":
            l, vv = W[key]
            t = "s_waitcnt " + (f"lgkmcnt({l})" if l is not None else f"vmcnt({vv})")
        A(t if i.kind == "label" else "    " + t)
for name, x, par in TRAMPS:
    A(f"L_tr_{name}:")
    A(f"    s_call_b64 {sRet}, L_rare_{'AB'[x]}{par}")
    A(f"    s_branch L_ret_{name}")
for x in range(2):
    for par in range(2):
        r = rare(x, par)
        hz = hazards(r)
        assert not hz, hz
        for i in r:
            A(i.text if i.kind == "label" else "    " + i.text)
A("L_code_end:")
A("    s_endpgm")
A(f""".section .rodata,"a"
.p2align 6
.amdhsa_kernel {KNAME}
  .amdhsa_next_free_vgpr 512
  .amdhsa_next_free_sgpr 102
  .amdhsa_accum_offset 256
  .amdhsa_group_segment_fixed_size 0
  .amdhsa_kernarg_size 48
  .amdhsa_user_sgpr_count 2
  .amdhsa_user_sgpr_kernarg_segment_ptr 1
  .amdhsa_system_sgpr_workgroup_id_x 1
  .amdhsa_float_denorm_mode_32 3
.end_amdhsa_kernel""")
print("\n".join(out))
```

```python
import re


def rl(f, lo, n=1):
    return [f"{f}{lo + i}" for i in range(n)]


class Reg:
    def __init__(self, f, lo, n=1):
        self.f, self.lo, self.n = f, lo, n

    def __getitem__(self, i):
        if isinstance(i, slice):
            a = i.start or 0
            b = i.stop if i.stop is not None else self.n
            assert 0 <= a < b <= self.n, (a, b, self.n)
            return Reg(self.f, self.lo + a, b - a)
        assert 0 <= i < self.n, (i, self.n)
        return Reg(self.f, self.lo + i, 1)

    def __str__(self):
        if self.n == 1:
            return f"{self.f}{self.lo}"
        return f"{self.f}[{self.lo}:{self.lo + self.n - 1}]"

    def names(self):
        return rl(self.f, self.lo, self.n)


def names(*xs):
    out = []
    for x in xs:
        if isinstance(x, Reg):
            out += x.names()
        elif isinstance(x, str):
            if re.fullmatch(r"[vas]\d+|vcc|scc|m0|exec", x):
                out.append(x)
        elif isinstance(x, (list, tuple)):
            out += names(*x)
    return out


COST = dict(mfma=8, valu=4, trans=8, ds=4, vmem=12, salu=4, wait=4, nop=4, branch=4, barrier=8, label=0)


class I:
    def __init__(self, text, kind, rd=(), wr=(), tag=None, waitl=None, waitv=None, cost=None,
                 srcc=None, ab=None, earliest=None, latest=None, states=1, flags=(), needl=None, needv=None):
        self.text, self.kind = text, kind
        self.rd, self.wr = names(rd), names(wr)
        self.tag, self.waitl, self.waitv = tag, waitl, waitv
        self.cost = COST[kind] if cost is None else cost
        self.srcc = names(srcc) if srcc is not None else []
        self.ab = names(ab) if ab is not None else []
        self.earliest, self.latest = earliest, latest
        self.states = 0 if kind == "label" else states
        self.flags = set(flags)
        self.needl, self.needv = needl, needv

    def __repr__(self):
        return f"<{self.text}>"


def mfma(d, a, b, c):
    cs = str(c) if isinstance(c, Reg) else "0"
    return I(f"v_mfma_f32_32x32x16_bf16 {d}, {a}, {b}, {cs}", "mfma", rd=[a, b] + ([c] if isinstance(c, Reg) else []),
             wr=[d], srcc=[c] if isinstance(c, Reg) else [], ab=[a, b])


def valu(op, d, *src, kind="valu", extra_rd=(), extra_wr=(), **kw):
    ops = ", ".join(str(x) for x in (d,) + src)
    rd = [re.sub(r"^-", "", s) if isinstance(s, str) else s for s in src]
    return I(f"{op} {ops}", kind, rd=list(rd) + list(extra_rd), wr=[d] + list(extra_wr), **kw)


def trans(op, d, s, **kw):
    return valu(op, d, s, kind="trans", **kw)


def salu(op, d, *src, scc_w=False, scc_r=False, **kw):
    ops = ", ".join(str(x) for x in (d,) + src)
    return I(f"{op} {ops}", "salu", rd=list(src) + (["scc"] if scc_r else []), wr=[d] + (["scc"] if scc_w else []), **kw)


def nop(n=0):
    return I(f"s_nop {n}", "nop", states=n + 1, cost=4 * (n + 1))


def label(name):
    return I(f"{name}:", "label")


def waitl(*tags):
    return I("s_waitcnt lgkmcnt(?)", "wait", waitl=list(tags))


def waitv(*tags):
    return I("s_waitcnt vmcnt(?)", "wait", waitv=list(tags))


def barrier():
    return I("s_barrier", "barrier")


PK_AT = 36


class Stream:
    def __init__(self, items, start, end, prio=0):
        self.items, self.start, self.end, self.prio = list(items), start, end, prio
        self.pos = 0
        self.total = sum(i.cost for i in self.items)
        self.done = 0


class Unit:
    def __init__(self, name):
        self.name = name
        self.pre = []
        self.heads = []
        self.pin = []
        self.tail = []
        self.streams = []
        self.post = []
        self.win0 = 0
        self.fixed_budget = False

    def add_gap(self, m):
        self.heads.append(m)
        self.pin.append([])
        self.tail.append([])
        return len(self.heads) - 1

    def schedule(self, budget=24, window=24, verbose=False):
        n = len(self.heads)
        window = getattr(self, 'window', window)
        fixed = [sum(i.cost for i in self.pin[k]) + sum(i.cost for i in self.tail[k]) for k in range(n)]
        target = [float(budget)] * n
        demand = [0.0] * n
        for s in self.streams:
            ln = s.end - s.start + 1
            for k in range(s.start, s.end + 1):
                demand[k] += s.total / ln
        for w0 in range(self.win0, n, window):
            w1 = min(n, w0 + window)
            ks = [k for k in range(w0, w1) if demand[k] > 0]
            need = sum(demand[k] for k in ks)
            t = float(budget)
            while ks and sum(max(0.0, t - fixed[k]) for k in ks) < need * (1.04 if t == budget else 1.0):
                t += 1
            for k in range(w0, w1):
                target[k] = t
        free = [max(0.0, target[k] - fixed[k]) for k in range(n)]
        out = list(self.pre)
        emitted = set(id(i) for i in out)
        used = []
        carry = 0.0
        for k in range(n):
            if self.heads[k] is not None:
                out.append(self.heads[k])
            out += self.pin[k]
            over = target[k] > budget
            rem = free[k] + (carry if over else 0.0)
            tailc = sum(i.cost for i in self.tail[k])
            u = fixed[k] - tailc
            haspk = False
            nvalu = sum(1 for i in self.pin[k] if i.kind in ("valu", "trans"))

            def avail(s):
                if s.pos >= len(s.items) or k < s.start:
                    return None
                it = s.items[s.pos]
                if it.earliest is not None and k < it.earliest:
                    return None
                if getattr(it, "after", None) is not None and id(it.after) not in emitted:
                    return None
                return it

            while True:
                best, bestlag = None, None
                for s in self.streams:
                    it = avail(s)
                    if it is None:
                        continue
                    dl = min([x.latest for x in s.items[s.pos:] if x.latest is not None] + [s.end])
                    f = dl <= k
                    cap_tot = sum(free[s.start:s.end + 1]) or 1
                    cap_el = sum(free[s.start:min(k, s.end) + 1])
                    lag = cap_el / cap_tot - s.done / s.total + s.prio
                    fits = it.cost <= rem or (over and (rem > it.cost / 2.0 or u + tailc + it.cost <= budget))
                    ahead = lag - s.prio <= -0.02 and not (over and u + tailc < budget)
                    if "head" in it.flags and not f:
                        if nvalu or u > 8:
                            continue
                        lag += 300
                    elif ("pk" in it.flags and haspk) or (out and "pk" in out[-1].flags):
                        lag += 200 if "pk" in it.flags else 150
                    elif f:
                        lag += 100
                    elif (not fits and not ("pk" in it.flags and rem > 0)) or ahead:
                        continue
                    if best is None or lag > bestlag:
                        best, bestlag = s, lag
                if best is None:
                    break
                it = best.items[best.pos]
                if "pk" in it.flags and self.heads[k] is not None and u < PK_AT:
                    alt = [s for s in self.streams if s is not best and avail(s) is not None
                           and not (avail(s).flags & {"pk", "head"})]
                    if alt:
                        best = min(alt, key=lambda s: s.done / s.total - (k - s.start) / (s.end - s.start + 1))
                        it = best.items[best.pos]
                    else:
                        rem -= PK_AT - u
                        u = PK_AT
                if "pk" in it.flags:
                    haspk = True
                if it.kind in ("valu", "trans"):
                    nvalu += 1
                best.pos += 1
                best.done += it.cost
                rem -= it.cost
                u += it.cost
                out.append(it)
                emitted.add(id(it))
            carry = rem if over else 0.0
            u += tailc
            out += self.tail[k]
            used.append(u)
        for s in self.streams:
            assert s.pos == len(s.items), (self.name, "stream not drained", s.items[s.pos])
        out += self.post
        self.used = used
        if verbose:
            est = sum(max(32, 8 + u) if self.heads[k] is not None else u for k, u in enumerate(used))
        return out


def resolve_waits(trace):
    res = {}
    ds_idx, vm_idx = {}, {}
    nds = nvm = 0
    for key, ins in trace:
        if ins.kind == "ds":
            nds += 1
            if ins.tag is not None:
                ds_idx[ins.tag] = nds
        elif ins.kind == "vmem":
            nvm += 1
            if ins.tag is not None:
                vm_idx[ins.tag] = nvm
        elif ins.kind == "wait":
            l = v = None
            if ins.waitl is not None:
                need = max(ds_idx[t] for t in ins.waitl)
                l = min(15, nds - need)
            if ins.waitv is not None:
                need = max(vm_idx[t] for t in ins.waitv)
                v = min(63, nvm - need)
            if key in res:
                pl, pv = res[key]
                if (pl, pv) != (l, v):
                    res.setdefault("_mismatch", []).append((key, (pl, pv), (l, v)))
                l = None if l is None else min(l, pl)
                v = None if v is None else min(v, pv)
            res[key] = (l, v)
    return res


def is_valu(i):
    return i.kind in ("valu", "trans")


def hazards(seq):
    out = []
    n = len(seq)
    for j in range(n):
        c = seq[j]
        if c.kind in ("label", "nop", "wait", "barrier"):
            continue
        crd, cwr = set(c.rd), set(c.wr)
        dist = 0
        i = j - 1
        while i >= 0 and dist < 20:
            p = seq[i]
            pw = set(p.wr)
            need = 0
            why = ""
            if is_valu(p):
                if c.kind == "mfma" and pw & crd:
                    need, why = 2, "valu->mfma"
                if "pk" in p.flags and c.kind == "mfma":
                    need, why = max(need, 1), "pk->mfma"
                if p.kind == "trans" and c.kind == "valu" and pw & crd:
                    need, why = max(need, 1), "trans->valu"
                if "permlane" in c.text and pw & (crd | cwr):
                    need, why = max(need, 2), "valu->permlane"
                if ("readfirstlane" in c.text or "readlane" in c.text) and pw & crd:
                    need, why = max(need, 1), "valu->readlane"
                sw = {x for x in pw if x[0] == "s" or x == "vcc"}
                if sw & crd:
                    if is_valu(c):
                        need, why = max(need, 2), "valu sgpr->valu"
                    elif c.kind == "vmem":
                        need, why = max(need, 5), "valu sgpr->vmem"
            elif p.kind == "mfma":
                if c.kind == "mfma":
                    if pw & set(c.ab):
                        need, why = 12, "mfma D->AB"
                    elif pw & set(c.srcc) and set(c.srcc) != pw:
                        need, why = 10, "mfma D->C partial"
                    elif pw & cwr and not (set(c.srcc) == pw):
                        need = 0
                elif is_valu(c) or c.kind in ("ds", "vmem"):
                    if pw & (crd | cwr):
                        need, why = 12, "mfma D->other"
                    if is_valu(c) and set(p.srcc) & cwr:
                        need, why = max(need, 7), "mfma C WAR"
            elif p.kind == "salu":
                if "m0" in pw and c.kind == "vmem" and "m0" in crd:
                    need, why = 1, "m0->dma"
            elif p.kind == "vmem" and "store" in p.text:
                if set(p.flags) & {"wide"} and (set(p.rd) & cwr):
                    need, why = 2, "store data WAR"
            if need > dist:
                out.append((j, need - dist, why + f" [{p.text}] -> [{c.text}]"))
            dist += p.states
            i -= 1
    return out


def check_coverage(trace, W):
    ds_idx, vm_idx = {}, {}
    nds = nvm = 0
    dsdone = vmdone = 0
    bad = []
    for key, ins in trace:
        for t in (ins.needl or []):
            if t in ds_idx and ds_idx[t] > dsdone:
                bad.append((key, ins.text, "lgkm", t))
            if t not in ds_idx and not (isinstance(t, tuple) and t[1] < 0):
                bad.append((key, ins.text, "lgkm-missing", t))
        for t in (ins.needv or []):
            if t in vm_idx and vm_idx[t] > vmdone:
                bad.append((key, ins.text, "vm", t))
        if ins.kind == "ds":
            nds += 1
            if ins.tag is not None:
                ds_idx[ins.tag] = nds
        elif ins.kind == "vmem":
            nvm += 1
            if ins.tag is not None:
                vm_idx[ins.tag] = nvm
        elif ins.kind == "wait":
            l, v = W[key]
            if l is not None:
                dsdone = max(dsdone, nds - l)
            if v is not None:
                vmdone = max(vmdone, nvm - v)
        elif ins.text.startswith("s_waitcnt lgkmcnt(0)"):
            dsdone = nds
    return bad
```

```python
import sys, struct, math, os
sys.path.insert(0, os.path.dirname(os.path.abspath(__file__)))
from asmlib import *

KNAME = "standalone__gqa_softmax__near_ridge_kernel"
OPT = dict(
    sgaps=[[10, 14, 18], [36, 40, 44]],
    oa_slots=[3, 5, 7, 8], ob_slots=[18, 25, 27, 28], qa_slots=[10, 12, 14, 16], qb_slots=[21, 22, 23, 24],
    oa_rd=[(1, g) for g in (0, 8, 12, 16, 20, 22, 26, 30, 34)] + [(2, g) for g in (0, 0, 8)],
    ob_wr=[(2, g) for g in (10, 14, 18, 22, 30, 34)] + [(3, g) for g in (8, 12, 16, 20, 26, 30)],
    ob_rd=[(3, g) for g in (34, 38, 42)] + [(4, g) for g in (0, 8, 12, 16, 20, 22, 26, 30, 34)],
    qar_iter=10,
    kgaps=[2, 4, 6], vgaps=[24, 28, 32],
    bar_gap=46,
    thr=4096.0,
    stamp=0,
    codewarm=1,
    pk=1,
    kv_nt=" nt", q_nt=" nt", o_nt=" nt",
)
for a in sys.argv[1:]:
    if "=" in a:
        k, v = a.split("=", 1)
        OPT[k] = eval(v)

TILE = 12288
KSLOT = [0, 1, 2, 3] * 4
VSLOT = [0, 1, 2, 3] * 4
KBASE, VBASE, STAGE, SPARE = 0, 4 * TILE, 8 * TILE, 12 * TILE
LDS_BYTES = 13 * TILE
KD, VD = 4, 3
if OPT.get("twobar"):
    KD = 5
    OPT["kgaps"], OPT["vgaps"] = OPT.get("kgaps2", [26, 28, 32]), OPT.get("vgaps2", [2, 4, 6])


def f2u(x):
    return struct.unpack("<I", struct.pack("<f", x))[0]


v = lambda lo, n=1: Reg("v", lo, n)
a = lambda lo, n=1: Reg("a", lo, n)
s = lambda lo, n=1: Reg("s", lo, n)

vLin = [v(1), v(30)]
vK = [v(2 + i) for i in range(4)]
vV = [v(6), v(7)]
vDK = [v(8 + i) for i in range(3)]
vDV = [v(11 + i) for i in range(3)]
negmc = [v(14), v(15)]
lsum = [v(16), v(17)]
rinv2 = [v(18, 2), v(20, 2)]
rinv = [v(18), v(20)]
X = [v(22 + i) for i in range(6)]
E = [v(28), v(29), None, v(31)]
vS = [v(32 + i) for i in range(4)]
vDX = [v(36 + i) for i in range(3)]
ts = v(39)
PA = [v(40, 8), v(48, 8)]
PB = v(56, 8)
SA = v(64, 16)
SB = [v(80, 16), v(96, 16)]
STG = v(208, 48)
Qc = a(96, 96)
FR = [a(192 + 4 * i, 4) for i in range(6)]
JUNK = a(252, 4)
SQ = [a(216 + 4 * i, 4) for i in range(9)]
OT = []
for _t in range(6):
    OT += [v(112 + 16 * _t, 16), a(16 * _t, 16)]

ptrQ, ptrK, ptrV, ptrO = s(4, 2), s(6, 2), s(8, 2), s(10, 2)
srdK, srdV, srdQ, srdO = s(12, 4), s(16, 4), s(20, 4), s(24, 4)
sBG, sH, sKO, sQO, sQOcur, sNrec, sTrip, sC, sNegC, sThr, sMagic, sW = [s(28 + i) for i in range(12)]
sRet = s(40, 2)
m0K = [s(42 + i) for i in range(4)]
sStage, sQB = s(46), s(47)
m0V = [s(48 + i) for i in range(4)]
sT = ["0"] + [s(51 + t) for t in range(1, 16)]
srdD = s(68, 4)
sStamp = s(72, 2)
sPC = s(76, 2)
sG = [[s(80 + 4 * x + j) for j in range(4)] for x in range(2)]
sM = [s(88 + j) for j in range(4)]
sTmp = s(92)

SCALE_C = math.log2(math.e) / math.sqrt(192.0)


def Qreg(base, ks, x):
    return base[ks * 8 + x * 4: ks * 8 + x * 4 + 4]


def dma(srd, voff, soff, c, tag):
    off = f" offset:{c * 1024}" if c else ""
    return I(f"buffer_load_dwordx4 {voff}, {srd}, {soff} offen{off}{OPT['kv_nt']} lds", "vmem",
             rd=[voff, srd, soff, "m0"], tag=tag)


def setm0(x):
    return salu("s_mov_b32", "m0", x)


def gvoff(jj, c):
    return vDX[c] if jj & 1 else vDK[c]


def qdma(x, jj, c, tag, need=None):
    off = f" offset:{c * 1024}" if c else ""
    vo = gvoff(jj, c)
    return I(f"buffer_load_dwordx4 {vo}, {srdQ}, {sG[x][jj]} offen{off}{OPT['q_nt']} lds", "vmem",
             rd=[vo, srdQ, sG[x][jj], "m0"], tag=tag, needl=need)


def qread(dst, ks, addr, tag, need=None):
    off = (ks // 4) * 128
    return I(f"ds_read_b128 {dst}, {addr[ks % 4]} offset:{off}", "ds", rd=[addr[ks % 4]], wr=[dst], tag=tag, needv=need)


def owrite(src, ch):
    off = (ch // 4) * 128
    return I(f"ds_write_b128 {vS[ch % 4]}, {src} offset:{off}", "ds", rd=[vS[ch % 4], src], cost=OPT.get("wcost", 32))


def oread(dst, idx, tag):
    jj, c = idx // 3, idx % 3
    return I(f"ds_read_b128 {dst}, {vLin[jj & 1]} offset:{jj * 3072 + c * 1024}", "ds", rd=[vLin[jj & 1]], wr=[dst], tag=tag)


def ostore(src, x, idx, need):
    jj, c = idx // 3, idx % 3
    off = f" offset:{c * 1024}" if c else ""
    vo = gvoff(jj, c)
    return I(f"buffer_store_dwordx4 {src}, {vo}, {srdO}, {sG[x][jj]} offen{off}{OPT['o_nt']}", "vmem",
             rd=[src, vo, srdO, sG[x][jj]], flags=["wide"], cost=28, needl=need)


def obuf(x, idx):
    if x == 1 and idx < 3:
        return STG[4 * idx: 4 * idx + 4]
    return SQ[idx % 9]


def kread(g, f, tile):
    ks = f % 12
    off = KBASE + KSLOT[tile % 16] * TILE + (ks // 4) * 128
    d = FR[f % 6]
    return [I(f"ds_read_b128 {d}, {vK[ks % 4]} offset:{off}", "ds", rd=[vK[ks % 4]], wr=[d], tag=("F", g, f))]


def vread(g, f, tile):
    idx = f % 12
    t, st = idx // 2, idx % 2
    d = FR[f % 6]
    out = []
    for jj in range(2):
        off = VSLOT[tile % 16] * TILE + (16 * st + 8 * jj) * 384 + t * 64
        out.append(I(f"ds_read_b64_tr_b16 {d[2 * jj:2 * jj + 2]}, {vV[t % 2]} offset:{off}", "ds", rd=[vV[t % 2]],
                     wr=[d[2 * jj:2 * jj + 2]], tag=("F", g, f) if jj == 1 else None))
    return out


def max_tree(S, u, w):
    return [
        valu("v_max3_f32", u, S[0], S[1], S[2]),
        valu("v_max3_f32", w, S[3], S[4], S[5]),
        valu("v_max3_f32", u, u, S[6], S[7]),
        valu("v_max3_f32", w, w, S[8], S[9]),
        valu("v_max3_f32", u, u, S[10], S[11]),
        valu("v_max3_f32", w, w, S[12], S[13]),
        valu("v_max3_f32", u, u, S[14], S[15]),
        valu("v_max_f32", u, u, w),
    ]


def swap(u, w):
    return I(f"v_permlane32_swap_b32 {u}, {w}", "valu", rd=[u, w], wr=[u, w])


def max_init(x, S):
    u, w = E[0], E[1]
    return max_tree(S, u, w) + [
        valu("v_mov_b32", w, u),
        nop(1),
        swap(u, w),
        valu("v_max_f32", u, u, w),
        valu("v_mul_f32", negmc[x], sNegC, u),
    ]


def exp_stream(x, S, P, acc):
    out = []
    T = lambda i: X[i % 6]
    for i in range(16 + 3):
        if i < 16:
            out.append(valu("v_fma_f32", T(i), S[i], sC, negmc[x]))
        if 0 <= i - 1 < 16:
            out.append(trans("v_exp_f32", T(i - 1), T(i - 1)))
        j = i - 3
        if 0 <= j < 16:
            if j == 1:
                out.append(valu("v_add_f32", acc, T(0), T(1)))
            elif j >= 2:
                out.append(valu("v_add_f32", acc, acc, T(j)))
            if j % 2 == 1:
                out.append(valu("v_cvt_pk_bf16_f32", P[j // 2], T(j - 1), T(j)))
    return out


TRAMPS = []


def softmax(x, tile, site):
    par = tile % 2
    S = SA if x == 0 else SB[par]
    P = PA[par] if x == 0 else PB
    if tile == 0:
        return max_init(x, S) + exp_stream(x, S, P, lsum[x]), []
    items = exp_stream(x, S, P, ts)
    name = f"{site}_{'AB'[x]}"
    if (name, x, par) not in TRAMPS:
        TRAMPS.append((name, x, par))
    items.append(I(f"v_cmp_nge_f32 vcc, {sThr}, {ts}", "valu", rd=[sThr, ts], wr=["vcc"]))
    tail = [
        I(f"s_cbranch_vccnz L_tr_{name}", "branch", rd=["vcc"]),
        label(f"L_ret_{name}"),
        valu("v_add_f32", lsum[x], lsum[x], ts),
    ]
    return items, tail


def rinv_stream(x):
    u = rinv2[x][1]
    return [
        valu("v_mov_b32", u, lsum[x]),
        nop(1),
        swap(u, lsum[x]),
        valu("v_add_f32", u, u, lsum[x]),
        trans("v_rcp_f32", rinv[x], u),
        trans("v_rcp_f32", u, u),
    ]


def scale2(R, x):
    if OPT["pk"]:
        return [I(f"v_pk_mul_f32 {R}, {R}, {rinv2[x]}", "valu", rd=[R, rinv2[x]], wr=[R], flags=["pk"])]
    return [valu("v_mul_f32", R[0], R[0], rinv[x]), valu("v_mul_f32", R[1], R[1], rinv[x])]


def epi_a(t):
    O = OT[2 * t]
    m = []
    for i in range(8):
        m += scale2(O[2 * i: 2 * i + 2], 0)
    c = [valu("v_cvt_pk_bf16_f32", O[i], O[2 * i], O[2 * i + 1]) for i in range(8)]
    return m, c, [owrite(O[0:4], 2 * t), owrite(O[4:8], 2 * t + 1)]


def epi_b(t, half, T):
    O = OT[2 * t + 1]
    D = STG[t * 8: t * 8 + 8]
    r = [valu("v_accvgpr_read_b32", T[i], O[8 * half + i]) for i in range(8)]
    m = []
    for i in range(4):
        m += scale2(T[2 * i: 2 * i + 2], 1)
    c = [valu("v_cvt_pk_bf16_f32", D[4 * half + i], T[2 * i], T[2 * i + 1]) for i in range(4)]
    return r, m, c


def setw(items, earliest=None, latest=None):
    for i in items:
        if latest is not None:
            i.latest = latest if i.latest is None else min(i.latest, latest)
    if earliest is not None:
        items[0].earliest = earliest
    return items


def rare(x, par):
    S = SA if x == 0 else SB[par]
    P = PA[par] if x == 0 else PB
    u, w, f = X[0], X[1], X[5]
    o = [label(f"L_rare_{'AB'[x]}{par}"), nop(15)]
    o += max_tree(S, u, w)
    o += [valu("v_fma_f32", u, u, sC, negmc[x]), valu("v_mov_b32", w, u), nop(1), swap(u, w),
          valu("v_max3_f32", u, u, w, "0"),
          valu("v_sub_f32", negmc[x], negmc[x], u),
          trans("v_exp_f32", f, f"-{u}", extra_rd=[u]), nop(0),
          valu("v_mul_f32", lsum[x], lsum[x], f)]
    for t in range(6):
        O = OT[2 * t + x]
        for i in range(16):
            if O.f == "a":
                tt = X[i % 4]
                o += [valu("v_accvgpr_read_b32", tt, O[i]), valu("v_mul_f32", tt, tt, f),
                      valu("v_accvgpr_write_b32", O[i], tt)]
            else:
                o.append(valu("v_mul_f32", O[i], O[i], f))
    o += exp_stream(x, S, P, ts)
    o += [nop(3), I(f"s_setpc_b64 {sRet}", "branch", rd=[sRet])]
    return o


def add_qk(u, g, tile, qwait=None):
    base = len(u.heads)
    Sb = SB[tile % 2]
    for ks in range(12):
        fr = FR[ks % 6]
        u.add_gap(mfma(SA, fr, Qreg(Qc, ks, 0), SA if ks else 0))
        m = mfma(Sb, fr, Qreg(Qc, ks, 1), Sb if ks else 0)
        if tile == 0:
            m.needl = [("QB", (g + 1) // 16, ks)]
        u.add_gap(m)
    return base


def add_pv(u, g, t):
    base = len(u.heads)
    for tt in range(6):
        for st in range(2):
            fr = FR[(12 + tt * 2 + st) % 6]
            z = (t == 0 and st == 0)
            oa, ob = OT[2 * tt], OT[2 * tt + 1]
            u.add_gap(mfma(oa, fr, PA[t % 2][4 * st:4 * st + 4], 0 if z else oa))
            u.add_gap(mfma(ob, fr, PB[4 * st:4 * st + 4], 0 if z else ob))
    return base


def frag_read(g, t, f):
    if f < 12:
        return kread(g, f, t + 1)
    if f < 24:
        return vread(g, f, t)
    return kread(g + 1, f - 24, t + 2)


def ftag(g, f):
    return ("F", g, f) if f < 24 else ("F", g + 1, f - 24)


def stamp(idx, real=False):
    if not OPT["stamp"]:
        return []
    if OPT["stamp"] == 2 and idx not in (0, 1, 15, 16, 17, 18, 19, 56, 60, 61):
        return []
    op = "s_memrealtime" if real else "s_memtime"
    return [I(f"{op} {sStamp}", "salu", wr=[sStamp]), I("s_waitcnt lgkmcnt(0)", "salu"),
            valu("v_mov_b32", E[3], sStamp[0]),
            I(f"buffer_store_dword {E[3]}, v0, {srdD}, {sH} offen offset:{idx * 4}", "vmem", rd=[E[3], "v0", srdD])]


def add_iter(u, b, t, site):
    g = b * 16 + t
    base = add_qk(u, g, (t + 1) % 16)
    add_pv(u, g, t)
    for f in range(24):
        k = base + 2 * f + 1
        u.pin[k] += frag_read(g, t, f + 6)
        if f % 2 == 1:
            u.pin[k].append(waitl(ftag(g, f + 1), ftag(g, f + 2)))
    tk, tv = (t + KD) % 16, (t + VD) % 16
    u.tail[base + OPT["kgaps"][0] - 1].append(setm0(m0K[KSLOT[tk]]))
    for c, k in enumerate(OPT["kgaps"]):
        u.pin[base + k].append(dma(srdK, vDK[c], sT[tk], c, ("K", g + KD)))
    u.tail[base + OPT["vgaps"][0] - 1].append(setm0(m0V[VSLOT[tv]]))
    for c, k in enumerate(OPT["vgaps"]):
        u.pin[base + k].append(dma(srdV, vDV[c], sT[tv], c, ("V", g + VD)))
    for x, key in ((0, "oa_rd"), (1, "ob_rd")):
        for idx, (tt, k) in enumerate(OPT[key]):
            if tt == t:
                u.pin[base + k].append(oread(obuf(x, idx), idx, ("OR", b, x, idx)))
    for ch, (tt, k) in enumerate(OPT["ob_wr"]):
        if tt == t:
            u.pin[base + k].append(owrite(STG[ch * 4: ch * 4 + 4], ch))
    for half in range(2):
        n = 2 * t + half
        gaps = OPT["sgaps"][half]
        for x, key in ((0, "oa_slots"), (1, "ob_slots")):
            if n in OPT[key]:
                jj = OPT[key].index(n)
                for c, k in enumerate(gaps):
                    idx = jj * 3 + c
                    u.pin[base + k].append(ostore(obuf(x, idx), x, idx, [("OR", b, x, idx)]))
        for x, key in ((0, "qa_slots"), (1, "qb_slots")):
            if n in OPT[key]:
                jj = OPT[key].index(n)
                u.tail[base + gaps[0] - 1].append(setm0(sM[jj]))
                need = [("OR", b, 1, 11)] if x == 0 else [("QA", b + 1, 11)]
                for c, k in enumerate(gaps):
                    u.pin[base + k].append(qdma(x, jj, c, ("QD", b + 1, x), need))
    if t == OPT["qar_iter"]:
        u.pin[base + 0].append(waitv(("QD", b + 1, 0)))
        for ks in range(12):
            u.pin[base + 2 * ks].append(qread(STG[ks * 4: ks * 4 + 4], ks, vS, ("QA", b + 1, ks), [("QD", b + 1, 0)]))
    if t == 14:
        u.pin[base + 24].append(waitv(("QD", b + 1, 1)))
        for ks in range(12):
            u.pin[base + 24 + 2 * ks].append(qread(Qreg(Qc, ks, 1), ks, vS, ("QB", b + 1, ks), [("QD", b + 1, 1)]))
    if OPT.get("twobar"):
        u.pin[base + OPT["bar_gap"]] += [waitv(("V", g + 1)), barrier()]
        u.pin[base + 24] += [waitv(("K", g + 2)), barrier()]
    else:
        u.pin[base + OPT["bar_gap"]] += [waitv(("K", g + 3), ("V", g + 1))] + ([] if OPT.get("nobar") else [barrier()])
    it, tl = softmax(1, t, site)
    u.streams.append(Stream(it, base + 0, base + 23, prio=0.05))
    u.tail[base + 23] += tl
    it, tl = softmax(0, (t + 1) % 16, site)
    u.streams.append(Stream(it, base + 25, base + 47, prio=0.05))
    u.tail[base + 47] += tl
    if t == 1:
        sl = [salu("s_mov_b32", sQOcur, sQO),
              salu("s_add_u32", sBG, sBG, "32", scc_w=True),
              salu("s_mul_hi_u32", sKO, sBG, sMagic),
              salu("s_mul_i32", sKO, sKO, "196608"),
              salu("s_mul_i32", sQO, sBG, "98304"),
              I(f"s_cmp_lt_u32 {sTrip}, 2", "salu", rd=[sTrip], wr=["scc"]),
              salu("s_cselect_b32", sNrec, "196608", "0", scc_r=True),
              salu("s_cselect_b32", srdQ[2], "98304", "0", scc_r=True),
              salu("s_add_u32", srdQ[0], ptrQ[0], sQO, scc_w=True),
              salu("s_addc_u32", srdQ[1], ptrQ[1], "0", scc_w=True, scc_r=True)]
        u.streams.append(Stream(sl, base + 12, base + 40))
    if t == 15 - KD:
        sl = [salu("s_add_u32", srdK[0], ptrK[0], sKO, scc_w=True),
              salu("s_addc_u32", srdK[1], ptrK[1], "0", scc_w=True, scc_r=True),
              salu("s_mov_b32", srdK[2], sNrec)]
        u.streams.append(Stream(sl, base + OPT["kgaps"][-1] + 1, base + 46))
    if t == 15 - VD:
        sl = [salu("s_add_u32", srdV[0], ptrV[0], sKO, scc_w=True),
              salu("s_addc_u32", srdV[1], ptrV[1], "0", scc_w=True, scc_r=True),
              salu("s_mov_b32", srdV[2], sNrec)]
        u.streams.append(Stream(sl, base + OPT["vgaps"][-1] + 1, base + 46))
    return base


def qcopy(ks_list, earliest_fn, latest_fn):
    out = []
    for ks in ks_list:
        for i in range(4):
            out.append(valu("v_accvgpr_write_b32", Qreg(Qc, ks, 0)[i], STG[ks * 4 + i],
                            earliest=earliest_fn(ks, 0), latest=latest_fn(ks, 0)))
    return out


def set_osrd():
    return [salu("s_add_u32", srdO[0], ptrO[0], sQOcur, scc_w=True),
            salu("s_addc_u32", srdO[1], ptrO[1], "0", scc_w=True, scc_r=True),
            salu("s_mov_b32", srdO[2], "98304")]


QC_SPLIT = 8


def unit_mid(b, t):
    u = Unit(f"T{t}")
    if t == 1:
        u.pre.append(label("L_loop"))
    u.pre += stamp_at(t)
    base = add_iter(u, b, t, f"T{t}")
    if t == 14:
        u.streams.append(Stream(qcopy(range(QC_SPLIT), lambda ks, x: base + 2 * ks + x, lambda ks, x: None),
                                base + 1, base + 47))
        u.post += [I(f"s_cmp_eq_u32 {sTrip}, 2", "salu", rd=[sTrip], wr=["scc"]),
                   I("s_cbranch_scc1 L_fin", "branch", rd=["scc"])]
    return u


def stamp_at(t):
    return stamp(t)


def unit_x(b):
    u = Unit("X")
    u.pre += stamp_at(15)
    b15 = add_iter(u, b, 15, "T15")
    b0 = add_iter(u, b + 1, 0, "T0")
    u.streams.append(Stream(qcopy(range(QC_SPLIT, 12), lambda ks, x: None, lambda ks, x: b15 + 2 * ks + x - 2),
                            b15 + 0, b15 + 20))
    u.streams.append(Stream(rinv_stream(0), b15 + 2, b15 + 20))
    u.streams.append(Stream(rinv_stream(1), b15 + 24, b15 + 27, prio=0.5))
    ep, wr = [], []
    for tt in range(6):
        O = OT[2 * tt]
        dl = b0 + 24 + 4 * tt - 1
        m, c, w = epi_a(tt)
        r0, m0_, c0 = epi_b(tt, 0, O[8:16])
        r1, m1_, c1 = epi_b(tt, 1, O[8:16])
        setw(m, earliest=b15 + 24 + 4 * tt + 5)
        ep += setw(m + c + r0 + m0_ + c0 + r1 + m1_ + c1, latest=dl)
        w[0].after, w[1].after = c[3], c[7]
        for i in w:
            i.flags.add("head")
        wr += setw(w, latest=dl)
    u.streams.append(Stream(ep, b15 + 29, b0 + 43))
    u.streams.append(Stream(wr, b15 + 29, b0 + 43))
    u.streams.append(Stream(set_osrd(), b15 + 8, b15 + 22))
    sl = [salu("s_add_u32", sTrip, sTrip, "1", scc_w=True)]
    if OPT["stamp"]:
        sl.append(salu("s_add_u32", sH, sH, "64", scc_w=True))
    u.streams.append(Stream(sl, b0 + 2, b0 + 40))
    u.post.append(I("s_branch L_loop", "branch"))
    return u


def unit_pro():
    u = Unit("PRO")
    P = u.pre
    tid, lane, q32, h, t0, t1, t2 = v(0), X[0], X[1], X[2], X[3], X[4], X[5]
    sP = sNrec
    P += [I("s_cmp_ge_u32 s2, 256", "salu", rd=["s2"], wr=["scc"]),
          I("s_cbranch_scc1 L_end", "branch", rd=["scc"]),
          I("s_load_dwordx4 s[4:7], s[0:1], 0", "salu", wr=[s(4, 4)]),
          I("s_load_dwordx4 s[8:11], s[0:1], 16", "salu", wr=[s(8, 4)])]
    if OPT["stamp"]:
        P += [I(f"s_load_dwordx2 {srdD[0:2]}, s[0:1], 40", "salu"), I(f"s_memrealtime {s(94, 2)}", "salu")]
    if OPT.get("dbg"):
        P += [I(f"s_load_dwordx2 {srdD[0:2]}, s[0:1], 32", "salu"), I(f"s_memrealtime {s(94, 2)}", "salu"),
              I(f"s_memtime {s(96, 2)}", "salu")]
    P += [valu("v_lshrrev_b32", t0, "6", tid), valu("v_and_b32", lane, "63", tid),
          I(f"v_readfirstlane_b32 {sW}, {t0}", "valu", rd=[t0], wr=[sW]),
          valu("v_lshlrev_b32", t1, "4", lane)]
    P += [salu("s_and_b32", sBG, "s2", "7", scc_w=True),
          salu("s_mul_i32", sBG, sBG, "96"),
          salu("s_lshr_b32", sH, "s2", "3", scc_w=True),
          salu("s_add_u32", sBG, sBG, sH, scc_w=True),
          salu("s_mov_b32", sMagic, "0x55555556"),
          salu("s_mul_hi_u32", sKO, sBG, sMagic),
          salu("s_mul_i32", sKO, sKO, "196608"),
          salu("s_mul_i32", sQO, sBG, "98304")]
    P += [salu("s_and_b32", sP, sW, "1", scc_w=True), salu("s_mul_i32", sP, sP, "3072"),
          salu("s_mov_b32", sQB, str(VBASE + 2 * TILE)),
          I(f"s_cmp_eq_u32 {sW}, 0", "salu", rd=[sW], wr=["scc"]),
          salu("s_cselect_b32", sQB, str(KBASE + 3 * TILE), sQB, scc_r=True),
          I(f"s_cmp_eq_u32 {sW}, 2", "salu", rd=[sW], wr=["scc"]),
          salu("s_cselect_b32", sQB, str(VBASE + 3 * TILE), sQB, scc_r=True),
          I(f"s_cmp_eq_u32 {sW}, 3", "salu", rd=[sW], wr=["scc"]),
          salu("s_cselect_b32", sQB, str(SPARE), sQB, scc_r=True),
          salu("s_mul_i32", sW, sW, "3072")]
    for c in range(3):
        P += [valu("v_add_u32", t0, sW, t1) if c == 0 else valu("v_add_u32", t0, "1024", t0),
              valu("v_lshrrev_b32", t2, "7", t0),
              valu("v_mul_u32_u24", t2, "171", t2),
              valu("v_lshrrev_b32", t2, "9", t2),
              valu("v_lshrrev_b32", vDK[c], "3", t2),
              valu("v_and_b32", vDK[c], "1", vDK[c]),
              valu("v_xor_b32", vDK[c], vDK[c], t2),
              valu("v_and_b32", vDK[c], "7", vDK[c]),
              valu("v_lshlrev_b32", vDK[c], "4", vDK[c]),
              valu("v_xor_b32", vDK[c], vDK[c], t0),
              valu("v_and_b32", vDV[c], "2", t2),
              valu("v_lshlrev_b32", vDV[c], "5", vDV[c]),
              valu("v_xor_b32", vDV[c], vDV[c], t0)]
        if c:
            P += [valu("v_subrev_u32", vDK[c], str(c * 1024), vDK[c]),
                  valu("v_subrev_u32", vDV[c], str(c * 1024), vDV[c])]
        P.append(valu("v_xor_b32", vDX[c], "16", vDK[c]))
    P += [salu("s_lshl_b32", sStage, sW, "2", scc_w=True),
          salu("s_add_u32", sStage, sStage, str(STAGE), scc_w=True),
          salu("s_mul_i32", sH, sW, "7")]
    for jj in range(4):
        op = "s_sub_u32" if jj & 1 else "s_add_u32"
        P += [salu(op, sTmp, str(jj * 3072), sP, scc_w=True),
              salu("s_add_u32", sM[jj], sStage, sTmp, scc_w=True),
              salu("s_add_u32", sG[0][jj], sH, sTmp, scc_w=True),
              salu("s_add_u32", sG[1][jj], sG[0][jj], str(TILE), scc_w=True)]
    P += [salu("s_sub_u32", sTmp, sQB, sStage, scc_w=True)]
    for i in range(4):
        P.append(salu("s_add_u32", m0K[i], sW, str(KBASE + i * TILE), scc_w=True))
    P += [I("s_waitcnt lgkmcnt(0)", "salu")]
    for srd, ptr, off, n in ((srdK, ptrK, sKO, 196608), (srdQ, ptrQ, sQO, 98304), (srdV, ptrV, sKO, 196608)):
        P += [salu("s_add_u32", srd[0], ptr[0], off, scc_w=True),
              salu("s_addc_u32", srd[1], ptr[1], "0", scc_w=True, scc_r=True),
              salu("s_mov_b32", srd[2], str(n)), salu("s_mov_b32", srd[3], "0x00020000")]

    def ktile(t):
        return [setm0(m0K[KSLOT[t]]), nop(0)] + [dma(srdK, vDK[c], sT[t], c, ("K", t)) for c in range(3)]

    def vtile(t):
        return [setm0(m0V[VSLOT[t]]), nop(0)] + [dma(srdV, vDV[c], sT[t], c, ("V", t)) for c in range(3)]

    P += ktile(0)
    for jj in range(4):
        P += [setm0(sM[jj]), nop(0)] + [qdma(0, jj, c, ("QD", 0, 0)) for c in range(3)]
    for jj in range(4):
        P += [salu("s_add_u32", "m0", sM[jj], sTmp, scc_w=True), nop(0)] + [qdma(1, jj, c, ("QD", 0, 1)) for c in range(3)]
    for i in range(4):
        P.append(salu("s_add_u32", m0V[i], sW, str(VBASE + i * TILE), scc_w=True))
    for t in range(1, 16):
        P.append(salu("s_mov_b32", sT[t], str(t * TILE)))
    P += ktile(1) + vtile(0) + ktile(2)
    if OPT["codewarm"]:
        P += [I(f"s_getpc_b64 {sPC}", "salu", wr=[sPC]),
              label("L_pc"),
              I(f"s_sub_u32 {sPC[0]}, {sPC[0]}, L_pc-{KNAME}", "salu", rd=[sPC], wr=[sPC, "scc"]),
              I(f"s_subb_u32 {sPC[1]}, {sPC[1]}, 0", "salu", rd=[sPC, "scc"], wr=[sPC, "scc"]),
              salu("s_lshr_b32", sH, "s2", "3", scc_w=True),
              salu("s_lshl_b32", sH, sH, "11", scc_w=True),
              valu("v_lshlrev_b32", t2, "3", tid),
              valu("v_add_u32", t2, sH, t2),
              I(f"v_min_u32 {t2}, L_code_end-{KNAME}-8, {t2}", "valu", rd=[t2], wr=[t2]),
              I(f"global_load_dwordx2 {JUNK[0:2]}, {t2}, {sPC}", "vmem", rd=[t2, sPC], wr=[JUNK[0:2]])]
    P += vtile(1)
    P += [salu("s_mov_b32", srdO[0], ptrO[0]), salu("s_mov_b32", srdO[1], ptrO[1]),
          salu("s_mov_b32", srdO[2], "0"), salu("s_mov_b32", srdO[3], "0x00020000"),
          salu("s_mov_b32", sTrip, "0"),
          salu("s_mov_b32", sC, hex(f2u(SCALE_C))), salu("s_mov_b32", sNegC, hex(f2u(-SCALE_C))),
          salu("s_mov_b32", sThr, hex(f2u(OPT["thr"])))]
    P += [valu("v_add_u32", t1, sStage, t1), valu("v_add_u32", vLin[0], sP, t1), valu("v_subrev_u32", vLin[1], sP, t1)]
    P += [valu("v_and_b32", q32, "31", lane), valu("v_lshrrev_b32", h, "5", lane),
          valu("v_mul_u32_u24", t0, "384", q32)]
    P += [valu("v_bfe_u32", t1, q32, "3", "1"), valu("v_xor_b32", t1, t1, q32), valu("v_and_b32", t1, "7", t1),
          valu("v_xor_b32", t1, t1, h)]
    for i in range(4):
        P += [valu("v_xor_b32", t2, str(2 * i), t1), valu("v_lshlrev_b32", t2, "4", t2),
              valu("v_add_u32", vK[i], t0, t2), valu("v_add_u32", vS[i], sStage, vK[i]),
              valu("v_add_u32", STG[i], sQB, vK[i])]
    r, g_, xx = q32, t1, t2
    P += [valu("v_bfe_u32", r, lane, "2", "2"),
          valu("v_lshl_add_u32", t0, h, "2", r),
          valu("v_mul_u32_u24", t0, "384", t0),
          valu("v_bfe_u32", g_, lane, "4", "1"), valu("v_lshlrev_b32", g_, "5", g_),
          valu("v_add_u32", t0, t0, g_),
          valu("v_and_b32", g_, "1", lane), valu("v_lshlrev_b32", g_, "4", g_),
          valu("v_add_u32", t0, t0, g_),
          valu("v_bfe_u32", g_, lane, "1", "1"), valu("v_lshlrev_b32", g_, "3", g_),
          valu("v_add_u32", t0, t0, g_),
          valu("v_add_u32", t0, str(VBASE), t0),
          valu("v_lshrrev_b32", xx, "1", r), valu("v_lshlrev_b32", xx, "6", xx),
          valu("v_add_u32", vV[0], t0, xx), valu("v_sub_u32", vV[1], t0, xx)]
    if OPT["stamp"]:
        P += [salu("s_mov_b32", srdD[2], "0x1000000"), salu("s_mov_b32", srdD[3], "0x00020000"),
              valu("v_lshrrev_b32", tid, "6", tid), valu("v_lshlrev_b32", tid, "8", tid),
              salu("s_lshl_b32", sH, "s2", "10", scc_w=True), valu("v_add_u32", tid, sH, tid),
              salu("s_mov_b32", sH, "0"),
              valu("v_mov_b32", E[3], s(94)),
              I(f"buffer_store_dword {E[3]}, v0, {srdD}, 0 offen offset:{57 * 4}", "vmem", rd=[E[3], "v0", srdD])]
    P += stamp(60) + stamp(56, True)
    P += [waitv(("QD", 0, 0)), barrier()]
    for f in range(6):
        P += kread(-2, f, 0)
    for ks in range(12):
        P.append(qread(Qreg(Qc, ks, 0), ks, vS, ("QA", 0, ks)))
    P += [waitl(("QA", 0, 3))]
    P += stamp(61)
    if OPT.get("dbg"):
        P += [I(f"s_memrealtime {s(98, 2)}", "salu"), I("s_waitcnt lgkmcnt(0)", "salu")]
    for n in range(12):
        k = u.add_gap(mfma(SA, FR[n % 6], Qreg(Qc, n, 0), SA if n else 0))
        u.pin[k] += kread(-2, n + 6, 0)
        if n == 3:
            u.pin[k].append(waitl(("QA", 0, 11)))
        if n >= 5 and n < 11:
            u.pin[k].append(waitl(("F", -2, n + 1)))
    k = u.add_gap(None)
    it, tl = softmax(0, 0, "PRO")
    u.pin[k] += it + [waitv(("QD", 0, 1))]
    for ks in range(12):
        u.pin[k].append(qread(Qreg(Qc, ks, 1), ks, [STG[i] for i in range(4)], ("QB", 0, ks)))
    u.pin[k] += [waitl(("QB", 0, 1))]
    for n in range(12, 24):
        ks = n - 12
        k = u.add_gap(mfma(SB[0], FR[n % 6], Qreg(Qc, ks, 1), SB[0] if ks else 0))
        if n + 6 < 24:
            u.pin[k] += kread(-2, n + 6, 0)
        if ks in (1, 3):
            u.pin[k].append(waitl(("QB", 0, 3 if ks == 1 else 11)))
        if ks == 4:
            wk = [("K", 1), ("V", 0)] + ([] if OPT.get("twobar") else [("K", 2)])
            u.pin[k] += [waitv(*wk), barrier()]
        if ks == 5:
            u.pin[k] += ktile(3)
        if ks == 6:
            u.pin[k] += vtile(2)
        if n >= 17 and n < 23:
            u.pin[k].append(waitl(("F", -2, n + 1)))
        if n >= 18:
            u.pin[k] += kread(0, n - 18, 1)
    u.pin[k] += [barrier()] + (ktile(4) if OPT.get("twobar") else [])
    u.pin[k] += [waitl(("F", 0, 0), ("F", 0, 1))]
    u.pin[k] += stamp(0)
    u.win0 = len(u.heads)
    add_iter(u, 0, 0, "T0p")
    return u


def unit_fin(b):
    u = Unit("FIN")
    g, t = b * 16 + 15, 15
    u.pre.append(label("L_fin"))
    u.pre += stamp_at(15)
    G = 1000
    for n in range(6):
        u.pre += vread(G, n, t)
    u.pre += rinv_stream(0) + set_osrd() + [waitl(("F", G, 0))]
    base = len(u.heads)
    for n in range(24):
        x, tt, st = n // 12, (n % 12) // 2, n % 2
        o = OT[2 * tt + x]
        Pr = PA[t % 2] if x == 0 else PB
        k = u.add_gap(mfma(o, FR[n % 6], Pr[4 * st: 4 * st + 4], o))
        if n + 6 < 24:
            u.pin[k] += vread(G, n + 6, t)
        if n < 23:
            u.pin[k].append(waitl(("F", G, n + 1)))
    last = u.add_gap(None)
    it, tl = softmax(1, 15, "T15f")
    u.streams.append(Stream(it, base, base + 11))
    u.tail[base + 11] += tl
    u.streams.append(Stream(rinv_stream(1), base + 12, base + 15))
    ep = []
    for tt in range(6):
        m, c, w = epi_a(tt)
        ep += m + c + w
    u.streams.append(Stream(ep, base + 12, base + 23))
    u.window = 12
    po = u.pin[last]
    Z = [Qc[4 * i: 4 * i + 4] for i in range(24)]
    for n in range(12):
        po.append(oread(Z[n], n, ("OR", b + 1, 0, n)))
    for tt in range(6):
        r0, m0_, c0 = epi_b(tt, 0, SA[0:8])
        r1, m1_, c1 = epi_b(tt, 1, SA[8:16])
        st = [ostore(Z[n], 0, n, [("OR", b + 1, 0, n)]) for n in (2 * tt, 2 * tt + 1)]
        po += r0 + r1 + ([waitl(("OR", b + 1, 0, 11))] if tt == 0 else []) + st[:1] + m0_ + m1_ + c0 + st[1:] + c1
        po += [owrite(STG[ch * 4: ch * 4 + 4], ch) for ch in (2 * tt, 2 * tt + 1)]
    for n in range(12):
        po.append(oread(Z[12 + n], n, ("OR", b + 1, 1, n)))
    for n in range(12):
        po.append(waitl(("OR", b + 1, 1, n)))
        po.append(ostore(Z[12 + n], 1, n, [("OR", b + 1, 1, n)]))
    u.post += stamp(16) + stamp(17, True)
    if OPT["stamp"]:
        u.post += [I("s_waitcnt vmcnt(0)", "salu")] + stamp(18) + stamp(19, True)
    if OPT.get("dbg"):
        u.post += [I("s_cmp_ge_u32 s2, 8", "salu"), I("s_cbranch_scc1 L_end", "branch"),
                   I(f"s_cmp_lg_u32 {sW}, 0", "salu"), I("s_cbranch_scc1 L_end", "branch"),
                   I("s_waitcnt vmcnt(0)", "salu"), I(f"s_memrealtime {sStamp}", "salu"), I(f"s_memtime {sPC}", "salu"),
                   I("s_waitcnt lgkmcnt(0)", "salu"),
                   salu("s_mov_b32", srdD[2], "256"), salu("s_mov_b32", srdD[3], "0x00020000"),
                   I("s_mov_b64 exec, 1", "salu"),
                   salu("s_sub_u32", sTmp, sStamp[0], s(94)), salu("s_sub_u32", sH, s(98), s(94)),
                   salu("s_mul_i32", sH, sH, "100000"), salu("s_add_u32", sTmp, sTmp, sH),
                   valu("v_mov_b32", v(30), sTmp),
                   salu("s_sub_u32", sTmp, sPC[0], s(96)), valu("v_mov_b32", E[3], sTmp),
                   salu("s_lshl_b32", sTmp, "s2", "3"),
                   I(f"buffer_store_dwordx2 {v(30, 2)}, off, {srdD}, {sTmp}", "vmem", rd=[srdD])]
    u.post += [label("L_end"), I("s_endpgm", "branch")]
    return u


def build(extra):
    cache = {}

    def get(name, fn, first):
        u = fn()
        ins = u.schedule(verbose=first and VERB)
        out = []
        for idx, i in enumerate(ins):
            n = extra.get((name, idx), 0)
            if n:
                out.append(((name, idx, "nop"), nop(n - 1)))
            out.append(((name, idx), i))
        if first:
            cache[name] = out
        return out

    trace = list(get("PRO", unit_pro, True))
    for b in range(3):
        for t in range(1, 15):
            trace += get(f"T{t}", lambda: unit_mid(b, t), b == 0)
        if b < 2:
            trace += get("X", lambda: unit_x(b), b == 0)
    trace += get("FIN", lambda: unit_fin(2), True)
    order = ["PRO"] + [f"T{t}" for t in range(1, 15)] + ["X", "FIN"]
    return [(n, cache[n]) for n in order], trace


VERB = False
extra = {}
for it in range(60):
    static, trace = build(extra)
    hz = hazards([i for _, i in trace])
    if not hz:
        break
    upd = {}
    lastj = -100
    for j, need, why in hz:
        key = trace[j][0]
        if j != lastj and j - lastj < 24:
            continue
        lastj = j
        upd[key] = max(upd.get(key, 0), need)
        if OPT.get("showhz"):
            print("; hazard:", key, need, why, file=sys.stderr)
    for k, n in upd.items():
        extra[k] = extra.get(k, 0) + n
else:
    raise SystemExit("hazards did not converge")
if OPT.get("verb"):
    VERB = True
    _so = sys.stdout
    sys.stdout = sys.stderr
    build(extra)
    sys.stdout = _so
    print("; nops inserted:", extra, file=sys.stderr)
W = resolve_waits(trace)
_bad = check_coverage(trace, W)
assert not _bad, _bad[:10]
if OPT.get("verb") and "_mismatch" in W:
    print("; wait mismatches:", W["_mismatch"], file=sys.stderr)

out = []
A = out.append
A(open(os.path.join(os.path.dirname(os.path.abspath(__file__)), "header.txt")).read().rstrip())
A(f"; @launch grid=(256,1,1) block=(256,1,1) lds={LDS_BYTES}")
A('.amdgcn_target "amdgcn-amd-amdhsa--gfx950"')
A(".text")
A(f".globl {KNAME}")
A(".p2align 8")
A(f".type {KNAME},@function")
A(f"{KNAME}:")
for name, ins in static:
    A(f"; ---- {name} ----")
    for key, i in ins:
        t = i.text
        if i.kind == "wait":
            l, vv = W[key]
            t = "s_waitcnt " + (f"lgkmcnt({l})" if l is not None else f"vmcnt({vv})")
        abl = OPT.get("abl", "")
        if abl and name not in ("PRO",):
            tx = i.text
            if "v" in abl and i.kind in ("valu", "trans") and any(str(r) in tx.replace(",", " ").split() for r in X + [ts]):
                continue
            if "v" in abl and "s_cbranch_vccnz" in tx:
                continue
            if "x" in abl and "v_exp_f32" in tx:
                continue
            if "f" in abl and "v_fma_f32" in tx:
                continue
            if "a" in abl and ("v_add_f32" in tx or "s_cbranch_vccnz" in tx):
                continue
            if "d" in abl and i.kind == "ds" and i.wr and i.wr[0] in names(FR):
                continue
            if "k" in abl and i.kind == "vmem" and (str(srdK) in tx or str(srdV) in tx):
                continue
            if "s" in abl and ((i.kind == "vmem" and (str(srdQ) in tx or str(srdO) in tx)) or
                               (i.kind == "ds" and not (i.wr and i.wr[0] in names(FR)))):
                continue
            if "e" in abl and i.kind == "valu" and (str(rinv[0]) in tx.split() or str(rinv[1]) in tx.split() or "accvgpr" in tx
                                                    or ("cvt_pk" in tx and not any(str(r) in tx.replace(",", " ").split() for r in X))):
                continue
            if "m" in abl and i.kind == "mfma":
                continue
            if "b" in abl and i.kind == "barrier":
                continue
        A(t if i.kind == "label" else "    " + t)
for name, x, par in TRAMPS:
    A(f"L_tr_{name}:")
    A(f"    s_call_b64 {sRet}, L_rare_{'AB'[x]}{par}")
    A(f"    s_branch L_ret_{name}")
for x in range(2):
    for par in range(2):
        r = rare(x, par)
        hz = hazards(r)
        assert not hz, hz
        for i in r:
            A(i.text if i.kind == "label" else "    " + i.text)
A("L_code_end:")
A("    s_endpgm")
A(f""".section .rodata,"a"
.p2align 6
.amdhsa_kernel {KNAME}
  .amdhsa_next_free_vgpr 512
  .amdhsa_next_free_sgpr 102
  .amdhsa_accum_offset 256
  .amdhsa_group_segment_fixed_size 0
  .amdhsa_kernarg_size 48
  .amdhsa_user_sgpr_count 2
  .amdhsa_user_sgpr_kernarg_segment_ptr 1
  .amdhsa_system_sgpr_workgroup_id_x 1
  .amdhsa_float_denorm_mode_32 3
.end_amdhsa_kernel""")
print("\n".join(out))
```

```python
import sys, struct, math, os
sys.path.insert(0, os.path.dirname(os.path.abspath(__file__)))
from asmlib import *

KNAME = "standalone__gqa_softmax__near_ridge_kernel"
OPT = dict(
    sgaps=[[10, 14, 18], [36, 40, 44]],
    oa_slots=[3, 5, 7, 8], ob_slots=[18, 11, 13, 15], qa_slots=[10, 12, 14, 16], qb_slots=[21, 22, 23, 24],
    oa_rd=[(1, g) for g in (0, 8, 12, 16, 20, 22, 26, 30, 34)] + [(2, g) for g in (0, 0, 8)],
    ob_wr=[(2, g) for g in (10, 14, 18, 22, 30, 34)] + [(3, g) for g in (8, 12, 16, 20, 26, 30)],
    ob_rd=[(3, g) for g in (34, 38, 42)] + [(4, g) for g in (0, 8, 12, 16, 20, 22, 26, 30, 34)],
    qar_iter=10,
    kgaps=[2, 4, 6], vgaps=[24, 28, 32],
    bar_gap=46,
    thr=4096.0,
    stamp=0,
    codewarm=1,
    pk=1,
    kv_nt=" nt", q_nt=" nt", o_nt=" nt",
)
for a in sys.argv[1:]:
    if "=" in a:
        k, v = a.split("=", 1)
        OPT[k] = eval(v)

TILE = 12288
KSLOT = [0, 1, 2, 3] * 4
VSLOT = [0, 1, 2, 3] * 4
KBASE, VBASE, STAGE, SPARE = 0, 4 * TILE, 8 * TILE, 12 * TILE
LDS_BYTES = 13 * TILE
KD, VD = 4, 3
if OPT.get("twobar"):
    KD = 5
    OPT["kgaps"], OPT["vgaps"] = OPT.get("kgaps2", [26, 28, 32]), OPT.get("vgaps2", [2, 4, 6])


def f2u(x):
    return struct.unpack("<I", struct.pack("<f", x))[0]


v = lambda lo, n=1: Reg("v", lo, n)
a = lambda lo, n=1: Reg("a", lo, n)
s = lambda lo, n=1: Reg("s", lo, n)

vLin = [v(1), v(30)]
vK = [v(2 + i) for i in range(4)]
vV = [v(6), v(7)]
vDK = [v(8 + i) for i in range(3)]
vDV = [v(11 + i) for i in range(3)]
negmc = [v(14), v(15)]
lsum = [v(16), v(17)]
rinv2 = [v(18, 2), v(20, 2)]
rinv = [v(18), v(20)]
X = [v(22 + i) for i in range(6)]
E = [v(28), v(29), None, v(31)]
vS = [v(32 + i) for i in range(4)]
vDX = [v(36 + i) for i in range(3)]
ts = v(39)
PA = [v(40, 8), v(48, 8)]
PB = v(56, 8)
SA = v(64, 16)
SB = [v(80, 16), v(96, 16)]
STG = v(208, 48)
Qc = a(96, 96)
FR = [a(192 + 4 * i, 4) for i in range(6)]
JUNK = a(252, 4)
SQ = [a(216 + 4 * i, 4) for i in range(9)]
OT = []
for _t in range(6):
    OT += [v(112 + 16 * _t, 16), a(16 * _t, 16)]

ptrQ, ptrK, ptrV, ptrO = s(4, 2), s(6, 2), s(8, 2), s(10, 2)
srdK, srdV, srdQ, srdO = s(12, 4), s(16, 4), s(20, 4), s(24, 4)
sBG, sH, sKO, sQO, sQOcur, sNrec, sTrip, sC, sNegC, sThr, sMagic, sW = [s(28 + i) for i in range(12)]
sRet = s(40, 2)
m0K = [s(42 + i) for i in range(4)]
sStage, sQB = s(46), s(47)
m0V = [s(48 + i) for i in range(4)]
sT = ["0"] + [s(51 + t) for t in range(1, 16)]
srdD = s(68, 4)
sStamp = s(72, 2)
sPC = s(76, 2)
sG = [[s(80 + 4 * x + j) for j in range(4)] for x in range(2)]
sM = [s(88 + j) for j in range(4)]
sTmp = s(92)

SCALE_C = math.log2(math.e) / math.sqrt(192.0)


def Qreg(base, ks, x):
    return base[ks * 8 + x * 4: ks * 8 + x * 4 + 4]


def dma(srd, voff, soff, c, tag):
    off = f" offset:{c * 1024}" if c else ""
    return I(f"buffer_load_dwordx4 {voff}, {srd}, {soff} offen{off}{OPT['kv_nt']} lds", "vmem",
             rd=[voff, srd, soff, "m0"], tag=tag)


def setm0(x):
    return salu("s_mov_b32", "m0", x)


def gvoff(jj, c):
    return vDX[c] if jj & 1 else vDK[c]


def qdma(x, jj, c, tag, need=None):
    off = f" offset:{c * 1024}" if c else ""
    vo = gvoff(jj, c)
    return I(f"buffer_load_dwordx4 {vo}, {srdQ}, {sG[x][jj]} offen{off}{OPT['q_nt']} lds", "vmem",
             rd=[vo, srdQ, sG[x][jj], "m0"], tag=tag, needl=need)


def qread(dst, ks, addr, tag, need=None):
    off = (ks // 4) * 128
    return I(f"ds_read_b128 {dst}, {addr[ks % 4]} offset:{off}", "ds", rd=[addr[ks % 4]], wr=[dst], tag=tag, needv=need)


def owrite(src, ch):
    off = (ch // 4) * 128
    return I(f"ds_write_b128 {vS[ch % 4]}, {src} offset:{off}", "ds", rd=[vS[ch % 4], src], cost=OPT.get("wcost", 32))


def oread(dst, idx, tag):
    jj, c = idx // 3, idx % 3
    return I(f"ds_read_b128 {dst}, {vLin[jj & 1]} offset:{jj * 3072 + c * 1024}", "ds", rd=[vLin[jj & 1]], wr=[dst], tag=tag)


def ostore(src, x, idx, need):
    jj, c = idx // 3, idx % 3
    off = f" offset:{c * 1024}" if c else ""
    vo = gvoff(jj, c)
    return I(f"buffer_store_dwordx4 {src}, {vo}, {srdO}, {sG[x][jj]} offen{off}{OPT['o_nt']}", "vmem",
             rd=[src, vo, srdO, sG[x][jj]], flags=["wide"], cost=28, needl=need)


def obuf(x, idx):
    if x == 1 and idx < 3:
        return STG[4 * idx: 4 * idx + 4]
    return SQ[idx % 9]


def kread(g, f, tile):
    ks = f % 12
    off = KBASE + KSLOT[tile % 16] * TILE + (ks // 4) * 128
    d = FR[f % 6]
    return [I(f"ds_read_b128 {d}, {vK[ks % 4]} offset:{off}", "ds", rd=[vK[ks % 4]], wr=[d], tag=("F", g, f))]


def vread(g, f, tile):
    idx = f % 12
    t, st = idx // 2, idx % 2
    d = FR[f % 6]
    out = []
    for jj in range(2):
        off = VSLOT[tile % 16] * TILE + (16 * st + 8 * jj) * 384 + t * 64
        out.append(I(f"ds_read_b64_tr_b16 {d[2 * jj:2 * jj + 2]}, {vV[t % 2]} offset:{off}", "ds", rd=[vV[t % 2]],
                     wr=[d[2 * jj:2 * jj + 2]], tag=("F", g, f) if jj == 1 else None))
    return out


def max_tree(S, u, w):
    return [
        valu("v_max3_f32", u, S[0], S[1], S[2]),
        valu("v_max3_f32", w, S[3], S[4], S[5]),
        valu("v_max3_f32", u, u, S[6], S[7]),
        valu("v_max3_f32", w, w, S[8], S[9]),
        valu("v_max3_f32", u, u, S[10], S[11]),
        valu("v_max3_f32", w, w, S[12], S[13]),
        valu("v_max3_f32", u, u, S[14], S[15]),
        valu("v_max_f32", u, u, w),
    ]


def swap(u, w):
    return I(f"v_permlane32_swap_b32 {u}, {w}", "valu", rd=[u, w], wr=[u, w])


def max_init(x, S):
    u, w = E[0], E[1]
    return max_tree(S, u, w) + [
        valu("v_mov_b32", w, u),
        nop(1),
        swap(u, w),
        valu("v_max_f32", u, u, w),
        valu("v_mul_f32", negmc[x], sNegC, u),
    ]


def exp_stream(x, S, P, acc):
    out = []
    T = lambda i: X[i % 6]
    for i in range(16 + 3):
        if i < 16:
            out.append(valu("v_fma_f32", T(i), S[i], sC, negmc[x]))
        if 0 <= i - 1 < 16:
            out.append(trans("v_exp_f32", T(i - 1), T(i - 1)))
        j = i - 3
        if 0 <= j < 16:
            if j == 1:
                out.append(valu("v_add_f32", acc, T(0), T(1)))
            elif j >= 2:
                out.append(valu("v_add_f32", acc, acc, T(j)))
            if j % 2 == 1:
                out.append(valu("v_cvt_pk_bf16_f32", P[j // 2], T(j - 1), T(j)))
    return out


TRAMPS = []


def softmax(x, tile, site):
    par = tile % 2
    S = SA if x == 0 else SB[par]
    P = PA[par] if x == 0 else PB
    if tile == 0:
        return max_init(x, S) + exp_stream(x, S, P, lsum[x]), []
    items = exp_stream(x, S, P, ts)
    name = f"{site}_{'AB'[x]}"
    if (name, x, par) not in TRAMPS:
        TRAMPS.append((name, x, par))
    items.append(I(f"v_cmp_nge_f32 vcc, {sThr}, {ts}", "valu", rd=[sThr, ts], wr=["vcc"]))
    tail = [
        I(f"s_cbranch_vccnz L_tr_{name}", "branch", rd=["vcc"]),
        label(f"L_ret_{name}"),
        valu("v_add_f32", lsum[x], lsum[x], ts),
    ]
    return items, tail


def rinv_stream(x):
    u = rinv2[x][1]
    return [
        valu("v_mov_b32", u, lsum[x]),
        nop(1),
        swap(u, lsum[x]),
        valu("v_add_f32", u, u, lsum[x]),
        trans("v_rcp_f32", rinv[x], u),
        trans("v_rcp_f32", u, u),
    ]


def scale2(R, x):
    if OPT["pk"]:
        return [I(f"v_pk_mul_f32 {R}, {R}, {rinv2[x]}", "valu", rd=[R, rinv2[x]], wr=[R], flags=["pk"])]
    return [valu("v_mul_f32", R[0], R[0], rinv[x]), valu("v_mul_f32", R[1], R[1], rinv[x])]


def epi_a(t):
    O = OT[2 * t]
    m = []
    for i in range(8):
        m += scale2(O[2 * i: 2 * i + 2], 0)
    c = [valu("v_cvt_pk_bf16_f32", O[i], O[2 * i], O[2 * i + 1]) for i in range(8)]
    return m, c, [owrite(O[0:4], 2 * t), owrite(O[4:8], 2 * t + 1)]


def epi_b(t, half, T):
    O = OT[2 * t + 1]
    D = STG[t * 8: t * 8 + 8]
    r = [valu("v_accvgpr_read_b32", T[i], O[8 * half + i]) for i in range(8)]
    m = []
    for i in range(4):
        m += scale2(T[2 * i: 2 * i + 2], 1)
    c = [valu("v_cvt_pk_bf16_f32", D[4 * half + i], T[2 * i], T[2 * i + 1]) for i in range(4)]
    return r, m, c


def setw(items, earliest=None, latest=None):
    for i in items:
        if latest is not None:
            i.latest = latest if i.latest is None else min(i.latest, latest)
    if earliest is not None:
        items[0].earliest = earliest
    return items


def rare(x, par):
    S = SA if x == 0 else SB[par]
    P = PA[par] if x == 0 else PB
    u, w, f = X[0], X[1], X[5]
    o = [label(f"L_rare_{'AB'[x]}{par}"), nop(15)]
    o += max_tree(S, u, w)
    o += [valu("v_fma_f32", u, u, sC, negmc[x]), valu("v_mov_b32", w, u), nop(1), swap(u, w),
          valu("v_max3_f32", u, u, w, "0"),
          valu("v_sub_f32", negmc[x], negmc[x], u),
          trans("v_exp_f32", f, f"-{u}", extra_rd=[u]), nop(0),
          valu("v_mul_f32", lsum[x], lsum[x], f)]
    for t in range(6):
        O = OT[2 * t + x]
        for i in range(16):
            if O.f == "a":
                tt = X[i % 4]
                o += [valu("v_accvgpr_read_b32", tt, O[i]), valu("v_mul_f32", tt, tt, f),
                      valu("v_accvgpr_write_b32", O[i], tt)]
            else:
                o.append(valu("v_mul_f32", O[i], O[i], f))
    o += exp_stream(x, S, P, ts)
    o += [nop(3), I(f"s_setpc_b64 {sRet}", "branch", rd=[sRet])]
    return o


def add_qk(u, g, tile, qwait=None):
    base = len(u.heads)
    Sb = SB[tile % 2]
    for ks in range(12):
        fr = FR[ks % 6]
        u.add_gap(mfma(SA, fr, Qreg(Qc, ks, 0), SA if ks else 0))
        m = mfma(Sb, fr, Qreg(Qc, ks, 1), Sb if ks else 0)
        if tile == 0:
            m.needl = [("QB", (g + 1) // 16, ks)]
        u.add_gap(m)
    return base


def add_pv(u, g, t):
    base = len(u.heads)
    for tt in range(6):
        for st in range(2):
            fr = FR[(12 + tt * 2 + st) % 6]
            z = (t == 0 and st == 0)
            oa, ob = OT[2 * tt], OT[2 * tt + 1]
            u.add_gap(mfma(oa, fr, PA[t % 2][4 * st:4 * st + 4], 0 if z else oa))
            u.add_gap(mfma(ob, fr, PB[4 * st:4 * st + 4], 0 if z else ob))
    return base


def frag_read(g, t, f):
    if f < 12:
        return kread(g, f, t + 1)
    if f < 24:
        return vread(g, f, t)
    return kread(g + 1, f - 24, t + 2)


def ftag(g, f):
    return ("F", g, f) if f < 24 else ("F", g + 1, f - 24)


def stamp(idx, real=False):
    if not OPT["stamp"]:
        return []
    if OPT["stamp"] == 2 and idx not in (0, 1, 15, 16, 17, 18, 19, 56, 60, 61):
        return []
    op = "s_memrealtime" if real else "s_memtime"
    return [I(f"{op} {sStamp}", "salu", wr=[sStamp]), I("s_waitcnt lgkmcnt(0)", "salu"),
            valu("v_mov_b32", E[3], sStamp[0]),
            I(f"buffer_store_dword {E[3]}, v0, {srdD}, {sH} offen offset:{idx * 4}", "vmem", rd=[E[3], "v0", srdD])]


def add_iter(u, b, t, site):
    g = b * 16 + t
    base = add_qk(u, g, (t + 1) % 16)
    add_pv(u, g, t)
    for f in range(24):
        k = base + 2 * f + 1
        u.pin[k] += frag_read(g, t, f + 6)
        if f % 2 == 1:
            u.pin[k].append(waitl(ftag(g, f + 1), ftag(g, f + 2)))
    tk, tv = (t + KD) % 16, (t + VD) % 16
    u.tail[base + OPT["kgaps"][0] - 1].append(setm0(m0K[KSLOT[tk]]))
    for c, k in enumerate(OPT["kgaps"]):
        u.pin[base + k].append(dma(srdK, vDK[c], sT[tk], c, ("K", g + KD)))
    u.tail[base + OPT["vgaps"][0] - 1].append(setm0(m0V[VSLOT[tv]]))
    for c, k in enumerate(OPT["vgaps"]):
        u.pin[base + k].append(dma(srdV, vDV[c], sT[tv], c, ("V", g + VD)))
    for x, key in ((0, "oa_rd"), (1, "ob_rd")):
        for idx, (tt, k) in enumerate(OPT[key]):
            if tt == t:
                u.pin[base + k].append(oread(obuf(x, idx), idx, ("OR", b, x, idx)))
    for ch, (tt, k) in enumerate(OPT["ob_wr"]):
        if tt == t:
            u.pin[base + k].append(owrite(STG[ch * 4: ch * 4 + 4], ch))
    for half in range(2):
        n = 2 * t + half
        gaps = OPT["sgaps"][half]
        for x, key in ((0, "oa_slots"), (1, "ob_slots")):
            if n in OPT[key]:
                jj = OPT[key].index(n)
                for c, k in enumerate(gaps):
                    idx = jj * 3 + c
                    u.pin[base + k].append(ostore(obuf(x, idx), x, idx, [("OR", b, x, idx)]))
        for x, key in ((0, "qa_slots"), (1, "qb_slots")):
            if n in OPT[key]:
                jj = OPT[key].index(n)
                u.tail[base + gaps[0] - 1].append(setm0(sM[jj]))
                need = [("OR", b, 1, 11)] if x == 0 else [("QA", b + 1, 11)]
                for c, k in enumerate(gaps):
                    u.pin[base + k].append(qdma(x, jj, c, ("QD", b + 1, x), need))
    if t == OPT["qar_iter"]:
        u.pin[base + 0].append(waitv(("QD", b + 1, 0)))
        for ks in range(12):
            u.pin[base + 2 * ks].append(qread(STG[ks * 4: ks * 4 + 4], ks, vS, ("QA", b + 1, ks), [("QD", b + 1, 0)]))
    if t == 14:
        u.pin[base + 24].append(waitv(("QD", b + 1, 1)))
        for ks in range(12):
            u.pin[base + 24 + 2 * ks].append(qread(Qreg(Qc, ks, 1), ks, vS, ("QB", b + 1, ks), [("QD", b + 1, 1)]))
    if OPT.get("twobar"):
        u.pin[base + OPT["bar_gap"]] += [waitv(("V", g + 1)), barrier()]
        u.pin[base + 24] += [waitv(("K", g + 2)), barrier()]
    else:
        u.pin[base + OPT["bar_gap"]] += [waitv(("K", g + 3), ("V", g + 1))] + ([] if OPT.get("nobar") else [barrier()])
    it, tl = softmax(1, t, site)
    u.streams.append(Stream(it, base + 0, base + 23, prio=0.05))
    u.tail[base + 23] += tl
    it, tl = softmax(0, (t + 1) % 16, site)
    u.streams.append(Stream(it, base + 25, base + 47, prio=0.05))
    u.tail[base + 47] += tl
    if t == 1:
        sl = [salu("s_mov_b32", sQOcur, sQO),
              salu("s_add_u32", sBG, sBG, "32", scc_w=True),
              salu("s_mul_hi_u32", sKO, sBG, sMagic),
              salu("s_mul_i32", sKO, sKO, "196608"),
              salu("s_mul_i32", sQO, sBG, "98304"),
              I(f"s_cmp_lt_u32 {sTrip}, 2", "salu", rd=[sTrip], wr=["scc"]),
              salu("s_cselect_b32", sNrec, "196608", "0", scc_r=True),
              salu("s_cselect_b32", srdQ[2], "98304", "0", scc_r=True),
              salu("s_add_u32", srdQ[0], ptrQ[0], sQO, scc_w=True),
              salu("s_addc_u32", srdQ[1], ptrQ[1], "0", scc_w=True, scc_r=True)]
        u.streams.append(Stream(sl, base + 12, base + 40))
    if t == 15 - KD:
        sl = [salu("s_add_u32", srdK[0], ptrK[0], sKO, scc_w=True),
              salu("s_addc_u32", srdK[1], ptrK[1], "0", scc_w=True, scc_r=True),
              salu("s_mov_b32", srdK[2], sNrec)]
        u.streams.append(Stream(sl, base + OPT["kgaps"][-1] + 1, base + 46))
    if t == 15 - VD:
        sl = [salu("s_add_u32", srdV[0], ptrV[0], sKO, scc_w=True),
              salu("s_addc_u32", srdV[1], ptrV[1], "0", scc_w=True, scc_r=True),
              salu("s_mov_b32", srdV[2], sNrec)]
        u.streams.append(Stream(sl, base + OPT["vgaps"][-1] + 1, base + 46))
    return base


def qcopy(ks_list, earliest_fn, latest_fn):
    out = []
    for ks in ks_list:
        for i in range(4):
            out.append(valu("v_accvgpr_write_b32", Qreg(Qc, ks, 0)[i], STG[ks * 4 + i],
                            earliest=earliest_fn(ks, 0), latest=latest_fn(ks, 0)))
    return out


def set_osrd():
    return [salu("s_add_u32", srdO[0], ptrO[0], sQOcur, scc_w=True),
            salu("s_addc_u32", srdO[1], ptrO[1], "0", scc_w=True, scc_r=True),
            salu("s_mov_b32", srdO[2], "98304")]


QC_SPLIT = 8


def unit_mid(b, t):
    u = Unit(f"T{t}")
    if t == 1:
        u.pre.append(label("L_loop"))
    u.pre += stamp_at(t)
    base = add_iter(u, b, t, f"T{t}")
    if t == 14:
        u.streams.append(Stream(qcopy(range(QC_SPLIT), lambda ks, x: base + 2 * ks + x, lambda ks, x: None),
                                base + 1, base + 47))
        u.post += [I(f"s_cmp_eq_u32 {sTrip}, 2", "salu", rd=[sTrip], wr=["scc"]),
                   I("s_cbranch_scc1 L_fin", "branch", rd=["scc"])]
    return u


def stamp_at(t):
    return stamp(t)


def unit_x(b):
    u = Unit("X")
    u.pre += stamp_at(15)
    b15 = add_iter(u, b, 15, "T15")
    b0 = add_iter(u, b + 1, 0, "T0")
    u.streams.append(Stream(qcopy(range(QC_SPLIT, 12), lambda ks, x: None, lambda ks, x: b15 + 2 * ks + x - 2),
                            b15 + 0, b15 + 20))
    u.streams.append(Stream(rinv_stream(0), b15 + 2, b15 + 20))
    u.streams.append(Stream(rinv_stream(1), b15 + 24, b15 + 27, prio=0.5))
    ep, wr = [], []
    for tt in range(6):
        O = OT[2 * tt]
        dl = b0 + 24 + 4 * tt - 1
        m, c, w = epi_a(tt)
        r0, m0_, c0 = epi_b(tt, 0, O[8:16])
        r1, m1_, c1 = epi_b(tt, 1, O[8:16])
        setw(m, earliest=b15 + 24 + 4 * tt + 5)
        ep += setw(m + c + r0 + m0_ + c0 + r1 + m1_ + c1, latest=dl)
        w[0].after, w[1].after = c[3], c[7]
        for i in w:
            i.flags.add("head")
        wr += setw(w, latest=dl)
    u.streams.append(Stream(ep, b15 + 29, b0 + 43))
    u.streams.append(Stream(wr, b15 + 29, b0 + 43))
    u.streams.append(Stream(set_osrd(), b15 + 8, b15 + 22))
    sl = [salu("s_add_u32", sTrip, sTrip, "1", scc_w=True)]
    if OPT["stamp"]:
        sl.append(salu("s_add_u32", sH, sH, "64", scc_w=True))
    u.streams.append(Stream(sl, b0 + 2, b0 + 40))
    u.post.append(I("s_branch L_loop", "branch"))
    return u


def unit_pro():
    u = Unit("PRO")
    P = u.pre
    tid, lane, q32, h, t0, t1, t2 = v(0), X[0], X[1], X[2], X[3], X[4], X[5]
    sP = sNrec
    P += [I("s_cmp_ge_u32 s2, 256", "salu", rd=["s2"], wr=["scc"]),
          I("s_cbranch_scc1 L_end", "branch", rd=["scc"]),
          I("s_load_dwordx4 s[4:7], s[0:1], 0", "salu", wr=[s(4, 4)]),
          I("s_load_dwordx4 s[8:11], s[0:1], 16", "salu", wr=[s(8, 4)])]
    if OPT["stamp"]:
        P += [I(f"s_load_dwordx2 {srdD[0:2]}, s[0:1], 40", "salu"), I(f"s_memrealtime {s(94, 2)}", "salu")]
    if OPT.get("dbg"):
        P += [I(f"s_load_dwordx2 {srdD[0:2]}, s[0:1], 32", "salu"), I(f"s_memrealtime {s(94, 2)}", "salu"),
              I(f"s_memtime {s(96, 2)}", "salu")]
    P += [valu("v_lshrrev_b32", t0, "6", tid), valu("v_and_b32", lane, "63", tid),
          I(f"v_readfirstlane_b32 {sW}, {t0}", "valu", rd=[t0], wr=[sW]),
          valu("v_lshlrev_b32", t1, "4", lane)]
    bad = OPT.get("badmap")
    P += [salu("s_lshr_b32", sBG, "s2", "5", scc_w=True) if bad else salu("s_and_b32", sBG, "s2", "7", scc_w=True),
          salu("s_mul_i32", sBG, sBG, "96"),
          salu("s_and_b32", sH, "s2", "31", scc_w=True) if bad else salu("s_lshr_b32", sH, "s2", "3", scc_w=True),
          salu("s_add_u32", sBG, sBG, sH, scc_w=True),
          salu("s_mov_b32", sMagic, "0x55555556"),
          salu("s_mul_hi_u32", sKO, sBG, sMagic),
          salu("s_mul_i32", sKO, sKO, "196608"),
          salu("s_mul_i32", sQO, sBG, "98304")]
    P += [salu("s_and_b32", sP, sW, "1", scc_w=True), salu("s_mul_i32", sP, sP, "3072"),
          salu("s_mov_b32", sQB, str(VBASE + 2 * TILE)),
          I(f"s_cmp_eq_u32 {sW}, 0", "salu", rd=[sW], wr=["scc"]),
          salu("s_cselect_b32", sQB, str(KBASE + 3 * TILE), sQB, scc_r=True),
          I(f"s_cmp_eq_u32 {sW}, 2", "salu", rd=[sW], wr=["scc"]),
          salu("s_cselect_b32", sQB, str(VBASE + 3 * TILE), sQB, scc_r=True),
          I(f"s_cmp_eq_u32 {sW}, 3", "salu", rd=[sW], wr=["scc"]),
          salu("s_cselect_b32", sQB, str(SPARE), sQB, scc_r=True),
          salu("s_mul_i32", sW, sW, "3072")]
    for c in range(3):
        P += [valu("v_add_u32", t0, sW, t1) if c == 0 else valu("v_add_u32", t0, "1024", t0),
              valu("v_lshrrev_b32", t2, "7", t0),
              valu("v_mul_u32_u24", t2, "171", t2),
              valu("v_lshrrev_b32", t2, "9", t2),
              valu("v_lshrrev_b32", vDK[c], "3", t2),
              valu("v_and_b32", vDK[c], "1", vDK[c]),
              valu("v_xor_b32", vDK[c], vDK[c], t2),
              valu("v_and_b32", vDK[c], "7", vDK[c]),
              valu("v_lshlrev_b32", vDK[c], "4", vDK[c]),
              valu("v_xor_b32", vDK[c], vDK[c], t0),
              valu("v_and_b32", vDV[c], "2", t2),
              valu("v_lshlrev_b32", vDV[c], "5", vDV[c]),
              valu("v_xor_b32", vDV[c], vDV[c], t0)]
        if c:
            P += [valu("v_subrev_u32", vDK[c], str(c * 1024), vDK[c]),
                  valu("v_subrev_u32", vDV[c], str(c * 1024), vDV[c])]
        P.append(valu("v_xor_b32", vDX[c], "16", vDK[c]))
    P += [salu("s_lshl_b32", sStage, sW, "2", scc_w=True),
          salu("s_add_u32", sStage, sStage, str(STAGE), scc_w=True),
          salu("s_mul_i32", sH, sW, "7")]
    for jj in range(4):
        op = "s_sub_u32" if jj & 1 else "s_add_u32"
        P += [salu(op, sTmp, str(jj * 3072), sP, scc_w=True),
              salu("s_add_u32", sM[jj], sStage, sTmp, scc_w=True),
              salu("s_add_u32", sG[0][jj], sH, sTmp, scc_w=True),
              salu("s_add_u32", sG[1][jj], sG[0][jj], str(TILE), scc_w=True)]
    P += [salu("s_sub_u32", sTmp, sQB, sStage, scc_w=True)]
    for i in range(4):
        P.append(salu("s_add_u32", m0K[i], sW, str(KBASE + i * TILE), scc_w=True))
    P += [I("s_waitcnt lgkmcnt(0)", "salu")]
    for srd, ptr, off, n in ((srdK, ptrK, sKO, 196608), (srdQ, ptrQ, sQO, 98304), (srdV, ptrV, sKO, 196608)):
        P += [salu("s_add_u32", srd[0], ptr[0], off, scc_w=True),
              salu("s_addc_u32", srd[1], ptr[1], "0", scc_w=True, scc_r=True),
              salu("s_mov_b32", srd[2], str(n)), salu("s_mov_b32", srd[3], "0x00020000")]

    def ktile(t):
        return [setm0(m0K[KSLOT[t]]), nop(0)] + [dma(srdK, vDK[c], sT[t], c, ("K", t)) for c in range(3)]

    def vtile(t):
        return [setm0(m0V[VSLOT[t]]), nop(0)] + [dma(srdV, vDV[c], sT[t], c, ("V", t)) for c in range(3)]

    P += ktile(0)
    for jj in range(4):
        P += [setm0(sM[jj]), nop(0)] + [qdma(0, jj, c, ("QD", 0, 0)) for c in range(3)]
    for jj in range(4):
        P += [salu("s_add_u32", "m0", sM[jj], sTmp, scc_w=True), nop(0)] + [qdma(1, jj, c, ("QD", 0, 1)) for c in range(3)]
    for i in range(4):
        P.append(salu("s_add_u32", m0V[i], sW, str(VBASE + i * TILE), scc_w=True))
    for t in range(1, 16):
        P.append(salu("s_mov_b32", sT[t], str(t * TILE)))
    P += ktile(1) + vtile(0) + ktile(2)
    if OPT["codewarm"]:
        P += [I(f"s_getpc_b64 {sPC}", "salu", wr=[sPC]),
              label("L_pc"),
              I(f"s_sub_u32 {sPC[0]}, {sPC[0]}, L_pc-{KNAME}", "salu", rd=[sPC], wr=[sPC, "scc"]),
              I(f"s_subb_u32 {sPC[1]}, {sPC[1]}, 0", "salu", rd=[sPC, "scc"], wr=[sPC, "scc"]),
              salu("s_lshr_b32", sH, "s2", "3", scc_w=True),
              salu("s_lshl_b32", sH, sH, "11", scc_w=True),
              valu("v_lshlrev_b32", t2, "3", tid),
              valu("v_add_u32", t2, sH, t2),
              I(f"v_min_u32 {t2}, L_code_end-{KNAME}-8, {t2}", "valu", rd=[t2], wr=[t2]),
              I(f"global_load_dwordx2 {JUNK[0:2]}, {t2}, {sPC}", "vmem", rd=[t2, sPC], wr=[JUNK[0:2]])]
    P += vtile(1)
    P += [salu("s_mov_b32", srdO[0], ptrO[0]), salu("s_mov_b32", srdO[1], ptrO[1]),
          salu("s_mov_b32", srdO[2], "0"), salu("s_mov_b32", srdO[3], "0x00020000"),
          salu("s_mov_b32", sTrip, "0"),
          salu("s_mov_b32", sC, hex(f2u(SCALE_C))), salu("s_mov_b32", sNegC, hex(f2u(-SCALE_C))),
          salu("s_mov_b32", sThr, hex(f2u(OPT["thr"])))]
    P += [valu("v_add_u32", t1, sStage, t1), valu("v_add_u32", vLin[0], sP, t1), valu("v_subrev_u32", vLin[1], sP, t1)]
    P += [valu("v_and_b32", q32, "31", lane), valu("v_lshrrev_b32", h, "5", lane),
          valu("v_mul_u32_u24", t0, "384", q32)]
    P += [valu("v_bfe_u32", t1, q32, "3", "1"), valu("v_xor_b32", t1, t1, q32), valu("v_and_b32", t1, "7", t1),
          valu("v_xor_b32", t1, t1, h)]
    for i in range(4):
        P += [valu("v_xor_b32", t2, str(2 * i), t1), valu("v_lshlrev_b32", t2, "4", t2),
              valu("v_add_u32", vK[i], t0, t2), valu("v_add_u32", vS[i], sStage, vK[i]),
              valu("v_add_u32", STG[i], sQB, vK[i])]
    r, g_, xx = q32, t1, t2
    P += [valu("v_bfe_u32", r, lane, "2", "2"),
          valu("v_lshl_add_u32", t0, h, "2", r),
          valu("v_mul_u32_u24", t0, "384", t0),
          valu("v_bfe_u32", g_, lane, "4", "1"), valu("v_lshlrev_b32", g_, "5", g_),
          valu("v_add_u32", t0, t0, g_),
          valu("v_and_b32", g_, "1", lane), valu("v_lshlrev_b32", g_, "4", g_),
          valu("v_add_u32", t0, t0, g_),
          valu("v_bfe_u32", g_, lane, "1", "1"), valu("v_lshlrev_b32", g_, "3", g_),
          valu("v_add_u32", t0, t0, g_),
          valu("v_add_u32", t0, str(VBASE), t0),
          valu("v_lshrrev_b32", xx, "1", r), valu("v_lshlrev_b32", xx, "6", xx),
          valu("v_add_u32", vV[0], t0, xx), valu("v_sub_u32", vV[1], t0, xx)]
    if OPT["stamp"]:
        P += [salu("s_mov_b32", srdD[2], "0x1000000"), salu("s_mov_b32", srdD[3], "0x00020000"),
              valu("v_lshrrev_b32", tid, "6", tid), valu("v_lshlrev_b32", tid, "8", tid),
              salu("s_lshl_b32", sH, "s2", "10", scc_w=True), valu("v_add_u32", tid, sH, tid),
              salu("s_mov_b32", sH, "0"),
              valu("v_mov_b32", E[3], s(94)),
              I(f"buffer_store_dword {E[3]}, v0, {srdD}, 0 offen offset:{57 * 4}", "vmem", rd=[E[3], "v0", srdD])]
    P += stamp(60) + stamp(56, True)
    P += [waitv(("QD", 0, 0)), barrier()]
    for f in range(6):
        P += kread(-2, f, 0)
    for ks in range(12):
        P.append(qread(Qreg(Qc, ks, 0), ks, vS, ("QA", 0, ks)))
    P += [waitl(("QA", 0, 3))]
    P += stamp(61)
    if OPT.get("dbg"):
        P += [I(f"s_memrealtime {s(98, 2)}", "salu"), I("s_waitcnt lgkmcnt(0)", "salu")]
    for n in range(12):
        k = u.add_gap(mfma(SA, FR[n % 6], Qreg(Qc, n, 0), SA if n else 0))
        u.pin[k] += kread(-2, n + 6, 0)
        if n == 3:
            u.pin[k].append(waitl(("QA", 0, 11)))
        if n >= 5 and n < 11:
            u.pin[k].append(waitl(("F", -2, n + 1)))
    k = u.add_gap(None)
    it, tl = softmax(0, 0, "PRO")
    u.pin[k] += it + [waitv(("QD", 0, 1))]
    for ks in range(12):
        u.pin[k].append(qread(Qreg(Qc, ks, 1), ks, [STG[i] for i in range(4)], ("QB", 0, ks)))
    u.pin[k] += [waitl(("QB", 0, 1))]
    for n in range(12, 24):
        ks = n - 12
        k = u.add_gap(mfma(SB[0], FR[n % 6], Qreg(Qc, ks, 1), SB[0] if ks else 0))
        if n + 6 < 24:
            u.pin[k] += kread(-2, n + 6, 0)
        if ks in (1, 3):
            u.pin[k].append(waitl(("QB", 0, 3 if ks == 1 else 11)))
        if ks == 4:
            wk = [("K", 1), ("V", 0)] + ([] if OPT.get("twobar") else [("K", 2)])
            u.pin[k] += [waitv(*wk), barrier()]
        if ks == 5:
            u.pin[k] += ktile(3)
        if ks == 6:
            u.pin[k] += vtile(2)
        if n >= 17 and n < 23:
            u.pin[k].append(waitl(("F", -2, n + 1)))
        if n >= 18:
            u.pin[k] += kread(0, n - 18, 1)
    u.pin[k] += [barrier()] + (ktile(4) if OPT.get("twobar") else [])
    u.pin[k] += [waitl(("F", 0, 0), ("F", 0, 1))]
    u.pin[k] += stamp(0)
    u.win0 = len(u.heads)
    add_iter(u, 0, 0, "T0p")
    return u


def unit_fin(b):
    u = Unit("FIN")
    g, t = b * 16 + 15, 15
    u.pre.append(label("L_fin"))
    u.pre += stamp_at(15)
    G = 1000
    for n in range(6):
        u.pre += vread(G, n, t)
    u.pre += rinv_stream(0) + set_osrd() + [waitl(("F", G, 0))]
    base = len(u.heads)
    for n in range(24):
        x, tt, st = n // 12, (n % 12) // 2, n % 2
        o = OT[2 * tt + x]
        Pr = PA[t % 2] if x == 0 else PB
        k = u.add_gap(mfma(o, FR[n % 6], Pr[4 * st: 4 * st + 4], o))
        if n + 6 < 24:
            u.pin[k] += vread(G, n + 6, t)
        if n < 23:
            u.pin[k].append(waitl(("F", G, n + 1)))
    last = u.add_gap(None)
    it, tl = softmax(1, 15, "T15f")
    u.streams.append(Stream(it, base, base + 11))
    u.tail[base + 11] += tl
    u.streams.append(Stream(rinv_stream(1), base + 12, base + 15))
    ep = []
    for tt in range(6):
        m, c, w = epi_a(tt)
        ep += m + c + w
    u.streams.append(Stream(ep, base + 12, base + 23))
    u.window = 12
    po = u.pin[last]
    Z = [Qc[4 * i: 4 * i + 4] for i in range(24)]
    for n in range(12):
        po.append(oread(Z[n], n, ("OR", b + 1, 0, n)))
    for tt in range(6):
        r0, m0_, c0 = epi_b(tt, 0, SA[0:8])
        r1, m1_, c1 = epi_b(tt, 1, SA[8:16])
        st = [ostore(Z[n], 0, n, [("OR", b + 1, 0, n)]) for n in (2 * tt, 2 * tt + 1)]
        po += r0 + r1 + ([waitl(("OR", b + 1, 0, 11))] if tt == 0 else []) + st[:1] + m0_ + m1_ + c0 + st[1:] + c1
        po += [owrite(STG[ch * 4: ch * 4 + 4], ch) for ch in (2 * tt, 2 * tt + 1)]
    for n in range(12):
        po.append(oread(Z[12 + n], n, ("OR", b + 1, 1, n)))
    for n in range(12):
        po.append(waitl(("OR", b + 1, 1, n)))
        po.append(ostore(Z[12 + n], 1, n, [("OR", b + 1, 1, n)]))
    u.post += stamp(16) + stamp(17, True)
    if OPT["stamp"]:
        u.post += [I("s_waitcnt vmcnt(0)", "salu")] + stamp(18) + stamp(19, True)
    if OPT.get("dbg"):
        u.post += [I("s_cmp_ge_u32 s2, 8", "salu"), I("s_cbranch_scc1 L_end", "branch"),
                   I(f"s_cmp_lg_u32 {sW}, 0", "salu"), I("s_cbranch_scc1 L_end", "branch"),
                   I("s_waitcnt vmcnt(0)", "salu"), I(f"s_memrealtime {sStamp}", "salu"), I(f"s_memtime {sPC}", "salu"),
                   I("s_waitcnt lgkmcnt(0)", "salu"),
                   salu("s_mov_b32", srdD[2], "256"), salu("s_mov_b32", srdD[3], "0x00020000"),
                   I("s_mov_b64 exec, 1", "salu"),
                   salu("s_sub_u32", sTmp, sStamp[0], s(94)), salu("s_sub_u32", sH, s(98), s(94)),
                   salu("s_mul_i32", sH, sH, "100000"), salu("s_add_u32", sTmp, sTmp, sH),
                   valu("v_mov_b32", v(30), sTmp),
                   salu("s_sub_u32", sTmp, sPC[0], s(96)), valu("v_mov_b32", E[3], sTmp),
                   salu("s_lshl_b32", sTmp, "s2", "3"),
                   I(f"buffer_store_dwordx2 {v(30, 2)}, off, {srdD}, {sTmp}", "vmem", rd=[srdD])]
    u.post += [label("L_end"), I("s_endpgm", "branch")]
    return u


def build(extra):
    cache = {}

    def get(name, fn, first):
        u = fn()
        ins = u.schedule(verbose=first and VERB)
        out = []
        for idx, i in enumerate(ins):
            n = extra.get((name, idx), 0)
            if n:
                out.append(((name, idx, "nop"), nop(n - 1)))
            out.append(((name, idx), i))
        if first:
            cache[name] = out
        return out

    trace = list(get("PRO", unit_pro, True))
    for b in range(3):
        for t in range(1, 15):
            trace += get(f"T{t}", lambda: unit_mid(b, t), b == 0)
        if b < 2:
            trace += get("X", lambda: unit_x(b), b == 0)
    trace += get("FIN", lambda: unit_fin(2), True)
    order = ["PRO"] + [f"T{t}" for t in range(1, 15)] + ["X", "FIN"]
    return [(n, cache[n]) for n in order], trace


VERB = False
extra = {}
for it in range(60):
    static, trace = build(extra)
    hz = hazards([i for _, i in trace])
    if not hz:
        break
    upd = {}
    lastj = -100
    for j, need, why in hz:
        key = trace[j][0]
        if j != lastj and j - lastj < 24:
            continue
        lastj = j
        upd[key] = max(upd.get(key, 0), need)
        if OPT.get("showhz"):
            print("; hazard:", key, need, why, file=sys.stderr)
    for k, n in upd.items():
        extra[k] = extra.get(k, 0) + n
else:
    raise SystemExit("hazards did not converge")
if OPT.get("verb"):
    VERB = True
    _so = sys.stdout
    sys.stdout = sys.stderr
    build(extra)
    sys.stdout = _so
    print("; nops inserted:", extra, file=sys.stderr)
W = resolve_waits(trace)
_bad = check_coverage(trace, W)
assert not _bad, _bad[:10]
if OPT.get("verb") and "_mismatch" in W:
    print("; wait mismatches:", W["_mismatch"], file=sys.stderr)

out = []
A = out.append
A(open(os.path.join(os.path.dirname(os.path.abspath(__file__)), "header.txt")).read().rstrip())
A(f"; @launch grid=(256,1,1) block=(256,1,1) lds={LDS_BYTES}")
A('.amdgcn_target "amdgcn-amd-amdhsa--gfx950"')
A(".text")
A(f".globl {KNAME}")
A(".p2align 8")
A(f".type {KNAME},@function")
A(f"{KNAME}:")
for name, ins in static:
    A(f"; ---- {name} ----")
    for key, i in ins:
        t = i.text
        if i.kind == "wait":
            l, vv = W[key]
            t = "s_waitcnt " + (f"lgkmcnt({l})" if l is not None else f"vmcnt({vv})")
        abl = OPT.get("abl", "")
        if abl and name not in ("PRO",):
            tx = i.text
            if "v" in abl and i.kind in ("valu", "trans") and any(str(r) in tx.replace(",", " ").split() for r in X + [ts]):
                continue
            if "v" in abl and "s_cbranch_vccnz" in tx:
                continue
            if "x" in abl and "v_exp_f32" in tx:
                continue
            if "f" in abl and "v_fma_f32" in tx:
                continue
            if "a" in abl and ("v_add_f32" in tx or "s_cbranch_vccnz" in tx):
                continue
            if "d" in abl and i.kind == "ds" and i.wr and i.wr[0] in names(FR):
                continue
            if "k" in abl and i.kind == "vmem" and (str(srdK) in tx or str(srdV) in tx):
                continue
            if "s" in abl and ((i.kind == "vmem" and (str(srdQ) in tx or str(srdO) in tx)) or
                               (i.kind == "ds" and not (i.wr and i.wr[0] in names(FR)))):
                continue
            if "e" in abl and i.kind == "valu" and (str(rinv[0]) in tx.split() or str(rinv[1]) in tx.split() or "accvgpr" in tx
                                                    or ("cvt_pk" in tx and not any(str(r) in tx.replace(",", " ").split() for r in X))):
                continue
            if "m" in abl and i.kind == "mfma":
                continue
            if "b" in abl and i.kind == "barrier":
                continue
        A(t if i.kind == "label" else "    " + t)
for name, x, par in TRAMPS:
    A(f"L_tr_{name}:")
    A(f"    s_call_b64 {sRet}, L_rare_{'AB'[x]}{par}")
    A(f"    s_branch L_ret_{name}")
for x in range(2):
    for par in range(2):
        r = rare(x, par)
        hz = hazards(r)
        assert not hz, hz
        for i in r:
            A(i.text if i.kind == "label" else "    " + i.text)
A("L_code_end:")
A("    s_endpgm")
A(f""".section .rodata,"a"
.p2align 6
.amdhsa_kernel {KNAME}
  .amdhsa_next_free_vgpr 512
  .amdhsa_next_free_sgpr 102
  .amdhsa_accum_offset 256
  .amdhsa_group_segment_fixed_size 0
  .amdhsa_kernarg_size 48
  .amdhsa_user_sgpr_count 2
  .amdhsa_user_sgpr_kernarg_segment_ptr 1
  .amdhsa_system_sgpr_workgroup_id_x 1
  .amdhsa_float_denorm_mode_32 3
.end_amdhsa_kernel""")
print("\n".join(out))
```

```python
import re


def rl(f, lo, n=1):
    return [f"{f}{lo + i}" for i in range(n)]


class Reg:
    def __init__(self, f, lo, n=1):
        self.f, self.lo, self.n = f, lo, n

    def __getitem__(self, i):
        if isinstance(i, slice):
            a = i.start or 0
            b = i.stop if i.stop is not None else self.n
            assert 0 <= a < b <= self.n, (a, b, self.n)
            return Reg(self.f, self.lo + a, b - a)
        assert 0 <= i < self.n, (i, self.n)
        return Reg(self.f, self.lo + i, 1)

    def __str__(self):
        if self.n == 1:
            return f"{self.f}{self.lo}"
        return f"{self.f}[{self.lo}:{self.lo + self.n - 1}]"

    def names(self):
        return rl(self.f, self.lo, self.n)


def names(*xs):
    out = []
    for x in xs:
        if isinstance(x, Reg):
            out += x.names()
        elif isinstance(x, str):
            if re.fullmatch(r"[vas]\d+|vcc|scc|m0|exec", x):
                out.append(x)
        elif isinstance(x, (list, tuple)):
            out += names(*x)
    return out


COST = dict(mfma=8, valu=4, trans=8, ds=4, vmem=12, salu=4, wait=4, nop=4, branch=4, barrier=8, label=0)


class I:
    def __init__(self, text, kind, rd=(), wr=(), tag=None, waitl=None, waitv=None, cost=None,
                 srcc=None, ab=None, earliest=None, latest=None, states=1, flags=(), needl=None, needv=None):
        self.text, self.kind = text, kind
        self.rd, self.wr = names(rd), names(wr)
        self.tag, self.waitl, self.waitv = tag, waitl, waitv
        self.cost = COST[kind] if cost is None else cost
        self.srcc = names(srcc) if srcc is not None else []
        self.ab = names(ab) if ab is not None else []
        self.earliest, self.latest = earliest, latest
        self.states = 0 if kind == "label" else states
        self.flags = set(flags)
        self.needl, self.needv = needl, needv

    def __repr__(self):
        return f"<{self.text}>"


def mfma(d, a, b, c):
    cs = str(c) if isinstance(c, Reg) else "0"
    op = "v_mfma_f32_32x32x16_bf16" if d.n == 16 else "v_mfma_f32_16x16x32_bf16"
    m = I(f"{op} {d}, {a}, {b}, {cs}", "mfma", rd=[a, b] + ([c] if isinstance(c, Reg) else []),
          wr=[d], srcc=[c] if isinstance(c, Reg) else [], ab=[a, b])
    m.passes = 8 if d.n == 16 else 4
    return m


def valu(op, d, *src, kind="valu", extra_rd=(), extra_wr=(), **kw):
    ops = ", ".join(str(x) for x in (d,) + src)
    rd = [re.sub(r"^-", "", s) if isinstance(s, str) else s for s in src]
    return I(f"{op} {ops}", kind, rd=list(rd) + list(extra_rd), wr=[d] + list(extra_wr), **kw)


def trans(op, d, s, **kw):
    return valu(op, d, s, kind="trans", **kw)


def salu(op, d, *src, scc_w=False, scc_r=False, **kw):
    ops = ", ".join(str(x) for x in (d,) + src)
    return I(f"{op} {ops}", "salu", rd=list(src) + (["scc"] if scc_r else []), wr=[d] + (["scc"] if scc_w else []), **kw)


def nop(n=0):
    return I(f"s_nop {n}", "nop", states=n + 1, cost=4 * (n + 1))


def label(name):
    return I(f"{name}:", "label")


def waitl(*tags):
    return I("s_waitcnt lgkmcnt(?)", "wait", waitl=list(tags))


def waitv(*tags):
    return I("s_waitcnt vmcnt(?)", "wait", waitv=list(tags))


def barrier():
    return I("s_barrier", "barrier")


class Stream:
    def __init__(self, items, start, end, prio=0, look=1):
        self.items, self.start, self.end, self.prio, self.look = list(items), start, end, prio, look
        self.total = sum(i.cost for i in self.items)
        self.done = 0

    def cands(self, k, emitted):
        if k < self.start:
            return []
        out = []
        rd, wr = set(), set()
        for it in self.items[:self.look]:
            ird, iwr = set(it.rd), set(it.wr)
            ok = not (ird & wr or iwr & wr or iwr & rd)
            if it.earliest is not None and k < it.earliest:
                break
            if getattr(it, "after", None) is not None and id(it.after) not in emitted:
                ok = False
            if it.kind not in ("valu", "trans") or it.flags:
                if it is self.items[0] and ok:
                    out.append(it)
                break
            if ok:
                out.append(it)
            rd |= ird
            wr |= iwr
        return out


class Unit:
    def __init__(self, name):
        self.name = name
        self.pre = []
        self.heads = []
        self.pin = []
        self.tail = []
        self.streams = []
        self.post = []
        self.win0 = 0
        self.fixed_budget = False

    def add_gap(self, m):
        self.heads.append(m)
        self.pin.append([])
        self.tail.append([])
        return len(self.heads) - 1

    def schedule(self, budget=24, window=24, pk_at=36, verbose=False):
        n = len(self.heads)
        window = getattr(self, 'window', window)
        fixed = [sum(i.cost for i in self.pin[k]) + sum(i.cost for i in self.tail[k]) for k in range(n)]
        target = [float(budget)] * n
        demand = [0.0] * n
        for s in self.streams:
            ln = s.end - s.start + 1
            for k in range(s.start, s.end + 1):
                demand[k] += s.total / ln
        for w0 in range(self.win0, n, window):
            w1 = min(n, w0 + window)
            ks = [k for k in range(w0, w1) if demand[k] > 0]
            need = sum(demand[k] for k in ks)
            t = float(budget)
            while ks and sum(max(0.0, t - fixed[k]) for k in ks) < need * (1.04 if t == budget else 1.0):
                t += 0.25
            for k in range(w0, w1):
                target[k] = t
        free = [max(0.0, target[k] - fixed[k]) for k in range(n)]
        cumfree = [0.0]
        for f in free:
            cumfree.append(cumfree[-1] + f)
        out = list(self.pre)
        emitted = set(id(i) for i in out)
        used = []
        carry = 0.0
        for k in range(n):
            if self.heads[k] is not None:
                out.append(self.heads[k])
            out += self.pin[k]
            over = target[k] > budget
            rem = free[k] + (carry if over else 0.0)
            tailc = sum(i.cost for i in self.tail[k])
            u = fixed[k] - tailc
            haspk = False
            nvalu = sum(1 for i in self.pin[k] if i.kind in ("valu", "trans"))
            while True:
                best, bestit, bestscore = None, None, None
                room = budget - u - tailc
                allc = [(s, s.cands(k, emitted)) for s in self.streams if s.items]
                for s, cl in allc:
                    if not cl:
                        continue
                    dl = min([x.latest for x in s.items if x.latest is not None] + [s.end])
                    f = dl <= k
                    cap_tot = (cumfree[s.end + 1] - cumfree[s.start]) or 1
                    cap_el = cumfree[min(k, s.end) + 1] - cumfree[s.start]
                    lag = cap_el / cap_tot - s.done / s.total
                    for ci, it in enumerate(cl):
                        score = lag + s.prio - 0.001 * ci
                        last = out[-1] if out else None
                        if last is not None and last.kind == "trans" and it.kind == "valu" and set(last.wr) & set(it.rd):
                            score -= 50
                        if "head" in it.flags and not f:
                            if nvalu or u > budget / 3 or (lag < 0 and getattr(s, "pace", False)):
                                continue
                            score += 300
                        elif ("pk" in it.flags and haspk) or (last is not None and "pk" in last.flags):
                            score += 200 if "pk" in it.flags else 150
                        elif f:
                            score += 100
                        else:
                            if over:
                                if room > 0:
                                    if it.cost <= room:
                                        score += 10 + (2 if it.cost == room else 0)
                                    elif rem < it.cost / 2.0:
                                        score -= 5
                                    if lag <= -0.06:
                                        score -= 20 if it.cost <= room else 1000
                                else:
                                    if rem < it.cost / 2.0 + 1 or lag <= -0.02:
                                        continue
                            else:
                                if (it.cost > rem and not ("pk" in it.flags and rem > 0)) or lag <= -0.02:
                                    continue
                                if it.cost == room:
                                    score += 0.02
                            if score < -500:
                                continue
                        if best is None or score > bestscore:
                            best, bestit, bestscore = s, it, score
                if best is None:
                    break
                it = bestit
                if "pk" in it.flags and self.heads[k] is not None and u < pk_at:
                    alt = [(s, c) for s, cl in allc for c in cl[:1] if s is not best and not (c.flags & {"pk", "head"})]
                    if alt:
                        best, it = min(alt, key=lambda sc: sc[0].done / sc[0].total - (k - sc[0].start) / (sc[0].end - sc[0].start + 1))
                    else:
                        rem -= pk_at - u
                        u = pk_at
                if "pk" in it.flags:
                    haspk = True
                if it.kind in ("valu", "trans"):
                    nvalu += 1
                best.items.remove(it)
                best.done += it.cost
                rem -= it.cost
                u += it.cost
                out.append(it)
                emitted.add(id(it))
            carry = rem if over else 0.0
            u += tailc
            out += self.tail[k]
            used.append(u)
        for s in self.streams:
            assert not s.items, (self.name, "stream not drained", s.items[0])
        out += self.post
        self.used = used
        if verbose:
            est = sum(max(budget + 8, 8 + u) if self.heads[k] is not None else u for k, u in enumerate(used))
        return out


def resolve_waits(trace):
    res = {}
    ds_idx, vm_idx = {}, {}
    nds = nvm = 0
    for key, ins in trace:
        if ins.kind == "ds":
            nds += 1
            if ins.tag is not None:
                ds_idx[ins.tag] = nds
        elif ins.kind == "vmem":
            nvm += 1
            if ins.tag is not None:
                vm_idx[ins.tag] = nvm
        elif ins.kind == "wait":
            l = v = None
            if ins.waitl is not None:
                need = max(ds_idx[t] for t in ins.waitl)
                l = min(15, nds - need)
            if ins.waitv is not None:
                need = max(vm_idx[t] for t in ins.waitv)
                v = min(63, nvm - need)
            if key in res:
                pl, pv = res[key]
                if (pl, pv) != (l, v):
                    res.setdefault("_mismatch", []).append((key, (pl, pv), (l, v)))
                l = None if l is None else min(l, pl)
                v = None if v is None else min(v, pv)
            res[key] = (l, v)
    return res


def is_valu(i):
    return i.kind in ("valu", "trans")


def hazards(seq):
    out = []
    n = len(seq)
    for j in range(n):
        c = seq[j]
        if c.kind in ("label", "nop", "wait", "barrier"):
            continue
        crd, cwr = set(c.rd), set(c.wr)
        dist = 0
        i = j - 1
        while i >= 0 and dist < 20:
            p = seq[i]
            pw = set(p.wr)
            need = 0
            why = ""
            if is_valu(p):
                if c.kind == "mfma" and pw & crd:
                    need, why = 2, "valu->mfma"
                if "pk" in p.flags and c.kind == "mfma":
                    need, why = max(need, 1), "pk->mfma"
                if p.kind == "trans" and c.kind == "valu" and pw & crd:
                    need, why = max(need, 1), "trans->valu"
                if "permlane" in c.text and pw & (crd | cwr):
                    need, why = max(need, 2), "valu->permlane"
                if ("readfirstlane" in c.text or "readlane" in c.text) and pw & crd:
                    need, why = max(need, 1), "valu->readlane"
                sw = {x for x in pw if x[0] == "s" or x == "vcc"}
                if sw & crd:
                    if is_valu(c):
                        need, why = max(need, 2), "valu sgpr->valu"
                    elif c.kind == "vmem":
                        need, why = max(need, 5), "valu sgpr->vmem"
            elif p.kind == "mfma":
                if c.kind == "mfma":
                    if pw & set(c.ab):
                        need, why = p.passes + 4, "mfma D->AB"
                    elif pw & set(c.srcc) and set(c.srcc) != pw:
                        need, why = p.passes + 2, "mfma D->C partial"
                    elif pw & cwr and not (set(c.srcc) == pw):
                        need = 0
                elif is_valu(c) or c.kind in ("ds", "vmem"):
                    if pw & (crd | cwr):
                        need, why = p.passes + 4, "mfma D->other"
                    if is_valu(c) and set(p.srcc) & cwr:
                        need, why = max(need, p.passes - 1), "mfma C WAR"
            elif p.kind == "salu":
                if "m0" in pw and c.kind == "vmem" and "m0" in crd:
                    need, why = 1, "m0->dma"
            elif p.kind == "vmem" and "store" in p.text:
                if set(p.flags) & {"wide"} and (set(p.rd) & cwr):
                    need, why = 2, "store data WAR"
            if need > dist:
                out.append((j, need - dist, why + f" [{p.text}] -> [{c.text}]"))
            dist += p.states
            i -= 1
    return out


def check_coverage(trace, W):
    ds_idx, vm_idx = {}, {}
    nds = nvm = 0
    dsdone = vmdone = 0
    bad = []
    for key, ins in trace:
        for t in (ins.needl or []):
            if t in ds_idx and ds_idx[t] > dsdone:
                bad.append((key, ins.text, "lgkm", t))
            if t not in ds_idx and not (isinstance(t, tuple) and t[1] < 0):
                bad.append((key, ins.text, "lgkm-missing", t))
        for t in (ins.needv or []):
            if t in vm_idx and vm_idx[t] > vmdone:
                bad.append((key, ins.text, "vm", t))
        if ins.kind == "ds":
            nds += 1
            if ins.tag is not None:
                ds_idx[ins.tag] = nds
        elif ins.kind == "vmem":
            nvm += 1
            if ins.tag is not None:
                vm_idx[ins.tag] = nvm
        elif ins.kind == "wait":
            l, v = W[key]
            if l is not None:
                dsdone = max(dsdone, nds - l)
            if v is not None:
                vmdone = max(vmdone, nvm - v)
        elif ins.text.startswith("s_waitcnt lgkmcnt(0)"):
            dsdone = nds
    return bad
```

```python
import sys, struct, math, os
sys.path.insert(0, os.path.dirname(os.path.abspath(__file__)))
import asmlib
from asmlib import *

asmlib.COST.update(vmem=8, barrier=8)
KNAME = "standalone__gqa_softmax__near_ridge_kernel"
OPT = dict(
    sgaps=[[20, 28, 36], [72, 80, 88]],
    oa_slots=[3, 5, 7, 8], ob_slots=[18, 11, 13, 15], qa_slots=[10, 12, 14, 16], qb_slots=[21, 22, 23, 24],
    oa_rd=[(1, g) for g in (0, 16, 24, 32, 40, 44, 52, 60, 68)] + [(2, g) for g in (0, 0, 16)],
    ob_rd=[(3, g) for g in (68, 76, 84)] + [(4, g) for g in (0, 16, 24, 32, 40, 44, 52, 60, 68)],
    qar_iter=10,
    kgaps=[4, 8, 12], vgaps=[48, 56, 64],
    bar_gap=92,
    wper=2, look=5,
    thr=4096.0,
    stamp=0,
    codewarm=1,
    pk=1,
    kv_nt=" nt", q_nt=" nt", o_nt=" nt",
)
for a in sys.argv[1:]:
    if "=" in a:
        k, v = a.split("=", 1)
        OPT[k] = eval(v)

TILE = 12288
KSLOT = [0, 1, 2, 3] * 4
VSLOT = [0, 1, 2, 3] * 4
KBASE, VBASE, STAGE, SPARE = 0, 4 * TILE, 8 * TILE, 12 * TILE
LDS_BYTES = 13 * TILE
KD, VD = 4, 3
RING = 6


def f2u(x):
    return struct.unpack("<I", struct.pack("<f", x))[0]


v = lambda lo, n=1: Reg("v", lo, n)
a = lambda lo, n=1: Reg("a", lo, n)
s = lambda lo, n=1: Reg("s", lo, n)

vLin = v(1)
vK = [v(2), v(3)]
vV = [v(4 + i) for i in range(4)]
vD = [v(8 + i) for i in range(3)]
vDO = [v(11 + i) for i in range(3)]
vS = [v(14), v(15)]
rinv = [v(16 + 2 * i) for i in range(4)]
rinv2 = [v(16 + 2 * i, 2) for i in range(4)]
lsum = [v(17 + 2 * i) for i in range(4)]
negmc = [v(24 + i) for i in range(4)]
ts = [v(28), v(29)]
vOW = v(30)
E = [v(31), v(32), v(33)]
X = [v(34 + i) for i in range(6)]
PA = [v(40, 8), v(48, 8)]
PB = v(56, 8)
SA = v(64, 16)
SB = [v(80, 16), v(96, 16)]
OA = v(112, 96)
STG = v(208, 48)
OB = a(0, 96)
Qc = a(96, 96)
FR = [a(192 + 4 * i, 4) for i in range(RING)]
SQ = [a(216 + 4 * i, 4) for i in range(9)]
JUNK = a(252, 4)
OX = [OA, OB]

ptrQ, ptrK, ptrV, ptrO = s(4, 2), s(6, 2), s(8, 2), s(10, 2)
srdK, srdV, srdQ, srdO = s(12, 4), s(16, 4), s(20, 4), s(24, 4)
sBG, sH, sKO, sQO, sQOcur, sNrec, sTrip, sC, sNegC, sThr, sMagic, sW = [s(28 + i) for i in range(12)]
sRet = s(40, 2)
m0K = [s(42 + i) for i in range(4)]
sStage, sQB = s(46), s(47)
m0V = [s(48 + i) for i in range(4)]
sT = ["0"] + [s(51 + t) for t in range(1, 16)]
srdD = s(68, 4)
sStamp = s(72, 2)
sPC = s(76, 2)
sG = [[s(80 + 4 * x + j) for j in range(4)] for x in range(2)]
sM = [s(88 + j) for j in range(4)]
sTmp = s(92)

SCALE_C = math.log2(math.e) / math.sqrt(192.0)


def Qreg(qb, ks):
    return Qc[(qb * 6 + ks) * 4: (qb * 6 + ks) * 4 + 4]


def Otile(qb, dt):
    n = (dt * 2 + qb % 2) * 4
    return OX[qb // 2][n: n + 4]


def Sbuf(x, tile):
    return SA if x == 0 else SB[tile % 2]


def Pbuf(x, tile):
    return PA[tile % 2] if x == 0 else PB


def dma(srd, soff, c, tag):
    off = f" offset:{c * 1024}" if c else ""
    return I(f"buffer_load_dwordx4 {vD[c]}, {srd}, {soff} offen{off}{OPT['kv_nt']} lds", "vmem",
             rd=[vD[c], srd, soff, "m0"], tag=tag)


def setm0(x):
    return salu("s_mov_b32", "m0", x)


def qdma(x, jj, c, tag, need=None):
    off = f" offset:{c * 1024}" if c else ""
    return I(f"buffer_load_dwordx4 {vD[c]}, {srdQ}, {sG[x][jj]} offen{off}{OPT['q_nt']} lds", "vmem",
             rd=[vD[c], srdQ, sG[x][jj], "m0"], tag=tag, needl=need)


def qread(dst, n, addr, tag, need=None):
    q, ks = n // 6, n % 6
    off = q * 6144 + (ks // 2) * 128
    return I(f"ds_read_b128 {dst}, {addr[ks % 2]} offset:{off}", "ds", rd=[addr[ks % 2]], wr=[dst], tag=tag, needv=need)


def oaddr(e):
    if e == 0:
        return vOW, []
    return E[2], [valu("v_xor_b32", E[2], str(e * 32), vOW)]


def owrite(src, addr, q, dt):
    off = q * 6144 + (dt // 4) * 128
    return I(f"ds_write_b64 {addr}, {src} offset:{off}", "ds", rd=[addr, src], cost=OPT.get("wcost", 12), flags=["head"])


def oread(dst, idx, tag):
    return I(f"ds_read_b128 {dst}, {vLin} offset:{idx * 1024}", "ds", rd=[vLin], wr=[dst], tag=tag)


def ostore(src, x, idx, need):
    jj, c = idx // 3, idx % 3
    off = f" offset:{c * 1024}" if c else ""
    return I(f"buffer_store_dwordx4 {src}, {vDO[c]}, {srdO}, {sG[x][jj]} offen{off}{OPT['o_nt']}", "vmem",
             rd=[src, vDO[c], srdO, sG[x][jj]], flags=["wide"], cost=16, needl=need)


def obuf(x, idx):
    if x == 1 and idx < 3:
        return STG[4 * idx: 4 * idx + 4]
    return SQ[idx % 9]


def kread(g, f, tile):
    kh, ks = (f % 12) // 6, f % 6
    off = KBASE + KSLOT[tile % 16] * TILE + kh * 6144 + (ks // 2) * 128
    d = FR[f % RING]
    return [I(f"ds_read_b128 {d}, {vK[ks % 2]} offset:{off}", "ds", rd=[vK[ks % 2]], wr=[d], tag=("F", g, f))]


def vread(g, f, tile):
    dt = f % 12
    d = FR[f % RING]
    out = []
    for jj in range(2):
        off = VSLOT[tile % 16] * TILE + jj * 6144 + (dt // 4) * 128
        out.append(I(f"ds_read_b64_tr_b16 {d[2 * jj:2 * jj + 2]}, {vV[dt % 4]} offset:{off}", "ds", rd=[vV[dt % 4]],
                     wr=[d[2 * jj:2 * jj + 2]], tag=("F", g, f) if jj == 1 else None))
    return out


def swap32(u, w):
    return I(f"v_permlane32_swap_b32 {u}, {w}", "valu", rd=[u, w], wr=[u, w], cost=8)


def swap16(u, w):
    return I(f"v_permlane16_swap_b32 {u}, {w}", "valu", rd=[u, w], wr=[u, w], cost=8)


def max_tree(S, u, w):
    o = []
    for a0, a1, a2, first in ((0, 1, 2, True), (3, 4, None, False), (5, 6, None, False)):
        for r, b in ((u, 0), (w, 8)):
            if first:
                o.append(valu("v_max3_f32", r, S[b + a0], S[b + a1], S[b + a2]))
            else:
                o.append(valu("v_max3_f32", r, r, S[b + a0], S[b + a1]))
    o += [valu("v_max_f32", u, u, S[7]), valu("v_max_f32", w, w, S[15])]
    return o


def reduce2(op, u, w):
    return [nop(1), swap32(u, w), valu(op, u, u, w), valu("v_mov_b32", w, u), nop(1), swap16(u, w), valu(op, u, u, w)]


def max_init(x, S):
    u, w = E[0], E[1]
    n0, n1 = negmc[2 * x], negmc[2 * x + 1]
    return max_tree(S, u, w) + reduce2("v_max_f32", u, w) + [
        valu("v_mul_f32", n0, sNegC, u), valu("v_mul_f32", n1, sNegC, u), nop(1), swap32(n0, n1)]


def exp_stream(x, S, P, acc):
    out = []
    T = lambda i: X[i % 6]
    for i in range(16 + 3):
        if i < 16:
            out.append(valu("v_fma_f32", T(i), S[i], sC, negmc[2 * x + i // 8]))
        if 0 <= i - 1 < 16:
            out.append(trans("v_exp_f32", T(i - 1), T(i - 1)))
        j = i - 3
        if 0 <= j < 16:
            ac = acc[j // 8]
            if j % 8 == 1:
                out.append(valu("v_add_f32", ac, T(j - 1), T(j)))
            elif j % 8 >= 2:
                out.append(valu("v_add_f32", ac, ac, T(j)))
            if j % 2 == 1:
                out.append(valu("v_cvt_pk_bf16_f32", P[j // 2], T(j - 1), T(j)))
    return out


TRAMPS = []


def softmax(x, tile, site):
    par = tile % 2
    S, P = Sbuf(x, tile), Pbuf(x, tile)
    if tile == 0:
        return max_init(x, S) + exp_stream(x, S, P, lsum[2 * x: 2 * x + 2]), []
    items = exp_stream(x, S, P, ts)
    name = f"{site}_{'AB'[x]}"
    if (name, x, par) not in TRAMPS:
        TRAMPS.append((name, x, par))
    items.append(valu("v_add_f32", X[0], ts[0], ts[1]))
    items.append(I(f"v_cmp_nge_f32 vcc, {sThr}, {X[0]}", "valu", rd=[sThr, X[0]], wr=["vcc"]))
    tail = [
        I(f"s_cbranch_vccnz L_tr_{name}", "branch", rd=["vcc"]),
        label(f"L_ret_{name}"),
    ]
    post = [valu("v_add_f32", lsum[2 * x + i], lsum[2 * x + i], ts[i]) for i in range(2)]
    return items, tail + post


def rinv_stream(x):
    u, w = lsum[2 * x], lsum[2 * x + 1]
    r0, r1 = rinv[2 * x], rinv[2 * x + 1]
    return reduce2("v_add_f32", u, w) + [trans("v_rcp_f32", r0, u), trans("v_rcp_f32", r1, u), nop(1), swap32(r0, r1)]


def scale2(R, qb):
    if OPT["pk"]:
        return [I(f"v_pk_mul_f32 {R}, {R}, {rinv2[qb]} op_sel_hi:[1,0]", "valu", rd=[R, rinv[qb]], wr=[R], flags=["pk"])]
    return [valu("v_mul_f32", R[0], R[0], rinv[qb]), valu("v_mul_f32", R[1], R[1], rinv[qb])]


def epi_a(tt):
    O = OA[16 * tt: 16 * tt + 16]
    m = []
    for i in range(8):
        m += scale2(O[2 * i: 2 * i + 2], (i // 2) % 2)
    c = [valu("v_cvt_pk_bf16_f32", O[i], O[2 * i], O[2 * i + 1]) for i in range(8)]
    w = []
    for n in range(4):
        dt, q = 2 * tt + n // 2, n % 2
        ad, pre = oaddr(dt % 4)
        if q == 0:
            w += pre
        wr = owrite(O[2 * n: 2 * n + 2], ad, q, dt)
        wr.after = c[2 * n + 1]
        w.append(wr)
    return m, c, w


def epi_b(tt, half, T):
    O = OB[16 * tt: 16 * tt + 16]
    D = STG[tt * 8: tt * 8 + 8]
    r = [valu("v_accvgpr_read_b32", T[i], O[8 * half + i]) for i in range(8)]
    m = []
    for i in range(4):
        m += scale2(T[2 * i: 2 * i + 2], 2 + i // 2)
    c = [valu("v_cvt_pk_bf16_f32", D[4 * half + i], T[2 * i], T[2 * i + 1]) for i in range(4)]
    return r, m, c


def ob_writes(es):
    w = []
    for e in es:
        ad, pre = oaddr(e)
        w += pre
        for dt in (e, e + 4, e + 8):
            for q in range(2):
                n = (dt * 2 + q) * 2
                w.append(owrite(STG[n: n + 2], ad, q, dt))
    return w


def setw(items, earliest=None, latest=None):
    for i in items:
        if latest is not None:
            i.latest = latest if i.latest is None else min(i.latest, latest)
    if earliest is not None:
        items[0].earliest = earliest
    return items


def rare(x, par):
    S, P = Sbuf(x, par), Pbuf(x, par)
    u, w, f = X[0], X[1], [X[4], X[5]]
    n = [negmc[2 * x], negmc[2 * x + 1]]
    o = [label(f"L_rare_{'AB'[x]}{par}"), nop(15)]
    o += max_tree(S, u, w)
    o += [valu("v_fma_f32", u, u, sC, n[0]), valu("v_fma_f32", w, w, sC, n[1])]
    o += reduce2("v_max_f32", u, w)
    o += [valu("v_max_f32", u, "0", u), valu("v_mov_b32", w, u), nop(1), swap32(u, w),
          valu("v_sub_f32", n[0], n[0], u), valu("v_sub_f32", n[1], n[1], w),
          trans("v_exp_f32", f[0], f"-{u}", extra_rd=[u]), trans("v_exp_f32", f[1], f"-{w}", extra_rd=[w]), nop(0),
          valu("v_mul_f32", lsum[2 * x], lsum[2 * x], f[0]), valu("v_mul_f32", lsum[2 * x + 1], lsum[2 * x + 1], f[1])]
    O = OX[x]
    for i in range(96):
        ff = f[(i // 4) % 2]
        if O.f == "a":
            tt = X[i % 4]
            o += [valu("v_accvgpr_read_b32", tt, O[i]), valu("v_mul_f32", tt, tt, ff),
                  valu("v_accvgpr_write_b32", O[i], tt)]
        else:
            o.append(valu("v_mul_f32", O[i], O[i], ff))
    o += exp_stream(x, S, P, ts)
    o += [nop(3), I(f"s_setpc_b64 {sRet}", "branch", rd=[sRet])]
    return o


def qk_mfma(tile, f, qb, fr):
    kh, ks = f // 6, f % 6
    n = (qb % 2) * 8 + kh * 4
    d = Sbuf(qb // 2, tile)[n: n + 4]
    return mfma(d, fr, Qreg(qb, ks), d if ks else 0)


def pv_mfma(t, dt, qb, fr, zero):
    o = Otile(qb, dt)
    p = Pbuf(qb // 2, t)[4 * (qb % 2): 4 * (qb % 2) + 4]
    return mfma(o, fr, p, 0 if zero else o)


def frag_read(g, t, f):
    if f < 12:
        return kread(g, f, t + 1)
    if f < 24:
        return vread(g, f, t)
    return kread(g + 1, f - 24, t + 2)


def ftag(g, f):
    return ("F", g, f) if f < 24 else ("F", g + 1, f - 24)


def stamp(idx, real=False):
    if not OPT["stamp"]:
        return []
    if OPT["stamp"] == 2 and idx not in (0, 1, 15, 16, 17, 18, 19, 56, 60, 61):
        return []
    op = "s_memrealtime" if real else "s_memtime"
    return [I(f"{op} {sStamp}", "salu", wr=[sStamp]), I("s_waitcnt lgkmcnt(0)", "salu"),
            valu("v_mov_b32", E[0], sStamp[0]),
            I(f"buffer_store_dword {E[0]}, v0, {srdD}, {sH} offen offset:{idx * 4}", "vmem", rd=[E[0], "v0", srdD])]


def add_iter(u, b, t, site):
    g = b * 16 + t
    base = len(u.heads)
    tn = (t + 1) % 16
    for f in range(12):
        for qb in range(4):
            m = qk_mfma(tn, f, qb, FR[f % RING])
            m.needl = [("F", g, f)] + ([("QB", b + 1, (qb - 2) * 6 + f % 6)] if tn == 0 and qb >= 2 else [])
            u.add_gap(m)
    for dt in range(12):
        for qb in range(4):
            m = pv_mfma(t, dt, qb, FR[(12 + dt) % RING], t == 0)
            m.needl = [("F", g, 12 + dt)]
            u.add_gap(m)
    wp = OPT["wper"]
    for f in range(24):
        k = base + 4 * f + 3
        rd = frag_read(g, t, f + RING)
        u.pin[k] += rd
        if (f + 1) % wp == 0:
            u.pin[k if len(rd) == 1 else k - 1].append(waitl(*[ftag(g, f + 1 + i) for i in range(wp)]))
    tk, tv = (t + KD) % 16, (t + VD) % 16
    u.pin[base + OPT["kgaps"][0] - 2].append(setm0(m0K[KSLOT[tk]]))
    for c, k in enumerate(OPT["kgaps"]):
        u.pin[base + k].append(dma(srdK, sT[tk], c, ("K", g + KD)))
    u.pin[base + OPT["vgaps"][0] - 3].append(setm0(m0V[VSLOT[tv]]))
    for c, k in enumerate(OPT["vgaps"]):
        u.pin[base + k].append(dma(srdV, sT[tv], c, ("V", g + VD)))
    for x, key in ((0, "oa_rd"), (1, "ob_rd")):
        for idx, (tt, k) in enumerate(OPT[key]):
            if tt == t:
                u.pin[base + k].append(oread(obuf(x, idx), idx, ("OR", b, x, idx)))
    if t in (2, 3):
        st = Stream(ob_writes((0, 1)), base + 17, base + 94) if t == 2 else Stream(ob_writes((2, 3)), base + 0, base + 66)
        st.pace = OPT.get("pace", 1)
        u.streams.append(st)
    for half in range(2):
        n = 2 * t + half
        gaps = OPT["sgaps"][half]
        for x, key in ((0, "oa_slots"), (1, "ob_slots")):
            if n in OPT[key]:
                jj = OPT[key].index(n)
                for c, k in enumerate(gaps):
                    idx = jj * 3 + c
                    u.pin[base + k].append(ostore(obuf(x, idx), x, idx, [("OR", b, x, idx)]))
        for x, key in ((0, "qa_slots"), (1, "qb_slots")):
            if n in OPT[key]:
                jj = OPT[key].index(n)
                u.pin[base + gaps[0] - 3].append(setm0(sM[jj]))
                need = [("OR", b, 1, 11)] if x == 0 else [("QA", b + 1, 11)]
                for c, k in enumerate(gaps):
                    u.pin[base + k].append(qdma(x, jj, c, ("QD", b + 1, x), need))
    if t == OPT["qar_iter"]:
        u.pin[base + 0].append(waitv(("QD", b + 1, 0)))
        for n in range(12):
            u.pin[base + 1 + 4 * n].append(qread(STG[n * 4: n * 4 + 4], n, vS, ("QA", b + 1, n), [("QD", b + 1, 0)]))
    if t == 14:
        u.pin[base + 49].append(waitv(("QD", b + 1, 1)))
        for i, n in enumerate([0, 6, 1, 7, 2, 8, 3, 9, 4, 10, 5, 11]):
            u.pin[base + 49 + 4 * (i // 2) + 4 * (i > 0 and False)].append(
                qread(Qreg(2 + n // 6, n % 6), n, vS, ("QB", b + 1, n), [("QD", b + 1, 1)]))
    u.pin[base + OPT["bar_gap"]] += [waitv(("K", g + 3), ("V", g + 1)), barrier()]
    it, tl = softmax(1, t, site)
    u.streams.append(Stream(it, base + 0, base + 47, prio=0.05, look=OPT["look"]))
    u.tail[base + 47] += tl
    it, tl = softmax(0, tn, site)
    u.streams.append(Stream(it, base + (51 if tn == 0 else 48), base + 95, prio=0.05, look=OPT["look"]))
    u.tail[base + 95] += tl
    if t == 1:
        sl = [salu("s_mov_b32", sQOcur, sQO),
              salu("s_add_u32", sBG, sBG, "32", scc_w=True),
              salu("s_mul_hi_u32", sKO, sBG, sMagic),
              salu("s_mul_i32", sKO, sKO, "196608"),
              salu("s_mul_i32", sQO, sBG, "98304"),
              I(f"s_cmp_lt_u32 {sTrip}, 2", "salu", rd=[sTrip], wr=["scc"]),
              salu("s_cselect_b32", sNrec, "196608", "0", scc_r=True),
              salu("s_cselect_b32", srdQ[2], "98304", "0", scc_r=True),
              salu("s_add_u32", srdQ[0], ptrQ[0], sQO, scc_w=True),
              salu("s_addc_u32", srdQ[1], ptrQ[1], "0", scc_w=True, scc_r=True)]
        u.streams.append(Stream(sl, base + 24, base + 80))
    if t == 15 - KD:
        sl = [salu("s_add_u32", srdK[0], ptrK[0], sKO, scc_w=True),
              salu("s_addc_u32", srdK[1], ptrK[1], "0", scc_w=True, scc_r=True),
              salu("s_mov_b32", srdK[2], sNrec)]
        u.streams.append(Stream(sl, base + OPT["kgaps"][-1] + 1, base + 90))
    if t == 15 - VD:
        sl = [salu("s_add_u32", srdV[0], ptrV[0], sKO, scc_w=True),
              salu("s_addc_u32", srdV[1], ptrV[1], "0", scc_w=True, scc_r=True),
              salu("s_mov_b32", srdV[2], sNrec)]
        u.streams.append(Stream(sl, base + OPT["vgaps"][-1] + 1, base + 90))
    return base


def qcopy(base):
    out = []
    for ks in range(6):
        for q in range(2):
            for i in range(4):
                out.append(valu("v_accvgpr_write_b32", Qreg(q, ks)[i], STG[(q * 6 + ks) * 4 + i],
                                earliest=base + 4 * (6 + ks) + q))
    return out


def set_osrd():
    return [salu("s_add_u32", srdO[0], ptrO[0], sQOcur, scc_w=True),
            salu("s_addc_u32", srdO[1], ptrO[1], "0", scc_w=True, scc_r=True),
            salu("s_mov_b32", srdO[2], "98304")]


def unit_mid(b, t):
    u = Unit(f"T{t}")
    if t == 1:
        u.pre.append(label("L_loop"))
    u.pre += stamp(t)
    base = add_iter(u, b, t, f"T{t}")
    if t == 14:
        u.streams.append(Stream(qcopy(base), base + 24, base + 94))
        u.post += [I(f"s_cmp_eq_u32 {sTrip}, 2", "salu", rd=[sTrip], wr=["scc"]),
                   I("s_cbranch_scc1 L_fin", "branch", rd=["scc"])]
    return u


def unit_x(b):
    u = Unit("X")
    u.pre += stamp(15)
    b15 = add_iter(u, b, 15, "T15")
    b0 = add_iter(u, b + 1, 0, "T0")
    u.streams.append(Stream(rinv_stream(0), b15 + 4, b15 + 40))
    u.streams.append(Stream(rinv_stream(1), b15 + 48, b15 + 56, prio=0.5))
    ep, wr = [], []
    for tt in range(6):
        O = OA[16 * tt: 16 * tt + 16]
        dl = b0 + 48 + 8 * tt - 1
        m, c, w = epi_a(tt)
        r0, m0_, c0 = epi_b(tt, 0, O[8:16])
        r1, m1_, c1 = epi_b(tt, 1, O[8:16])
        setw(m, earliest=b15 + 48 + 8 * tt + 9)
        ep += setw(m + c + r0 + m0_ + c0 + r1 + m1_ + c1, latest=dl)
        wr += setw(w, latest=dl)
    u.streams.append(Stream(ep, b15 + 57, b0 + 87))
    u.streams.append(Stream(wr, b15 + 57, b0 + 87))
    u.streams.append(Stream(set_osrd(), b15 + 16, b15 + 44))
    sl = [salu("s_add_u32", sTrip, sTrip, "1", scc_w=True)]
    if OPT["stamp"]:
        sl.append(salu("s_add_u32", sH, sH, "64", scc_w=True))
    u.streams.append(Stream(sl, b0 + 4, b0 + 80))
    u.post.append(I("s_branch L_loop", "branch"))
    return u


def unit_pro():
    u = Unit("PRO")
    P = u.pre
    tid, lane, i16, G, t0, t1, t2 = v(0), X[0], X[1], X[2], X[3], X[4], X[5]
    P += [I("s_cmp_ge_u32 s2, 256", "salu", rd=["s2"], wr=["scc"]),
          I("s_cbranch_scc1 L_end", "branch", rd=["scc"]),
          I("s_load_dwordx4 s[4:7], s[0:1], 0", "salu", wr=[s(4, 4)]),
          I("s_load_dwordx4 s[8:11], s[0:1], 16", "salu", wr=[s(8, 4)])]
    if OPT["stamp"]:
        P += [I(f"s_load_dwordx2 {srdD[0:2]}, s[0:1], 40", "salu"), I(f"s_memrealtime {s(94, 2)}", "salu")]
    if OPT.get("dbg"):
        P += [I(f"s_load_dwordx2 {srdD[0:2]}, s[0:1], 32", "salu"), I(f"s_memrealtime {s(94, 2)}", "salu"),
              I(f"s_memtime {s(96, 2)}", "salu")]
    P += [valu("v_lshrrev_b32", t0, "6", tid), valu("v_and_b32", lane, "63", tid),
          I(f"v_readfirstlane_b32 {sW}, {t0}", "valu", rd=[t0], wr=[sW]),
          valu("v_lshlrev_b32", t1, "4", lane)]
    P += [salu("s_and_b32", sBG, "s2", "7", scc_w=True),
          salu("s_mul_i32", sBG, sBG, "96"),
          salu("s_lshr_b32", sH, "s2", "3", scc_w=True),
          salu("s_add_u32", sBG, sBG, sH, scc_w=True),
          salu("s_mov_b32", sMagic, "0x55555556"),
          salu("s_mul_hi_u32", sKO, sBG, sMagic),
          salu("s_mul_i32", sKO, sKO, "196608"),
          salu("s_mul_i32", sQO, sBG, "98304")]
    P += [salu("s_mov_b32", sQB, str(VBASE + 2 * TILE)),
          I(f"s_cmp_eq_u32 {sW}, 0", "salu", rd=[sW], wr=["scc"]),
          salu("s_cselect_b32", sQB, str(KBASE + 3 * TILE), sQB, scc_r=True),
          I(f"s_cmp_eq_u32 {sW}, 2", "salu", rd=[sW], wr=["scc"]),
          salu("s_cselect_b32", sQB, str(VBASE + 3 * TILE), sQB, scc_r=True),
          I(f"s_cmp_eq_u32 {sW}, 3", "salu", rd=[sW], wr=["scc"]),
          salu("s_cselect_b32", sQB, str(SPARE), sQB, scc_r=True),
          salu("s_mul_i32", sW, sW, "3072")]
    late = []
    for c in range(3):
        P += [valu("v_add_u32", t0, str(c * 1024), t1),
              valu("v_lshrrev_b32", t2, "7", t0),
              valu("v_mul_u32_u24", t2, "171", t2),
              valu("v_lshrrev_b32", vDO[c], "9", t2),
              valu("v_and_b32", vD[c], "6", vDO[c]),
              valu("v_lshlrev_b32", vD[c], "4", vD[c]),
              valu("v_xor_b32", vD[c], vD[c], t1),
              valu("v_add_u32", vD[c], sW, vD[c])]
        late += [valu("v_lshlrev_b32", vDO[c], "4", vDO[c]),
                 valu("v_xor_b32", vDO[c], vDO[c], t1),
                 valu("v_add_u32", vDO[c], sW, vDO[c])]
    P += [salu("s_lshl_b32", sStage, sW, "2", scc_w=True),
          salu("s_add_u32", sStage, sStage, str(STAGE), scc_w=True),
          salu("s_mul_i32", sH, sW, "7")]
    for jj in range(4):
        P += [salu("s_add_u32", sM[jj], sStage, str(jj * 3072), scc_w=True),
              salu("s_add_u32", sG[0][jj], sH, str(jj * 3072), scc_w=True),
              salu("s_add_u32", sG[1][jj], sH, str(jj * 3072 + TILE), scc_w=True)]
    P += [I("s_waitcnt lgkmcnt(0)", "salu")]

    def mksrd(srd, ptr, off, n):
        return [salu("s_add_u32", srd[0], ptr[0], off, scc_w=True),
                salu("s_addc_u32", srd[1], ptr[1], "0", scc_w=True, scc_r=True),
                salu("s_mov_b32", srd[2], str(n)), salu("s_mov_b32", srd[3], "0x00020000")]

    def ktile(t):
        return [setm0(m0K[KSLOT[t]]), nop(0)] + [dma(srdK, sT[t], c, ("K", t)) for c in range(3)]

    def vtile(t):
        return [setm0(m0V[VSLOT[t]]), nop(0)] + [dma(srdV, sT[t], c, ("V", t)) for c in range(3)]

    P += [setm0(sW)] + mksrd(srdK, ptrK, sKO, 196608) + [dma(srdK, "0", c, ("K", 0)) for c in range(3)]
    P += mksrd(srdQ, ptrQ, sQO, 98304)
    for jj in range(4):
        P += [setm0(sM[jj]), nop(0)] + [qdma(0, jj, c, ("QD", 0, 0)) for c in range(3)]
    for jj in range(4):
        P += [salu("s_add_u32", "m0", sQB, str(jj * 3072), scc_w=True), nop(0)] + [qdma(1, jj, c, ("QD", 0, 1)) for c in range(3)]
    P += mksrd(srdV, ptrV, sKO, 196608)
    for i in range(4):
        P.append(salu("s_add_u32", m0K[i], sW, str(KBASE + i * TILE), scc_w=True))
        P.append(salu("s_add_u32", m0V[i], sW, str(VBASE + i * TILE), scc_w=True))
    for t in range(1, 16):
        P.append(salu("s_mov_b32", sT[t], str(t * TILE)))
    warm = []
    if OPT["codewarm"]:
        P += [I(f"s_getpc_b64 {sPC}", "salu", wr=[sPC]),
              label("L_pc"),
              I(f"s_sub_u32 {sPC[0]}, {sPC[0]}, L_pc-{KNAME}", "salu", rd=[sPC], wr=[sPC, "scc"]),
              I(f"s_subb_u32 {sPC[1]}, {sPC[1]}, 0", "salu", rd=[sPC, "scc"], wr=[sPC, "scc"]),
              salu("s_lshr_b32", sH, "s2", "3", scc_w=True),
              salu("s_lshl_b32", sH, sH, "11", scc_w=True),
              valu("v_lshlrev_b32", E[2], "3", tid),
              valu("v_add_u32", E[2], sH, E[2]),
              I(f"v_min_u32 {E[2]}, L_code_end-{KNAME}-8, {E[2]}", "valu", rd=[E[2]], wr=[E[2]])]
        warm = [I(f"global_load_dwordx2 {JUNK[0:2]}, {E[2]}, {sPC}", "vmem", rd=[E[2], sPC], wr=[JUNK[0:2]])]
    P += [salu("s_mov_b32", srdO[0], ptrO[0]), salu("s_mov_b32", srdO[1], ptrO[1]),
          salu("s_mov_b32", srdO[2], "0"), salu("s_mov_b32", srdO[3], "0x00020000"),
          salu("s_mov_b32", sTrip, "0"),
          salu("s_mov_b32", sC, hex(f2u(SCALE_C))), salu("s_mov_b32", sNegC, hex(f2u(-SCALE_C))),
          salu("s_mov_b32", sThr, hex(f2u(OPT["thr"])))]
    P += late + [valu("v_add_u32", vLin, sStage, t1)]
    P += [valu("v_and_b32", i16, "15", lane), valu("v_lshrrev_b32", G, "4", lane),
          valu("v_mul_u32_u24", t0, "384", i16)]
    P += [valu("v_and_b32", t1, "6", i16), valu("v_xor_b32", t1, t1, G), valu("v_lshl_add_u32", vK[0], t1, "4", t0),
          valu("v_xor_b32", vK[1], "64", vK[0])]
    for e in range(2):
        P += [valu("v_add_u32", vS[e], sStage, vK[e]), valu("v_add_u32", STG[e], sQB, vK[e])]
    P += [valu("v_lshrrev_b32", t1, "1", G), valu("v_and_b32", t2, "7", i16), valu("v_xor_b32", t1, t1, t2),
          valu("v_lshl_add_u32", vOW, t1, "4", t0), valu("v_and_b32", t1, "1", G),
          valu("v_lshl_add_u32", vOW, t1, "3", vOW), valu("v_add_u32", vOW, sStage, vOW)]
    P += [valu("v_lshrrev_b32", t1, "2", lane), valu("v_mul_u32_u24", t0, "384", t1),
          valu("v_and_b32", t1, "6", t1), valu("v_lshl_add_u32", t0, t1, "4", t0),
          valu("v_and_b32", t1, "3", lane), valu("v_lshl_add_u32", t0, t1, "3", t0),
          valu("v_add_u32", vV[0], str(VBASE), t0)]
    for e in range(1, 4):
        P.append(valu("v_xor_b32", vV[e], str(e * 32), vV[0]))
    if OPT["stamp"]:
        P += [salu("s_mov_b32", srdD[2], "0x1000000"), salu("s_mov_b32", srdD[3], "0x00020000"),
              valu("v_lshrrev_b32", tid, "6", tid), valu("v_lshlrev_b32", tid, "8", tid),
              salu("s_lshl_b32", sH, "s2", "10", scc_w=True), valu("v_add_u32", tid, sH, tid),
              salu("s_mov_b32", sH, "0"),
              valu("v_mov_b32", E[0], s(94)),
              I(f"buffer_store_dword {E[0]}, v0, {srdD}, 0 offen offset:{57 * 4}", "vmem", rd=[E[0], "v0", srdD])]
    P += stamp(60) + stamp(56, True)
    P += [waitv(("QD", 0, 0)), barrier()]
    for f in range(RING):
        P += kread(-2, f, 0)
    qorder = [0, 6, 1, 7, 2, 8, 3, 9, 4, 10, 5, 11]
    for n in qorder:
        P.append(qread(Qreg(n // 6, n % 6), n, vS, ("QA", 0, n)))
    P += [waitl(("QA", 0, 7))]
    P += stamp(61)
    if OPT.get("dbg"):
        P += [I(f"s_memrealtime {s(98, 2)}", "salu"), I("s_waitcnt lgkmcnt(0)", "salu")]
    pend = ktile(1) + vtile(0) + ktile(2) + warm + vtile(1)
    for n in range(24):
        x, f = n // 12, n % 12
        for q in range(2):
            m = qk_mfma(0, f, 2 * x + q, FR[n % RING])
            m.needl = [("F", -2, n), ("QA" if x == 0 else "QB", 0, q * 6 + f % 6)]
            k = u.add_gap(m)
            if x == 0 and pend:
                it = pend.pop(0)
                if it.kind != "nop":
                    u.pin[k].append(it)
        if n + RING < 24:
            u.pin[k] += kread(-2, n + RING, 0)
        else:
            u.pin[k] += kread(0, n + RING - 24, 1)
        if f == 1:
            u.pin[k].append(waitl(("QA" if x == 0 else "QB", 0, 11)))
        if RING - 1 <= n < 23 and n != 11:
            u.pin[k].append(waitl(("F", -2, n + 1)))
        if n == 11:
            assert not pend
            k = u.add_gap(None)
            it, tl = softmax(0, 0, "PRO")
            u.pin[k] += it + [waitv(("QD", 0, 1))]
            for nn in qorder:
                u.pin[k].append(qread(Qreg(2 + nn // 6, nn % 6), nn, [STG[0], STG[1]], ("QB", 0, nn)))
            u.pin[k] += [waitl(("QB", 0, 7))]
        if n == 14:
            u.pin[k] += [waitv(("K", 1), ("V", 0), ("K", 2)), barrier()]
        if n == 15:
            u.pin[k] += ktile(3)
        if n == 16:
            u.pin[k] += vtile(2)
    u.pin[k] += [barrier(), waitl(*[("F", 0, i) for i in range(OPT["wper"])])]
    u.pin[k] += stamp(0)
    u.win0 = len(u.heads)
    add_iter(u, 0, 0, "T0p")
    return u


def unit_fin(b):
    u = Unit("FIN")
    t = 15
    u.pre.append(label("L_fin"))
    u.pre += stamp(15)
    G = 1000
    for n in range(RING):
        u.pre += vread(G, n, t)
    u.pre += rinv_stream(0) + set_osrd() + [waitl(("F", G, 0))]
    base = len(u.heads)
    for n in range(24):
        x, dt = n // 12, n % 12
        for q in range(2):
            m = pv_mfma(t, dt, 2 * x + q, FR[n % RING], False)
            m.needl = [("F", G, n)]
            k = u.add_gap(m)
        if n < 23:
            u.pin[k - 1].append(waitl(("F", G, n + 1)))
        if n + RING < 24:
            u.pin[k] += vread(G, n + RING, t)
    last = u.add_gap(None)
    it, tl = softmax(1, 15, "T15f")
    u.streams.append(Stream(it, base, base + 23, look=OPT["look"]))
    u.tail[base + 23] += tl
    u.streams.append(Stream(rinv_stream(1), base + 24, base + 32))
    ep, wr = [], []
    for tt in range(6):
        m, c, w = epi_a(tt)
        ep += m + c
        wr += w
    u.streams.append(Stream(ep, base + 24, base + 46))
    u.streams.append(Stream(wr, base + 24, base + 47))
    u.window = 24
    po = u.pin[last]
    Z = [Qc[4 * i: 4 * i + 4] for i in range(24)]
    for n in range(12):
        po.append(oread(Z[n], n, ("OR", b + 1, 0, n)))
    for tt in range(6):
        r0, m0_, c0 = epi_b(tt, 0, SA[0:8])
        r1, m1_, c1 = epi_b(tt, 1, SA[8:16])
        st = [ostore(Z[n], 0, n, [("OR", b + 1, 0, n)]) for n in (2 * tt, 2 * tt + 1)]
        po += r0 + r1 + ([waitl(("OR", b + 1, 0, 11))] if tt == 0 else []) + st[:1] + m0_ + m1_ + c0 + st[1:] + c1
        for dt in (2 * tt, 2 * tt + 1):
            ad, pre = oaddr(dt % 4)
            po += pre + [owrite(STG[(dt * 2 + q) * 2: (dt * 2 + q) * 2 + 2], ad, q, dt) for q in range(2)]
    for n in range(12):
        po.append(oread(Z[12 + n], n, ("OR", b + 1, 1, n)))
    for n in range(12):
        po.append(waitl(("OR", b + 1, 1, n)))
        po.append(ostore(Z[12 + n], 1, n, [("OR", b + 1, 1, n)]))
    u.post += stamp(16) + stamp(17, True)
    if OPT["stamp"]:
        u.post += [I("s_waitcnt vmcnt(0)", "salu")] + stamp(18) + stamp(19, True)
    if OPT.get("dbg"):
        u.post += [I("s_cmp_ge_u32 s2, 8", "salu"), I("s_cbranch_scc1 L_end", "branch"),
                   I(f"s_cmp_lg_u32 {sW}, 0", "salu"), I("s_cbranch_scc1 L_end", "branch"),
                   I("s_waitcnt vmcnt(0)", "salu"), I(f"s_memrealtime {sStamp}", "salu"), I(f"s_memtime {sPC}", "salu"),
                   I("s_waitcnt lgkmcnt(0)", "salu"),
                   salu("s_mov_b32", srdD[2], "256"), salu("s_mov_b32", srdD[3], "0x00020000"),
                   I("s_mov_b64 exec, 1", "salu"),
                   salu("s_sub_u32", sTmp, sStamp[0], s(94)), salu("s_sub_u32", sH, s(98), s(94)),
                   salu("s_mul_i32", sH, sH, "100000"), salu("s_add_u32", sTmp, sTmp, sH),
                   valu("v_mov_b32", v(32), sTmp),
                   salu("s_sub_u32", sTmp, sPC[0], s(96)), valu("v_mov_b32", v(33), sTmp),
                   salu("s_lshl_b32", sTmp, "s2", "3"),
                   I(f"buffer_store_dwordx2 {v(32, 2)}, off, {srdD}, {sTmp}", "vmem", rd=[srdD])]
    u.post += [label("L_end"), I("s_endpgm", "branch")]
    return u


def build(extra):
    cache = {}

    def get(name, fn, first):
        u = fn()
        ins = u.schedule(budget=8, window=48, pk_at=20, verbose=first and VERB)
        out = []
        for idx, i in enumerate(ins):
            n = extra.get((name, idx), 0)
            if n:
                out.append(((name, idx, "nop"), nop(n - 1)))
            out.append(((name, idx), i))
        if first:
            cache[name] = out
        return out

    trace = list(get("PRO", unit_pro, True))
    for b in range(3):
        for t in range(1, 15):
            trace += get(f"T{t}", lambda: unit_mid(b, t), b == 0)
        if b < 2:
            trace += get("X", lambda: unit_x(b), b == 0)
    trace += get("FIN", lambda: unit_fin(2), True)
    order = ["PRO"] + [f"T{t}" for t in range(1, 15)] + ["X", "FIN"]
    return [(n, cache[n]) for n in order], trace


VERB = False
extra = {}
for it in range(60):
    static, trace = build(extra)
    hz = hazards([i for _, i in trace])
    if not hz:
        break
    upd = {}
    lastj = -100
    for j, need, why in hz:
        key = trace[j][0]
        if j != lastj and j - lastj < 24:
            continue
        lastj = j
        upd[key] = max(upd.get(key, 0), need)
        if OPT.get("showhz"):
            print("; hazard:", key, need, why, file=sys.stderr)
    for k, n in upd.items():
        extra[k] = extra.get(k, 0) + n
else:
    raise SystemExit("hazards did not converge")
if OPT.get("verb"):
    VERB = True
    _so = sys.stdout
    sys.stdout = sys.stderr
    build(extra)
    sys.stdout = _so
    print("; nops inserted:", extra, file=sys.stderr)
W = resolve_waits(trace)
_bad = check_coverage(trace, W)
assert not _bad, _bad[:10]
if OPT.get("verb") and "_mismatch" in W:
    print("; wait mismatches:", W["_mismatch"], file=sys.stderr)

out = []
A = out.append
A(open(os.path.join(os.path.dirname(os.path.abspath(__file__)), "header.txt")).read().rstrip())
A(f"; @launch grid=(256,1,1) block=(256,1,1) lds={LDS_BYTES}")
A('.amdgcn_target "amdgcn-amd-amdhsa--gfx950"')
A(".text")
A(f".globl {KNAME}")
A(".p2align 8")
A(f".type {KNAME},@function")
A(f"{KNAME}:")
for name, ins in static:
    A(f"; ---- {name} ----")
    for key, i in ins:
        t = i.text
        if i.kind == "wait":
            l, vv = W[key]
            t = "s_waitcnt " + (f"lgkmcnt({l})" if l is not None else f"vmcnt({vv})")
        A(t if i.kind == "label" else "    " + t)
for name, x, par in TRAMPS:
    A(f"L_tr_{name}:")
    A(f"    s_call_b64 {sRet}, L_rare_{'AB'[x]}{par}")
    A(f"    s_branch L_ret_{name}")
for x in range(2):
    for par in range(2):
        r = rare(x, par)
        hz = hazards(r)
        assert not hz, hz
        for i in r:
            A(i.text if i.kind == "label" else "    " + i.text)
A("L_code_end:")
A("    s_endpgm")
A(f""".section .rodata,"a"
.p2align 6
.amdhsa_kernel {KNAME}
  .amdhsa_next_free_vgpr 512
  .amdhsa_next_free_sgpr 102
  .amdhsa_accum_offset 256
  .amdhsa_group_segment_fixed_size 0
  .amdhsa_kernarg_size 48
  .amdhsa_user_sgpr_count 2
  .amdhsa_user_sgpr_kernarg_segment_ptr 1
  .amdhsa_system_sgpr_workgroup_id_x 1
  .amdhsa_float_denorm_mode_32 3
.end_amdhsa_kernel""")
print("\n".join(out))
```

```python
import sys, struct, math, os, re
sys.path.insert(0, os.path.dirname(os.path.abspath(__file__)))
import asmlib
from asmlib import *

asmlib.COST.update(vmem=8, barrier=8)
KNAME = "standalone__gqa_softmax__near_ridge_kernel"
OPT = dict(
    sgaps=[[20, 28, 36], [74, 82, 90]],
    oa_slots=[3, 4, 6, 8], ob_slots=[11, 13, 15, 18], qa_slots=[10, 12, 14, 16], qb_slots=[21, 22, 23, 24],
    oa_rd=[(1, g) for g in (1, 17, 25, 33, 41, 45, 59, 67)] + [(2, g) for g in (1, 9, 17, 22)],
    ob_rd=[(3, g) for g in (71, 75, 79, 83, 87, 91)] + [(4, g) for g in (1, 9, 17, 25, 33, 41)],
    qar_iter=10,
    kgaps=[4, 8, 12], vgaps=[48, 58, 66],
    bar_gap=98,
    wper=3, look=5,
    thr=4096.0,
    stamp=0,
    codewarm=1,
    pk=1,
    kv_nt=" nt", q_nt=" nt", o_nt=" nt",
)
for a in sys.argv[1:]:
    if "=" in a:
        k, v = a.split("=", 1)
        OPT[k] = eval(v)

TILE = 12288
KSLOT = [0, 1, 2, 3] * 4
VSLOT = [0, 1, 2, 3] * 4
KBASE, VBASE, STAGE, SPARE = 0, 4 * TILE, 8 * TILE, 12 * TILE
LDS_BYTES = 13 * TILE
KD, VD = 4, 3
RING = 6
P2 = 50
NG = 100


def f2u(x):
    return struct.unpack("<I", struct.pack("<f", x))[0]


v = lambda lo, n=1: Reg("v", lo, n)
a = lambda lo, n=1: Reg("a", lo, n)
s = lambda lo, n=1: Reg("s", lo, n)

vLin = v(1)
vK = [v(2), v(3)]
vV = [v(4 + i) for i in range(4)]
vD = [v(8 + i) for i in range(3)]
vDO = [v(11 + i) for i in range(3)]
vS = [v(14), v(15)]
rinv = [v(16 + 2 * i) for i in range(4)]
rinv2 = [v(16 + 2 * i, 2) for i in range(4)]
lsum = [v(17 + 2 * i) for i in range(4)]
negmc = [v(24 + i) for i in range(4)]
TS = v(28, 4)
vOW = v(32)
E = [v(33), v(34), v(35)]
X = [v(36), v(37), v(38), v(39), v(0)]
PA = [v(40, 8), v(48, 8)]
PB = v(56, 8)
SA = v(64, 16)
SB = [v(80, 16), v(96, 16)]
OA = v(112, 96)
STG = v(208, 48)
OB = a(0, 96)
Qc = a(96, 96)
FR = [a(192 + 4 * i, 4) for i in range(RING)]
SQ = [a(216 + 4 * i, 4) for i in range(8)]
JUNK = SQ[7]
ONES = [a(248, 4), a(252, 4)]
OX = [OA, OB]

ptrQ, ptrK, ptrV, ptrO = s(4, 2), s(6, 2), s(8, 2), s(10, 2)
srdK, srdV, srdQ, srdO = s(12, 4), s(16, 4), s(20, 4), s(24, 4)
sBG, sH, sKO, sQO, sQOcur, sNrec, sTrip, sC, sNegC, sThr, sMagic, sW = [s(28 + i) for i in range(12)]
sRet = s(40, 2)
m0K = [s(42 + i) for i in range(4)]
sStage, sQB = s(46), s(47)
m0V = [s(48 + i) for i in range(4)]
sT = ["0"] + [s(51 + t) for t in range(1, 16)]
srdD = s(68, 4)
sStamp = s(72, 2)
sPC = s(76, 2)
sG = [[s(80 + 4 * x + j) for j in range(4)] for x in range(2)]
sM = [s(88 + j) for j in range(4)]
sTmp = s(92)

SCALE_C = math.log2(math.e) / math.sqrt(192.0)


def Qreg(qb, ks):
    return Qc[(qb * 6 + ks) * 4: (qb * 6 + ks) * 4 + 4]


def Otile(qb, dt):
    n = (dt * 2 + qb % 2) * 4
    return OX[qb // 2][n: n + 4]


def Sbuf(x, tile):
    return SA if x == 0 else SB[tile % 2]


def Pbuf(x, tile):
    return PA[tile % 2] if x == 0 else PB


def dma(srd, soff, c, tag):
    off = f" offset:{c * 1024}" if c else ""
    return I(f"buffer_load_dwordx4 {vD[c]}, {srd}, {soff} offen{off}{OPT['kv_nt']} lds", "vmem",
             rd=[vD[c], srd, soff, "m0"], tag=tag)


def setm0(x):
    return salu("s_mov_b32", "m0", x)


def qdma(x, jj, c, tag, need=None):
    off = f" offset:{c * 1024}" if c else ""
    return I(f"buffer_load_dwordx4 {vD[c]}, {srdQ}, {sG[x][jj]} offen{off}{OPT['q_nt']} lds", "vmem",
             rd=[vD[c], srdQ, sG[x][jj], "m0"], tag=tag, needl=need)


def qread(dst, n, addr, tag, need=None):
    q, ks = n // 6, n % 6
    off = q * 6144 + (ks // 2) * 128
    return I(f"ds_read_b128 {dst}, {addr[ks % 2]} offset:{off}", "ds", rd=[addr[ks % 2]], wr=[dst], tag=tag, needv=need)


def oaddr(e):
    if e == 0:
        return vOW, []
    return E[2], [valu("v_xor_b32", E[2], str(e * 32), vOW)]


def owrite(src, addr, q, dt):
    off = q * 6144 + (dt // 4) * 128
    return I(f"ds_write_b64 {addr}, {src} offset:{off}", "ds", rd=[addr, src], cost=OPT.get("wcost", 12), flags=["head"])


def oread(dst, idx, tag):
    return I(f"ds_read_b128 {dst}, {vLin} offset:{idx * 1024}", "ds", rd=[vLin], wr=[dst], tag=tag)


def ostore(src, x, idx, need):
    jj, c = idx // 3, idx % 3
    off = f" offset:{c * 1024}" if c else ""
    return I(f"buffer_store_dwordx4 {src}, {vDO[c]}, {srdO}, {sG[x][jj]} offen{off}{OPT['o_nt']}", "vmem",
             rd=[src, vDO[c], srdO, sG[x][jj]], flags=["wide"], cost=16, needl=need)


def obuf(x, idx):
    if x == 1:
        return STG[4 * idx: 4 * idx + 4]
    return SQ[idx % 8]


def kread(g, f, tile):
    kh, ks = (f % 12) // 6, f % 6
    off = KBASE + KSLOT[tile % 16] * TILE + kh * 6144 + (ks // 2) * 128
    d = FR[f % RING]
    return [I(f"ds_read_b128 {d}, {vK[ks % 2]} offset:{off}", "ds", rd=[vK[ks % 2]], wr=[d], tag=("F", g, f))]


def vread(g, f, tile):
    dt = f % 12
    d = FR[f % RING]
    out = []
    for jj in range(2):
        off = VSLOT[tile % 16] * TILE + jj * 6144 + (dt // 4) * 128
        out.append(I(f"ds_read_b64_tr_b16 {d[2 * jj:2 * jj + 2]}, {vV[dt % 4]} offset:{off}", "ds", rd=[vV[dt % 4]],
                     wr=[d[2 * jj:2 * jj + 2]], tag=("F", g, f) if jj == 1 else None))
    return out


def swap32(u, w):
    return I(f"v_permlane32_swap_b32 {u}, {w}", "valu", rd=[u, w], wr=[u, w], cost=8)


def swap16(u, w):
    return I(f"v_permlane16_swap_b32 {u}, {w}", "valu", rd=[u, w], wr=[u, w], cost=8)


def max_tree(S, u, w):
    o = []
    for a0, a1, a2, first in ((0, 1, 2, True), (3, 4, None, False), (5, 6, None, False)):
        for r, b in ((u, 0), (w, 8)):
            if first:
                o.append(valu("v_max3_f32", r, S[b + a0], S[b + a1], S[b + a2]))
            else:
                o.append(valu("v_max3_f32", r, r, S[b + a0], S[b + a1]))
    o += [valu("v_max_f32", u, u, S[7]), valu("v_max_f32", w, w, S[15])]
    return o


def reduce2(op, u, w):
    return [nop(1), swap32(u, w), valu(op, u, u, w), valu("v_mov_b32", w, u), nop(1), swap16(u, w), valu(op, u, u, w)]


def max_init(x, S):
    u, w = E[0], E[1]
    n0, n1 = negmc[2 * x], negmc[2 * x + 1]
    return max_tree(S, u, w) + reduce2("v_max_f32", u, w) + [
        valu("v_mul_f32", n0, sNegC, u), valu("v_mul_f32", n1, sNegC, u), nop(1), swap32(n0, n1)]


XPOS = [0]


def exp_stream(x, S, P, order=range(16), late=None):
    out = []
    order = list(order)
    p0 = XPOS[0]
    XPOS[0] = (p0 + 16) % len(X)
    T = lambda n: X[(p0 + n) % len(X)]
    for n in range(16 + 2):
        if n < 16:
            i = order[n]
            f = valu("v_fma_f32", T(n), S[i], sC, negmc[2 * x + i // 8])
            if late is not None and i % 8 >= 4:
                f.earliest = late
            out.append(f)
        if 0 <= n - 1 < 16:
            out.append(trans("v_exp_f32", T(n - 1), T(n - 1)))
        j = n - 2
        if 0 <= j < 16 and j % 2 == 1:
            out.append(valu("v_cvt_pk_bf16_f32", P[order[j] // 2], T(j - 1), T(j)))
    return out


TRAMPS = []
KH0_FIRST = [0, 1, 2, 3, 8, 9, 10, 11, 4, 5, 6, 7, 12, 13, 14, 15]


def softmax(x, tile, late=None):
    S, P = Sbuf(x, tile), Pbuf(x, tile)
    if tile == 0:
        return max_init(x, S) + exp_stream(x, S, P)
    return exp_stream(x, S, P, KH0_FIRST if late is not None else range(16), late)


def sum_mfma(x, tile):
    P = Pbuf(x, tile)
    return [mfma(TS, ONES[0], P[0:4], 0), mfma(TS, ONES[1], P[4:8], TS)]


def check(x, tile, site):
    if tile == 0:
        return [], [], [valu("v_mov_b32", lsum[2 * x + i], TS[i]) for i in range(2)]
    par = tile % 2
    name = f"{site}_{'AB'[x]}"
    if (name, x, par) not in TRAMPS:
        TRAMPS.append((name, x, par))
    return ([I(f"v_cmp_nge_f32 vcc, {sThr}, {TS[2]}", "valu", rd=[sThr, TS[2]], wr=["vcc"])],
            [I(f"s_cbranch_vccnz L_tr_{name}", "branch", rd=["vcc"]), label(f"L_ret_{name}")],
            [valu("v_add_f32", lsum[2 * x + i], lsum[2 * x + i], TS[i]) for i in range(2)])


def rinv_stream(x):
    u, w = lsum[2 * x], lsum[2 * x + 1]
    r0, r1 = rinv[2 * x], rinv[2 * x + 1]
    return reduce2("v_add_f32", u, w) + [trans("v_rcp_f32", r0, u), trans("v_rcp_f32", r1, u), nop(1), swap32(r0, r1)]


def scale2(R, qb):
    if OPT["pk"]:
        return [I(f"v_pk_mul_f32 {R}, {R}, {rinv2[qb]} op_sel_hi:[1,0]", "valu", rd=[R, rinv[qb]], wr=[R], flags=["pk"])]
    return [valu("v_mul_f32", R[0], R[0], rinv[qb]), valu("v_mul_f32", R[1], R[1], rinv[qb])]


def epi_a(tt):
    O = OA[16 * tt: 16 * tt + 16]
    m = []
    for i in range(8):
        m += scale2(O[2 * i: 2 * i + 2], (i // 2) % 2)
    c = [valu("v_cvt_pk_bf16_f32", O[i], O[2 * i], O[2 * i + 1]) for i in range(8)]
    w = []
    for n in range(4):
        dt, q = 2 * tt + n // 2, n % 2
        ad, pre = oaddr(dt % 4)
        if q == 0:
            w += pre
        wr = owrite(O[2 * n: 2 * n + 2], ad, q, dt)
        wr.after = c[2 * n + 1]
        w.append(wr)
    return m, c, w


def epi_b(tt, half, T):
    O = OB[16 * tt: 16 * tt + 16]
    D = STG[tt * 8: tt * 8 + 8]
    r = [valu("v_accvgpr_read_b32", T[i], O[8 * half + i]) for i in range(8)]
    m = []
    for i in range(4):
        m += scale2(T[2 * i: 2 * i + 2], 2 + i // 2)
    c = [valu("v_cvt_pk_bf16_f32", D[4 * half + i], T[2 * i], T[2 * i + 1]) for i in range(4)]
    return r, m, c


def ob_writes(es):
    w = []
    for e in es:
        ad, pre = oaddr(e)
        w += pre
        for dt in (e, e + 4, e + 8):
            for q in range(2):
                n = (dt * 2 + q) * 2
                w.append(owrite(STG[n: n + 2], ad, q, dt))
    return w


def setw(items, earliest=None, latest=None):
    for i in items:
        if latest is not None:
            i.latest = latest if i.latest is None else min(i.latest, latest)
    if earliest is not None:
        items[0].earliest = earliest
    return items


def rare(x, par):
    S, P = Sbuf(x, par), Pbuf(x, par)
    u, w = E[0], E[1]
    f = [u, w]
    n = [negmc[2 * x], negmc[2 * x + 1]]
    o = [label(f"L_rare_{'AB'[x]}{par}"), nop(15)]
    o += max_tree(S, u, w)
    o += [valu("v_fma_f32", u, u, sC, n[0]), valu("v_fma_f32", w, w, sC, n[1])]
    o += reduce2("v_max_f32", u, w)
    o += [valu("v_max_f32", u, "0", u), valu("v_mov_b32", w, u), nop(1), swap32(u, w),
          valu("v_sub_f32", n[0], n[0], u), valu("v_sub_f32", n[1], n[1], w),
          trans("v_exp_f32", u, f"-{u}", extra_rd=[u]), trans("v_exp_f32", w, f"-{w}", extra_rd=[w]), nop(0),
          valu("v_mul_f32", lsum[2 * x], lsum[2 * x], u), valu("v_mul_f32", lsum[2 * x + 1], lsum[2 * x + 1], w)]
    O = OX[x]
    for i in range(96):
        ff = f[(i // 4) % 2]
        if O.f == "a":
            tt = P[i % 4]
            o += [valu("v_accvgpr_read_b32", tt, O[i]), valu("v_mul_f32", tt, tt, ff),
                  valu("v_accvgpr_write_b32", O[i], tt)]
        else:
            o.append(valu("v_mul_f32", O[i], O[i], ff))
    o += [valu("v_fma_f32", S[i], S[i], sC, n[i // 8]) for i in range(16)]
    o += [trans("v_exp_f32", S[i], S[i]) for i in range(16)]
    o += [valu("v_cvt_pk_bf16_f32", P[i], S[2 * i], S[2 * i + 1]) for i in range(8)]
    o += [nop(1)] + sum_mfma(x, par)
    o += [nop(15), I(f"s_setpc_b64 {sRet}", "branch", rd=[sRet])]
    return o


def qk_mfma(tile, f, qb, fr):
    kh, ks = f // 6, f % 6
    n = (qb % 2) * 8 + kh * 4
    d = Sbuf(qb // 2, tile)[n: n + 4]
    return mfma(d, fr, Qreg(qb, ks), d if ks else 0)


def pv_mfma(t, dt, qb, fr, zero):
    o = Otile(qb, dt)
    p = Pbuf(qb // 2, t)[4 * (qb % 2): 4 * (qb % 2) + 4]
    return mfma(o, fr, p, 0 if zero else o)


def frag_read(g, t, f):
    if f < 12:
        return kread(g, f, t + 1)
    if f < 24:
        return vread(g, f, t)
    return kread(g + 1, f - 24, t + 2)


def ftag(g, f):
    return ("F", g, f) if f < 24 else ("F", g + 1, f - 24)


def stamp(idx, real=False):
    if not OPT["stamp"]:
        return []
    if OPT["stamp"] == 2 and idx not in (0, 1, 15, 16, 17, 18, 19, 56, 60, 61):
        return []
    op = "s_memrealtime" if real else "s_memtime"
    return [I(f"{op} {sStamp}", "salu", wr=[sStamp]), I("s_waitcnt lgkmcnt(0)", "salu"),
            valu("v_mov_b32", E[0], sStamp[0]),
            I(f"buffer_store_dword {E[0]}, off, {srdD}, {sH} offset:{idx * 4}", "vmem", rd=[E[0], srdD])]


def add_iter(u, b, t, site):
    g = b * 16 + t
    base = len(u.heads)
    tn = (t + 1) % 16
    lastuse = {}
    NR = OPT.get("nr", 3)
    seq = [(f, qb) for f in range(NR) for qb in (2, 3)] + [(f, qb) for f in range(NR) for qb in (0, 1)] + \
          [(f, qb) for f in range(NR, 12) for qb in range(4)]
    for f, qb in seq:
        m = qk_mfma(tn, f, qb, FR[f % RING])
        m.needl = [("F", g, f)] + ([("QB", b + 1, (qb - 2) * 6 + f % 6)] if tn == 0 and qb >= 2 else [])
        lastuse[f] = u.add_gap(m)
    for m in sum_mfma(1, t):
        u.add_gap(m)
    seq = [(f, qb) for f in range(NR) for qb in (0, 1)] + [(f, qb) for f in range(NR) for qb in (2, 3)] + \
          [(f, qb) for f in range(NR, 12) for qb in range(4)]
    for dt, qb in seq:
        m = pv_mfma(t, dt, qb, FR[(12 + dt) % RING], t == 0)
        m.needl = [("F", g, 12 + dt)]
        lastuse[12 + dt] = u.add_gap(m)
    for m in sum_mfma(0, tn):
        u.add_gap(m)
    wp = OPT["wper"]
    for f in range(24):
        k = lastuse[f]
        rd = frag_read(g, t, f + RING)
        u.pin[k] += rd
        if (f + 1) % wp == 0:
            kw = k + 2 if f in (11, 23) else (k if len(rd) == 1 else k - 1)
            u.pin[kw].append(waitl(*[ftag(g, f + 1 + i) for i in range(wp)]))
    for x, k in ((0, base), (1, base + P2)):
        c, br, lu = check(x, t, site)
        u.tail[k + OPT.get("cmpgap", 2)] += c
        kb = k + 2 * NR - 1
        if OPT.get("brhead"):
            u.pin[kb] = br + u.pin[kb]
        else:
            u.tail[kb] += br
        u.streams.append(Stream(lu, kb + 1, kb + 3, prio=0.5))
    tk, tv = (t + KD) % 16, (t + VD) % 16
    u.pin[base + OPT["kgaps"][0] - 2].append(setm0(m0K[KSLOT[tk]]))
    for c, k in enumerate(OPT["kgaps"]):
        u.pin[base + k].append(dma(srdK, sT[tk], c, ("K", g + KD)))
    u.pin[base + OPT["vgaps"][0] - 3].append(setm0(m0V[VSLOT[tv]]))
    for c, k in enumerate(OPT["vgaps"]):
        u.pin[base + k].append(dma(srdV, sT[tv], c, ("V", g + VD)))
    for x, key in ((0, "oa_rd"), (1, "ob_rd")):
        for idx, (tt, k) in enumerate(OPT[key]):
            if tt == t:
                u.pin[base + k].append(oread(obuf(x, idx), idx, ("OR", b, x, idx)))
    if t in (2, 3):
        st = Stream(ob_writes((0, 1)), base + 23, base + 97) if t == 2 else Stream(ob_writes((2, 3)), base + 0, base + 70)
        st.pace = OPT.get("pace", 1)
        u.streams.append(st)
    for half in range(2):
        n = 2 * t + half
        gaps = OPT["sgaps"][half]
        for x, key in ((0, "oa_slots"), (1, "ob_slots")):
            if n in OPT[key]:
                jj = OPT[key].index(n)
                for c, k in enumerate(gaps):
                    idx = jj * 3 + c
                    u.pin[base + k].append(ostore(obuf(x, idx), x, idx, [("OR", b, x, idx)]))
        for x, key in ((0, "qa_slots"), (1, "qb_slots")):
            if n in OPT[key]:
                jj = OPT[key].index(n)
                u.pin[base + gaps[0] - 3].append(setm0(sM[jj]))
                need = [("OR", b, 1, 11)] if x == 0 else [("QA", b + 1, 11)]
                for c, k in enumerate(gaps):
                    u.pin[base + k].append(qdma(x, jj, c, ("QD", b + 1, x), need))
    if t == OPT["qar_iter"]:
        u.pin[base + 0].append(waitv(("QD", b + 1, 0)))
        for n in range(12):
            u.pin[base + 1 + 4 * n].append(qread(STG[n * 4: n * 4 + 4], n, vS, ("QA", b + 1, n), [("QD", b + 1, 0)]))
    if t == 14:
        u.pin[base + P2].append(waitv(("QD", b + 1, 1)))
        for i, n in enumerate([0, 6, 1, 7, 2, 8, 3, 9, 4, 10, 5, 11]):
            u.pin[base + P2 + 1 + 4 * (i // 2) + (8 if i >= 2 else 0)].append(
                qread(Qreg(2 + n // 6, n % 6), n, vS, ("QB", b + 1, n), [("QD", b + 1, 1)]))
    u.pin[base + OPT["bar_gap"]] += [waitv(("K", g + 3), ("V", g + 1)), barrier()]
    XPOS[0] = 0
    sb = setw(softmax(1, t), latest=base + 46)
    sa = softmax(0, tn, late=base + 49)
    sa[0].earliest = base + (P2 + 2 * NR if tn == 0 else 30)
    u.streams.append(Stream(sb + sa, base + 0, base + 96, prio=0.05, look=OPT["look"]))
    if t == 1:
        sl = [salu("s_mov_b32", sQOcur, sQO),
              salu("s_add_u32", sBG, sBG, "32", scc_w=True),
              salu("s_mul_hi_u32", sKO, sBG, sMagic),
              salu("s_mul_i32", sKO, sKO, "196608"),
              salu("s_mul_i32", sQO, sBG, "98304"),
              I(f"s_cmp_lt_u32 {sTrip}, 2", "salu", rd=[sTrip], wr=["scc"]),
              salu("s_cselect_b32", sNrec, "196608", "0", scc_r=True),
              salu("s_cselect_b32", srdQ[2], "98304", "0", scc_r=True),
              salu("s_add_u32", srdQ[0], ptrQ[0], sQO, scc_w=True),
              salu("s_addc_u32", srdQ[1], ptrQ[1], "0", scc_w=True, scc_r=True)]
        u.streams.append(Stream(sl, base + 24, base + 80))
    if t == 15 - KD:
        sl = [salu("s_add_u32", srdK[0], ptrK[0], sKO, scc_w=True),
              salu("s_addc_u32", srdK[1], ptrK[1], "0", scc_w=True, scc_r=True),
              salu("s_mov_b32", srdK[2], sNrec)]
        u.streams.append(Stream(sl, base + OPT["kgaps"][-1] + 1, base + 90))
    if t == 15 - VD:
        sl = [salu("s_add_u32", srdV[0], ptrV[0], sKO, scc_w=True),
              salu("s_addc_u32", srdV[1], ptrV[1], "0", scc_w=True, scc_r=True),
              salu("s_mov_b32", srdV[2], sNrec)]
        u.streams.append(Stream(sl, base + OPT["vgaps"][-1] + 1, base + 90))
    return base


def qcopy(base):
    out = []
    for ks in range(6):
        for q in range(2):
            for i in range(4):
                out.append(valu("v_accvgpr_write_b32", Qreg(q, ks)[i], STG[(q * 6 + ks) * 4 + i],
                                earliest=base + 4 * (6 + ks) + q))
    return out


def set_osrd():
    return [salu("s_add_u32", srdO[0], ptrO[0], sQOcur, scc_w=True),
            salu("s_addc_u32", srdO[1], ptrO[1], "0", scc_w=True, scc_r=True),
            salu("s_mov_b32", srdO[2], "98304")]


def unit_mid(b, t):
    u = Unit(f"T{t}")
    if t == 1:
        u.pre.append(label("L_loop"))
    u.pre += stamp(t)
    base = add_iter(u, b, t, f"T{t}")
    if t == 14:
        u.streams.append(Stream(qcopy(base), base + 24, base + 99))
        u.post += [I(f"s_cmp_eq_u32 {sTrip}, 2", "salu", rd=[sTrip], wr=["scc"]),
                   I("s_cbranch_scc1 L_fin", "branch", rd=["scc"])]
    return u


def unit_x(b):
    u = Unit("X")
    u.pre += stamp(15)
    b15 = add_iter(u, b, 15, "T15")
    b0 = add_iter(u, b + 1, 0, "T0")
    u.streams.append(Stream(rinv_stream(0), b15 + 9, b15 + 40))
    u.streams.append(Stream(rinv_stream(1), b15 + P2 + 9, b15 + P2 + 15, prio=0.5))
    ep, wr = [], []
    for tt in range(6):
        O = OA[16 * tt: 16 * tt + 16]
        dl = b0 + P2 + (8 * tt if tt != 1 else 4) - 1
        m, c, w = epi_a(tt)
        r0, m0_, c0 = epi_b(tt, 0, O[8:16])
        r1, m1_, c1 = epi_b(tt, 1, O[8:16])
        setw(m, earliest=b15 + P2 + 8 * tt + 9)
        setw(r0, earliest=b15 + P2 + max(16, 8 * tt + 9))
        ep += setw(m + c + r0 + m0_ + c0 + r1 + m1_ + c1, latest=dl)
        wr += setw(w, latest=dl)
    u.streams.append(Stream(ep, b15 + P2 + 9, b0 + P2 + 39))
    u.streams.append(Stream(wr, b15 + P2 + 9, b0 + P2 + 39))
    u.streams.append(Stream(set_osrd(), b15 + 16, b15 + 44))
    sl = [salu("s_add_u32", sTrip, sTrip, "1", scc_w=True)]
    if OPT["stamp"]:
        sl.append(salu("s_add_u32", sH, sH, "64", scc_w=True))
    u.streams.append(Stream(sl, b0 + 4, b0 + 80))
    u.post.append(I("s_branch L_loop", "branch"))
    return u


def unit_pro():
    u = Unit("PRO")
    P = u.pre
    tid, lane, i16, G, t0, t1, t2 = v(0), X[0], X[1], X[2], X[3], E[0], E[1]
    P += [I("s_cmp_ge_u32 s2, 256", "salu", rd=["s2"], wr=["scc"]),
          I("s_cbranch_scc1 L_end", "branch", rd=["scc"]),
          I("s_load_dwordx4 s[4:7], s[0:1], 0", "salu", wr=[s(4, 4)]),
          I("s_load_dwordx4 s[8:11], s[0:1], 16", "salu", wr=[s(8, 4)])]
    if OPT["stamp"]:
        P += [I(f"s_load_dwordx2 {srdD[0:2]}, s[0:1], 40", "salu"), I(f"s_memrealtime {s(94, 2)}", "salu")]
    if OPT.get("dbg"):
        P += [I(f"s_load_dwordx2 {srdD[0:2]}, s[0:1], 32", "salu"), I(f"s_memrealtime {s(94, 2)}", "salu"),
              I(f"s_memtime {s(96, 2)}", "salu")]
    P += [valu("v_lshrrev_b32", t0, "6", tid), valu("v_and_b32", lane, "63", tid),
          I(f"v_readfirstlane_b32 {sW}, {t0}", "valu", rd=[t0], wr=[sW]),
          valu("v_lshlrev_b32", t1, "4", lane)]
    P += [salu("s_and_b32", sBG, "s2", "7", scc_w=True),
          salu("s_mul_i32", sBG, sBG, "96"),
          salu("s_lshr_b32", sH, "s2", "3", scc_w=True),
          salu("s_add_u32", sBG, sBG, sH, scc_w=True),
          salu("s_mov_b32", sMagic, "0x55555556"),
          salu("s_mul_hi_u32", sKO, sBG, sMagic),
          salu("s_mul_i32", sKO, sKO, "196608"),
          salu("s_mul_i32", sQO, sBG, "98304")]
    P += [salu("s_mov_b32", sQB, str(VBASE + 2 * TILE)),
          I(f"s_cmp_eq_u32 {sW}, 0", "salu", rd=[sW], wr=["scc"]),
          salu("s_cselect_b32", sQB, str(KBASE + 3 * TILE), sQB, scc_r=True),
          I(f"s_cmp_eq_u32 {sW}, 2", "salu", rd=[sW], wr=["scc"]),
          salu("s_cselect_b32", sQB, str(VBASE + 3 * TILE), sQB, scc_r=True),
          I(f"s_cmp_eq_u32 {sW}, 3", "salu", rd=[sW], wr=["scc"]),
          salu("s_cselect_b32", sQB, str(SPARE), sQB, scc_r=True),
          salu("s_mul_i32", sW, sW, "3072")]
    late = []
    for c in range(3):
        P += [valu("v_add_u32", t0, str(c * 1024), t1),
              valu("v_lshrrev_b32", t2, "7", t0),
              valu("v_mul_u32_u24", t2, "171", t2),
              valu("v_lshrrev_b32", vDO[c], "9", t2),
              valu("v_and_b32", vD[c], "6", vDO[c]),
              valu("v_lshlrev_b32", vD[c], "4", vD[c]),
              valu("v_xor_b32", vD[c], vD[c], t1),
              valu("v_add_u32", vD[c], sW, vD[c])]
        late += [valu("v_lshlrev_b32", vDO[c], "4", vDO[c]),
                 valu("v_xor_b32", vDO[c], vDO[c], t1),
                 valu("v_add_u32", vDO[c], sW, vDO[c])]
    P += [salu("s_lshl_b32", sStage, sW, "2", scc_w=True),
          salu("s_add_u32", sStage, sStage, str(STAGE), scc_w=True),
          salu("s_mul_i32", sH, sW, "7")]
    for jj in range(4):
        P += [salu("s_add_u32", sM[jj], sStage, str(jj * 3072), scc_w=True),
              salu("s_add_u32", sG[0][jj], sH, str(jj * 3072), scc_w=True),
              salu("s_add_u32", sG[1][jj], sH, str(jj * 3072 + TILE), scc_w=True)]
    P += [I("s_waitcnt lgkmcnt(0)", "salu")]

    def mksrd(srd, ptr, off, n):
        return [salu("s_add_u32", srd[0], ptr[0], off, scc_w=True),
                salu("s_addc_u32", srd[1], ptr[1], "0", scc_w=True, scc_r=True),
                salu("s_mov_b32", srd[2], str(n)), salu("s_mov_b32", srd[3], "0x00020000")]

    def ktile(t):
        return [setm0(m0K[KSLOT[t]]), nop(0)] + [dma(srdK, sT[t], c, ("K", t)) for c in range(3)]

    def vtile(t):
        return [setm0(m0V[VSLOT[t]]), nop(0)] + [dma(srdV, sT[t], c, ("V", t)) for c in range(3)]

    P += [setm0(sW)] + mksrd(srdK, ptrK, sKO, 196608) + [dma(srdK, "0", c, ("K", 0)) for c in range(3)]
    P += mksrd(srdQ, ptrQ, sQO, 98304)
    for jj in range(4):
        P += [setm0(sM[jj]), nop(0)] + [qdma(0, jj, c, ("QD", 0, 0)) for c in range(3)]
    for jj in range(4):
        P += [salu("s_add_u32", "m0", sQB, str(jj * 3072), scc_w=True), nop(0)] + [qdma(1, jj, c, ("QD", 0, 1)) for c in range(3)]
    P += mksrd(srdV, ptrV, sKO, 196608)
    for i in range(4):
        P.append(salu("s_add_u32", m0K[i], sW, str(KBASE + i * TILE), scc_w=True))
        P.append(salu("s_add_u32", m0V[i], sW, str(VBASE + i * TILE), scc_w=True))
    for t in range(1, 16):
        P.append(salu("s_mov_b32", sT[t], str(t * TILE)))
    warm = []
    if OPT["codewarm"]:
        P += [I(f"s_getpc_b64 {sPC}", "salu", wr=[sPC]),
              label("L_pc"),
              I(f"s_sub_u32 {sPC[0]}, {sPC[0]}, L_pc-{KNAME}", "salu", rd=[sPC], wr=[sPC, "scc"]),
              I(f"s_subb_u32 {sPC[1]}, {sPC[1]}, 0", "salu", rd=[sPC, "scc"], wr=[sPC, "scc"]),
              salu("s_lshr_b32", sH, "s2", "3", scc_w=True),
              salu("s_lshl_b32", sH, sH, "11", scc_w=True),
              valu("v_lshlrev_b32", E[2], "3", tid),
              valu("v_add_u32", E[2], sH, E[2]),
              I(f"v_min_u32 {E[2]}, L_code_end-{KNAME}-8, {E[2]}", "valu", rd=[E[2]], wr=[E[2]])]
        warm = [I(f"global_load_dwordx2 {JUNK[0:2]}, {E[2]}, {sPC}", "vmem", rd=[E[2], sPC], wr=[JUNK[0:2]])]
    P += [salu("s_mov_b32", srdO[0], ptrO[0]), salu("s_mov_b32", srdO[1], ptrO[1]),
          salu("s_mov_b32", srdO[2], "0"), salu("s_mov_b32", srdO[3], "0x00020000"),
          salu("s_mov_b32", sTrip, "0"),
          salu("s_mov_b32", sC, hex(f2u(SCALE_C))), salu("s_mov_b32", sNegC, hex(f2u(-SCALE_C))),
          salu("s_mov_b32", sThr, hex(f2u(OPT["thr"])))]
    P += late + [valu("v_add_u32", vLin, sStage, t1)]
    P += [valu("v_and_b32", i16, "15", lane), valu("v_lshrrev_b32", G, "4", lane),
          valu("v_mul_u32_u24", t0, "384", i16)]
    P += [valu("v_and_b32", t1, "6", i16), valu("v_xor_b32", t1, t1, G), valu("v_lshl_add_u32", vK[0], t1, "4", t0),
          valu("v_xor_b32", vK[1], "64", vK[0])]
    for e in range(2):
        P += [valu("v_add_u32", vS[e], sStage, vK[e]), valu("v_add_u32", STG[e], sQB, vK[e])]
    P += [valu("v_lshrrev_b32", t1, "1", G), valu("v_and_b32", t2, "7", i16), valu("v_xor_b32", t1, t1, t2),
          valu("v_lshl_add_u32", vOW, t1, "4", t0), valu("v_and_b32", t1, "1", G),
          valu("v_lshl_add_u32", vOW, t1, "3", vOW), valu("v_add_u32", vOW, sStage, vOW)]
    P += [valu("v_lshrrev_b32", t1, "2", lane), valu("v_mul_u32_u24", t0, "384", t1),
          valu("v_and_b32", t1, "6", t1), valu("v_lshl_add_u32", t0, t1, "4", t0),
          valu("v_and_b32", t1, "3", lane), valu("v_lshl_add_u32", t0, t1, "3", t0),
          valu("v_add_u32", vV[0], str(VBASE), t0)]
    for e in range(1, 4):
        P.append(valu("v_xor_b32", vV[e], str(e * 32), vV[0]))
    P += [salu("s_mov_b32", sTmp, "0x3f803f80"), valu("v_mov_b32", t0, sTmp)]
    for j in range(2):
        P += [I(f"v_cmp_eq_u32 vcc, {j}, {i16}", "valu", rd=[i16], wr=["vcc"]),
              I(f"v_cmp_eq_u32 {sRet}, 2, {i16}", "valu", rd=[i16], wr=[sRet]), nop(0),
              I(f"s_or_b64 vcc, vcc, {sRet}", "salu", rd=["vcc", sRet], wr=["vcc", "scc"]), nop(1),
              I(f"v_cndmask_b32 {t1}, 0, {t0}, vcc", "valu", rd=[t0, "vcc"], wr=[t1])]
        P += [valu("v_accvgpr_write_b32", ONES[j][i], t1) for i in range(4)]
    if OPT["stamp"]:
        P += [salu("s_mov_b32", srdD[2], "0x1000000"), salu("s_mov_b32", srdD[3], "0x00020000"),
              salu("s_mul_hi_u32", sTmp, sW, sMagic), salu("s_lshr_b32", sTmp, sTmp, "2", scc_w=True),
              salu("s_lshl_b32", sH, "s2", "10", scc_w=True), salu("s_add_u32", sH, sH, sTmp, scc_w=True),
              valu("v_mov_b32", E[0], s(94)),
              I(f"buffer_store_dword {E[0]}, off, {srdD}, {sH} offset:{57 * 4}", "vmem", rd=[E[0], srdD])]
    P += stamp(60) + stamp(56, True)
    P += [waitv(("QD", 0, 0)), barrier()]
    for f in range(RING):
        P += kread(-2, f, 0)
    qorder = [0, 6, 1, 7, 2, 8, 3, 9, 4, 10, 5, 11]
    for n in qorder:
        P.append(qread(Qreg(n // 6, n % 6), n, vS, ("QA", 0, n)))
    P += [waitl(("QA", 0, 7))]
    P += stamp(61)
    if OPT.get("dbg"):
        P += [I(f"s_memrealtime {s(98, 2)}", "salu"), I("s_waitcnt lgkmcnt(0)", "salu")]
    pend = ktile(1) + vtile(0) + ktile(2) + warm + vtile(1)
    for n in range(24):
        x, f = n // 12, n % 12
        for q in range(2):
            m = qk_mfma(0, f, 2 * x + q, FR[n % RING])
            m.needl = [("F", -2, n), ("QA" if x == 0 else "QB", 0, q * 6 + f % 6)]
            k = u.add_gap(m)
            if x == 0 and pend:
                it = pend.pop(0)
                if it.kind != "nop":
                    u.pin[k].append(it)
        if n + RING < 24:
            u.pin[k] += kread(-2, n + RING, 0)
        else:
            u.pin[k] += kread(0, n + RING - 24, 1)
        if f == 1:
            u.pin[k].append(waitl(("QA" if x == 0 else "QB", 0, 11)))
        if RING - 1 <= n < 23 and n != 11:
            u.pin[k].append(waitl(("F", -2, n + 1)))
        if n == 11:
            assert not pend
            k = u.add_gap(None)
            XPOS[0] = 0
            u.pin[k] += softmax(0, 0) + [waitv(("QD", 0, 1))]
            for nn in qorder:
                u.pin[k].append(qread(Qreg(2 + nn // 6, nn % 6), nn, [STG[0], STG[1]], ("QB", 0, nn)))
            u.pin[k] += sum_mfma(0, 0) + [waitl(("QB", 0, 7))]
        if n == 14:
            u.pin[k] += [waitv(("K", 1), ("V", 0), ("K", 2)), barrier()]
        if n == 15:
            u.pin[k] += ktile(3)
        if n == 16:
            u.pin[k] += vtile(2)
    u.pin[k] += [barrier(), waitl(*[("F", 0, i) for i in range(OPT["wper"])])]
    u.pin[k] += stamp(0)
    u.win0 = len(u.heads)
    add_iter(u, 0, 0, "T0p")
    return u


def unit_fin(b):
    u = Unit("FIN")
    t = 15
    u.pre.append(label("L_fin"))
    u.pre += stamp(15)
    G = 1000
    for n in range(RING):
        u.pre += vread(G, n, t)
    c, br, lu = check(0, 15, "T15f")
    u.pre += c + br + lu + rinv_stream(0) + set_osrd() + [waitl(("F", G, 0))]
    base = len(u.heads)
    for n in range(24):
        x, dt = n // 12, n % 12
        for q in range(2):
            m = pv_mfma(t, dt, 2 * x + q, FR[n % RING], False)
            m.needl = [("F", G, n)]
            k = u.add_gap(m)
        if n < 23:
            u.pin[k - 1].append(waitl(("F", G, n + 1)))
        if n + RING < 24:
            u.pin[k] += vread(G, n + RING, t)
        if n == 9:
            for m in sum_mfma(1, 15):
                u.add_gap(m)
        if n == 11:
            c, br, lu = check(1, 15, "T15f")
            u.tail[k] += c + br + lu
    last = u.add_gap(None)
    XPOS[0] = 0
    u.streams.append(Stream(softmax(1, 15), base, base + 18, look=OPT["look"]))
    u.streams.append(Stream(rinv_stream(1), base + 26, base + 34))
    ep, wr = [], []
    for tt in range(6):
        m, c, w = epi_a(tt)
        setw(m, earliest=base + 4 * tt + 8)
        ep += m + c
        wr += w
    u.streams.append(Stream(ep, base + 19, base + 46))
    u.streams.append(Stream(wr, base + 19, base + 49))
    u.window = 19
    po = u.pin[last]
    Z = [Qc[4 * i: 4 * i + 4] for i in range(24)]
    for n in range(12):
        po.append(oread(Z[n], n, ("OR", b + 1, 0, n)))
    for tt in range(6):
        r0, m0_, c0 = epi_b(tt, 0, SA[0:8])
        r1, m1_, c1 = epi_b(tt, 1, SA[8:16])
        st = [ostore(Z[n], 0, n, [("OR", b + 1, 0, n)]) for n in (2 * tt, 2 * tt + 1)]
        po += r0 + r1 + ([waitl(("OR", b + 1, 0, 11))] if tt == 0 else []) + st[:1] + m0_ + m1_ + c0 + st[1:] + c1
        for dt in (2 * tt, 2 * tt + 1):
            ad, pre = oaddr(dt % 4)
            po += pre + [owrite(STG[(dt * 2 + q) * 2: (dt * 2 + q) * 2 + 2], ad, q, dt) for q in range(2)]
    for n in range(12):
        po.append(oread(Z[12 + n], n, ("OR", b + 1, 1, n)))
    for n in range(12):
        po.append(waitl(("OR", b + 1, 1, n)))
        po.append(ostore(Z[12 + n], 1, n, [("OR", b + 1, 1, n)]))
    u.post += stamp(16) + stamp(17, True)
    if OPT["stamp"]:
        u.post += [I("s_waitcnt vmcnt(0)", "salu")] + stamp(18) + stamp(19, True)
    if OPT.get("dbg"):
        u.post += [I("s_cmp_ge_u32 s2, 8", "salu"), I("s_cbranch_scc1 L_end", "branch"),
                   I(f"s_cmp_lg_u32 {sW}, 0", "salu"), I("s_cbranch_scc1 L_end", "branch"),
                   I("s_waitcnt vmcnt(0)", "salu"), I(f"s_memrealtime {sStamp}", "salu"), I(f"s_memtime {sPC}", "salu"),
                   I("s_waitcnt lgkmcnt(0)", "salu"),
                   salu("s_mov_b32", srdD[2], "256"), salu("s_mov_b32", srdD[3], "0x00020000"),
                   I("s_mov_b64 exec, 1", "salu"),
                   salu("s_sub_u32", sTmp, sStamp[0], s(94)), salu("s_sub_u32", sH, s(98), s(94)),
                   salu("s_mul_i32", sH, sH, "100000"), salu("s_add_u32", sTmp, sTmp, sH),
                   valu("v_mov_b32", v(34), sTmp),
                   salu("s_sub_u32", sTmp, sPC[0], s(96)), valu("v_mov_b32", v(35), sTmp),
                   salu("s_lshl_b32", sTmp, "s2", "3"),
                   I(f"buffer_store_dwordx2 {v(34, 2)}, off, {srdD}, {sTmp}", "vmem", rd=[srdD])]
    u.post += [label("L_end"), I("s_endpgm", "branch")]
    return u


def build(extra):
    cache = {}

    def get(name, fn, first):
        u = fn()
        ins = u.schedule(budget=8, window=50, pk_at=20, verbose=first and VERB)
        out = []
        for idx, i in enumerate(ins):
            n = extra.get((name, idx), 0)
            if n:
                out.append(((name, idx, "nop"), nop(n - 1)))
            out.append(((name, idx), i))
        if first:
            cache[name] = out
        return out

    trace = list(get("PRO", unit_pro, True))
    for b in range(3):
        for t in range(1, 15):
            trace += get(f"T{t}", lambda: unit_mid(b, t), b == 0)
        if b < 2:
            trace += get("X", lambda: unit_x(b), b == 0)
    trace += get("FIN", lambda: unit_fin(2), True)
    order = ["PRO"] + [f"T{t}" for t in range(1, 15)] + ["X", "FIN"]
    return [(n, cache[n]) for n in order], trace


VERB = False
extra = {}
for it in range(60):
    static, trace = build(extra)
    hz = hazards([i for _, i in trace])
    if not hz:
        break
    upd = {}
    lastj = -100
    for j, need, why in hz:
        key = trace[j][0]
        if j != lastj and j - lastj < 24:
            continue
        lastj = j
        upd[key] = max(upd.get(key, 0), need)
        if OPT.get("showhz"):
            print("; hazard:", key, need, why, file=sys.stderr)
    for k, n in upd.items():
        extra[k] = extra.get(k, 0) + n
else:
    raise SystemExit("hazards did not converge")
if OPT.get("verb"):
    VERB = True
    _so = sys.stdout
    sys.stdout = sys.stderr
    build(extra)
    sys.stdout = _so
    print("; nops inserted:", extra, file=sys.stderr)
W = resolve_waits(trace)
_bad = check_coverage(trace, W)
assert not _bad, _bad[:10]
if OPT.get("verb") and "_mismatch" in W:
    print("; wait mismatches:", W["_mismatch"], file=sys.stderr)

out = []
A = out.append
A(open(os.path.join(os.path.dirname(os.path.abspath(__file__)), "header.txt")).read().rstrip())
A(f"; @launch grid=(256,1,1) block=(256,1,1) lds={LDS_BYTES}")
A('.amdgcn_target "amdgcn-amd-amdhsa--gfx950"')
A(".text")
A(f".globl {KNAME}")
A(".p2align 8")
A(f".type {KNAME},@function")
A(f"{KNAME}:")
for name, ins in static:
    A(f"; ---- {name} ----")
    for key, i in ins:
        t = i.text
        if i.kind == "wait":
            l, vv = W[key]
            t = "s_waitcnt " + (f"lgkmcnt({l})" if l is not None else f"vmcnt({vv})")
        abl = OPT.get("abl", "")
        if abl and name not in ("PRO",):
            tx = i.text
            if "c" in abl and "s_cbranch_vccnz" in tx:
                t = "s_nop 0"
            if "b" in abl and i.kind == "barrier":
                t = "s_nop 0"
            if "k" in abl and i.kind == "vmem" and (str(srdK) in tx or str(srdV) in tx):
                t = "s_nop 1"
            if "w" in abl and i.kind == "wait" and i.waitl is not None:
                t = "s_nop 0"
            if "W" in abl and i.kind == "wait" and i.waitv is not None:
                t = "s_nop 0"
            if "s" in abl and i.kind == "vmem" and (str(srdQ) in tx or str(srdO) in tx):
                t = "s_nop 1"
            if "z" in abl and "ds_write" in tx:
                t = "s_nop 1"
        if OPT.get("e64") and re.match(r"v_(exp_f32|add_f32|mul_f32|mov_b32|xor_b32|max_f32|rcp_f32) ", t) and "96" not in t.split(",")[1]:
            t = t.replace(" ", "_e64 ", 1)
        A(t if i.kind == "label" else "    " + t)
for name, x, par in TRAMPS:
    A(f"L_tr_{name}:")
    A(f"    s_call_b64 {sRet}, L_rare_{'AB'[x]}{par}")
    A(f"    s_branch L_ret_{name}")
for x in range(2):
    for par in range(2):
        r = rare(x, par)
        hz = hazards(r)
        assert not hz, hz
        for i in r:
            A(i.text if i.kind == "label" else "    " + i.text)
A("L_code_end:")
A("    s_endpgm")
A(f""".section .rodata,"a"
.p2align 6
.amdhsa_kernel {KNAME}
  .amdhsa_next_free_vgpr 512
  .amdhsa_next_free_sgpr 102
  .amdhsa_accum_offset 256
  .amdhsa_group_segment_fixed_size 0
  .amdhsa_kernarg_size 48
  .amdhsa_user_sgpr_count 2
  .amdhsa_user_sgpr_kernarg_segment_ptr 1
  .amdhsa_system_sgpr_workgroup_id_x 1
  .amdhsa_float_denorm_mode_32 3
.end_amdhsa_kernel""")
print("\n".join(out))
```

```python
import sys, struct, math, os, re
sys.path.insert(0, os.path.dirname(os.path.abspath(__file__)))
import asmlib
from asmlib import *

asmlib.COST.update(vmem=8, barrier=8)
KNAME = "standalone__gqa_softmax__near_ridge_kernel"
OPT = dict(
    sgaps=[[20, 28, 36], [74, 82, 90]],
    oa_slots=[3, 4, 6, 8], ob_slots=[11, 13, 15, 18], qa_slots=[10, 12, 14, 16], qb_slots=[21, 22, 23, 24],
    oa_rd=[(1, g) for g in (1, 17, 25, 33, 41, 45, 59, 67)] + [(2, g) for g in (1, 9, 17, 22)],
    ob_rd=[(3, g) for g in (71, 75, 79, 83, 87, 91)] + [(4, g) for g in (1, 9, 17, 25, 33, 41)],
    qar_iter=10,
    kgaps=[4, 8, 12], vgaps=[48, 58, 66],
    bar_gap=98,
    wper=3, look=5,
    thr=4096.0,
    stamp=0,
    codewarm=1,
    pk=1,
    kv_nt=" nt", q_nt=" nt", o_nt=" sc1",
)
for a in sys.argv[1:]:
    if "=" in a:
        k, v = a.split("=", 1)
        OPT[k] = eval(v)

TILE = 12288
KSLOT = [0, 1, 2, 3] * 4
VSLOT = [0, 1, 2, 3] * 4
KBASE, VBASE, STAGE, SPARE = 0, 4 * TILE, 8 * TILE, 12 * TILE
LDS_BYTES = 13 * TILE
KD, VD = 4, 3
RING = 6
P2 = 50
NG = 100


def f2u(x):
    return struct.unpack("<I", struct.pack("<f", x))[0]


v = lambda lo, n=1: Reg("v", lo, n)
a = lambda lo, n=1: Reg("a", lo, n)
s = lambda lo, n=1: Reg("s", lo, n)

vLin = v(1)
vK = [v(2), v(3)]
vV = [v(4 + i) for i in range(4)]
vD = [v(8 + i) for i in range(3)]
vDO = [v(11 + i) for i in range(3)]
vS = [v(14), v(15)]
rinv = [v(16 + 2 * i) for i in range(4)]
rinv2 = [v(16 + 2 * i, 2) for i in range(4)]
lsum = [v(17 + 2 * i) for i in range(4)]
negmc = [v(24 + i) for i in range(4)]
TS = v(28, 4)
vOW = v(32)
E = [v(33), v(34), v(35)]
X = [v(36), v(37), v(38), v(39), v(0)]
PA = [v(40, 8), v(48, 8)]
PB = v(56, 8)
SA = v(64, 16)
SB = [v(80, 16), v(96, 16)]
OA = v(112, 96)
STG = v(208, 48)
OB = a(0, 96)
Qc = a(96, 96)
FR = [a(192 + 4 * i, 4) for i in range(RING)]
SQ = [a(216 + 4 * i, 4) for i in range(8)]
JUNK = SQ[7]
ONES = [a(248, 4), a(252, 4)]
OX = [OA, OB]

ptrQ, ptrK, ptrV, ptrO = s(4, 2), s(6, 2), s(8, 2), s(10, 2)
srdK, srdV, srdQ, srdO = s(12, 4), s(16, 4), s(20, 4), s(24, 4)
sBG, sH, sKO, sQO, sQOcur, sNrec, sTrip, sC, sNegC, sThr, sMagic, sW = [s(28 + i) for i in range(12)]
sRet = s(40, 2)
m0K = [s(42 + i) for i in range(4)]
sStage, sQB = s(46), s(47)
m0V = [s(48 + i) for i in range(4)]
sT = ["0"] + [s(51 + t) for t in range(1, 16)]
srdD = s(68, 4)
sStamp = s(72, 2)
sPC = s(76, 2)
sG = [[s(80 + 4 * x + j) for j in range(4)] for x in range(2)]
sM = [s(88 + j) for j in range(4)]
sTmp = s(92)

SCALE_C = math.log2(math.e) / math.sqrt(192.0)


def Qreg(qb, ks):
    return Qc[(qb * 6 + ks) * 4: (qb * 6 + ks) * 4 + 4]


def Otile(qb, dt):
    n = (dt * 2 + qb % 2) * 4
    return OX[qb // 2][n: n + 4]


def Sbuf(x, tile):
    return SA if x == 0 else SB[tile % 2]


def Pbuf(x, tile):
    return PA[tile % 2] if x == 0 else PB


def dma(srd, soff, c, tag):
    off = f" offset:{c * 1024}" if c else ""
    return I(f"buffer_load_dwordx4 {vD[c]}, {srd}, {soff} offen{off}{OPT['kv_nt']} lds", "vmem",
             rd=[vD[c], srd, soff, "m0"], tag=tag)


def setm0(x):
    return salu("s_mov_b32", "m0", x)


def qdma(x, jj, c, tag, need=None):
    off = f" offset:{c * 1024}" if c else ""
    return I(f"buffer_load_dwordx4 {vD[c]}, {srdQ}, {sG[x][jj]} offen{off}{OPT['q_nt']} lds", "vmem",
             rd=[vD[c], srdQ, sG[x][jj], "m0"], tag=tag, needl=need)


def qread(dst, n, addr, tag, need=None):
    q, ks = n // 6, n % 6
    off = q * 6144 + (ks // 2) * 128
    return I(f"ds_read_b128 {dst}, {addr[ks % 2]} offset:{off}", "ds", rd=[addr[ks % 2]], wr=[dst], tag=tag, needv=need)


def oaddr(e):
    if e == 0:
        return vOW, []
    return E[2], [valu("v_xor_b32", E[2], str(e * 32), vOW)]


def owrite(src, addr, q, dt):
    off = q * 6144 + (dt // 4) * 128
    return I(f"ds_write_b64 {addr}, {src} offset:{off}", "ds", rd=[addr, src], cost=OPT.get("wcost", 12), flags=["head"])


def oread(dst, idx, tag):
    return I(f"ds_read_b128 {dst}, {vLin} offset:{idx * 1024}", "ds", rd=[vLin], wr=[dst], tag=tag)


def ostore(src, x, idx, need, fin=False):
    jj, c = idx // 3, idx % 3
    off = f" offset:{c * 1024}" if c else ""
    fl = OPT.get("of_nt" + "ab"[x], OPT["o_nt"]) if fin else OPT["o_nt"]
    return I(f"buffer_store_dwordx4 {src}, {vDO[c]}, {srdO}, {sG[x][jj]} offen{off}{fl}", "vmem",
             rd=[src, vDO[c], srdO, sG[x][jj]], flags=["wide"], cost=16, needl=need)


def obuf(x, idx):
    if x == 1:
        return STG[4 * idx: 4 * idx + 4]
    return SQ[idx % 8]


def kread(g, f, tile):
    kh, ks = (f % 12) // 6, f % 6
    off = KBASE + KSLOT[tile % 16] * TILE + kh * 6144 + (ks // 2) * 128
    d = FR[f % RING]
    return [I(f"ds_read_b128 {d}, {vK[ks % 2]} offset:{off}", "ds", rd=[vK[ks % 2]], wr=[d], tag=("F", g, f))]


def vread(g, f, tile):
    dt = f % 12
    d = FR[f % RING]
    out = []
    for jj in range(2):
        off = VSLOT[tile % 16] * TILE + jj * 6144 + (dt // 4) * 128
        out.append(I(f"ds_read_b64_tr_b16 {d[2 * jj:2 * jj + 2]}, {vV[dt % 4]} offset:{off}", "ds", rd=[vV[dt % 4]],
                     wr=[d[2 * jj:2 * jj + 2]], tag=("F", g, f) if jj == 1 else None))
    return out


def swap32(u, w):
    return I(f"v_permlane32_swap_b32 {u}, {w}", "valu", rd=[u, w], wr=[u, w], cost=8)


def swap16(u, w):
    return I(f"v_permlane16_swap_b32 {u}, {w}", "valu", rd=[u, w], wr=[u, w], cost=8)


def max_tree(S, u, w):
    o = []
    for a0, a1, a2, first in ((0, 1, 2, True), (3, 4, None, False), (5, 6, None, False)):
        for r, b in ((u, 0), (w, 8)):
            if first:
                o.append(valu("v_max3_f32", r, S[b + a0], S[b + a1], S[b + a2]))
            else:
                o.append(valu("v_max3_f32", r, r, S[b + a0], S[b + a1]))
    o += [valu("v_max_f32", u, u, S[7]), valu("v_max_f32", w, w, S[15])]
    return o


def reduce2(op, u, w):
    return [nop(1), swap32(u, w), valu(op, u, u, w), valu("v_mov_b32", w, u), nop(1), swap16(u, w), valu(op, u, u, w)]


def max_init(x, S):
    u, w = E[0], E[1]
    n0, n1 = negmc[2 * x], negmc[2 * x + 1]
    return max_tree(S, u, w) + reduce2("v_max_f32", u, w) + [
        valu("v_mul_f32", n0, sNegC, u), valu("v_mul_f32", n1, sNegC, u), nop(1), swap32(n0, n1)]


XPOS = [0]


def exp_stream(x, S, P, order=range(16), late=None):
    out = []
    order = list(order)
    p0 = XPOS[0]
    XPOS[0] = (p0 + 16) % len(X)
    T = lambda n: X[(p0 + n) % len(X)]
    for n in range(16 + 2):
        if n < 16:
            i = order[n]
            f = valu("v_fma_f32", T(n), S[i], sC, negmc[2 * x + i // 8])
            if late is not None and i % 8 >= 4:
                f.earliest = late
            out.append(f)
        if 0 <= n - 1 < 16:
            out.append(trans("v_exp_f32", T(n - 1), T(n - 1)))
        j = n - 2
        if 0 <= j < 16 and j % 2 == 1:
            out.append(valu("v_cvt_pk_bf16_f32", P[order[j] // 2], T(j - 1), T(j)))
    return out


TRAMPS = []
KH0_FIRST = [0, 1, 2, 3, 8, 9, 10, 11, 4, 5, 6, 7, 12, 13, 14, 15]


def softmax(x, tile, late=None):
    S, P = Sbuf(x, tile), Pbuf(x, tile)
    if tile == 0:
        return max_init(x, S) + exp_stream(x, S, P)
    return exp_stream(x, S, P, KH0_FIRST if late is not None else range(16), late)


def sum_mfma(x, tile):
    P = Pbuf(x, tile)
    return [mfma(TS, ONES[0], P[0:4], 0), mfma(TS, ONES[1], P[4:8], TS)]


def check(x, tile, site):
    if tile == 0:
        return [], [], [valu("v_mov_b32", lsum[2 * x + i], TS[i]) for i in range(2)]
    par = tile % 2
    name = f"{site}_{'AB'[x]}"
    if (name, x, par) not in TRAMPS:
        TRAMPS.append((name, x, par))
    return ([I(f"v_cmp_nge_f32 vcc, {sThr}, {TS[2]}", "valu", rd=[sThr, TS[2]], wr=["vcc"])],
            [I(f"s_cbranch_vccnz L_tr_{name}", "branch", rd=["vcc"]), label(f"L_ret_{name}")],
            [valu("v_add_f32", lsum[2 * x + i], lsum[2 * x + i], TS[i]) for i in range(2)])


def rinv_stream(x):
    u, w = lsum[2 * x], lsum[2 * x + 1]
    r0, r1 = rinv[2 * x], rinv[2 * x + 1]
    return reduce2("v_add_f32", u, w) + [trans("v_rcp_f32", r0, u), trans("v_rcp_f32", r1, u), nop(1), swap32(r0, r1)]


def scale2(R, qb):
    if OPT["pk"]:
        return [I(f"v_pk_mul_f32 {R}, {R}, {rinv2[qb]} op_sel_hi:[1,0]", "valu", rd=[R, rinv[qb]], wr=[R], flags=["pk"])]
    return [valu("v_mul_f32", R[0], R[0], rinv[qb]), valu("v_mul_f32", R[1], R[1], rinv[qb])]


def epi_a(tt):
    O = OA[16 * tt: 16 * tt + 16]
    m = []
    for i in range(8):
        m += scale2(O[2 * i: 2 * i + 2], (i // 2) % 2)
    c = [valu("v_cvt_pk_bf16_f32", O[i], O[2 * i], O[2 * i + 1]) for i in range(8)]
    w = []
    for n in range(4):
        dt, q = 2 * tt + n // 2, n % 2
        ad, pre = oaddr(dt % 4)
        if q == 0:
            w += pre
        wr = owrite(O[2 * n: 2 * n + 2], ad, q, dt)
        wr.after = c[2 * n + 1]
        w.append(wr)
    return m, c, w


def epi_b(tt, half, T):
    O = OB[16 * tt: 16 * tt + 16]
    D = STG[tt * 8: tt * 8 + 8]
    r = [valu("v_accvgpr_read_b32", T[i], O[8 * half + i]) for i in range(8)]
    m = []
    for i in range(4):
        m += scale2(T[2 * i: 2 * i + 2], 2 + i // 2)
    c = [valu("v_cvt_pk_bf16_f32", D[4 * half + i], T[2 * i], T[2 * i + 1]) for i in range(4)]
    return r, m, c


def ob_writes(es):
    w = []
    for e in es:
        ad, pre = oaddr(e)
        w += pre
        for dt in (e, e + 4, e + 8):
            for q in range(2):
                n = (dt * 2 + q) * 2
                w.append(owrite(STG[n: n + 2], ad, q, dt))
    return w


def setw(items, earliest=None, latest=None):
    for i in items:
        if latest is not None:
            i.latest = latest if i.latest is None else min(i.latest, latest)
    if earliest is not None:
        items[0].earliest = earliest
    return items


def rare(x, par):
    S, P = Sbuf(x, par), Pbuf(x, par)
    u, w = E[0], E[1]
    f = [u, w]
    n = [negmc[2 * x], negmc[2 * x + 1]]
    o = [label(f"L_rare_{'AB'[x]}{par}"), nop(15)]
    o += max_tree(S, u, w)
    o += [valu("v_fma_f32", u, u, sC, n[0]), valu("v_fma_f32", w, w, sC, n[1])]
    o += reduce2("v_max_f32", u, w)
    o += [valu("v_max_f32", u, "0", u), valu("v_mov_b32", w, u), nop(1), swap32(u, w),
          valu("v_sub_f32", n[0], n[0], u), valu("v_sub_f32", n[1], n[1], w),
          trans("v_exp_f32", u, f"-{u}", extra_rd=[u]), trans("v_exp_f32", w, f"-{w}", extra_rd=[w]), nop(0),
          valu("v_mul_f32", lsum[2 * x], lsum[2 * x], u), valu("v_mul_f32", lsum[2 * x + 1], lsum[2 * x + 1], w)]
    O = OX[x]
    for i in range(96):
        ff = f[(i // 4) % 2]
        if O.f == "a":
            tt = P[i % 4]
            o += [valu("v_accvgpr_read_b32", tt, O[i]), valu("v_mul_f32", tt, tt, ff),
                  valu("v_accvgpr_write_b32", O[i], tt)]
        else:
            o.append(valu("v_mul_f32", O[i], O[i], ff))
    o += [valu("v_fma_f32", S[i], S[i], sC, n[i // 8]) for i in range(16)]
    o += [trans("v_exp_f32", S[i], S[i]) for i in range(16)]
    o += [valu("v_cvt_pk_bf16_f32", P[i], S[2 * i], S[2 * i + 1]) for i in range(8)]
    o += [nop(1)] + sum_mfma(x, par)
    o += [nop(15), I(f"s_setpc_b64 {sRet}", "branch", rd=[sRet])]
    return o


def qk_mfma(tile, f, qb, fr):
    kh, ks = f // 6, f % 6
    n = (qb % 2) * 8 + kh * 4
    d = Sbuf(qb // 2, tile)[n: n + 4]
    return mfma(d, fr, Qreg(qb, ks), d if ks else 0)


def pv_mfma(t, dt, qb, fr, zero):
    o = Otile(qb, dt)
    p = Pbuf(qb // 2, t)[4 * (qb % 2): 4 * (qb % 2) + 4]
    return mfma(o, fr, p, 0 if zero else o)


def frag_read(g, t, f):
    if f < 12:
        return kread(g, f, t + 1)
    if f < 24:
        return vread(g, f, t)
    return kread(g + 1, f - 24, t + 2)


def ftag(g, f):
    return ("F", g, f) if f < 24 else ("F", g + 1, f - 24)


def stamp(idx, real=False):
    if not OPT["stamp"]:
        return []
    if OPT["stamp"] == 2 and idx not in (0, 1, 15, 16, 17, 18, 19, 56, 60, 61):
        return []
    op = "s_memrealtime" if real else "s_memtime"
    return [I(f"{op} {sStamp}", "salu", wr=[sStamp]), I("s_waitcnt lgkmcnt(0)", "salu"),
            valu("v_mov_b32", E[0], sStamp[0]),
            I(f"buffer_store_dword {E[0]}, off, {srdD}, {sH} offset:{idx * 4}", "vmem", rd=[E[0], srdD])]


def add_iter(u, b, t, site):
    g = b * 16 + t
    base = len(u.heads)
    tn = (t + 1) % 16
    lastuse = {}
    NR = OPT.get("nr", 3)
    seq = [(f, qb) for f in range(NR) for qb in (2, 3)] + [(f, qb) for f in range(NR) for qb in (0, 1)] + \
          [(f, qb) for f in range(NR, 12) for qb in range(4)]
    for f, qb in seq:
        m = qk_mfma(tn, f, qb, FR[f % RING])
        m.needl = [("F", g, f)] + ([("QB", b + 1, (qb - 2) * 6 + f % 6)] if tn == 0 and qb >= 2 else [])
        lastuse[f] = u.add_gap(m)
    for m in sum_mfma(1, t):
        u.add_gap(m)
    seq = [(f, qb) for f in range(NR) for qb in (0, 1)] + [(f, qb) for f in range(NR) for qb in (2, 3)] + \
          [(f, qb) for f in range(NR, 12) for qb in range(4)]
    for dt, qb in seq:
        m = pv_mfma(t, dt, qb, FR[(12 + dt) % RING], t == 0)
        m.needl = [("F", g, 12 + dt)]
        lastuse[12 + dt] = u.add_gap(m)
    for m in sum_mfma(0, tn):
        u.add_gap(m)
    wp = OPT["wper"]
    for f in range(24):
        k = lastuse[f]
        rd = frag_read(g, t, f + RING)
        u.pin[k] += rd
        if (f + 1) % wp == 0:
            kw = k + 2 if f in (11, 23) else (k if len(rd) == 1 else k - 1)
            u.pin[kw].append(waitl(*[ftag(g, f + 1 + i) for i in range(wp)]))
    for x, k in ((0, base), (1, base + P2)):
        c, br, lu = check(x, t, site)
        u.tail[k + OPT.get("cmpgap", 2)] += c
        kb = k + 2 * NR - 1
        if OPT.get("brhead"):
            u.pin[kb] = br + u.pin[kb]
        else:
            u.tail[kb] += br
        u.streams.append(Stream(lu, kb + 1, kb + 3, prio=0.5))
    tk, tv = (t + KD) % 16, (t + VD) % 16
    u.pin[base + OPT["kgaps"][0] - 2].append(setm0(m0K[KSLOT[tk]]))
    for c, k in enumerate(OPT["kgaps"]):
        u.pin[base + k].append(dma(srdK, sT[tk], c, ("K", g + KD)))
    u.pin[base + OPT["vgaps"][0] - 3].append(setm0(m0V[VSLOT[tv]]))
    for c, k in enumerate(OPT["vgaps"]):
        u.pin[base + k].append(dma(srdV, sT[tv], c, ("V", g + VD)))
    for x, key in ((0, "oa_rd"), (1, "ob_rd")):
        for idx, (tt, k) in enumerate(OPT[key]):
            if tt == t:
                u.pin[base + k].append(oread(obuf(x, idx), idx, ("OR", b, x, idx)))
    if t in (2, 3):
        st = Stream(ob_writes((0, 1)), base + 23, base + 97) if t == 2 else Stream(ob_writes((2, 3)), base + 0, base + 70)
        st.pace = OPT.get("pace", 1)
        u.streams.append(st)
    for half in range(2):
        n = 2 * t + half
        gaps = OPT["sgaps"][half]
        for x, key in ((0, "oa_slots"), (1, "ob_slots")):
            if n in OPT[key]:
                jj = OPT[key].index(n)
                for c, k in enumerate(gaps):
                    idx = jj * 3 + c
                    u.pin[base + k].append(ostore(obuf(x, idx), x, idx, [("OR", b, x, idx)]))
        for x, key in ((0, "qa_slots"), (1, "qb_slots")):
            if n in OPT[key]:
                jj = OPT[key].index(n)
                u.pin[base + gaps[0] - 3].append(setm0(sM[jj]))
                need = [("OR", b, 1, 11)] if x == 0 else [("QA", b + 1, 11)]
                for c, k in enumerate(gaps):
                    u.pin[base + k].append(qdma(x, jj, c, ("QD", b + 1, x), need))
    if t == OPT["qar_iter"]:
        u.pin[base + 0].append(waitv(("QD", b + 1, 0)))
        for n in range(12):
            u.pin[base + 1 + 4 * n].append(qread(STG[n * 4: n * 4 + 4], n, vS, ("QA", b + 1, n), [("QD", b + 1, 0)]))
    if t == 14:
        u.pin[base + P2].append(waitv(("QD", b + 1, 1)))
        for i, n in enumerate([0, 6, 1, 7, 2, 8, 3, 9, 4, 10, 5, 11]):
            u.pin[base + P2 + 1 + 4 * (i // 2) + (8 if i >= 2 else 0)].append(
                qread(Qreg(2 + n // 6, n % 6), n, vS, ("QB", b + 1, n), [("QD", b + 1, 1)]))
    u.pin[base + OPT["bar_gap"]] += [waitv(("K", g + 3), ("V", g + 1)), barrier()]
    XPOS[0] = 0
    sb = setw(softmax(1, t), latest=base + 46)
    sa = softmax(0, tn, late=base + 49)
    sa[0].earliest = base + (P2 + 2 * NR if tn == 0 else 30)
    u.streams.append(Stream(sb + sa, base + 0, base + 96, prio=0.05, look=OPT["look"]))
    if t == 1:
        sl = [salu("s_mov_b32", sQOcur, sQO),
              salu("s_add_u32", sBG, sBG, "32", scc_w=True),
              salu("s_mul_hi_u32", sKO, sBG, sMagic),
              salu("s_mul_i32", sKO, sKO, "196608"),
              salu("s_mul_i32", sQO, sBG, "98304"),
              I(f"s_cmp_lt_u32 {sTrip}, 2", "salu", rd=[sTrip], wr=["scc"]),
              salu("s_cselect_b32", sNrec, "196608", "0", scc_r=True),
              salu("s_cselect_b32", srdQ[2], "98304", "0", scc_r=True),
              salu("s_add_u32", srdQ[0], ptrQ[0], sQO, scc_w=True),
              salu("s_addc_u32", srdQ[1], ptrQ[1], "0", scc_w=True, scc_r=True)]
        u.streams.append(Stream(sl, base + 24, base + 80))
    if t == 15 - KD:
        sl = [salu("s_add_u32", srdK[0], ptrK[0], sKO, scc_w=True),
              salu("s_addc_u32", srdK[1], ptrK[1], "0", scc_w=True, scc_r=True),
              salu("s_mov_b32", srdK[2], sNrec)]
        u.streams.append(Stream(sl, base + OPT["kgaps"][-1] + 1, base + 90))
    if t == 15 - VD:
        sl = [salu("s_add_u32", srdV[0], ptrV[0], sKO, scc_w=True),
              salu("s_addc_u32", srdV[1], ptrV[1], "0", scc_w=True, scc_r=True),
              salu("s_mov_b32", srdV[2], sNrec)]
        u.streams.append(Stream(sl, base + OPT["vgaps"][-1] + 1, base + 90))
    return base


def qcopy(base):
    out = []
    for ks in range(6):
        for q in range(2):
            for i in range(4):
                out.append(valu("v_accvgpr_write_b32", Qreg(q, ks)[i], STG[(q * 6 + ks) * 4 + i],
                                earliest=base + 4 * (6 + ks) + q))
    return out


def set_osrd():
    return [salu("s_add_u32", srdO[0], ptrO[0], sQOcur, scc_w=True),
            salu("s_addc_u32", srdO[1], ptrO[1], "0", scc_w=True, scc_r=True),
            salu("s_mov_b32", srdO[2], "98304")]


def unit_mid(b, t):
    u = Unit(f"T{t}")
    if t == 1:
        u.pre.append(label("L_loop"))
    u.pre += stamp(t)
    base = add_iter(u, b, t, f"T{t}")
    if t == 14:
        u.streams.append(Stream(qcopy(base), base + 24, base + 99))
        u.post += [I(f"s_cmp_eq_u32 {sTrip}, 2", "salu", rd=[sTrip], wr=["scc"]),
                   I("s_cbranch_scc1 L_fin", "branch", rd=["scc"])]
    return u


def unit_x(b):
    u = Unit("X")
    u.pre += stamp(15)
    b15 = add_iter(u, b, 15, "T15")
    b0 = add_iter(u, b + 1, 0, "T0")
    u.streams.append(Stream(rinv_stream(0), b15 + 9, b15 + 40))
    u.streams.append(Stream(rinv_stream(1), b15 + P2 + 9, b15 + P2 + 15, prio=0.5))
    ep, wr = [], []
    for tt in range(6):
        O = OA[16 * tt: 16 * tt + 16]
        dl = b0 + P2 + (8 * tt if tt != 1 else 4) - 1
        m, c, w = epi_a(tt)
        r0, m0_, c0 = epi_b(tt, 0, O[8:16])
        r1, m1_, c1 = epi_b(tt, 1, O[8:16])
        setw(m, earliest=b15 + P2 + 8 * tt + 9)
        setw(r0, earliest=b15 + P2 + max(16, 8 * tt + 9))
        ep += setw(m + c + r0 + m0_ + c0 + r1 + m1_ + c1, latest=dl)
        wr += setw(w, latest=dl)
    u.streams.append(Stream(ep, b15 + P2 + 9, b0 + P2 + 39))
    u.streams.append(Stream(wr, b15 + P2 + 9, b0 + P2 + 39))
    u.streams.append(Stream(set_osrd(), b15 + 16, b15 + 44))
    sl = [salu("s_add_u32", sTrip, sTrip, "1", scc_w=True)]
    if OPT["stamp"]:
        sl.append(salu("s_add_u32", sH, sH, "64", scc_w=True))
    u.streams.append(Stream(sl, b0 + 4, b0 + 80))
    u.post.append(I("s_branch L_loop", "branch"))
    return u


def unit_pro():
    u = Unit("PRO")
    P = u.pre
    tid, lane, i16, G, t0, t1, t2 = v(0), X[0], X[1], X[2], X[3], E[0], E[1]
    P += [I("s_cmp_ge_u32 s2, 256", "salu", rd=["s2"], wr=["scc"]),
          I("s_cbranch_scc1 L_end", "branch", rd=["scc"]),
          I("s_load_dwordx4 s[4:7], s[0:1], 0", "salu", wr=[s(4, 4)]),
          I("s_load_dwordx4 s[8:11], s[0:1], 16", "salu", wr=[s(8, 4)])]
    if OPT["stamp"]:
        P += [I(f"s_load_dwordx2 {srdD[0:2]}, s[0:1], 40", "salu"), I(f"s_memrealtime {s(94, 2)}", "salu")]
    if OPT.get("dbg"):
        P += [I(f"s_load_dwordx2 {srdD[0:2]}, s[0:1], 32", "salu"), I(f"s_memrealtime {s(94, 2)}", "salu"),
              I(f"s_memtime {s(96, 2)}", "salu")]
    P += [valu("v_lshrrev_b32", t0, "6", tid), valu("v_and_b32", lane, "63", tid),
          I(f"v_readfirstlane_b32 {sW}, {t0}", "valu", rd=[t0], wr=[sW]),
          valu("v_lshlrev_b32", t1, "4", lane)]
    P += [salu("s_and_b32", sBG, "s2", "7", scc_w=True),
          salu("s_mul_i32", sBG, sBG, "96"),
          salu("s_lshr_b32", sH, "s2", "3", scc_w=True),
          salu("s_add_u32", sBG, sBG, sH, scc_w=True),
          salu("s_mov_b32", sMagic, "0x55555556"),
          salu("s_mul_hi_u32", sKO, sBG, sMagic),
          salu("s_mul_i32", sKO, sKO, "196608"),
          salu("s_mul_i32", sQO, sBG, "98304")]
    P += [salu("s_mov_b32", sQB, str(VBASE + 2 * TILE)),
          I(f"s_cmp_eq_u32 {sW}, 0", "salu", rd=[sW], wr=["scc"]),
          salu("s_cselect_b32", sQB, str(KBASE + 3 * TILE), sQB, scc_r=True),
          I(f"s_cmp_eq_u32 {sW}, 2", "salu", rd=[sW], wr=["scc"]),
          salu("s_cselect_b32", sQB, str(VBASE + 3 * TILE), sQB, scc_r=True),
          I(f"s_cmp_eq_u32 {sW}, 3", "salu", rd=[sW], wr=["scc"]),
          salu("s_cselect_b32", sQB, str(SPARE), sQB, scc_r=True),
          salu("s_mul_i32", sW, sW, "3072")]
    late = []
    for c in range(3):
        P += [valu("v_add_u32", t0, str(c * 1024), t1),
              valu("v_lshrrev_b32", t2, "7", t0),
              valu("v_mul_u32_u24", t2, "171", t2),
              valu("v_lshrrev_b32", vDO[c], "9", t2),
              valu("v_and_b32", vD[c], "6", vDO[c]),
              valu("v_lshlrev_b32", vD[c], "4", vD[c]),
              valu("v_xor_b32", vD[c], vD[c], t1),
              valu("v_add_u32", vD[c], sW, vD[c])]
        late += [valu("v_lshlrev_b32", vDO[c], "4", vDO[c]),
                 valu("v_xor_b32", vDO[c], vDO[c], t1),
                 valu("v_add_u32", vDO[c], sW, vDO[c])]
    P += [salu("s_lshl_b32", sStage, sW, "2", scc_w=True),
          salu("s_add_u32", sStage, sStage, str(STAGE), scc_w=True),
          salu("s_mul_i32", sH, sW, "7")]
    for jj in range(4):
        P += [salu("s_add_u32", sM[jj], sStage, str(jj * 3072), scc_w=True),
              salu("s_add_u32", sG[0][jj], sH, str(jj * 3072), scc_w=True),
              salu("s_add_u32", sG[1][jj], sH, str(jj * 3072 + TILE), scc_w=True)]
    P += [I("s_waitcnt lgkmcnt(0)", "salu")]

    def mksrd(srd, ptr, off, n):
        return [salu("s_add_u32", srd[0], ptr[0], off, scc_w=True),
                salu("s_addc_u32", srd[1], ptr[1], "0", scc_w=True, scc_r=True),
                salu("s_mov_b32", srd[2], str(n)), salu("s_mov_b32", srd[3], "0x00020000")]

    def ktile(t):
        return [setm0(m0K[KSLOT[t]]), nop(0)] + [dma(srdK, sT[t], c, ("K", t)) for c in range(3)]

    def vtile(t):
        return [setm0(m0V[VSLOT[t]]), nop(0)] + [dma(srdV, sT[t], c, ("V", t)) for c in range(3)]

    P += [setm0(sW)] + mksrd(srdK, ptrK, sKO, 196608) + [dma(srdK, "0", c, ("K", 0)) for c in range(3)]
    P += mksrd(srdQ, ptrQ, sQO, 98304)
    for jj in range(4):
        P += [setm0(sM[jj]), nop(0)] + [qdma(0, jj, c, ("QD", 0, 0)) for c in range(3)]
    for jj in range(4):
        P += [salu("s_add_u32", "m0", sQB, str(jj * 3072), scc_w=True), nop(0)] + [qdma(1, jj, c, ("QD", 0, 1)) for c in range(3)]
    P += mksrd(srdV, ptrV, sKO, 196608)
    for i in range(4):
        P.append(salu("s_add_u32", m0K[i], sW, str(KBASE + i * TILE), scc_w=True))
        P.append(salu("s_add_u32", m0V[i], sW, str(VBASE + i * TILE), scc_w=True))
    for t in range(1, 16):
        P.append(salu("s_mov_b32", sT[t], str(t * TILE)))
    warm = []
    if OPT["codewarm"]:
        P += [I(f"s_getpc_b64 {sPC}", "salu", wr=[sPC]),
              label("L_pc"),
              I(f"s_sub_u32 {sPC[0]}, {sPC[0]}, L_pc-{KNAME}", "salu", rd=[sPC], wr=[sPC, "scc"]),
              I(f"s_subb_u32 {sPC[1]}, {sPC[1]}, 0", "salu", rd=[sPC, "scc"], wr=[sPC, "scc"]),
              salu("s_lshr_b32", sH, "s2", "3", scc_w=True),
              salu("s_lshl_b32", sH, sH, "11", scc_w=True),
              valu("v_lshlrev_b32", E[2], "3", tid),
              valu("v_add_u32", E[2], sH, E[2]),
              I(f"v_min_u32 {E[2]}, L_code_end-{KNAME}-8, {E[2]}", "valu", rd=[E[2]], wr=[E[2]])]
        warm = [I(f"global_load_dwordx2 {JUNK[0:2]}, {E[2]}, {sPC}", "vmem", rd=[E[2], sPC], wr=[JUNK[0:2]])]
    P += [salu("s_mov_b32", srdO[0], ptrO[0]), salu("s_mov_b32", srdO[1], ptrO[1]),
          salu("s_mov_b32", srdO[2], "0"), salu("s_mov_b32", srdO[3], "0x00020000"),
          salu("s_mov_b32", sTrip, "0"),
          salu("s_mov_b32", sC, hex(f2u(SCALE_C))), salu("s_mov_b32", sNegC, hex(f2u(-SCALE_C))),
          salu("s_mov_b32", sThr, hex(f2u(OPT["thr"])))]
    P += late + [valu("v_add_u32", vLin, sStage, t1)]
    P += [valu("v_and_b32", i16, "15", lane), valu("v_lshrrev_b32", G, "4", lane),
          valu("v_mul_u32_u24", t0, "384", i16)]
    P += [valu("v_and_b32", t1, "6", i16), valu("v_xor_b32", t1, t1, G), valu("v_lshl_add_u32", vK[0], t1, "4", t0),
          valu("v_xor_b32", vK[1], "64", vK[0])]
    for e in range(2):
        P += [valu("v_add_u32", vS[e], sStage, vK[e]), valu("v_add_u32", STG[e], sQB, vK[e])]
    P += [valu("v_lshrrev_b32", t1, "1", G), valu("v_and_b32", t2, "7", i16), valu("v_xor_b32", t1, t1, t2),
          valu("v_lshl_add_u32", vOW, t1, "4", t0), valu("v_and_b32", t1, "1", G),
          valu("v_lshl_add_u32", vOW, t1, "3", vOW), valu("v_add_u32", vOW, sStage, vOW)]
    P += [valu("v_lshrrev_b32", t1, "2", lane), valu("v_mul_u32_u24", t0, "384", t1),
          valu("v_and_b32", t1, "6", t1), valu("v_lshl_add_u32", t0, t1, "4", t0),
          valu("v_and_b32", t1, "3", lane), valu("v_lshl_add_u32", t0, t1, "3", t0),
          valu("v_add_u32", vV[0], str(VBASE), t0)]
    for e in range(1, 4):
        P.append(valu("v_xor_b32", vV[e], str(e * 32), vV[0]))
    P += [salu("s_mov_b32", sTmp, "0x3f803f80"), valu("v_mov_b32", t0, sTmp)]
    for j in range(2):
        P += [I(f"v_cmp_eq_u32 vcc, {j}, {i16}", "valu", rd=[i16], wr=["vcc"]),
              I(f"v_cmp_eq_u32 {sRet}, 2, {i16}", "valu", rd=[i16], wr=[sRet]), nop(0),
              I(f"s_or_b64 vcc, vcc, {sRet}", "salu", rd=["vcc", sRet], wr=["vcc", "scc"]), nop(1),
              I(f"v_cndmask_b32 {t1}, 0, {t0}, vcc", "valu", rd=[t0, "vcc"], wr=[t1])]
        P += [valu("v_accvgpr_write_b32", ONES[j][i], t1) for i in range(4)]
    if OPT["stamp"]:
        P += [salu("s_mov_b32", srdD[2], "0x1000000"), salu("s_mov_b32", srdD[3], "0x00020000"),
              salu("s_mul_hi_u32", sTmp, sW, sMagic), salu("s_lshr_b32", sTmp, sTmp, "2", scc_w=True),
              salu("s_lshl_b32", sH, "s2", "10", scc_w=True), salu("s_add_u32", sH, sH, sTmp, scc_w=True),
              valu("v_mov_b32", E[0], s(94)),
              I(f"buffer_store_dword {E[0]}, off, {srdD}, {sH} offset:{57 * 4}", "vmem", rd=[E[0], srdD])]
    P += stamp(60) + stamp(56, True)
    P += [waitv(("QD", 0, 0)), barrier()]
    for f in range(RING):
        P += kread(-2, f, 0)
    qorder = [0, 6, 1, 7, 2, 8, 3, 9, 4, 10, 5, 11]
    for n in qorder:
        P.append(qread(Qreg(n // 6, n % 6), n, vS, ("QA", 0, n)))
    P += [waitl(("QA", 0, 7))]
    P += stamp(61)
    if OPT.get("dbg"):
        P += [I(f"s_memrealtime {s(98, 2)}", "salu"), I("s_waitcnt lgkmcnt(0)", "salu")]
    pend = ktile(1) + vtile(0) + ktile(2) + warm + vtile(1)
    for n in range(24):
        x, f = n // 12, n % 12
        for q in range(2):
            m = qk_mfma(0, f, 2 * x + q, FR[n % RING])
            m.needl = [("F", -2, n), ("QA" if x == 0 else "QB", 0, q * 6 + f % 6)]
            k = u.add_gap(m)
            if x == 0 and pend:
                it = pend.pop(0)
                if it.kind != "nop":
                    u.pin[k].append(it)
        if n + RING < 24:
            u.pin[k] += kread(-2, n + RING, 0)
        else:
            u.pin[k] += kread(0, n + RING - 24, 1)
        if f == 1:
            u.pin[k].append(waitl(("QA" if x == 0 else "QB", 0, 11)))
        if RING - 1 <= n < 23 and n != 11:
            u.pin[k].append(waitl(("F", -2, n + 1)))
        if n == 11:
            assert not pend
            k = u.add_gap(None)
            XPOS[0] = 0
            u.pin[k] += softmax(0, 0) + [waitv(("QD", 0, 1))]
            for nn in qorder:
                u.pin[k].append(qread(Qreg(2 + nn // 6, nn % 6), nn, [STG[0], STG[1]], ("QB", 0, nn)))
            u.pin[k] += sum_mfma(0, 0) + [waitl(("QB", 0, 7))]
        if n == 14:
            u.pin[k] += [waitv(("K", 1), ("V", 0), ("K", 2)), barrier()]
        if n == 15:
            u.pin[k] += ktile(3)
        if n == 16:
            u.pin[k] += vtile(2)
    u.pin[k] += [barrier(), waitl(*[("F", 0, i) for i in range(OPT["wper"])])]
    u.pin[k] += stamp(0)
    u.win0 = len(u.heads)
    add_iter(u, 0, 0, "T0p")
    return u


def unit_fin(b):
    u = Unit("FIN")
    t = 15
    u.pre.append(label("L_fin"))
    u.pre += stamp(15)
    G = 1000
    for n in range(RING):
        u.pre += vread(G, n, t)
    c, br, lu = check(0, 15, "T15f")
    u.pre += c + br + lu + rinv_stream(0) + set_osrd() + [waitl(("F", G, 0))]
    base = len(u.heads)
    for n in range(24):
        x, dt = n // 12, n % 12
        for q in range(2):
            m = pv_mfma(t, dt, 2 * x + q, FR[n % RING], False)
            m.needl = [("F", G, n)]
            k = u.add_gap(m)
        if n < 23:
            u.pin[k - 1].append(waitl(("F", G, n + 1)))
        if n + RING < 24:
            u.pin[k] += vread(G, n + RING, t)
        if n == 9:
            for m in sum_mfma(1, 15):
                u.add_gap(m)
        if n == 11:
            c, br, lu = check(1, 15, "T15f")
            u.tail[k] += c + br + lu
    last = u.add_gap(None)
    XPOS[0] = 0
    u.streams.append(Stream(softmax(1, 15), base, base + 18, look=OPT["look"]))
    u.streams.append(Stream(rinv_stream(1), base + 26, base + 34))
    ep, wr = [], []
    for tt in range(6):
        m, c, w = epi_a(tt)
        setw(m, earliest=base + 4 * tt + 8)
        ep += m + c
        wr += w
    u.streams.append(Stream(ep, base + 19, base + 46))
    u.streams.append(Stream(wr, base + 19, base + 49))
    u.window = 19
    po = u.pin[last]
    Z = [Qc[4 * i: 4 * i + 4] for i in range(24)]
    for n in range(12):
        po.append(oread(Z[n], n, ("OR", b + 1, 0, n)))
    for tt in range(6):
        r0, m0_, c0 = epi_b(tt, 0, SA[0:8])
        r1, m1_, c1 = epi_b(tt, 1, SA[8:16])
        st = [ostore(Z[n], 0, n, [("OR", b + 1, 0, n)], True) for n in (2 * tt, 2 * tt + 1)]
        po += r0 + r1 + ([waitl(("OR", b + 1, 0, 11))] if tt == 0 else []) + st[:1] + m0_ + m1_ + c0 + st[1:] + c1
        for dt in (2 * tt, 2 * tt + 1):
            ad, pre = oaddr(dt % 4)
            po += pre + [owrite(STG[(dt * 2 + q) * 2: (dt * 2 + q) * 2 + 2], ad, q, dt) for q in range(2)]
    for n in range(12):
        po.append(oread(Z[12 + n], n, ("OR", b + 1, 1, n)))
    for n in range(12):
        po.append(waitl(("OR", b + 1, 1, n)))
        po.append(ostore(Z[12 + n], 1, n, [("OR", b + 1, 1, n)], True))
    u.post += stamp(16) + stamp(17, True)
    if OPT["stamp"]:
        u.post += [I("s_waitcnt vmcnt(0)", "salu")] + stamp(18) + stamp(19, True)
    if OPT.get("dbg"):
        u.post += [I("s_cmp_ge_u32 s2, 8", "salu"), I("s_cbranch_scc1 L_end", "branch"),
                   I(f"s_cmp_lg_u32 {sW}, 0", "salu"), I("s_cbranch_scc1 L_end", "branch"),
                   I("s_waitcnt vmcnt(0)", "salu"), I(f"s_memrealtime {sStamp}", "salu"), I(f"s_memtime {sPC}", "salu"),
                   I("s_waitcnt lgkmcnt(0)", "salu"),
                   salu("s_mov_b32", srdD[2], "256"), salu("s_mov_b32", srdD[3], "0x00020000"),
                   I("s_mov_b64 exec, 1", "salu"),
                   salu("s_sub_u32", sTmp, sStamp[0], s(94)), salu("s_sub_u32", sH, s(98), s(94)),
                   salu("s_mul_i32", sH, sH, "100000"), salu("s_add_u32", sTmp, sTmp, sH),
                   valu("v_mov_b32", v(34), sTmp),
                   salu("s_sub_u32", sTmp, sPC[0], s(96)), valu("v_mov_b32", v(35), sTmp),
                   salu("s_lshl_b32", sTmp, "s2", "3"),
                   I(f"buffer_store_dwordx2 {v(34, 2)}, off, {srdD}, {sTmp}", "vmem", rd=[srdD])]
    u.post += [label("L_end"), I("s_endpgm", "branch")]
    return u


def build(extra):
    cache = {}

    def get(name, fn, first):
        u = fn()
        ins = u.schedule(budget=8, window=50, pk_at=20, verbose=first and VERB)
        out = []
        for idx, i in enumerate(ins):
            n = extra.get((name, idx), 0)
            if n:
                out.append(((name, idx, "nop"), nop(n - 1)))
            out.append(((name, idx), i))
        if first:
            cache[name] = out
        return out

    trace = list(get("PRO", unit_pro, True))
    for b in range(3):
        for t in range(1, 15):
            trace += get(f"T{t}", lambda: unit_mid(b, t), b == 0)
        if b < 2:
            trace += get("X", lambda: unit_x(b), b == 0)
    trace += get("FIN", lambda: unit_fin(2), True)
    order = ["PRO"] + [f"T{t}" for t in range(1, 15)] + ["X", "FIN"]
    return [(n, cache[n]) for n in order], trace


VERB = False
extra = {}
for it in range(60):
    static, trace = build(extra)
    hz = hazards([i for _, i in trace])
    if not hz:
        break
    upd = {}
    lastj = -100
    for j, need, why in hz:
        key = trace[j][0]
        if j != lastj and j - lastj < 24:
            continue
        lastj = j
        upd[key] = max(upd.get(key, 0), need)
        if OPT.get("showhz"):
            print("; hazard:", key, need, why, file=sys.stderr)
    for k, n in upd.items():
        extra[k] = extra.get(k, 0) + n
else:
    raise SystemExit("hazards did not converge")
if OPT.get("verb"):
    VERB = True
    _so = sys.stdout
    sys.stdout = sys.stderr
    build(extra)
    sys.stdout = _so
    print("; nops inserted:", extra, file=sys.stderr)
W = resolve_waits(trace)
_bad = check_coverage(trace, W)
assert not _bad, _bad[:10]
if OPT.get("verb") and "_mismatch" in W:
    print("; wait mismatches:", W["_mismatch"], file=sys.stderr)

out = []
A = out.append
A(open(os.path.join(os.path.dirname(os.path.abspath(__file__)), "header.txt")).read().rstrip())
A(f"; @launch grid=(256,1,1) block=(256,1,1) lds={LDS_BYTES}")
A('.amdgcn_target "amdgcn-amd-amdhsa--gfx950"')
A(".text")
A(f".globl {KNAME}")
A(".p2align 8")
A(f".type {KNAME},@function")
A(f"{KNAME}:")
for name, ins in static:
    A(f"; ---- {name} ----")
    for key, i in ins:
        t = i.text
        if i.kind == "wait":
            l, vv = W[key]
            t = "s_waitcnt " + (f"lgkmcnt({l})" if l is not None else f"vmcnt({vv})")
        abl = OPT.get("abl", "")
        if abl and name not in ("PRO",):
            tx = i.text
            if "c" in abl and "s_cbranch_vccnz" in tx:
                t = "s_nop 0"
            if "b" in abl and i.kind == "barrier":
                t = "s_nop 0"
            if "k" in abl and i.kind == "vmem" and (str(srdK) in tx or str(srdV) in tx):
                t = "s_nop 1"
            if "w" in abl and i.kind == "wait" and i.waitl is not None:
                t = "s_nop 0"
            if "W" in abl and i.kind == "wait" and i.waitv is not None:
                t = "s_nop 0"
            if "s" in abl and i.kind == "vmem" and (str(srdQ) in tx or str(srdO) in tx):
                t = "s_nop 1"
            if "z" in abl and "ds_write" in tx:
                t = "s_nop 1"
        if OPT.get("e64") and re.match(r"v_(exp_f32|add_f32|mul_f32|mov_b32|xor_b32|max_f32|rcp_f32) ", t) and "96" not in t.split(",")[1]:
            t = t.replace(" ", "_e64 ", 1)
        A(t if i.kind == "label" else "    " + t)
for name, x, par in TRAMPS:
    A(f"L_tr_{name}:")
    A(f"    s_call_b64 {sRet}, L_rare_{'AB'[x]}{par}")
    A(f"    s_branch L_ret_{name}")
for x in range(2):
    for par in range(2):
        r = rare(x, par)
        hz = hazards(r)
        assert not hz, hz
        for i in r:
            A(i.text if i.kind == "label" else "    " + i.text)
A("L_code_end:")
A("    s_endpgm")
A(f""".section .rodata,"a"
.p2align 6
.amdhsa_kernel {KNAME}
  .amdhsa_next_free_vgpr 512
  .amdhsa_next_free_sgpr 102
  .amdhsa_accum_offset 256
  .amdhsa_group_segment_fixed_size 0
  .amdhsa_kernarg_size 48
  .amdhsa_user_sgpr_count 2
  .amdhsa_user_sgpr_kernarg_segment_ptr 1
  .amdhsa_system_sgpr_workgroup_id_x 1
  .amdhsa_float_denorm_mode_32 3
.end_amdhsa_kernel""")
print("\n".join(out))
```

```python
import re


def rl(f, lo, n=1):
    return [f"{f}{lo + i}" for i in range(n)]


class Reg:
    def __init__(self, f, lo, n=1):
        self.f, self.lo, self.n = f, lo, n

    def __getitem__(self, i):
        if isinstance(i, slice):
            a = i.start or 0
            b = i.stop if i.stop is not None else self.n
            assert 0 <= a < b <= self.n, (a, b, self.n)
            return Reg(self.f, self.lo + a, b - a)
        assert 0 <= i < self.n, (i, self.n)
        return Reg(self.f, self.lo + i, 1)

    def __str__(self):
        if self.n == 1:
            return f"{self.f}{self.lo}"
        return f"{self.f}[{self.lo}:{self.lo + self.n - 1}]"

    def names(self):
        return rl(self.f, self.lo, self.n)


def names(*xs):
    out = []
    for x in xs:
        if isinstance(x, Reg):
            out += x.names()
        elif isinstance(x, str):
            if re.fullmatch(r"[vas]\d+|vcc|scc|m0|exec", x):
                out.append(x)
        elif isinstance(x, (list, tuple)):
            out += names(*x)
    return out


COST = dict(mfma=8, valu=4, trans=8, ds=4, vmem=12, salu=4, wait=4, nop=4, branch=4, barrier=8, label=0)


class I:
    def __init__(self, text, kind, rd=(), wr=(), tag=None, waitl=None, waitv=None, cost=None,
                 srcc=None, ab=None, earliest=None, latest=None, states=1, flags=(), needl=None, needv=None):
        self.text, self.kind = text, kind
        self.rd, self.wr = names(rd), names(wr)
        self.tag, self.waitl, self.waitv = tag, waitl, waitv
        self.cost = COST[kind] if cost is None else cost
        self.srcc = names(srcc) if srcc is not None else []
        self.ab = names(ab) if ab is not None else []
        self.earliest, self.latest = earliest, latest
        self.states = 0 if kind == "label" else states
        self.flags = set(flags)
        self.needl, self.needv = needl, needv

    def __repr__(self):
        return f"<{self.text}>"


def mfma(d, a, b, c):
    cs = str(c) if isinstance(c, Reg) else "0"
    op = "v_mfma_f32_32x32x16_bf16" if d.n == 16 else "v_mfma_f32_16x16x32_bf16"
    m = I(f"{op} {d}, {a}, {b}, {cs}", "mfma", rd=[a, b] + ([c] if isinstance(c, Reg) else []),
          wr=[d], srcc=[c] if isinstance(c, Reg) else [], ab=[a, b])
    m.passes = 8 if d.n == 16 else 4
    return m


def valu(op, d, *src, kind="valu", extra_rd=(), extra_wr=(), **kw):
    ops = ", ".join(str(x) for x in (d,) + src)
    rd = [re.sub(r"^-", "", s) if isinstance(s, str) else s for s in src]
    return I(f"{op} {ops}", kind, rd=list(rd) + list(extra_rd), wr=[d] + list(extra_wr), **kw)


def trans(op, d, s, **kw):
    return valu(op, d, s, kind="trans", **kw)


def salu(op, d, *src, scc_w=False, scc_r=False, **kw):
    ops = ", ".join(str(x) for x in (d,) + src)
    return I(f"{op} {ops}", "salu", rd=list(src) + (["scc"] if scc_r else []), wr=[d] + (["scc"] if scc_w else []), **kw)


def nop(n=0):
    return I(f"s_nop {n}", "nop", states=n + 1, cost=4 * (n + 1))


def label(name):
    return I(f"{name}:", "label")


def waitl(*tags):
    return I("s_waitcnt lgkmcnt(?)", "wait", waitl=list(tags))


def waitv(*tags):
    return I("s_waitcnt vmcnt(?)", "wait", waitv=list(tags))


def barrier():
    return I("s_barrier", "barrier")


class Stream:
    def __init__(self, items, start, end, prio=0, look=1):
        self.items, self.start, self.end, self.prio, self.look = list(items), start, end, prio, look
        self.total = sum(i.cost for i in self.items)
        self.done = 0

    def cands(self, k, emitted):
        if k < self.start:
            return []
        out = []
        rd, wr = set(), set()
        for it in self.items[:self.look]:
            ird, iwr = set(it.rd), set(it.wr)
            ok = not (ird & wr or iwr & wr or iwr & rd)
            if it.earliest is not None and k < it.earliest:
                break
            if getattr(it, "after", None) is not None and (
                    id(it.after) not in emitted or k < min(self.end, emitted[id(it.after)] + getattr(it, "delay", 0))):
                ok = False
            if it.kind not in ("valu", "trans") or it.flags:
                if it is self.items[0] and ok:
                    out.append(it)
                break
            if ok:
                out.append(it)
            rd |= ird
            wr |= iwr
        return out


class Unit:
    def __init__(self, name):
        self.name = name
        self.pre = []
        self.heads = []
        self.pin = []
        self.tail = []
        self.streams = []
        self.post = []
        self.win0 = 0
        self.fixed_budget = False

    def add_gap(self, m):
        self.heads.append(m)
        self.pin.append([])
        self.tail.append([])
        return len(self.heads) - 1

    def schedule(self, budget=24, window=24, pk_at=36, verbose=False):
        n = len(self.heads)
        window = getattr(self, 'window', window)
        fixed = [sum(i.cost for i in self.pin[k]) + sum(i.cost for i in self.tail[k]) for k in range(n)]
        target = [float(budget)] * n
        demand = [0.0] * n
        for s in self.streams:
            ln = s.end - s.start + 1
            for k in range(s.start, s.end + 1):
                demand[k] += s.total / ln
        wins = getattr(self, "wins", None) or list(range(self.win0, n, window))
        for w0, w1 in zip(wins, wins[1:] + [n]):
            ks = [k for k in range(w0, w1) if demand[k] > 0]
            need = sum(demand[k] for k in ks)
            t = float(budget)
            while ks and sum(max(0.0, t - fixed[k]) for k in ks) < need * (1.04 if t == budget else 1.0):
                t += 0.25
            for k in range(w0, w1):
                target[k] = t
        free = [max(0.0, target[k] - fixed[k]) for k in range(n)]
        cumfree = [0.0]
        for f in free:
            cumfree.append(cumfree[-1] + f)
        out = list(self.pre)
        emitted = {id(i): -1 for i in out}
        used = []
        carry = 0.0
        for k in range(n):
            if self.heads[k] is not None:
                out.append(self.heads[k])
            out += self.pin[k]
            over = target[k] > budget
            rem = free[k] + (carry if over else 0.0)
            tailc = sum(i.cost for i in self.tail[k])
            u = fixed[k] - tailc
            haspk = False
            nvalu = sum(1 for i in self.pin[k] if i.kind in ("valu", "trans"))
            while True:
                best, bestit, bestscore = None, None, None
                room = budget - u - tailc
                allc = [(s, s.cands(k, emitted)) for s in self.streams if s.items]
                for s, cl in allc:
                    if not cl:
                        continue
                    dl = min([x.latest for x in s.items if x.latest is not None] + [s.end])
                    f = dl <= k
                    cap_tot = (cumfree[s.end + 1] - cumfree[s.start]) or 1
                    cap_el = cumfree[min(k, s.end) + 1] - cumfree[s.start]
                    lag = cap_el / cap_tot - s.done / s.total
                    for ci, it in enumerate(cl):
                        score = lag + s.prio - 0.001 * ci
                        last = out[-1] if out else None
                        if last is not None and last.kind == "trans" and it.kind == "valu" and set(last.wr) & set(it.rd):
                            score -= 50
                        if "head" in it.flags and not f:
                            if nvalu or u > getattr(s, "headmax", budget / 3) or (lag < 0 and getattr(s, "pace", False)):
                                continue
                            score += 300
                        elif ("pk" in it.flags and haspk) or (last is not None and "pk" in last.flags):
                            score += 200 if "pk" in it.flags else 150
                        elif f:
                            score += 100
                        else:
                            if over:
                                if room > 0:
                                    if it.cost <= room:
                                        score += 10 + (2 if it.cost == room else 0)
                                    elif rem < it.cost / 2.0:
                                        score -= 5
                                    if lag <= -0.06:
                                        score -= 20 if it.cost <= room else 1000
                                else:
                                    if rem < it.cost / 2.0 + 1 or lag <= -0.02:
                                        continue
                            else:
                                if (it.cost > rem and not ("pk" in it.flags and rem > 0)) or lag <= -0.02:
                                    continue
                                if it.cost == room:
                                    score += 0.02
                            if score < -500:
                                continue
                        if best is None or score > bestscore:
                            best, bestit, bestscore = s, it, score
                if best is None:
                    break
                it = bestit
                if "pk" in it.flags and self.heads[k] is not None and u < pk_at:
                    alt = [(s, c) for s, cl in allc for c in cl[:1] if s is not best and not (c.flags & {"pk", "head"})]
                    if alt:
                        best, it = min(alt, key=lambda sc: sc[0].done / sc[0].total - (k - sc[0].start) / (sc[0].end - sc[0].start + 1))
                    else:
                        rem -= pk_at - u
                        u = pk_at
                if "pk" in it.flags:
                    haspk = True
                if it.kind in ("valu", "trans"):
                    nvalu += 1
                best.items.remove(it)
                best.done += it.cost
                rem -= it.cost
                u += it.cost
                out.append(it)
                emitted[id(it)] = k
            carry = min(rem, budget) if over else 0.0
            u += tailc
            out += self.tail[k]
            used.append(u)
        for s in self.streams:
            assert not s.items, (self.name, "stream not drained", s.items[0])
        out += self.post
        self.used = used
        if verbose:
            est = sum(max(budget + 8, 8 + u) if self.heads[k] is not None else u for k, u in enumerate(used))
        return out


def resolve_waits(trace):
    res = {}
    ds_idx, vm_idx = {}, {}
    nds = nvm = 0
    for key, ins in trace:
        if ins.kind == "ds":
            nds += 1
            if ins.tag is not None:
                ds_idx[ins.tag] = nds
        elif ins.kind == "vmem":
            nvm += 1
            if ins.tag is not None:
                vm_idx[ins.tag] = nvm
        elif ins.kind == "wait":
            l = v = None
            if ins.waitl is not None:
                need = max(ds_idx[t] for t in ins.waitl)
                l = min(15, nds - need)
            if ins.waitv is not None:
                need = max(vm_idx[t] for t in ins.waitv)
                v = min(63, nvm - need)
            if key in res:
                pl, pv = res[key]
                if (pl, pv) != (l, v):
                    res.setdefault("_mismatch", []).append((key, (pl, pv), (l, v)))
                l = None if l is None else min(l, pl)
                v = None if v is None else min(v, pv)
            res[key] = (l, v)
    return res


def is_valu(i):
    return i.kind in ("valu", "trans")


def hazards(seq):
    out = []
    n = len(seq)
    for j in range(n):
        c = seq[j]
        if c.kind in ("label", "nop", "wait", "barrier"):
            continue
        crd, cwr = set(c.rd), set(c.wr)
        dist = 0
        i = j - 1
        while i >= 0 and dist < 20:
            p = seq[i]
            pw = set(p.wr)
            need = 0
            why = ""
            if is_valu(p):
                if c.kind == "mfma" and pw & crd:
                    need, why = 2, "valu->mfma"
                if "pk" in p.flags and c.kind == "mfma":
                    need, why = max(need, 1), "pk->mfma"
                if p.kind == "trans" and c.kind == "valu" and pw & crd:
                    need, why = max(need, 1), "trans->valu"
                if "permlane" in c.text and pw & (crd | cwr):
                    need, why = max(need, 2), "valu->permlane"
                if ("readfirstlane" in c.text or "readlane" in c.text) and pw & crd:
                    need, why = max(need, 1), "valu->readlane"
                sw = {x for x in pw if x[0] == "s" or x == "vcc"}
                if sw & crd:
                    if is_valu(c):
                        need, why = max(need, 2), "valu sgpr->valu"
                    elif c.kind == "vmem":
                        need, why = max(need, 5), "valu sgpr->vmem"
            elif p.kind == "mfma":
                if c.kind == "mfma":
                    if pw & set(c.ab):
                        need, why = p.passes + 4, "mfma D->AB"
                    elif pw & set(c.srcc) and set(c.srcc) != pw:
                        need, why = p.passes + 2, "mfma D->C partial"
                    elif pw & cwr and not (set(c.srcc) == pw):
                        need = 0
                elif is_valu(c) or c.kind in ("ds", "vmem"):
                    if pw & (crd | cwr):
                        need, why = p.passes + 4, "mfma D->other"
                    if is_valu(c) and set(p.srcc) & cwr:
                        need, why = max(need, p.passes - 1), "mfma C WAR"
            elif p.kind == "salu":
                if "m0" in pw and c.kind == "vmem" and "m0" in crd:
                    need, why = 1, "m0->dma"
            elif p.kind == "vmem" and "store" in p.text:
                if set(p.flags) & {"wide"} and (set(p.rd) & cwr):
                    need, why = 2, "store data WAR"
            if need > dist:
                out.append((j, need - dist, why + f" [{p.text}] -> [{c.text}]"))
            dist += p.states
            i -= 1
    return out


def check_coverage(trace, W):
    ds_idx, vm_idx = {}, {}
    nds = nvm = 0
    dsdone = vmdone = 0
    bad = []
    for key, ins in trace:
        for t in (ins.needl or []):
            if t in ds_idx and ds_idx[t] > dsdone:
                bad.append((key, ins.text, "lgkm", t))
            if t not in ds_idx and not (isinstance(t, tuple) and t[1] < 0):
                bad.append((key, ins.text, "lgkm-missing", t))
        for t in (ins.needv or []):
            if t in vm_idx and vm_idx[t] > vmdone:
                bad.append((key, ins.text, "vm", t))
        if ins.kind == "ds":
            nds += 1
            if ins.tag is not None:
                ds_idx[ins.tag] = nds
        elif ins.kind == "vmem":
            nvm += 1
            if ins.tag is not None:
                vm_idx[ins.tag] = nvm
        elif ins.kind == "wait":
            l, v = W[key]
            if l is not None:
                dsdone = max(dsdone, nds - l)
            if v is not None:
                vmdone = max(vmdone, nvm - v)
        elif ins.text.startswith("s_waitcnt lgkmcnt(0)"):
            dsdone = nds
    return bad
```

```python
import sys, struct, math, os, re
sys.path.insert(0, os.path.dirname(os.path.abspath(__file__)))
import asmlib
from asmlib import *

asmlib.COST.update(vmem=8, barrier=8)
KNAME = "standalone__gqa_softmax__near_ridge_kernel"
OPT = dict(
    sgaps=[[20, 28, 36], [74, 82, 90]],
    oa_slots=[3, 4, 6, 8], ob_slots=[11, 13, 15, 18], qa_slots=[10, 12, 14, 16], qb_slots=[21, 22, 23, 24],
    oa_rd=[(1, g) for g in (1, 17, 25, 33, 41, 45, 59, 67)] + [(2, g) for g in (1, 9, 17, 22)],
    ob_rd=[(3, g) for g in (71, 75, 79, 83, 87, 91)] + [(4, g) for g in (1, 9, 17, 25, 33, 41)],
    qar_iter=10,
    kgaps=[4, 8, 12], vgaps=[48, 58, 66],
    bar_gap=98,
    wper=3, look=5,
    thr=4096.0,
    stamp=0,
    codewarm=1,
    pk=1,
    kv_nt=" nt", q_nt=" nt", o_nt=" sc1",
)
for a in sys.argv[1:]:
    if "=" in a:
        k, v = a.split("=", 1)
        OPT[k] = eval(v)

TILE = 12288
KSLOT = [0, 1, 2, 3] * 4
VSLOT = [0, 1, 2, 3] * 4
KBASE, VBASE, STAGE, SPARE = 0, 4 * TILE, 8 * TILE, 12 * TILE
LDS_BYTES = 13 * TILE
KD, VD = 4, 3
RING = 6
P2 = 50
NG = 100


def f2u(x):
    return struct.unpack("<I", struct.pack("<f", x))[0]


v = lambda lo, n=1: Reg("v", lo, n)
a = lambda lo, n=1: Reg("a", lo, n)
s = lambda lo, n=1: Reg("s", lo, n)

vLin = v(1)
vK = [v(2), v(3)]
vV = [v(4 + i) for i in range(4)]
vD = [v(8 + i) for i in range(3)]
vDO = [v(11 + i) for i in range(3)]
vS = [v(14), v(15)]
rinv = [v(16 + 2 * i) for i in range(4)]
rinv2 = [v(16 + 2 * i, 2) for i in range(4)]
lsum = [v(17 + 2 * i) for i in range(4)]
negmc = [v(24 + i) for i in range(4)]
TS = v(28, 4)
vOW = v(32)
E = [v(33), v(34), v(35)]
X = [v(36), v(37), v(38), v(39), v(0)]
PA = [v(40, 8), v(48, 8)]
PB = v(56, 8)
SA = v(64, 16)
SB = [v(80, 16), v(96, 16)]
OA = v(112, 96)
STG = v(208, 48)
OB = a(0, 96)
Qc = a(96, 96)
FR = [a(192 + 4 * i, 4) for i in range(RING)]
SQ = [a(216 + 4 * i, 4) for i in range(8)]
JUNK = SQ[7]
ONES = [a(248, 4), a(252, 4)]
OX = [OA, OB]

ptrQ, ptrK, ptrV, ptrO = s(4, 2), s(6, 2), s(8, 2), s(10, 2)
srdK, srdV, srdQ, srdO = s(12, 4), s(16, 4), s(20, 4), s(24, 4)
sBG, sH, sKO, sQO, sQOcur, sNrec, sTrip, sC, sNegC, sThr, sMagic, sW = [s(28 + i) for i in range(12)]
sRet = s(40, 2)
m0K = [s(42 + i) for i in range(4)]
sStage, sQB = s(46), s(47)
m0V = [s(48 + i) for i in range(4)]
sT = ["0"] + [s(51 + t) for t in range(1, 16)]
srdD = s(68, 4)
sStamp = s(72, 2)
sPC = s(76, 2)
sG = [[s(80 + 4 * x + j) for j in range(4)] for x in range(2)]
sM = [s(88 + j) for j in range(4)]
sTmp = s(92)

SCALE_C = math.log2(math.e) / math.sqrt(192.0)


def Qreg(qb, ks):
    return Qc[(qb * 6 + ks) * 4: (qb * 6 + ks) * 4 + 4]


def Otile(qb, dt):
    n = (dt * 2 + qb % 2) * 4
    return OX[qb // 2][n: n + 4]


def Sbuf(x, tile):
    return SA if x == 0 else SB[tile % 2]


ALT_P = [False]


def Pbuf(x, tile):
    if x == 1 and ALT_P[0] and tile % 2 == 1:
        return PA[1]
    return PA[tile % 2] if x == 0 else PB


def dma(srd, soff, c, tag):
    off = f" offset:{c * 1024}" if c else ""
    return I(f"buffer_load_dwordx4 {vD[c]}, {srd}, {soff} offen{off}{OPT['kv_nt']} lds", "vmem",
             rd=[vD[c], srd, soff, "m0"], tag=tag)


def setm0(x):
    return salu("s_mov_b32", "m0", x)


def qdma(x, jj, c, tag, need=None):
    off = f" offset:{c * 1024}" if c else ""
    return I(f"buffer_load_dwordx4 {vD[c]}, {srdQ}, {sG[x][jj]} offen{off}{OPT['q_nt']} lds", "vmem",
             rd=[vD[c], srdQ, sG[x][jj], "m0"], tag=tag, needl=need)


def qread(dst, n, addr, tag, need=None):
    q, ks = n // 6, n % 6
    off = q * 6144 + (ks // 2) * 128
    return I(f"ds_read_b128 {dst}, {addr[ks % 2]} offset:{off}", "ds", rd=[addr[ks % 2]], wr=[dst], tag=tag, needv=need)


def oaddr(e):
    if e == 0:
        return vOW, []
    return E[2], [valu("v_xor_b32", E[2], str(e * 32), vOW)]


def owrite(src, addr, q, dt):
    off = q * 6144 + (dt // 4) * 128
    return I(f"ds_write_b64 {addr}, {src} offset:{off}", "ds", rd=[addr, src], cost=OPT.get("wcost", 12), flags=["head"])


def oread(dst, idx, tag):
    return I(f"ds_read_b128 {dst}, {vLin} offset:{idx * 1024}", "ds", rd=[vLin], wr=[dst], tag=tag)


def ostore(src, x, idx, need, fin=False):
    jj, c = idx // 3, idx % 3
    off = f" offset:{c * 1024}" if c else ""
    fl = OPT.get("of_nt" + "ab"[x], OPT["o_nt"]) if fin else OPT["o_nt"]
    return I(f"buffer_store_dwordx4 {src}, {vDO[c]}, {srdO}, {sG[x][jj]} offen{off}{fl}", "vmem",
             rd=[src, vDO[c], srdO, sG[x][jj]], flags=["wide"], cost=16, needl=need)


def obuf(x, idx):
    if x == 1:
        return STG[4 * idx: 4 * idx + 4]
    return SQ[idx % 8]


def kread(g, f, tile):
    kh, ks = (f % 12) // 6, f % 6
    off = KBASE + KSLOT[tile % 16] * TILE + kh * 6144 + (ks // 2) * 128
    d = FR[f % RING]
    return [I(f"ds_read_b128 {d}, {vK[ks % 2]} offset:{off}", "ds", rd=[vK[ks % 2]], wr=[d], tag=("F", g, f))]


def vread(g, f, tile):
    dt = f % 12
    d = FR[f % RING]
    out = []
    for jj in range(2):
        off = VSLOT[tile % 16] * TILE + jj * 6144 + (dt // 4) * 128
        out.append(I(f"ds_read_b64_tr_b16 {d[2 * jj:2 * jj + 2]}, {vV[dt % 4]} offset:{off}", "ds", rd=[vV[dt % 4]],
                     wr=[d[2 * jj:2 * jj + 2]], tag=("F", g, f) if jj == 1 else None))
    return out


def swap32(u, w):
    return I(f"v_permlane32_swap_b32 {u}, {w}", "valu", rd=[u, w], wr=[u, w], cost=8)


def swap16(u, w):
    return I(f"v_permlane16_swap_b32 {u}, {w}", "valu", rd=[u, w], wr=[u, w], cost=8)


def max_tree(S, u, w):
    o = []
    for a0, a1, a2, first in ((0, 1, 2, True), (3, 4, None, False), (5, 6, None, False)):
        for r, b in ((u, 0), (w, 8)):
            if first:
                o.append(valu("v_max3_f32", r, S[b + a0], S[b + a1], S[b + a2]))
            else:
                o.append(valu("v_max3_f32", r, r, S[b + a0], S[b + a1]))
    o += [valu("v_max_f32", u, u, S[7]), valu("v_max_f32", w, w, S[15])]
    return o


def reduce2(op, u, w):
    return [nop(1), swap32(u, w), valu(op, u, u, w), valu("v_mov_b32", w, u), nop(1), swap16(u, w), valu(op, u, u, w)]


def max_init(x, S):
    u, w = E[0], E[1]
    n0, n1 = negmc[2 * x], negmc[2 * x + 1]
    return max_tree(S, u, w) + reduce2("v_max_f32", u, w) + [
        valu("v_mul_f32", n0, sNegC, u), valu("v_mul_f32", n1, sNegC, u), nop(1), swap32(n0, n1)]


XPOS = [0]


def exp_stream(x, S, P, order=range(16), late=None):
    out = []
    order = list(order)
    p0 = XPOS[0]
    N = len(order)
    XPOS[0] = (p0 + N) % len(X)
    T = lambda n: X[(p0 + n) % len(X)]
    for n in range(N + 2):
        if n < N:
            i = order[n]
            f = valu("v_fma_f32", T(n), S[i], sC, negmc[2 * x + i // 8])
            if late is not None and i % 8 >= 4:
                f.earliest = late
            out.append(f)
        if 0 <= n - 1 < N:
            out.append(trans("v_exp_f32", T(n - 1), T(n - 1)))
        j = n - 2
        if 0 <= j < N and j % 2 == 1:
            out.append(valu("v_cvt_pk_bf16_f32", P[order[j] // 2], T(j - 1), T(j)))
    return out


TRAMPS = []
KH0_FIRST = [0, 1, 2, 3, 8, 9, 10, 11, 4, 5, 6, 7, 12, 13, 14, 15]


def softmax(x, tile, late=None):
    S, P = Sbuf(x, tile), Pbuf(x, tile)
    if tile == 0:
        return max_init(x, S) + exp_stream(x, S, P)
    return exp_stream(x, S, P, KH0_FIRST if late is not None else range(16), late)


def sum_mfma(x, tile):
    P = Pbuf(x, tile)
    return [mfma(TS, ONES[0], P[0:4], 0), mfma(TS, ONES[1], P[4:8], TS)]


def check(x, tile, site):
    if tile == 0:
        return [], [], [valu("v_mov_b32", lsum[2 * x + i], TS[i]) for i in range(2)]
    par = tile % 2
    if x == 1 and ALT_P[0] and par == 1:
        par = 3
    name = f"{site}_{'AB'[x]}"
    if (name, x, par) not in TRAMPS:
        TRAMPS.append((name, x, par))
    return ([I(f"v_cmp_nge_f32 vcc, {sThr}, {TS[2]}", "valu", rd=[sThr, TS[2]], wr=["vcc"])],
            [I(f"s_cbranch_vccnz L_tr_{name}", "branch", rd=["vcc"]), label(f"L_ret_{name}")],
            [valu("v_add_f32", lsum[2 * x + i], lsum[2 * x + i], TS[i]) for i in range(2)])


def rinv_stream(x):
    u, w = lsum[2 * x], lsum[2 * x + 1]
    r0, r1 = rinv[2 * x], rinv[2 * x + 1]
    return reduce2("v_add_f32", u, w) + [trans("v_rcp_f32", r0, u), trans("v_rcp_f32", r1, u), nop(1), swap32(r0, r1)]


def scale2(R, qb):
    if OPT["pk"]:
        return [I(f"v_pk_mul_f32 {R}, {R}, {rinv2[qb]} op_sel_hi:[1,0]", "valu", rd=[R, rinv[qb]], wr=[R], flags=["pk"])]
    return [valu("v_mul_f32", R[0], R[0], rinv[qb]), valu("v_mul_f32", R[1], R[1], rinv[qb])]


def epi_a(tt):
    O = OA[16 * tt: 16 * tt + 16]
    m = []
    for i in range(8):
        m += scale2(O[2 * i: 2 * i + 2], (i // 2) % 2)
    c = [valu("v_cvt_pk_bf16_f32", O[i], O[2 * i], O[2 * i + 1]) for i in range(8)]
    w = []
    for n in range(4):
        dt, q = 2 * tt + n // 2, n % 2
        ad, pre = oaddr(dt % 4)
        if q == 0:
            w += pre
        wr = owrite(O[2 * n: 2 * n + 2], ad, q, dt)
        wr.after = c[2 * n + 1]
        w.append(wr)
    return m, c, w


def epi_b(tt, half, T):
    O = OB[16 * tt: 16 * tt + 16]
    D = STG[tt * 8: tt * 8 + 8]
    r = [valu("v_accvgpr_read_b32", T[i], O[8 * half + i]) for i in range(8)]
    m = []
    for i in range(4):
        m += scale2(T[2 * i: 2 * i + 2], 2 + i // 2)
    c = [valu("v_cvt_pk_bf16_f32", D[4 * half + i], T[2 * i], T[2 * i + 1]) for i in range(4)]
    return r, m, c


def ob_writes(es):
    w = []
    for e in es:
        ad, pre = oaddr(e)
        w += pre
        for dt in (e, e + 4, e + 8):
            for q in range(2):
                n = (dt * 2 + q) * 2
                w.append(owrite(STG[n: n + 2], ad, q, dt))
    return w


def setw(items, earliest=None, latest=None):
    for i in items:
        if latest is not None:
            i.latest = latest if i.latest is None else min(i.latest, latest)
    if earliest is not None:
        items[0].earliest = earliest
    return items


def rare(x, par):
    S, P = Sbuf(x, par), Pbuf(x, par)
    u, w = E[0], E[1]
    f = [u, w]
    n = [negmc[2 * x], negmc[2 * x + 1]]
    o = [label(f"L_rare_{'AB'[x]}{par}"), nop(15)]
    o += max_tree(S, u, w)
    o += [valu("v_fma_f32", u, u, sC, n[0]), valu("v_fma_f32", w, w, sC, n[1])]
    o += reduce2("v_max_f32", u, w)
    o += [valu("v_max_f32", u, "0", u), valu("v_mov_b32", w, u), nop(1), swap32(u, w),
          valu("v_sub_f32", n[0], n[0], u), valu("v_sub_f32", n[1], n[1], w),
          trans("v_exp_f32", u, f"-{u}", extra_rd=[u]), trans("v_exp_f32", w, f"-{w}", extra_rd=[w]), nop(0),
          valu("v_mul_f32", lsum[2 * x], lsum[2 * x], u), valu("v_mul_f32", lsum[2 * x + 1], lsum[2 * x + 1], w)]
    O = OX[x]
    for i in range(96):
        ff = f[(i // 4) % 2]
        if O.f == "a":
            tt = P[i % 4]
            o += [valu("v_accvgpr_read_b32", tt, O[i]), valu("v_mul_f32", tt, tt, ff),
                  valu("v_accvgpr_write_b32", O[i], tt)]
        else:
            o.append(valu("v_mul_f32", O[i], O[i], ff))
    o += [valu("v_fma_f32", S[i], S[i], sC, n[i // 8]) for i in range(16)]
    o += [trans("v_exp_f32", S[i], S[i]) for i in range(16)]
    o += [valu("v_cvt_pk_bf16_f32", P[i], S[2 * i], S[2 * i + 1]) for i in range(8)]
    o += [nop(1)] + sum_mfma(x, par)
    o += [nop(15), I(f"s_setpc_b64 {sRet}", "branch", rd=[sRet])]
    return o


def qk_mfma(tile, f, qb, fr):
    kh, ks = f // 6, f % 6
    n = (qb % 2) * 8 + kh * 4
    d = Sbuf(qb // 2, tile)[n: n + 4]
    return mfma(d, fr, Qreg(qb, ks), d if ks else 0)


def pv_mfma(t, dt, qb, fr, zero):
    o = Otile(qb, dt)
    p = Pbuf(qb // 2, t)[4 * (qb % 2): 4 * (qb % 2) + 4]
    return mfma(o, fr, p, 0 if zero else o)


def frag_read(g, t, f):
    if f < 12:
        return kread(g, f, t + 1)
    if f < 24:
        return vread(g, f, t)
    return kread(g + 1, f - 24, t + 2)


def ftag(g, f):
    return ("F", g, f) if f < 24 else ("F", g + 1, f - 24)


def stamp(idx, real=False):
    if not OPT["stamp"]:
        return []
    if OPT["stamp"] == 2 and idx not in (0, 1, 15, 16, 17, 18, 19, 56, 60, 61):
        return []
    op = "s_memrealtime" if real else "s_memtime"
    return [I(f"{op} {sStamp}", "salu", wr=[sStamp]), I("s_waitcnt lgkmcnt(0)", "salu"),
            valu("v_mov_b32", E[0], sStamp[0]),
            I(f"buffer_store_dword {E[0]}, off, {srdD}, {sH} offset:{idx * 4}", "vmem", rd=[E[0], srdD])]


def add_iter(u, b, t, site):
    g = b * 16 + t
    base = len(u.heads)
    tn = (t + 1) % 16
    lastuse = {}
    NR = OPT.get("nr", 3)
    seq = [(f, qb) for f in range(NR) for qb in (2, 3)] + [(f, qb) for f in range(NR) for qb in (0, 1)] + \
          [(f, qb) for f in range(NR, 12) for qb in range(4)]
    for f, qb in seq:
        m = qk_mfma(tn, f, qb, FR[f % RING])
        m.needl = [("F", g, f)] + ([("QB", b + 1, (qb - 2) * 6 + f % 6)] if tn == 0 and qb >= 2 else [])
        lastuse[f] = u.add_gap(m)
    for m in sum_mfma(1, t):
        u.add_gap(m)
    seq = [(f, qb) for f in range(NR) for qb in (0, 1)] + [(f, qb) for f in range(NR) for qb in (2, 3)] + \
          [(f, qb) for f in range(NR, 12) for qb in range(4)]
    for dt, qb in seq:
        m = pv_mfma(t, dt, qb, FR[(12 + dt) % RING], t == 0)
        m.needl = [("F", g, 12 + dt)]
        lastuse[12 + dt] = u.add_gap(m)
    for m in sum_mfma(0, tn):
        u.add_gap(m)
    wp = OPT["wper"]
    for f in range(24):
        k = lastuse[f]
        rd = frag_read(g, t, f + RING)
        u.pin[k] += rd
        if (f + 1) % wp == 0:
            kw = k + 2 if f in (11, 23) else (k if len(rd) == 1 else k - 1)
            u.pin[kw].append(waitl(*[ftag(g, f + 1 + i) for i in range(wp)]))
    for x, k in ((0, base), (1, base + P2)):
        c, br, lu = check(x, t, site)
        u.tail[k + OPT.get("cmpgap", 2)] += c
        kb = k + 2 * NR - 1
        if OPT.get("brhead"):
            u.pin[kb] = br + u.pin[kb]
        else:
            u.tail[kb] += br
        u.streams.append(Stream(lu, kb + 1, kb + 3, prio=0.5))
    tk, tv = (t + KD) % 16, (t + VD) % 16
    u.pin[base + OPT["kgaps"][0] - 2].append(setm0(m0K[KSLOT[tk]]))
    for c, k in enumerate(OPT["kgaps"]):
        u.pin[base + k].append(dma(srdK, sT[tk], c, ("K", g + KD)))
    u.pin[base + OPT["vgaps"][0] - 3].append(setm0(m0V[VSLOT[tv]]))
    for c, k in enumerate(OPT["vgaps"]):
        u.pin[base + k].append(dma(srdV, sT[tv], c, ("V", g + VD)))
    for x, key in ((0, "oa_rd"), (1, "ob_rd")):
        for idx, (tt, k) in enumerate(OPT[key]):
            if tt == t:
                u.pin[base + k].append(oread(obuf(x, idx), idx, ("OR", b, x, idx)))
    if t in (2, 3):
        st = Stream(ob_writes((0, 1)), base + 23, base + 97) if t == 2 else Stream(ob_writes((2, 3)), base + 0, base + 70)
        st.pace = OPT.get("pace", 1)
        u.streams.append(st)
    for half in range(2):
        n = 2 * t + half
        gaps = OPT["sgaps"][half]
        for x, key in ((0, "oa_slots"), (1, "ob_slots")):
            if n in OPT[key]:
                jj = OPT[key].index(n)
                for c, k in enumerate(gaps):
                    idx = jj * 3 + c
                    u.pin[base + k].append(ostore(obuf(x, idx), x, idx, [("OR", b, x, idx)]))
        for x, key in ((0, "qa_slots"), (1, "qb_slots")):
            if n in OPT[key]:
                jj = OPT[key].index(n)
                u.pin[base + gaps[0] - 3].append(setm0(sM[jj]))
                need = [("OR", b, 1, 11)] if x == 0 else [("QA", b + 1, 11)]
                for c, k in enumerate(gaps):
                    u.pin[base + k].append(qdma(x, jj, c, ("QD", b + 1, x), need))
    if t == OPT["qar_iter"]:
        u.pin[base + 0].append(waitv(("QD", b + 1, 0)))
        for n in range(12):
            u.pin[base + 1 + 4 * n].append(qread(STG[n * 4: n * 4 + 4], n, vS, ("QA", b + 1, n), [("QD", b + 1, 0)]))
    if t == 14:
        u.pin[base + P2].append(waitv(("QD", b + 1, 1)))
        for i, n in enumerate([0, 6, 1, 7, 2, 8, 3, 9, 4, 10, 5, 11]):
            u.pin[base + P2 + 1 + 4 * (i // 2) + (8 if i >= 2 else 0)].append(
                qread(Qreg(2 + n // 6, n % 6), n, vS, ("QB", b + 1, n), [("QD", b + 1, 1)]))
    u.pin[base + OPT["bar_gap"]] += [waitv(("K", g + 3), ("V", g + 1)), barrier()]
    XPOS[0] = 0
    sb = setw(softmax(1, t), latest=base + 46)
    sa = softmax(0, tn, late=base + 49)
    sa[0].earliest = base + (P2 + 2 * NR if tn == 0 else 30)
    u.streams.append(Stream(sb + sa, base + 0, base + 96, prio=0.05, look=OPT["look"]))
    if t == 1:
        sl = [salu("s_mov_b32", sQOcur, sQO),
              salu("s_add_u32", sBG, sBG, "32", scc_w=True),
              salu("s_mul_hi_u32", sKO, sBG, sMagic),
              salu("s_mul_i32", sKO, sKO, "196608"),
              salu("s_mul_i32", sQO, sBG, "98304"),
              I(f"s_cmp_lt_u32 {sTrip}, 2", "salu", rd=[sTrip], wr=["scc"]),
              salu("s_cselect_b32", sNrec, "196608", "0", scc_r=True),
              salu("s_cselect_b32", srdQ[2], "98304", "0", scc_r=True),
              salu("s_add_u32", srdQ[0], ptrQ[0], sQO, scc_w=True),
              salu("s_addc_u32", srdQ[1], ptrQ[1], "0", scc_w=True, scc_r=True)]
        u.streams.append(Stream(sl, base + 24, base + 80))
    if t == 15 - KD:
        sl = [salu("s_add_u32", srdK[0], ptrK[0], sKO, scc_w=True),
              salu("s_addc_u32", srdK[1], ptrK[1], "0", scc_w=True, scc_r=True),
              salu("s_mov_b32", srdK[2], sNrec)]
        u.streams.append(Stream(sl, base + OPT["kgaps"][-1] + 1, base + 90))
    if t == 15 - VD:
        sl = [salu("s_add_u32", srdV[0], ptrV[0], sKO, scc_w=True),
              salu("s_addc_u32", srdV[1], ptrV[1], "0", scc_w=True, scc_r=True),
              salu("s_mov_b32", srdV[2], sNrec)]
        u.streams.append(Stream(sl, base + OPT["vgaps"][-1] + 1, base + 90))
    return base


def qcopy(base):
    out = []
    for ks in range(6):
        for q in range(2):
            for i in range(4):
                out.append(valu("v_accvgpr_write_b32", Qreg(q, ks)[i], STG[(q * 6 + ks) * 4 + i],
                                earliest=base + 4 * (6 + ks) + q))
    return out


def set_osrd():
    return [salu("s_add_u32", srdO[0], ptrO[0], sQOcur, scc_w=True),
            salu("s_addc_u32", srdO[1], ptrO[1], "0", scc_w=True, scc_r=True),
            salu("s_mov_b32", srdO[2], "98304")]


def unit_mid(b, t):
    u = Unit(f"T{t}")
    if t == 1:
        u.pre.append(label("L_loop"))
    u.pre += stamp(t)
    base = add_iter(u, b, t, f"T{t}")
    if t == 14:
        u.streams.append(Stream(qcopy(base), base + 24, base + 99))
    if t == 11:
        u.tail[base + 96].append(I(f"s_cmp_eq_u32 {sTrip}, 2", "salu", rd=[sTrip], wr=["scc"]))
        u.post += [I("s_cbranch_scc1 L_fin", "branch", rd=["scc"])]
    return u


def unit_x(b):
    u = Unit("X")
    u.pre += stamp(15)
    b15 = add_iter(u, b, 15, "T15")
    b0 = add_iter(u, b + 1, 0, "T0")
    u.streams.append(Stream(rinv_stream(0), b15 + 9, b15 + 40))
    u.streams.append(Stream(rinv_stream(1), b15 + P2 + 9, b15 + P2 + 15, prio=0.5))
    ep, wr = [], []
    for tt in range(6):
        O = OA[16 * tt: 16 * tt + 16]
        dl = b0 + P2 + (8 * tt if tt != 1 else 4) - 1
        m, c, w = epi_a(tt)
        r0, m0_, c0 = epi_b(tt, 0, O[8:16])
        r1, m1_, c1 = epi_b(tt, 1, O[8:16])
        setw(m, earliest=b15 + P2 + 8 * tt + 9)
        setw(r0, earliest=b15 + P2 + max(16, 8 * tt + 9))
        ep += setw(m + c + r0 + m0_ + c0 + r1 + m1_ + c1, latest=dl)
        wr += setw(w, latest=dl)
    u.streams.append(Stream(ep, b15 + P2 + 9, b0 + P2 + 39))
    u.streams.append(Stream(wr, b15 + P2 + 9, b0 + P2 + 39))
    u.streams.append(Stream(set_osrd(), b15 + 16, b15 + 44))
    sl = [salu("s_add_u32", sTrip, sTrip, "1", scc_w=True)]
    if OPT["stamp"]:
        sl.append(salu("s_add_u32", sH, sH, "64", scc_w=True))
    u.streams.append(Stream(sl, b0 + 4, b0 + 80))
    u.post.append(I("s_branch L_loop", "branch"))
    return u


def unit_pro():
    u = Unit("PRO")
    P = u.pre
    tid, lane, i16, G, t0, t1, t2 = v(0), X[0], X[1], X[2], X[3], E[0], E[1]
    P += [I("s_cmp_ge_u32 s2, 256", "salu", rd=["s2"], wr=["scc"]),
          I("s_cbranch_scc1 L_end", "branch", rd=["scc"]),
          I("s_load_dwordx4 s[4:7], s[0:1], 0", "salu", wr=[s(4, 4)]),
          I("s_load_dwordx4 s[8:11], s[0:1], 16", "salu", wr=[s(8, 4)])]
    if OPT["stamp"]:
        P += [I(f"s_load_dwordx2 {srdD[0:2]}, s[0:1], 40", "salu"), I(f"s_memrealtime {s(94, 2)}", "salu")]
    if OPT.get("dbg"):
        P += [I(f"s_load_dwordx2 {srdD[0:2]}, s[0:1], 32", "salu"), I(f"s_memrealtime {s(94, 2)}", "salu"),
              I(f"s_memtime {s(96, 2)}", "salu")]
    P += [valu("v_lshrrev_b32", t0, "6", tid), valu("v_and_b32", lane, "63", tid),
          I(f"v_readfirstlane_b32 {sW}, {t0}", "valu", rd=[t0], wr=[sW]),
          valu("v_lshlrev_b32", t1, "4", lane)]
    P += [salu("s_and_b32", sBG, "s2", "7", scc_w=True),
          salu("s_mul_i32", sBG, sBG, "96"),
          salu("s_lshr_b32", sH, "s2", "3", scc_w=True),
          salu("s_add_u32", sBG, sBG, sH, scc_w=True),
          salu("s_mov_b32", sMagic, "0x55555556"),
          salu("s_mul_hi_u32", sKO, sBG, sMagic),
          salu("s_mul_i32", sKO, sKO, "196608"),
          salu("s_mul_i32", sQO, sBG, "98304")]
    P += [salu("s_mov_b32", sQB, str(VBASE + 2 * TILE)),
          I(f"s_cmp_eq_u32 {sW}, 0", "salu", rd=[sW], wr=["scc"]),
          salu("s_cselect_b32", sQB, str(KBASE + 3 * TILE), sQB, scc_r=True),
          I(f"s_cmp_eq_u32 {sW}, 2", "salu", rd=[sW], wr=["scc"]),
          salu("s_cselect_b32", sQB, str(VBASE + 3 * TILE), sQB, scc_r=True),
          I(f"s_cmp_eq_u32 {sW}, 3", "salu", rd=[sW], wr=["scc"]),
          salu("s_cselect_b32", sQB, str(SPARE), sQB, scc_r=True),
          salu("s_mul_i32", sW, sW, "3072")]
    late = []
    for c in range(3):
        P += [valu("v_add_u32", t0, str(c * 1024), t1),
              valu("v_lshrrev_b32", t2, "7", t0),
              valu("v_mul_u32_u24", t2, "171", t2),
              valu("v_lshrrev_b32", vDO[c], "9", t2),
              valu("v_and_b32", vD[c], "6", vDO[c]),
              valu("v_lshlrev_b32", vD[c], "4", vD[c]),
              valu("v_xor_b32", vD[c], vD[c], t1),
              valu("v_add_u32", vD[c], sW, vD[c])]
        late += [valu("v_lshlrev_b32", vDO[c], "4", vDO[c]),
                 valu("v_xor_b32", vDO[c], vDO[c], t1),
                 valu("v_add_u32", vDO[c], sW, vDO[c])]
    P += [salu("s_lshl_b32", sStage, sW, "2", scc_w=True),
          salu("s_add_u32", sStage, sStage, str(STAGE), scc_w=True),
          salu("s_mul_i32", sH, sW, "7")]
    for jj in range(4):
        P += [salu("s_add_u32", sM[jj], sStage, str(jj * 3072), scc_w=True),
              salu("s_add_u32", sG[0][jj], sH, str(jj * 3072), scc_w=True),
              salu("s_add_u32", sG[1][jj], sH, str(jj * 3072 + TILE), scc_w=True)]
    P += [I("s_waitcnt lgkmcnt(0)", "salu")]

    def mksrd(srd, ptr, off, n):
        return [salu("s_add_u32", srd[0], ptr[0], off, scc_w=True),
                salu("s_addc_u32", srd[1], ptr[1], "0", scc_w=True, scc_r=True),
                salu("s_mov_b32", srd[2], str(n)), salu("s_mov_b32", srd[3], "0x00020000")]

    def ktile(t):
        return [setm0(m0K[KSLOT[t]]), nop(0)] + [dma(srdK, sT[t], c, ("K", t)) for c in range(3)]

    def vtile(t):
        return [setm0(m0V[VSLOT[t]]), nop(0)] + [dma(srdV, sT[t], c, ("V", t)) for c in range(3)]

    P += [setm0(sW)] + mksrd(srdK, ptrK, sKO, 196608) + [dma(srdK, "0", c, ("K", 0)) for c in range(3)]
    P += mksrd(srdQ, ptrQ, sQO, 98304)
    for jj in range(4):
        P += [setm0(sM[jj]), nop(0)] + [qdma(0, jj, c, ("QD", 0, 0)) for c in range(3)]
    for jj in range(4):
        P += [salu("s_add_u32", "m0", sQB, str(jj * 3072), scc_w=True), nop(0)] + [qdma(1, jj, c, ("QD", 0, 1)) for c in range(3)]
    P += mksrd(srdV, ptrV, sKO, 196608)
    for i in range(4):
        P.append(salu("s_add_u32", m0K[i], sW, str(KBASE + i * TILE), scc_w=True))
        P.append(salu("s_add_u32", m0V[i], sW, str(VBASE + i * TILE), scc_w=True))
    for t in range(1, 16):
        P.append(salu("s_mov_b32", sT[t], str(t * TILE)))
    warm = []
    if OPT["codewarm"]:
        P += [I(f"s_getpc_b64 {sPC}", "salu", wr=[sPC]),
              label("L_pc"),
              I(f"s_sub_u32 {sPC[0]}, {sPC[0]}, L_pc-{KNAME}", "salu", rd=[sPC], wr=[sPC, "scc"]),
              I(f"s_subb_u32 {sPC[1]}, {sPC[1]}, 0", "salu", rd=[sPC, "scc"], wr=[sPC, "scc"]),
              salu("s_lshr_b32", sH, "s2", "3", scc_w=True),
              salu("s_lshl_b32", sH, sH, "11", scc_w=True),
              valu("v_lshlrev_b32", E[2], "3", tid),
              valu("v_add_u32", E[2], sH, E[2]),
              I(f"v_min_u32 {E[2]}, L_code_end-{KNAME}-8, {E[2]}", "valu", rd=[E[2]], wr=[E[2]])]
        warm = [I(f"global_load_dwordx2 {JUNK[0:2]}, {E[2]}, {sPC}", "vmem", rd=[E[2], sPC], wr=[JUNK[0:2]])]
    P += [salu("s_mov_b32", srdO[0], ptrO[0]), salu("s_mov_b32", srdO[1], ptrO[1]),
          salu("s_mov_b32", srdO[2], "0"), salu("s_mov_b32", srdO[3], "0x00020000"),
          salu("s_mov_b32", sTrip, "0"),
          salu("s_mov_b32", sC, hex(f2u(SCALE_C))), salu("s_mov_b32", sNegC, hex(f2u(-SCALE_C))),
          salu("s_mov_b32", sThr, hex(f2u(OPT["thr"])))]
    P += late + [valu("v_add_u32", vLin, sStage, t1)]
    P += [valu("v_and_b32", i16, "15", lane), valu("v_lshrrev_b32", G, "4", lane),
          valu("v_mul_u32_u24", t0, "384", i16)]
    P += [valu("v_and_b32", t1, "6", i16), valu("v_xor_b32", t1, t1, G), valu("v_lshl_add_u32", vK[0], t1, "4", t0),
          valu("v_xor_b32", vK[1], "64", vK[0])]
    for e in range(2):
        P += [valu("v_add_u32", vS[e], sStage, vK[e]), valu("v_add_u32", STG[e], sQB, vK[e])]
    P += [valu("v_lshrrev_b32", t1, "1", G), valu("v_and_b32", t2, "7", i16), valu("v_xor_b32", t1, t1, t2),
          valu("v_lshl_add_u32", vOW, t1, "4", t0), valu("v_and_b32", t1, "1", G),
          valu("v_lshl_add_u32", vOW, t1, "3", vOW), valu("v_add_u32", vOW, sStage, vOW)]
    P += [valu("v_lshrrev_b32", t1, "2", lane), valu("v_mul_u32_u24", t0, "384", t1),
          valu("v_and_b32", t1, "6", t1), valu("v_lshl_add_u32", t0, t1, "4", t0),
          valu("v_and_b32", t1, "3", lane), valu("v_lshl_add_u32", t0, t1, "3", t0),
          valu("v_add_u32", vV[0], str(VBASE), t0)]
    for e in range(1, 4):
        P.append(valu("v_xor_b32", vV[e], str(e * 32), vV[0]))
    P += [salu("s_mov_b32", sTmp, "0x3f803f80"), valu("v_mov_b32", t0, sTmp)]
    for j in range(2):
        P += [I(f"v_cmp_eq_u32 vcc, {j}, {i16}", "valu", rd=[i16], wr=["vcc"]),
              I(f"v_cmp_eq_u32 {sRet}, 2, {i16}", "valu", rd=[i16], wr=[sRet]), nop(0),
              I(f"s_or_b64 vcc, vcc, {sRet}", "salu", rd=["vcc", sRet], wr=["vcc", "scc"]), nop(1),
              I(f"v_cndmask_b32 {t1}, 0, {t0}, vcc", "valu", rd=[t0, "vcc"], wr=[t1])]
        P += [valu("v_accvgpr_write_b32", ONES[j][i], t1) for i in range(4)]
    if OPT["stamp"]:
        P += [salu("s_mov_b32", srdD[2], "0x1000000"), salu("s_mov_b32", srdD[3], "0x00020000"),
              salu("s_mul_hi_u32", sTmp, sW, sMagic), salu("s_lshr_b32", sTmp, sTmp, "2", scc_w=True),
              salu("s_lshl_b32", sH, "s2", "10", scc_w=True), salu("s_add_u32", sH, sH, sTmp, scc_w=True),
              valu("v_mov_b32", E[0], s(94)),
              I(f"buffer_store_dword {E[0]}, off, {srdD}, {sH} offset:{57 * 4}", "vmem", rd=[E[0], srdD])]
    P += stamp(60) + stamp(56, True)
    P += [waitv(("QD", 0, 0)), barrier()]
    for f in range(RING):
        P += kread(-2, f, 0)
    qorder = [0, 6, 1, 7, 2, 8, 3, 9, 4, 10, 5, 11]
    for n in qorder:
        P.append(qread(Qreg(n // 6, n % 6), n, vS, ("QA", 0, n)))
    P += [waitl(("QA", 0, 7))]
    P += stamp(61)
    if OPT.get("dbg"):
        P += [I(f"s_memrealtime {s(98, 2)}", "salu"), I("s_waitcnt lgkmcnt(0)", "salu")]
    pend = ktile(1) + vtile(0) + ktile(2) + warm + vtile(1)
    for n in range(24):
        x, f = n // 12, n % 12
        for q in range(2):
            m = qk_mfma(0, f, 2 * x + q, FR[n % RING])
            m.needl = [("F", -2, n), ("QA" if x == 0 else "QB", 0, q * 6 + f % 6)]
            k = u.add_gap(m)
            if x == 0 and pend:
                it = pend.pop(0)
                if it.kind != "nop":
                    u.pin[k].append(it)
        if n + RING < 24:
            u.pin[k] += kread(-2, n + RING, 0)
        else:
            u.pin[k] += kread(0, n + RING - 24, 1)
        if f == 1:
            u.pin[k].append(waitl(("QA" if x == 0 else "QB", 0, 11)))
        if RING - 1 <= n < 23 and n != 11:
            u.pin[k].append(waitl(("F", -2, n + 1)))
        if n == 11:
            assert not pend
            k = u.add_gap(None)
            XPOS[0] = 0
            u.pin[k] += softmax(0, 0) + [waitv(("QD", 0, 1))]
            for nn in qorder:
                u.pin[k].append(qread(Qreg(2 + nn // 6, nn % 6), nn, [STG[0], STG[1]], ("QB", 0, nn)))
            u.pin[k] += sum_mfma(0, 0) + [waitl(("QB", 0, 7))]
        if n == 14:
            u.pin[k] += [waitv(("K", 1), ("V", 0), ("K", 2)), barrier()]
        if n == 15:
            u.pin[k] += ktile(3)
        if n == 16:
            u.pin[k] += vtile(2)
    u.pin[k] += [barrier(), waitl(*[("F", 0, i) for i in range(OPT["wper"])])]
    u.pin[k] += stamp(0)
    u.win0 = len(u.heads)
    add_iter(u, 0, 0, "T0p")
    return u


def unit_fin(b):
    u = Unit("FIN")
    u.pre.append(label("L_fin"))
    u.pre += stamp(15)
    g0 = b * 16 + 12
    NR = OPT.get("nr", 3)
    phases = [("QK", (0, 1), 13), ("PV", (0,), 12), ("QK", (0,), 14), ("PV", (0,), 13), ("QK", (0,), 15),
              ("PV", (0,), 14), ("PV", (0,), 15),
              ("QK", (1,), 14), ("PV", (1,), 12), ("QK", (1,), 15), ("PV", (1,), 13), ("PV", (1,), 14), ("PV", (1,), 15)]
    ALT_P[0] = True
    sums = {(0, 48): (1, 12), (1, 18): (0, 13), (3, 18): (0, 14), (5, 18): (0, 15), (8, 18): (1, 13), (10, 18): (1, 14),
            (11, 18): (1, 15)}
    start, end, sumgap, lastuse, done = {}, {}, {}, {}, {}
    nfr = 12 * len(phases)
    for pi, (kind, hs, tile) in enumerate(phases):
        if len(hs) == 2:
            seq = [(f, qb) for f in range(NR) for qb in (2, 3)] + [(f, qb) for f in range(NR) for qb in (0, 1)] + \
                  [(f, qb) for f in range(NR, 12) for qb in range(4)]
        else:
            seq = [(f, 2 * hs[0] + q) for f in range(12) for q in range(2)]
        start[pi] = len(u.heads)
        for i, (f, qb) in enumerate(seq):
            n = 12 * pi + f
            m = qk_mfma(tile, f, qb, FR[n % RING]) if kind == "QK" else pv_mfma(tile, f, qb, FR[n % RING], False)
            m.needl = [("F", g0, n)]
            lastuse[n] = done[(pi, f, qb)] = u.add_gap(m)
            if (pi, i + 1) in sums:
                sumgap[sums[(pi, i + 1)]] = len(u.heads)
                for m in sum_mfma(*sums[(pi, i + 1)]):
                    u.add_gap(m)
        end[pi] = len(u.heads) - 1
    last = u.add_gap(None)
    wp = OPT["wper"]
    for n in range(nfr):
        k = lastuse[n]
        nn = n + RING
        rd = []
        if nn < nfr:
            kind, hs, tile = phases[nn // 12]
            rd = kread(g0, nn, tile) if kind == "QK" else vread(g0, nn, tile)
            u.pin[k] += rd
        if (n + 1) % wp == 0 and n + 1 < nfr:
            u.pin[k if len(rd) < 2 else k - 1].append(waitl(*[("F", g0, n + 1 + i) for i in range(wp)]))
    u.pin[start[0] + 1].append(setm0(m0V[VSLOT[15]]))
    for c, k in enumerate((4, 8, 12)):
        u.pin[start[0] + k].append(dma(srdV, sT[15], c, ("V", g0 + 3)))
    u.pin[start[2] + 2] += [waitv(("K", g0 + 3), ("V", g0 + 1), ("V", g0 + 2)), barrier()]
    u.pin[start[4] + 14] += [waitv(("V", g0 + 3)), barrier()]
    def put_check(x, tile, kc, kb):
        c, br, lu = check(x, tile, f"F{tile}")
        u.tail[kc] += c
        u.tail[kb] += br
        u.streams.append(Stream(lu, kb + 1, kb + 3, prio=0.5))
    put_check(0, 12, start[0] + 2, start[0] + 2 * NR - 1)
    for (x, tile), k in sumgap.items():
        put_check(x, tile, k + 5, k + 7)
    XPOS[0] = 0
    sm = setw(softmax(1, 12), latest=sumgap[(1, 12)] - 2)
    x = exp_stream(0, SA, Pbuf(0, 13), KH0_FIRST[:8])
    x[0].earliest = start[0] + 30
    u.streams.append(Stream(sm + x, start[0], end[0], prio=0.05, look=OPT["look"]))
    for tile, pq in ((13, 0), (14, 2), (15, 4)):
        if pq:
            u.streams.append(Stream(exp_stream(0, SA, Pbuf(0, tile), KH0_FIRST[:8]), start[pq] + 15, end[pq] + 2,
                                    prio=0.05, look=OPT["look"]))
        u.streams.append(Stream(exp_stream(0, SA, Pbuf(0, tile), KH0_FIRST[8:]), end[pq] + (3 if pq else 1),
                                sumgap[(0, tile)] - 2, prio=0.05, look=OPT["look"]))
    for tile, pq in ((13, 7), (14, 9), (15, 11)):
        u.streams.append(Stream(softmax(1, tile), start[pq] + (OPT.get("b13", 12) if pq == 7 else 0), sumgap[(1, tile)] - 2,
                                prio=0.05, look=OPT["look"]))
    AD = [vOW, STG[0], STG[1], STG[2]]
    u.streams.append(Stream(set_osrd() + [valu("v_xor_b32", AD[e], str(32 * e), vOW) for e in range(1, 4)],
                            start[2] + 4, end[2]))
    kA = sumgap[(0, 15)] + 11
    u.streams.append(Stream(rinv_stream(0), kA, kA + 8, prio=0.5))
    Z = [Qc[4 * i: 4 * i + 4] for i in range(12)]

    def epi_group(qb, dts, T):
        r, m, c, w = [], [], [], []
        for i, dt in enumerate(dts):
            O = Otile(qb, dt)
            R = O if O.f == "v" else T[4 * i: 4 * i + 4]
            if O.f == "a":
                r += [valu("v_accvgpr_read_b32", R[j], O[j]) for j in range(4)]
            m += scale2(R[0:2], qb) + scale2(R[2:4], qb)
            cc = [valu("v_cvt_pk_bf16_f32", R[0], R[0], R[1]), valu("v_cvt_pk_bf16_f32", R[1], R[2], R[3])]
            c += cc
            wr = owrite(R[0:2], AD[dt % 4], qb % 2, dt)
            wr.after = cc[1]
            w.append(wr)
        return r, m, c, w

    ep, wr, sts = [], [], []
    for q in range(2):
        for grp in range(3):
            r, m, c, w = epi_group(q, range(4 * grp, 4 * grp + 4), None)
            setw(m, earliest=max(kA + 9, done[(6, 4 * grp + 3, q)] + 4))
            ep += m + c
            wr += w
        for n in range(6 * q, 6 * q + 6):
            rd = oread(Z[n], n, ("OR", b + 1, 0, n))
            rd.flags.add("head")
            wr.append(rd)
        w = waitl(("OR", b + 1, 0, 6 * q + 5))
        w.after = wr[-1]
        w.delay = 6
        sts.append(w)
        for n in range(6 * q, 6 * q + 6):
            st = ostore(Z[n], 0, n, [("OR", b + 1, 0, n)], True)
            st.flags.add("head")
            sts.append(st)
    u.streams.append(Stream(ep, kA + 9, end[7], prio=0.3))
    u.streams.append(Stream(wr, kA + 9, end[7] + 12, prio=0.3))
    u.streams[-1].headmax = 8
    u.streams.append(Stream(sts, start[7] - OPT.get("st0", 10), end[OPT.get("stend", 11)], prio=0.3))
    u.streams[-1].headmax = 4
    u.streams[-1].pace = True
    u.streams.append(Stream(rinv_stream(1), start[12] + 3, start[12] + 8, prio=0.5))
    TT = [SA, SB[0], SB[1]]
    ep, wr = [], []
    for grp in range(2):
        r, m, c, w = epi_group(2, range(4 * grp, 4 * grp + 4), TT[grp])
        setw(r, earliest=done[(12, 4 * grp + 3, 2)] + 3)
        ep += r + m + c
        wr += w
    u.streams.append(Stream(ep, start[12] + 9, end[12], prio=0.3))
    u.streams.append(Stream(wr, start[12] + 9, end[12], prio=0.3))
    u.streams[-1].headmax = 8
    po = u.pin[last]
    r, m, c, w = epi_group(2, range(8, 12), TT[2])
    po += r + m + c + w
    po += [oread(Z[n], n, ("OR", b + 1, 1, n)) for n in range(6)]
    for grp in range(3):
        r, m, c, w = epi_group(3, range(4 * grp, 4 * grp + 4), TT[grp])
        st = [ostore(Z[n], 1, n, [("OR", b + 1, 1, n)], True) for n in range(6)] if grp == 0 else []
        po += r[:8] + ([waitl(("OR", b + 1, 1, 5))] if grp == 0 else []) + st[:2] + r[8:] + st[2:4] + m + st[4:] + c + w
    po += [oread(Z[n], n, ("OR", b + 1, 1, n)) for n in range(6, 12)]
    for n in range(6, 12):
        po += [waitl(("OR", b + 1, 1, n)), ostore(Z[n], 1, n, [("OR", b + 1, 1, n)], True)]
    ALT_P[0] = False
    u.wins = sorted(set(list(start.values()) + list(sumgap.values()) + [start[2] + 15, start[4] + 15, kA + 9]))
    u.post += stamp(16) + stamp(17, True)
    if OPT["stamp"]:
        u.post += [I("s_waitcnt vmcnt(0)", "salu")] + stamp(18) + stamp(19, True)
    if OPT.get("dbg"):
        u.post += [I("s_cmp_ge_u32 s2, 8", "salu"), I("s_cbranch_scc1 L_end", "branch"),
                   I(f"s_cmp_lg_u32 {sW}, 0", "salu"), I("s_cbranch_scc1 L_end", "branch"),
                   I("s_waitcnt vmcnt(0)", "salu"), I(f"s_memrealtime {sStamp}", "salu"), I(f"s_memtime {sPC}", "salu"),
                   I("s_waitcnt lgkmcnt(0)", "salu"),
                   salu("s_mov_b32", srdD[2], "256"), salu("s_mov_b32", srdD[3], "0x00020000"),
                   I("s_mov_b64 exec, 1", "salu"),
                   salu("s_sub_u32", sTmp, sStamp[0], s(94)), salu("s_sub_u32", sH, s(98), s(94)),
                   salu("s_mul_i32", sH, sH, "100000"), salu("s_add_u32", sTmp, sTmp, sH),
                   valu("v_mov_b32", v(34), sTmp),
                   salu("s_sub_u32", sTmp, sPC[0], s(96)), valu("v_mov_b32", v(35), sTmp),
                   salu("s_lshl_b32", sTmp, "s2", "3"),
                   I(f"buffer_store_dwordx2 {v(34, 2)}, off, {srdD}, {sTmp}", "vmem", rd=[srdD])]
    u.post += [label("L_end"), I("s_endpgm", "branch")]
    return u


def build(extra):
    cache = {}

    def get(name, fn, first):
        u = fn()
        ins = u.schedule(budget=8, window=50, pk_at=20, verbose=first and VERB)
        out = []
        for idx, i in enumerate(ins):
            n = extra.get((name, idx), 0)
            if n:
                out.append(((name, idx, "nop"), nop(n - 1)))
            out.append(((name, idx), i))
        if first:
            cache[name] = out
        return out

    trace = list(get("PRO", unit_pro, True))
    for b in range(3):
        for t in range(1, 15 if b < 2 else 12):
            trace += get(f"T{t}", lambda: unit_mid(b, t), b == 0)
        if b < 2:
            trace += get("X", lambda: unit_x(b), b == 0)
    trace += get("FIN", lambda: unit_fin(2), True)
    order = ["PRO"] + [f"T{t}" for t in range(1, 15)] + ["X", "FIN"]
    return [(n, cache[n]) for n in order], trace


VERB = False
extra = {}
for it in range(60):
    static, trace = build(extra)
    hz = hazards([i for _, i in trace])
    if not hz:
        break
    upd = {}
    lastj = -100
    for j, need, why in hz:
        key = trace[j][0]
        if j != lastj and j - lastj < 24:
            continue
        lastj = j
        upd[key] = max(upd.get(key, 0), need)
        if OPT.get("showhz"):
            print("; hazard:", key, need, why, file=sys.stderr)
    for k, n in upd.items():
        extra[k] = extra.get(k, 0) + n
else:
    raise SystemExit("hazards did not converge")
if OPT.get("verb"):
    VERB = True
    _so = sys.stdout
    sys.stdout = sys.stderr
    build(extra)
    sys.stdout = _so
    print("; nops inserted:", extra, file=sys.stderr)
W = resolve_waits(trace)
_bad = check_coverage(trace, W)
assert not _bad, _bad[:10]
if OPT.get("verb") and "_mismatch" in W:
    print("; wait mismatches:", W["_mismatch"], file=sys.stderr)

out = []
A = out.append
A(open(os.path.join(os.path.dirname(os.path.abspath(__file__)), "header.txt")).read().rstrip())
A(f"; @launch grid=(256,1,1) block=(256,1,1) lds={LDS_BYTES}")
A('.amdgcn_target "amdgcn-amd-amdhsa--gfx950"')
A(".text")
A(f".globl {KNAME}")
A(".p2align 8")
A(f".type {KNAME},@function")
A(f"{KNAME}:")
for name, ins in static:
    A(f"; ---- {name} ----")
    for key, i in ins:
        t = i.text
        if i.kind == "wait":
            l, vv = W[key]
            t = "s_waitcnt " + (f"lgkmcnt({l})" if l is not None else f"vmcnt({vv})")
        abl = OPT.get("abl", "")
        if abl and name not in ("PRO",):
            tx = i.text
            if "c" in abl and "s_cbranch_vccnz" in tx:
                t = "s_nop 0"
            if "b" in abl and i.kind == "barrier":
                t = "s_nop 0"
            if "k" in abl and i.kind == "vmem" and (str(srdK) in tx or str(srdV) in tx):
                t = "s_nop 1"
            if "w" in abl and i.kind == "wait" and i.waitl is not None:
                t = "s_nop 0"
            if "W" in abl and i.kind == "wait" and i.waitv is not None:
                t = "s_nop 0"
            if "s" in abl and i.kind == "vmem" and (str(srdQ) in tx or str(srdO) in tx):
                t = "s_nop 1"
            if "z" in abl and "ds_write" in tx:
                t = "s_nop 1"
        if OPT.get("e64") and re.match(r"v_(exp_f32|add_f32|mul_f32|mov_b32|xor_b32|max_f32|rcp_f32) ", t) and "96" not in t.split(",")[1]:
            t = t.replace(" ", "_e64 ", 1)
        A(t if i.kind == "label" else "    " + t)
for name, x, par in TRAMPS:
    A(f"L_tr_{name}:")
    A(f"    s_call_b64 {sRet}, L_rare_{'AB'[x]}{par}")
    A(f"    s_branch L_ret_{name}")
for x, par in ((0, 0), (0, 1), (1, 0), (1, 1), (1, 3)):
    if True:
        ALT_P[0] = par == 3
        r = rare(x, par)
        ALT_P[0] = False
        hz = hazards(r)
        assert not hz, hz
        for i in r:
            A(i.text if i.kind == "label" else "    " + i.text)
A("L_code_end:")
A("    s_endpgm")
A(f""".section .rodata,"a"
.p2align 6
.amdhsa_kernel {KNAME}
  .amdhsa_next_free_vgpr 512
  .amdhsa_next_free_sgpr 102
  .amdhsa_accum_offset 256
  .amdhsa_group_segment_fixed_size 0
  .amdhsa_kernarg_size 48
  .amdhsa_user_sgpr_count 2
  .amdhsa_user_sgpr_kernarg_segment_ptr 1
  .amdhsa_system_sgpr_workgroup_id_x 1
  .amdhsa_float_denorm_mode_32 3
.end_amdhsa_kernel""")
print("\n".join(out))
```

```python
import sys, struct, math, os, re
sys.path.insert(0, os.path.dirname(os.path.abspath(__file__)))
import asmlib
from asmlib import *

asmlib.COST.update(vmem=8, barrier=8)
KNAME = "standalone__gqa_softmax__near_ridge_kernel"
OPT = dict(
    sgaps=[[20, 28, 36], [74, 82, 90]],
    oa_slots=[3, 4, 6, 8], ob_slots=[11, 13, 15, 18], qa_slots=[10, 12, 14, 16], qb_slots=[21, 22, 23, 24],
    oa_rd=[(1, g) for g in (1, 17, 25, 33, 41, 45, 59, 67)] + [(2, g) for g in (1, 9, 17, 22)],
    ob_rd=[(3, g) for g in (71, 75, 79, 83, 87, 91)] + [(4, g) for g in (1, 9, 17, 25, 33, 41)],
    qar_iter=10,
    kgaps=[4, 8, 12], vgaps=[48, 58, 66],
    bar_gap=98,
    wper=3, look=5,
    thr=4096.0,
    stamp=0,
    codewarm=1,
    pk=1,
    kv_nt=" nt", q_nt=" nt", o_nt=" sc1",
)
for a in sys.argv[1:]:
    if "=" in a:
        k, v = a.split("=", 1)
        OPT[k] = eval(v)

TILE = 12288
KSLOT = [0, 1, 2, 3] * 4
VSLOT = [0, 1, 2, 3] * 4
KBASE, VBASE, STAGE, SPARE = 0, 4 * TILE, 8 * TILE, 12 * TILE
LDS_BYTES = 13 * TILE
KD, VD = 4, 3
RING = 6
P2 = 50
NG = 100


def f2u(x):
    return struct.unpack("<I", struct.pack("<f", x))[0]


v = lambda lo, n=1: Reg("v", lo, n)
a = lambda lo, n=1: Reg("a", lo, n)
s = lambda lo, n=1: Reg("s", lo, n)

vLin = v(1)
vK = [v(2), v(3)]
vV = [v(4 + i) for i in range(4)]
vD = [v(8 + i) for i in range(3)]
vDO = [v(11 + i) for i in range(3)]
vS = [v(14), v(15)]
rinv = [v(16 + 2 * i) for i in range(4)]
rinv2 = [v(16 + 2 * i, 2) for i in range(4)]
lsum = [v(17 + 2 * i) for i in range(4)]
negmc = [v(24 + i) for i in range(4)]
TS = v(28, 4)
vOW = v(32)
E = [v(33), v(34), v(35)]
X = [v(36), v(37), v(38), v(39), v(0)]
PA = [v(40, 8), v(48, 8)]
PB = v(56, 8)
SA = v(64, 16)
SB = [v(80, 16), v(96, 16)]
OA = v(112, 96)
STG = v(208, 48)
OB = a(0, 96)
Qc = a(96, 96)
FR = [a(192 + 4 * i, 4) for i in range(RING)]
SQ = [a(216 + 4 * i, 4) for i in range(8)]
JUNK = SQ[7]
ONES = [a(248, 4), a(252, 4)]
OX = [OA, OB]

ptrQ, ptrK, ptrV, ptrO = s(4, 2), s(6, 2), s(8, 2), s(10, 2)
srdK, srdV, srdQ, srdO = s(12, 4), s(16, 4), s(20, 4), s(24, 4)
sBG, sH, sKO, sQO, sQOcur, sNrec, sTrip, sC, sNegC, sThr, sMagic, sW = [s(28 + i) for i in range(12)]
sRet = s(40, 2)
m0K = [s(42 + i) for i in range(4)]
sStage, sQB = s(46), s(47)
m0V = [s(48 + i) for i in range(4)]
sT = ["0"] + [s(51 + t) for t in range(1, 16)]
srdD = s(68, 4)
sStamp = s(72, 2)
sPC = s(76, 2)
sG = [[s(80 + 4 * x + j) for j in range(4)] for x in range(2)]
sM = [s(88 + j) for j in range(4)]
sTmp = s(92)

SCALE_C = math.log2(math.e) / math.sqrt(192.0)


def Qreg(qb, ks):
    return Qc[(qb * 6 + ks) * 4: (qb * 6 + ks) * 4 + 4]


def Otile(qb, dt):
    n = (dt * 2 + qb % 2) * 4
    return OX[qb // 2][n: n + 4]


def Sbuf(x, tile):
    return SA if x == 0 else SB[tile % 2]


ALT_P = [False]


def Pbuf(x, tile):
    if x == 1 and ALT_P[0] and tile % 2 == 1:
        return PA[1]
    return PA[tile % 2] if x == 0 else PB


def dma(srd, soff, c, tag):
    off = f" offset:{c * 1024}" if c else ""
    return I(f"buffer_load_dwordx4 {vD[c]}, {srd}, {soff} offen{off}{OPT['kv_nt']} lds", "vmem",
             rd=[vD[c], srd, soff, "m0"], tag=tag)


def setm0(x):
    return salu("s_mov_b32", "m0", x)


def qdma(x, jj, c, tag, need=None):
    off = f" offset:{c * 1024}" if c else ""
    return I(f"buffer_load_dwordx4 {vD[c]}, {srdQ}, {sG[x][jj]} offen{off}{OPT['q_nt']} lds", "vmem",
             rd=[vD[c], srdQ, sG[x][jj], "m0"], tag=tag, needl=need)


def qread(dst, n, addr, tag, need=None):
    q, ks = n // 6, n % 6
    off = q * 6144 + (ks // 2) * 128
    return I(f"ds_read_b128 {dst}, {addr[ks % 2]} offset:{off}", "ds", rd=[addr[ks % 2]], wr=[dst], tag=tag, needv=need)


def oaddr(e):
    if e == 0:
        return vOW, []
    return E[2], [valu("v_xor_b32", E[2], str(e * 32), vOW)]


def owrite(src, addr, q, dt):
    off = q * 6144 + (dt // 4) * 128
    return I(f"ds_write_b64 {addr}, {src} offset:{off}", "ds", rd=[addr, src], cost=OPT.get("wcost", 12), flags=["head"])


def oread(dst, idx, tag):
    return I(f"ds_read_b128 {dst}, {vLin} offset:{idx * 1024}", "ds", rd=[vLin], wr=[dst], tag=tag)


def ostore(src, x, idx, need, fin=False):
    jj, c = idx // 3, idx % 3
    off = f" offset:{c * 1024}" if c else ""
    fl = OPT.get("of_nt" + "ab"[x], OPT["o_nt"]) if fin else OPT["o_nt"]
    return I(f"buffer_store_dwordx4 {src}, {vDO[c]}, {srdO}, {sG[x][jj]} offen{off}{fl}", "vmem",
             rd=[src, vDO[c], srdO, sG[x][jj]], flags=["wide"], cost=16, needl=need)


def obuf(x, idx):
    if x == 1:
        return STG[4 * idx: 4 * idx + 4]
    return SQ[idx % 8]


def kread(g, f, tile):
    kh, ks = (f % 12) // 6, f % 6
    off = KBASE + KSLOT[tile % 16] * TILE + kh * 6144 + (ks // 2) * 128
    d = FR[f % RING]
    return [I(f"ds_read_b128 {d}, {vK[ks % 2]} offset:{off}", "ds", rd=[vK[ks % 2]], wr=[d], tag=("F", g, f))]


def vread(g, f, tile):
    dt = f % 12
    d = FR[f % RING]
    out = []
    for jj in range(2):
        off = VSLOT[tile % 16] * TILE + jj * 6144 + (dt // 4) * 128
        out.append(I(f"ds_read_b64_tr_b16 {d[2 * jj:2 * jj + 2]}, {vV[dt % 4]} offset:{off}", "ds", rd=[vV[dt % 4]],
                     wr=[d[2 * jj:2 * jj + 2]], tag=("F", g, f) if jj == 1 else None))
    return out


def swap32(u, w):
    return I(f"v_permlane32_swap_b32 {u}, {w}", "valu", rd=[u, w], wr=[u, w], cost=8)


def swap16(u, w):
    return I(f"v_permlane16_swap_b32 {u}, {w}", "valu", rd=[u, w], wr=[u, w], cost=8)


def max_tree(S, u, w):
    o = []
    for a0, a1, a2, first in ((0, 1, 2, True), (3, 4, None, False), (5, 6, None, False)):
        for r, b in ((u, 0), (w, 8)):
            if first:
                o.append(valu("v_max3_f32", r, S[b + a0], S[b + a1], S[b + a2]))
            else:
                o.append(valu("v_max3_f32", r, r, S[b + a0], S[b + a1]))
    o += [valu("v_max_f32", u, u, S[7]), valu("v_max_f32", w, w, S[15])]
    return o


def reduce2(op, u, w):
    return [nop(1), swap32(u, w), valu(op, u, u, w), valu("v_mov_b32", w, u), nop(1), swap16(u, w), valu(op, u, u, w)]


def max_init(x, S):
    u, w = E[0], E[1]
    n0, n1 = negmc[2 * x], negmc[2 * x + 1]
    return max_tree(S, u, w) + reduce2("v_max_f32", u, w) + [
        valu("v_mul_f32", n0, sNegC, u), valu("v_mul_f32", n1, sNegC, u), nop(1), swap32(n0, n1)]


XPOS = [0]


def exp_stream(x, S, P, order=range(16), late=None):
    out = []
    order = list(order)
    p0 = XPOS[0]
    N = len(order)
    XPOS[0] = (p0 + N) % len(X)
    T = lambda n: X[(p0 + n) % len(X)]
    for n in range(N + 2):
        if n < N:
            i = order[n]
            f = valu("v_fma_f32", T(n), S[i], sC, negmc[2 * x + i // 8])
            if late is not None and i % 8 >= 4:
                f.earliest = late
            out.append(f)
        if 0 <= n - 1 < N:
            out.append(trans("v_exp_f32", T(n - 1), T(n - 1)))
        j = n - 2
        if 0 <= j < N and j % 2 == 1:
            out.append(valu("v_cvt_pk_bf16_f32", P[order[j] // 2], T(j - 1), T(j)))
    return out


TRAMPS = []
KH0_FIRST = [0, 1, 2, 3, 8, 9, 10, 11, 4, 5, 6, 7, 12, 13, 14, 15]


def softmax(x, tile, late=None):
    S, P = Sbuf(x, tile), Pbuf(x, tile)
    if tile == 0:
        return max_init(x, S) + exp_stream(x, S, P)
    return exp_stream(x, S, P, KH0_FIRST if late is not None else range(16), late)


def sum_mfma(x, tile):
    P = Pbuf(x, tile)
    return [mfma(TS, ONES[0], P[0:4], 0), mfma(TS, ONES[1], P[4:8], TS)]


def check(x, tile, site):
    if tile == 0:
        return [], [], [valu("v_mov_b32", lsum[2 * x + i], TS[i]) for i in range(2)]
    par = tile % 2
    if x == 1 and ALT_P[0] and par == 1:
        par = 3
    name = f"{site}_{'AB'[x]}"
    if (name, x, par) not in TRAMPS:
        TRAMPS.append((name, x, par))
    return ([I(f"v_cmp_nge_f32 vcc, {sThr}, {TS[2]}", "valu", rd=[sThr, TS[2]], wr=["vcc"])],
            [I(f"s_cbranch_vccnz L_tr_{name}", "branch", rd=["vcc"]), label(f"L_ret_{name}")],
            [valu("v_add_f32", lsum[2 * x + i], lsum[2 * x + i], TS[i]) for i in range(2)])


def rinv_stream(x):
    u, w = lsum[2 * x], lsum[2 * x + 1]
    r0, r1 = rinv[2 * x], rinv[2 * x + 1]
    return reduce2("v_add_f32", u, w) + [trans("v_rcp_f32", r0, u), trans("v_rcp_f32", r1, u), nop(1), swap32(r0, r1)]


def scale2(R, qb):
    if OPT["pk"]:
        return [I(f"v_pk_mul_f32 {R}, {R}, {rinv2[qb]} op_sel_hi:[1,0]", "valu", rd=[R, rinv[qb]], wr=[R], flags=["pk"])]
    return [valu("v_mul_f32", R[0], R[0], rinv[qb]), valu("v_mul_f32", R[1], R[1], rinv[qb])]


def epi_a(tt):
    O = OA[16 * tt: 16 * tt + 16]
    m = []
    for i in range(8):
        m += scale2(O[2 * i: 2 * i + 2], (i // 2) % 2)
    c = [valu("v_cvt_pk_bf16_f32", O[i], O[2 * i], O[2 * i + 1]) for i in range(8)]
    w = []
    for n in range(4):
        dt, q = 2 * tt + n // 2, n % 2
        ad, pre = oaddr(dt % 4)
        if q == 0:
            w += pre
        wr = owrite(O[2 * n: 2 * n + 2], ad, q, dt)
        wr.after = c[2 * n + 1]
        w.append(wr)
    return m, c, w


def epi_b(tt, half, T):
    O = OB[16 * tt: 16 * tt + 16]
    D = STG[tt * 8: tt * 8 + 8]
    r = [valu("v_accvgpr_read_b32", T[i], O[8 * half + i]) for i in range(8)]
    m = []
    for i in range(4):
        m += scale2(T[2 * i: 2 * i + 2], 2 + i // 2)
    c = [valu("v_cvt_pk_bf16_f32", D[4 * half + i], T[2 * i], T[2 * i + 1]) for i in range(4)]
    return r, m, c


def ob_writes(es):
    w = []
    for e in es:
        ad, pre = oaddr(e)
        w += pre
        for dt in (e, e + 4, e + 8):
            for q in range(2):
                n = (dt * 2 + q) * 2
                w.append(owrite(STG[n: n + 2], ad, q, dt))
    return w


def setw(items, earliest=None, latest=None):
    for i in items:
        if latest is not None:
            i.latest = latest if i.latest is None else min(i.latest, latest)
    if earliest is not None:
        items[0].earliest = earliest
    return items


def rare(x, par):
    S, P = Sbuf(x, par), Pbuf(x, par)
    u, w = E[0], E[1]
    f = [u, w]
    n = [negmc[2 * x], negmc[2 * x + 1]]
    o = [label(f"L_rare_{'AB'[x]}{par}"), nop(15)]
    o += max_tree(S, u, w)
    o += [valu("v_fma_f32", u, u, sC, n[0]), valu("v_fma_f32", w, w, sC, n[1])]
    o += reduce2("v_max_f32", u, w)
    o += [valu("v_max_f32", u, "0", u), valu("v_mov_b32", w, u), nop(1), swap32(u, w),
          valu("v_sub_f32", n[0], n[0], u), valu("v_sub_f32", n[1], n[1], w),
          trans("v_exp_f32", u, f"-{u}", extra_rd=[u]), trans("v_exp_f32", w, f"-{w}", extra_rd=[w]), nop(0),
          valu("v_mul_f32", lsum[2 * x], lsum[2 * x], u), valu("v_mul_f32", lsum[2 * x + 1], lsum[2 * x + 1], w)]
    O = OX[x]
    for i in range(96):
        ff = f[(i // 4) % 2]
        if O.f == "a":
            tt = P[i % 4]
            o += [valu("v_accvgpr_read_b32", tt, O[i]), valu("v_mul_f32", tt, tt, ff),
                  valu("v_accvgpr_write_b32", O[i], tt)]
        else:
            o.append(valu("v_mul_f32", O[i], O[i], ff))
    o += [valu("v_fma_f32", S[i], S[i], sC, n[i // 8]) for i in range(16)]
    o += [trans("v_exp_f32", S[i], S[i]) for i in range(16)]
    o += [valu("v_cvt_pk_bf16_f32", P[i], S[2 * i], S[2 * i + 1]) for i in range(8)]
    o += [nop(1)] + sum_mfma(x, par)
    o += [nop(15), I(f"s_setpc_b64 {sRet}", "branch", rd=[sRet])]
    return o


def qk_mfma(tile, f, qb, fr):
    kh, ks = f // 6, f % 6
    n = (qb % 2) * 8 + kh * 4
    d = Sbuf(qb // 2, tile)[n: n + 4]
    return mfma(d, fr, Qreg(qb, ks), d if ks else 0)


def pv_mfma(t, dt, qb, fr, zero):
    o = Otile(qb, dt)
    p = Pbuf(qb // 2, t)[4 * (qb % 2): 4 * (qb % 2) + 4]
    return mfma(o, fr, p, 0 if zero else o)


def frag_read(g, t, f):
    if f < 12:
        return kread(g, f, t + 1)
    if f < 24:
        return vread(g, f, t)
    return kread(g + 1, f - 24, t + 2)


def ftag(g, f):
    return ("F", g, f) if f < 24 else ("F", g + 1, f - 24)


def stamp(idx, real=False):
    if not OPT["stamp"]:
        return []
    if OPT["stamp"] == 2 and idx not in (0, 1, 15, 16, 17, 18, 19, 56, 60, 61):
        return []
    op = "s_memrealtime" if real else "s_memtime"
    return [I(f"{op} {sStamp}", "salu", wr=[sStamp]), I("s_waitcnt lgkmcnt(0)", "salu"),
            valu("v_mov_b32", E[0], sStamp[0]),
            I(f"buffer_store_dword {E[0]}, off, {srdD}, {sH} offset:{idx * 4}", "vmem", rd=[E[0], srdD])]


def add_iter(u, b, t, site):
    g = b * 16 + t
    base = len(u.heads)
    tn = (t + 1) % 16
    lastuse = {}
    NR = OPT.get("nr", 3)
    seq = [(f, qb) for f in range(NR) for qb in (2, 3)] + [(f, qb) for f in range(NR) for qb in (0, 1)] + \
          [(f, qb) for f in range(NR, 12) for qb in range(4)]
    for f, qb in seq:
        m = qk_mfma(tn, f, qb, FR[f % RING])
        m.needl = [("F", g, f)] + ([("QB", b + 1, (qb - 2) * 6 + f % 6)] if tn == 0 and qb >= 2 else [])
        lastuse[f] = u.add_gap(m)
    for m in sum_mfma(1, t):
        u.add_gap(m)
    seq = [(f, qb) for f in range(NR) for qb in (0, 1)] + [(f, qb) for f in range(NR) for qb in (2, 3)] + \
          [(f, qb) for f in range(NR, 12) for qb in range(4)]
    for dt, qb in seq:
        m = pv_mfma(t, dt, qb, FR[(12 + dt) % RING], t == 0)
        m.needl = [("F", g, 12 + dt)]
        lastuse[12 + dt] = u.add_gap(m)
    for m in sum_mfma(0, tn):
        u.add_gap(m)
    wp = OPT["wper"]
    for f in range(24):
        k = lastuse[f]
        rd = frag_read(g, t, f + RING)
        u.pin[k] += rd
        if (f + 1) % wp == 0:
            kw = k + 2 if f in (11, 23) else (k if len(rd) == 1 else k - 1)
            u.pin[kw].append(waitl(*[ftag(g, f + 1 + i) for i in range(wp)]))
    for x, k in ((0, base), (1, base + P2)):
        c, br, lu = check(x, t, site)
        u.tail[k + OPT.get("cmpgap", 2)] += c
        kb = k + 2 * NR - 1
        if OPT.get("brhead"):
            u.pin[kb] = br + u.pin[kb]
        else:
            u.tail[kb] += br
        u.streams.append(Stream(lu, kb + 1, kb + 3, prio=0.5))
    tk, tv = (t + KD) % 16, (t + VD) % 16
    u.pin[base + OPT["kgaps"][0] - 2].append(setm0(m0K[KSLOT[tk]]))
    for c, k in enumerate(OPT["kgaps"]):
        u.pin[base + k].append(dma(srdK, sT[tk], c, ("K", g + KD)))
    u.pin[base + OPT["vgaps"][0] - 3].append(setm0(m0V[VSLOT[tv]]))
    for c, k in enumerate(OPT["vgaps"]):
        u.pin[base + k].append(dma(srdV, sT[tv], c, ("V", g + VD)))
    for x, key in ((0, "oa_rd"), (1, "ob_rd")):
        for idx, (tt, k) in enumerate(OPT[key]):
            if tt == t:
                u.pin[base + k].append(oread(obuf(x, idx), idx, ("OR", b, x, idx)))
    if t in (2, 3):
        st = Stream(ob_writes((0, 1)), base + 23, base + 97) if t == 2 else Stream(ob_writes((2, 3)), base + 0, base + 70)
        st.pace = OPT.get("pace", 1)
        u.streams.append(st)
    for half in range(2):
        n = 2 * t + half
        gaps = OPT["sgaps"][half]
        for x, key in ((0, "oa_slots"), (1, "ob_slots")):
            if n in OPT[key]:
                jj = OPT[key].index(n)
                for c, k in enumerate(gaps):
                    idx = jj * 3 + c
                    u.pin[base + k].append(ostore(obuf(x, idx), x, idx, [("OR", b, x, idx)]))
        for x, key in ((0, "qa_slots"), (1, "qb_slots")):
            if n in OPT[key]:
                jj = OPT[key].index(n)
                u.pin[base + gaps[0] - 3].append(setm0(sM[jj]))
                need = [("OR", b, 1, 11)] if x == 0 else [("QA", b + 1, 11)]
                for c, k in enumerate(gaps):
                    u.pin[base + k].append(qdma(x, jj, c, ("QD", b + 1, x), need))
    if t == OPT["qar_iter"]:
        u.pin[base + 0].append(waitv(("QD", b + 1, 0)))
        for n in range(12):
            u.pin[base + 1 + 4 * n].append(qread(STG[n * 4: n * 4 + 4], n, vS, ("QA", b + 1, n), [("QD", b + 1, 0)]))
    if t == 14:
        u.pin[base + P2].append(waitv(("QD", b + 1, 1)))
        for i, n in enumerate([0, 6, 1, 7, 2, 8, 3, 9, 4, 10, 5, 11]):
            u.pin[base + P2 + 1 + 4 * (i // 2) + (8 if i >= 2 else 0)].append(
                qread(Qreg(2 + n // 6, n % 6), n, vS, ("QB", b + 1, n), [("QD", b + 1, 1)]))
    u.pin[base + OPT["bar_gap"]] += [waitv(("K", g + 3), ("V", g + 1)), barrier()]
    XPOS[0] = 0
    sb = setw(softmax(1, t), latest=base + 46)
    sa = softmax(0, tn, late=base + 49)
    sa[0].earliest = base + (P2 + 2 * NR if tn == 0 else 30)
    u.streams.append(Stream(sb + sa, base + 0, base + 96, prio=0.05, look=OPT["look"]))
    if t == 1:
        sl = [salu("s_mov_b32", sQOcur, sQO),
              salu("s_add_u32", sBG, sBG, "32", scc_w=True),
              salu("s_mul_hi_u32", sKO, sBG, sMagic),
              salu("s_mul_i32", sKO, sKO, "196608"),
              salu("s_mul_i32", sQO, sBG, "98304"),
              I(f"s_cmp_lt_u32 {sTrip}, 2", "salu", rd=[sTrip], wr=["scc"]),
              salu("s_cselect_b32", sNrec, "196608", "0", scc_r=True),
              salu("s_cselect_b32", srdQ[2], "98304", "0", scc_r=True),
              salu("s_add_u32", srdQ[0], ptrQ[0], sQO, scc_w=True),
              salu("s_addc_u32", srdQ[1], ptrQ[1], "0", scc_w=True, scc_r=True)]
        u.streams.append(Stream(sl, base + 24, base + 80))
    if t == 15 - KD:
        sl = [salu("s_add_u32", srdK[0], ptrK[0], sKO, scc_w=True),
              salu("s_addc_u32", srdK[1], ptrK[1], "0", scc_w=True, scc_r=True),
              salu("s_mov_b32", srdK[2], sNrec)]
        u.streams.append(Stream(sl, base + OPT["kgaps"][-1] + 1, base + 90))
    if t == 15 - VD:
        sl = [salu("s_add_u32", srdV[0], ptrV[0], sKO, scc_w=True),
              salu("s_addc_u32", srdV[1], ptrV[1], "0", scc_w=True, scc_r=True),
              salu("s_mov_b32", srdV[2], sNrec)]
        u.streams.append(Stream(sl, base + OPT["vgaps"][-1] + 1, base + 90))
    return base


def qcopy(base):
    out = []
    for ks in range(6):
        for q in range(2):
            for i in range(4):
                out.append(valu("v_accvgpr_write_b32", Qreg(q, ks)[i], STG[(q * 6 + ks) * 4 + i],
                                earliest=base + 4 * (6 + ks) + q))
    return out


def set_osrd():
    return [salu("s_add_u32", srdO[0], ptrO[0], sQOcur, scc_w=True),
            salu("s_addc_u32", srdO[1], ptrO[1], "0", scc_w=True, scc_r=True),
            salu("s_mov_b32", srdO[2], "98304")]


def unit_mid(b, t):
    u = Unit(f"T{t}")
    if t == 1:
        u.pre.append(label("L_loop"))
    u.pre += stamp(t)
    base = add_iter(u, b, t, f"T{t}")
    if t == 14:
        u.streams.append(Stream(qcopy(base), base + 24, base + 99))
    if t == 11:
        u.tail[base + 96].append(I(f"s_cmp_eq_u32 {sTrip}, 2", "salu", rd=[sTrip], wr=["scc"]))
        u.post += [I("s_cbranch_scc1 L_fin", "branch", rd=["scc"])]
    return u


def unit_x(b):
    u = Unit("X")
    u.pre += stamp(15)
    b15 = add_iter(u, b, 15, "T15")
    b0 = add_iter(u, b + 1, 0, "T0")
    u.streams.append(Stream(rinv_stream(0), b15 + 9, b15 + 40))
    u.streams.append(Stream(rinv_stream(1), b15 + P2 + 9, b15 + P2 + 15, prio=0.5))
    ep, wr = [], []
    for tt in range(6):
        O = OA[16 * tt: 16 * tt + 16]
        dl = b0 + P2 + (8 * tt if tt != 1 else 4) - 1
        m, c, w = epi_a(tt)
        r0, m0_, c0 = epi_b(tt, 0, O[8:16])
        r1, m1_, c1 = epi_b(tt, 1, O[8:16])
        setw(m, earliest=b15 + P2 + 8 * tt + 9)
        setw(r0, earliest=b15 + P2 + max(16, 8 * tt + 9))
        ep += setw(m + c + r0 + m0_ + c0 + r1 + m1_ + c1, latest=dl)
        wr += setw(w, latest=dl)
    u.streams.append(Stream(ep, b15 + P2 + 9, b0 + P2 + 39))
    u.streams.append(Stream(wr, b15 + P2 + 9, b0 + P2 + 39))
    u.streams.append(Stream(set_osrd(), b15 + 16, b15 + 44))
    sl = [salu("s_add_u32", sTrip, sTrip, "1", scc_w=True)]
    if OPT["stamp"]:
        sl.append(salu("s_add_u32", sH, sH, "64", scc_w=True))
    u.streams.append(Stream(sl, b0 + 4, b0 + 80))
    u.post.append(I("s_branch L_loop", "branch"))
    return u


def unit_pro():
    u = Unit("PRO")
    P = u.pre
    tid, lane, i16, G, t0, t1, t2 = v(0), X[0], X[1], X[2], X[3], E[0], E[1]
    P += [I("s_cmp_ge_u32 s2, 256", "salu", rd=["s2"], wr=["scc"]),
          I("s_cbranch_scc1 L_end", "branch", rd=["scc"]),
          I("s_load_dwordx4 s[4:7], s[0:1], 0", "salu", wr=[s(4, 4)]),
          I("s_load_dwordx4 s[8:11], s[0:1], 16", "salu", wr=[s(8, 4)])]
    warm = []
    if OPT["codewarm"]:
        P += [I(f"s_getpc_b64 {sPC}", "salu", wr=[sPC]),
              label("L_pc"),
              I(f"s_sub_u32 {sPC[0]}, {sPC[0]}, L_pc-{KNAME}", "salu", rd=[sPC], wr=[sPC, "scc"]),
              I(f"s_subb_u32 {sPC[1]}, {sPC[1]}, 0", "salu", rd=[sPC, "scc"], wr=[sPC, "scc"]),
              salu("s_lshr_b32", sH, "s2", "3", scc_w=True),
              salu("s_lshl_b32", sH, sH, "11", scc_w=True),
              valu("v_lshlrev_b32", E[2], "3", tid),
              valu("v_add_u32", E[2], sH, E[2]),
              I(f"v_min_u32 {E[2]}, L_code_end-{KNAME}-8, {E[2]}", "valu", rd=[E[2]], wr=[E[2]])]
        warm = [I(f"global_load_dwordx2 {JUNK[0:2]}, {E[2]}, {sPC}", "vmem", rd=[E[2], sPC], wr=[JUNK[0:2]])]
        if OPT["codewarm"] == 1:
            P += warm
            warm = []
    if OPT["stamp"]:
        P += [I(f"s_load_dwordx2 {srdD[0:2]}, s[0:1], 40", "salu"), I(f"s_memrealtime {s(94, 2)}", "salu")]
    if OPT.get("dbg"):
        P += [I(f"s_load_dwordx2 {srdD[0:2]}, s[0:1], 32", "salu"), I(f"s_memrealtime {s(94, 2)}", "salu"),
              I(f"s_memtime {s(96, 2)}", "salu")]
    P += [valu("v_lshrrev_b32", t0, "6", tid), valu("v_and_b32", lane, "63", tid),
          I(f"v_readfirstlane_b32 {sW}, {t0}", "valu", rd=[t0], wr=[sW]),
          valu("v_lshlrev_b32", t1, "4", lane)]
    P += [salu("s_and_b32", sBG, "s2", "7", scc_w=True),
          salu("s_mul_i32", sBG, sBG, "96"),
          salu("s_lshr_b32", sH, "s2", "3", scc_w=True),
          salu("s_add_u32", sBG, sBG, sH, scc_w=True),
          salu("s_mov_b32", sMagic, "0x55555556"),
          salu("s_mul_hi_u32", sKO, sBG, sMagic),
          salu("s_mul_i32", sKO, sKO, "196608"),
          salu("s_mul_i32", sQO, sBG, "98304")]
    P += [salu("s_mov_b32", sQB, str(VBASE + 2 * TILE)),
          I(f"s_cmp_eq_u32 {sW}, 0", "salu", rd=[sW], wr=["scc"]),
          salu("s_cselect_b32", sQB, str(KBASE + 3 * TILE), sQB, scc_r=True),
          I(f"s_cmp_eq_u32 {sW}, 2", "salu", rd=[sW], wr=["scc"]),
          salu("s_cselect_b32", sQB, str(VBASE + 3 * TILE), sQB, scc_r=True),
          I(f"s_cmp_eq_u32 {sW}, 3", "salu", rd=[sW], wr=["scc"]),
          salu("s_cselect_b32", sQB, str(SPARE), sQB, scc_r=True),
          salu("s_mul_i32", sW, sW, "3072")]
    late = []
    for c in range(3):
        P += [valu("v_add_u32", t0, str(c * 1024), t1),
              valu("v_lshrrev_b32", t2, "7", t0),
              valu("v_mul_u32_u24", t2, "171", t2),
              valu("v_lshrrev_b32", vDO[c], "9", t2),
              valu("v_and_b32", vD[c], "6", vDO[c]),
              valu("v_lshlrev_b32", vD[c], "4", vD[c]),
              valu("v_xor_b32", vD[c], vD[c], t1),
              valu("v_add_u32", vD[c], sW, vD[c])]
        late += [valu("v_lshlrev_b32", vDO[c], "4", vDO[c]),
                 valu("v_xor_b32", vDO[c], vDO[c], t1),
                 valu("v_add_u32", vDO[c], sW, vDO[c])]
    P += [salu("s_lshl_b32", sStage, sW, "2", scc_w=True),
          salu("s_add_u32", sStage, sStage, str(STAGE), scc_w=True),
          salu("s_mul_i32", sH, sW, "7")]
    for jj in range(4):
        P += [salu("s_add_u32", sM[jj], sStage, str(jj * 3072), scc_w=True),
              salu("s_add_u32", sG[0][jj], sH, str(jj * 3072), scc_w=True),
              salu("s_add_u32", sG[1][jj], sH, str(jj * 3072 + TILE), scc_w=True)]
    P += [I("s_waitcnt lgkmcnt(0)", "salu")]

    def mksrd(srd, ptr, off, n):
        return [salu("s_add_u32", srd[0], ptr[0], off, scc_w=True),
                salu("s_addc_u32", srd[1], ptr[1], "0", scc_w=True, scc_r=True),
                salu("s_mov_b32", srd[2], str(n)), salu("s_mov_b32", srd[3], "0x00020000")]

    def ktile(t):
        return [setm0(m0K[KSLOT[t]]), nop(0)] + [dma(srdK, sT[t], c, ("K", t)) for c in range(3)]

    def vtile(t):
        return [setm0(m0V[VSLOT[t]]), nop(0)] + [dma(srdV, sT[t], c, ("V", t)) for c in range(3)]

    P += [setm0(sW)] + mksrd(srdK, ptrK, sKO, 196608) + [dma(srdK, "0", c, ("K", 0)) for c in range(3)]
    P += mksrd(srdQ, ptrQ, sQO, 98304)
    for jj in range(4):
        P += [setm0(sM[jj]), nop(0)] + [qdma(0, jj, c, ("QD", 0, 0)) for c in range(3)]
    for jj in range(4):
        P += [salu("s_add_u32", "m0", sQB, str(jj * 3072), scc_w=True), nop(0)] + [qdma(1, jj, c, ("QD", 0, 1)) for c in range(3)]
    P += mksrd(srdV, ptrV, sKO, 196608)
    for i in range(4):
        P.append(salu("s_add_u32", m0K[i], sW, str(KBASE + i * TILE), scc_w=True))
        P.append(salu("s_add_u32", m0V[i], sW, str(VBASE + i * TILE), scc_w=True))
    for t in range(1, 16):
        P.append(salu("s_mov_b32", sT[t], str(t * TILE)))
    P += [salu("s_mov_b32", srdO[0], ptrO[0]), salu("s_mov_b32", srdO[1], ptrO[1]),
          salu("s_mov_b32", srdO[2], "0"), salu("s_mov_b32", srdO[3], "0x00020000"),
          salu("s_mov_b32", sTrip, "0"),
          salu("s_mov_b32", sC, hex(f2u(SCALE_C))), salu("s_mov_b32", sNegC, hex(f2u(-SCALE_C))),
          salu("s_mov_b32", sThr, hex(f2u(OPT["thr"])))]
    P += late + [valu("v_add_u32", vLin, sStage, t1)]
    P += [valu("v_and_b32", i16, "15", lane), valu("v_lshrrev_b32", G, "4", lane),
          valu("v_mul_u32_u24", t0, "384", i16)]
    P += [valu("v_and_b32", t1, "6", i16), valu("v_xor_b32", t1, t1, G), valu("v_lshl_add_u32", vK[0], t1, "4", t0),
          valu("v_xor_b32", vK[1], "64", vK[0])]
    for e in range(2):
        P += [valu("v_add_u32", vS[e], sStage, vK[e]), valu("v_add_u32", STG[e], sQB, vK[e])]
    P += [valu("v_lshrrev_b32", t1, "1", G), valu("v_and_b32", t2, "7", i16), valu("v_xor_b32", t1, t1, t2),
          valu("v_lshl_add_u32", vOW, t1, "4", t0), valu("v_and_b32", t1, "1", G),
          valu("v_lshl_add_u32", vOW, t1, "3", vOW), valu("v_add_u32", vOW, sStage, vOW)]
    P += [valu("v_lshrrev_b32", t1, "2", lane), valu("v_mul_u32_u24", t0, "384", t1),
          valu("v_and_b32", t1, "6", t1), valu("v_lshl_add_u32", t0, t1, "4", t0),
          valu("v_and_b32", t1, "3", lane), valu("v_lshl_add_u32", t0, t1, "3", t0),
          valu("v_add_u32", vV[0], str(VBASE), t0)]
    for e in range(1, 4):
        P.append(valu("v_xor_b32", vV[e], str(e * 32), vV[0]))
    P += [salu("s_mov_b32", sTmp, "0x3f803f80"), valu("v_mov_b32", t0, sTmp)]
    for j in range(2):
        P += [I(f"v_cmp_eq_u32 vcc, {j}, {i16}", "valu", rd=[i16], wr=["vcc"]),
              I(f"v_cmp_eq_u32 {sRet}, 2, {i16}", "valu", rd=[i16], wr=[sRet]), nop(0),
              I(f"s_or_b64 vcc, vcc, {sRet}", "salu", rd=["vcc", sRet], wr=["vcc", "scc"]), nop(1),
              I(f"v_cndmask_b32 {t1}, 0, {t0}, vcc", "valu", rd=[t0, "vcc"], wr=[t1])]
        P += [valu("v_accvgpr_write_b32", ONES[j][i], t1) for i in range(4)]
    if OPT["stamp"]:
        P += [salu("s_mov_b32", srdD[2], "0x1000000"), salu("s_mov_b32", srdD[3], "0x00020000"),
              salu("s_mul_hi_u32", sTmp, sW, sMagic), salu("s_lshr_b32", sTmp, sTmp, "2", scc_w=True),
              salu("s_lshl_b32", sH, "s2", "10", scc_w=True), salu("s_add_u32", sH, sH, sTmp, scc_w=True),
              valu("v_mov_b32", E[0], s(94)),
              I(f"buffer_store_dword {E[0]}, off, {srdD}, {sH} offset:{57 * 4}", "vmem", rd=[E[0], srdD])]
    P += stamp(60) + stamp(56, True)
    P += [waitv(("QD", 0, 0)), barrier()]
    for f in range(RING):
        P += kread(-2, f, 0)
    qorder = [0, 6, 1, 7, 2, 8, 3, 9, 4, 10, 5, 11]
    for n in qorder:
        P.append(qread(Qreg(n // 6, n % 6), n, vS, ("QA", 0, n)))
    P += [waitl(("QA", 0, 7))]
    P += stamp(61)
    if OPT.get("dbg"):
        P += [I(f"s_memrealtime {s(98, 2)}", "salu"), I("s_waitcnt lgkmcnt(0)", "salu")]
    pend = ktile(1) + vtile(0) + ktile(2) + warm + vtile(1)
    for n in range(24):
        x, f = n // 12, n % 12
        for q in range(2):
            m = qk_mfma(0, f, 2 * x + q, FR[n % RING])
            m.needl = [("F", -2, n), ("QA" if x == 0 else "QB", 0, q * 6 + f % 6)]
            k = u.add_gap(m)
            if x == 0 and pend:
                it = pend.pop(0)
                if it.kind != "nop":
                    u.pin[k].append(it)
        if n + RING < 24:
            u.pin[k] += kread(-2, n + RING, 0)
        else:
            u.pin[k] += kread(0, n + RING - 24, 1)
        if f == 1:
            u.pin[k].append(waitl(("QA" if x == 0 else "QB", 0, 11)))
        if RING - 1 <= n < 23 and n != 11:
            u.pin[k].append(waitl(("F", -2, n + 1)))
        if n == 11:
            assert not pend
            k = u.add_gap(None)
            XPOS[0] = 0
            u.pin[k] += softmax(0, 0) + [waitv(("QD", 0, 1))]
            for nn in qorder:
                u.pin[k].append(qread(Qreg(2 + nn // 6, nn % 6), nn, [STG[0], STG[1]], ("QB", 0, nn)))
            u.pin[k] += sum_mfma(0, 0) + [waitl(("QB", 0, 7))]
        if n == 14:
            u.pin[k] += [waitv(("K", 1), ("V", 0), ("K", 2)), barrier()]
        if n == 15:
            u.pin[k] += ktile(3)
        if n == 16:
            u.pin[k] += vtile(2)
    u.pin[k] += [barrier(), waitl(*[("F", 0, i) for i in range(OPT["wper"])])]
    u.pin[k] += stamp(0)
    u.win0 = len(u.heads)
    add_iter(u, 0, 0, "T0p")
    return u


def unit_fin(b):
    u = Unit("FIN")
    u.pre.append(label("L_fin"))
    u.pre += stamp(15)
    g0 = b * 16 + 12
    NR = OPT.get("nr", 3)
    phases = [("QK", (0, 1), 13), ("PV", (0,), 12), ("QK", (0,), 14), ("PV", (0,), 13), ("QK", (0,), 15),
              ("PV", (0,), 14), ("PV", (0,), 15),
              ("QK", (1,), 14), ("PV", (1,), 12), ("QK", (1,), 15), ("PV", (1,), 13), ("PV", (1,), 14), ("PV", (1,), 15)]
    ALT_P[0] = True
    sums = {(0, 48): (1, 12), (1, 18): (0, 13), (3, 18): (0, 14), (5, 18): (0, 15), (8, 18): (1, 13), (10, 18): (1, 14),
            (11, 18): (1, 15)}
    start, end, sumgap, lastuse, done = {}, {}, {}, {}, {}
    nfr = 12 * len(phases)
    for pi, (kind, hs, tile) in enumerate(phases):
        if len(hs) == 2:
            seq = [(f, qb) for f in range(NR) for qb in (2, 3)] + [(f, qb) for f in range(NR) for qb in (0, 1)] + \
                  [(f, qb) for f in range(NR, 12) for qb in range(4)]
        else:
            seq = [(f, 2 * hs[0] + q) for f in range(12) for q in range(2)]
        start[pi] = len(u.heads)
        for i, (f, qb) in enumerate(seq):
            n = 12 * pi + f
            m = qk_mfma(tile, f, qb, FR[n % RING]) if kind == "QK" else pv_mfma(tile, f, qb, FR[n % RING], False)
            m.needl = [("F", g0, n)]
            lastuse[n] = done[(pi, f, qb)] = u.add_gap(m)
            if (pi, i + 1) in sums:
                sumgap[sums[(pi, i + 1)]] = len(u.heads)
                for m in sum_mfma(*sums[(pi, i + 1)]):
                    u.add_gap(m)
        end[pi] = len(u.heads) - 1
    last = u.add_gap(None)
    wp = OPT["wper"]
    for n in range(nfr):
        k = lastuse[n]
        nn = n + RING
        rd = []
        if nn < nfr:
            kind, hs, tile = phases[nn // 12]
            rd = kread(g0, nn, tile) if kind == "QK" else vread(g0, nn, tile)
            u.pin[k] += rd
        if (n + 1) % wp == 0 and n + 1 < nfr:
            u.pin[k if len(rd) < 2 else k - 1].append(waitl(*[("F", g0, n + 1 + i) for i in range(wp)]))
    u.pin[start[0] + 1].append(setm0(m0V[VSLOT[15]]))
    for c, k in enumerate((4, 8, 12)):
        u.pin[start[0] + k].append(dma(srdV, sT[15], c, ("V", g0 + 3)))
    u.pin[start[2] + 2] += [waitv(("K", g0 + 3), ("V", g0 + 1), ("V", g0 + 2)), barrier()]
    u.pin[start[4] + 14] += [waitv(("V", g0 + 3)), barrier()]
    def put_check(x, tile, kc, kb):
        c, br, lu = check(x, tile, f"F{tile}")
        u.tail[kc] += c
        u.tail[kb] += br
        u.streams.append(Stream(lu, kb + 1, kb + 3, prio=0.5))
    put_check(0, 12, start[0] + 2, start[0] + 2 * NR - 1)
    for (x, tile), k in sumgap.items():
        put_check(x, tile, k + 5, k + 7)
    XPOS[0] = 0
    sm = setw(softmax(1, 12), latest=sumgap[(1, 12)] - 2)
    x = exp_stream(0, SA, Pbuf(0, 13), KH0_FIRST[:8])
    x[0].earliest = start[0] + 30
    u.streams.append(Stream(sm + x, start[0], end[0], prio=0.05, look=OPT["look"]))
    for tile, pq in ((13, 0), (14, 2), (15, 4)):
        if pq:
            u.streams.append(Stream(exp_stream(0, SA, Pbuf(0, tile), KH0_FIRST[:8]), start[pq] + 15, end[pq] + 2,
                                    prio=0.05, look=OPT["look"]))
        u.streams.append(Stream(exp_stream(0, SA, Pbuf(0, tile), KH0_FIRST[8:]), end[pq] + (3 if pq else 1),
                                sumgap[(0, tile)] - 2, prio=0.05, look=OPT["look"]))
    for tile, pq in ((13, 7), (14, 9), (15, 11)):
        u.streams.append(Stream(softmax(1, tile), start[pq] + (OPT.get("b13", 12) if pq == 7 else 0), sumgap[(1, tile)] - 2,
                                prio=0.05, look=OPT["look"]))
    AD = [vOW, STG[0], STG[1], STG[2]]
    u.streams.append(Stream(set_osrd() + [valu("v_xor_b32", AD[e], str(32 * e), vOW) for e in range(1, 4)],
                            start[2] + 4, end[2]))
    kA = sumgap[(0, 15)] + 11
    u.streams.append(Stream(rinv_stream(0), kA, kA + 8, prio=0.5))
    Z = [Qc[4 * i: 4 * i + 4] for i in range(12)]

    def epi_group(qb, dts, T):
        r, m, c, w = [], [], [], []
        for i, dt in enumerate(dts):
            O = Otile(qb, dt)
            R = O if O.f == "v" else T[4 * i: 4 * i + 4]
            if O.f == "a":
                r += [valu("v_accvgpr_read_b32", R[j], O[j]) for j in range(4)]
            m += scale2(R[0:2], qb) + scale2(R[2:4], qb)
            cc = [valu("v_cvt_pk_bf16_f32", R[0], R[0], R[1]), valu("v_cvt_pk_bf16_f32", R[1], R[2], R[3])]
            c += cc
            wr = owrite(R[0:2], AD[dt % 4], qb % 2, dt)
            wr.after = cc[1]
            w.append(wr)
        return r, m, c, w

    ep, wr, sts = [], [], []
    for q in range(2):
        for grp in range(3):
            r, m, c, w = epi_group(q, range(4 * grp, 4 * grp + 4), None)
            setw(m, earliest=max(kA + 9, done[(6, 4 * grp + 3, q)] + 4))
            ep += m + c
            wr += w
        for n in range(6 * q, 6 * q + 6):
            rd = oread(Z[n], n, ("OR", b + 1, 0, n))
            rd.flags.add("head")
            wr.append(rd)
        w = waitl(("OR", b + 1, 0, 6 * q + 5))
        w.after = wr[-1]
        w.delay = 6
        sts.append(w)
        for n in range(6 * q, 6 * q + 6):
            st = ostore(Z[n], 0, n, [("OR", b + 1, 0, n)], True)
            st.flags.add("head")
            sts.append(st)
    u.streams.append(Stream(ep, kA + 9, end[7], prio=0.3))
    u.streams.append(Stream(wr, kA + 9, end[7] + 12, prio=0.3))
    u.streams[-1].headmax = 8
    u.streams.append(Stream(sts, start[7] - OPT.get("st0", 10), end[OPT.get("stend", 11)], prio=0.3))
    u.streams[-1].headmax = 4
    u.streams[-1].pace = True
    u.streams.append(Stream(rinv_stream(1), start[12] + 3, start[12] + 8, prio=0.5))
    TT = [SA, SB[0], SB[1]]
    ep, wr = [], []
    for grp in range(2):
        r, m, c, w = epi_group(2, range(4 * grp, 4 * grp + 4), TT[grp])
        setw(r, earliest=done[(12, 4 * grp + 3, 2)] + 3)
        ep += r + m + c
        wr += w
    u.streams.append(Stream(ep, start[12] + 9, end[12], prio=0.3))
    u.streams.append(Stream(wr, start[12] + 9, end[12], prio=0.3))
    u.streams[-1].headmax = 8
    po = u.pin[last]
    r, m, c, w = epi_group(2, range(8, 12), TT[2])
    po += r + m + c + w
    po += [oread(Z[n], n, ("OR", b + 1, 1, n)) for n in range(6)]
    for grp in range(3):
        r, m, c, w = epi_group(3, range(4 * grp, 4 * grp + 4), TT[grp])
        st = [ostore(Z[n], 1, n, [("OR", b + 1, 1, n)], True) for n in range(6)] if grp == 0 else []
        po += r[:8] + ([waitl(("OR", b + 1, 1, 5))] if grp == 0 else []) + st[:2] + r[8:] + st[2:4] + m + st[4:] + c + w
    po += [oread(Z[n], n, ("OR", b + 1, 1, n)) for n in range(6, 12)]
    for n in range(6, 12):
        po += [waitl(("OR", b + 1, 1, n)), ostore(Z[n], 1, n, [("OR", b + 1, 1, n)], True)]
    ALT_P[0] = False
    u.wins = sorted(set(list(start.values()) + list(sumgap.values()) + [start[2] + 15, start[4] + 15, kA + 9]))
    u.post += stamp(16) + stamp(17, True)
    if OPT["stamp"]:
        u.post += [I("s_waitcnt vmcnt(0)", "salu")] + stamp(18) + stamp(19, True)
    if OPT.get("dbg"):
        u.post += [I("s_cmp_ge_u32 s2, 8", "salu"), I("s_cbranch_scc1 L_end", "branch"),
                   I(f"s_cmp_lg_u32 {sW}, 0", "salu"), I("s_cbranch_scc1 L_end", "branch"),
                   I("s_waitcnt vmcnt(0)", "salu"), I(f"s_memrealtime {sStamp}", "salu"), I(f"s_memtime {sPC}", "salu"),
                   I("s_waitcnt lgkmcnt(0)", "salu"),
                   salu("s_mov_b32", srdD[2], "256"), salu("s_mov_b32", srdD[3], "0x00020000"),
                   I("s_mov_b64 exec, 1", "salu"),
                   salu("s_sub_u32", sTmp, sStamp[0], s(94)), salu("s_sub_u32", sH, s(98), s(94)),
                   salu("s_mul_i32", sH, sH, "100000"), salu("s_add_u32", sTmp, sTmp, sH),
                   valu("v_mov_b32", v(34), sTmp),
                   salu("s_sub_u32", sTmp, sPC[0], s(96)), valu("v_mov_b32", v(35), sTmp),
                   salu("s_lshl_b32", sTmp, "s2", "3"),
                   I(f"buffer_store_dwordx2 {v(34, 2)}, off, {srdD}, {sTmp}", "vmem", rd=[srdD])]
    u.post += [label("L_end"), I("s_endpgm", "branch")]
    return u


def build(extra):
    cache = {}

    def get(name, fn, first):
        u = fn()
        ins = u.schedule(budget=8, window=50, pk_at=20, verbose=first and VERB)
        out = []
        for idx, i in enumerate(ins):
            n = extra.get((name, idx), 0)
            if n:
                out.append(((name, idx, "nop"), nop(n - 1)))
            out.append(((name, idx), i))
        if first:
            cache[name] = out
        return out

    trace = list(get("PRO", unit_pro, True))
    for b in range(3):
        for t in range(1, 15 if b < 2 else 12):
            trace += get(f"T{t}", lambda: unit_mid(b, t), b == 0)
        if b < 2:
            trace += get("X", lambda: unit_x(b), b == 0)
    trace += get("FIN", lambda: unit_fin(2), True)
    order = ["PRO"] + [f"T{t}" for t in range(1, 15)] + ["X", "FIN"]
    return [(n, cache[n]) for n in order], trace


VERB = False
extra = {}
for it in range(60):
    static, trace = build(extra)
    hz = hazards([i for _, i in trace])
    if not hz:
        break
    upd = {}
    lastj = -100
    for j, need, why in hz:
        key = trace[j][0]
        if j != lastj and j - lastj < 24:
            continue
        lastj = j
        upd[key] = max(upd.get(key, 0), need)
        if OPT.get("showhz"):
            print("; hazard:", key, need, why, file=sys.stderr)
    for k, n in upd.items():
        extra[k] = extra.get(k, 0) + n
else:
    raise SystemExit("hazards did not converge")
if OPT.get("verb"):
    VERB = True
    _so = sys.stdout
    sys.stdout = sys.stderr
    build(extra)
    sys.stdout = _so
    print("; nops inserted:", extra, file=sys.stderr)
W = resolve_waits(trace)
_bad = check_coverage(trace, W)
assert not _bad, _bad[:10]
if OPT.get("verb") and "_mismatch" in W:
    print("; wait mismatches:", W["_mismatch"], file=sys.stderr)

out = []
A = out.append
A(open(os.path.join(os.path.dirname(os.path.abspath(__file__)), "header.txt")).read().rstrip())
A(f"; @launch grid=(256,1,1) block=(256,1,1) lds={LDS_BYTES}")
A('.amdgcn_target "amdgcn-amd-amdhsa--gfx950"')
A(".text")
A(f".globl {KNAME}")
A(".p2align 8")
A(f".type {KNAME},@function")
A(f"{KNAME}:")
for name, ins in static:
    A(f"; ---- {name} ----")
    for key, i in ins:
        t = i.text
        if i.kind == "wait":
            l, vv = W[key]
            t = "s_waitcnt " + (f"lgkmcnt({l})" if l is not None else f"vmcnt({vv})")
        abl = OPT.get("abl", "")
        if abl and name not in ("PRO",):
            tx = i.text
            if "c" in abl and "s_cbranch_vccnz" in tx:
                t = "s_nop 0"
            if "b" in abl and i.kind == "barrier":
                t = "s_nop 0"
            if "k" in abl and i.kind == "vmem" and (str(srdK) in tx or str(srdV) in tx):
                t = "s_nop 1"
            if "w" in abl and i.kind == "wait" and i.waitl is not None:
                t = "s_nop 0"
            if "W" in abl and i.kind == "wait" and i.waitv is not None:
                t = "s_nop 0"
            if "s" in abl and i.kind == "vmem" and (str(srdQ) in tx or str(srdO) in tx):
                t = "s_nop 1"
            if "z" in abl and "ds_write" in tx:
                t = "s_nop 1"
        if OPT.get("e64") and re.match(r"v_(exp_f32|add_f32|mul_f32|mov_b32|xor_b32|max_f32|rcp_f32) ", t) and "96" not in t.split(",")[1]:
            t = t.replace(" ", "_e64 ", 1)
        A(t if i.kind == "label" else "    " + t)
for name, x, par in TRAMPS:
    A(f"L_tr_{name}:")
    A(f"    s_call_b64 {sRet}, L_rare_{'AB'[x]}{par}")
    A(f"    s_branch L_ret_{name}")
for x, par in ((0, 0), (0, 1), (1, 0), (1, 1), (1, 3)):
    if True:
        ALT_P[0] = par == 3
        r = rare(x, par)
        ALT_P[0] = False
        hz = hazards(r)
        assert not hz, hz
        for i in r:
            A(i.text if i.kind == "label" else "    " + i.text)
A("L_code_end:")
A("    s_endpgm")
A(f""".section .rodata,"a"
.p2align 6
.amdhsa_kernel {KNAME}
  .amdhsa_next_free_vgpr 512
  .amdhsa_next_free_sgpr 102
  .amdhsa_accum_offset 256
  .amdhsa_group_segment_fixed_size 0
  .amdhsa_kernarg_size 48
  .amdhsa_user_sgpr_count 2
  .amdhsa_user_sgpr_kernarg_segment_ptr 1
  .amdhsa_system_sgpr_workgroup_id_x 1
  .amdhsa_float_denorm_mode_32 3
.end_amdhsa_kernel""")
print("\n".join(out))
```

```python
import sys, struct, math, os, re
sys.path.insert(0, os.path.dirname(os.path.abspath(__file__)))
import asmlib
from asmlib import *

asmlib.COST.update(vmem=8, barrier=8)
KNAME = "standalone__gqa_softmax__near_ridge_kernel"
OPT = dict(
    sgaps=[[20, 28, 36], [74, 82, 90]],
    oa_slots=[3, 4, 6, 8], ob_slots=[11, 13, 15, 18], qa_slots=[10, 12, 14, 16], qb_slots=[21, 22, 23, 24],
    oa_rd=[(1, g) for g in (1, 17, 25, 33, 41, 45, 59, 67)] + [(2, g) for g in (1, 9, 17, 22)],
    ob_rd=[(3, g) for g in (71, 75, 79, 83, 87, 91)] + [(4, g) for g in (1, 9, 17, 25, 33, 41)],
    qar_iter=10,
    kgaps=[4, 8, 12], vgaps=[48, 58, 66],
    bar_gap=98,
    wper=3, look=5,
    thr=4096.0,
    stamp=0,
    codewarm=1,
    pk=1,
    kv_nt=" nt", q_nt=" nt", o_nt=" sc1",
)
for a in sys.argv[1:]:
    if "=" in a:
        k, v = a.split("=", 1)
        OPT[k] = eval(v)

TILE = 12288
KSLOT = [0, 1, 2, 3] * 4
VSLOT = [0, 1, 2, 3] * 4
KBASE, VBASE, STAGE, SPARE = 0, 4 * TILE, 8 * TILE, 12 * TILE
LDS_BYTES = 13 * TILE
KD, VD = 4, 3
RING = 6
P2 = 50
NG = 100


def f2u(x):
    return struct.unpack("<I", struct.pack("<f", x))[0]


v = lambda lo, n=1: Reg("v", lo, n)
a = lambda lo, n=1: Reg("a", lo, n)
s = lambda lo, n=1: Reg("s", lo, n)

vLin = v(1)
vK = [v(2), v(3)]
vV = [v(4 + i) for i in range(4)]
vD = [v(8 + i) for i in range(3)]
vDO = [v(11 + i) for i in range(3)]
vS = [v(14), v(15)]
rinv = [v(16 + 2 * i) for i in range(4)]
rinv2 = [v(16 + 2 * i, 2) for i in range(4)]
lsum = [v(17 + 2 * i) for i in range(4)]
negmc = [v(24 + i) for i in range(4)]
TS = v(28, 4)
vOW = v(32)
E = [v(33), v(34), v(35)]
X = [v(36), v(37), v(38), v(39), v(0)]
PA = [v(40, 8), v(48, 8)]
PB = v(56, 8)
SA = v(64, 16)
SB = [v(80, 16), v(96, 16)]
OA = v(112, 96)
STG = v(208, 48)
OB = a(0, 96)
Qc = a(96, 96)
FR = [a(192 + 4 * i, 4) for i in range(RING)]
SQ = [a(216 + 4 * i, 4) for i in range(8)]
JUNK = SQ[7]
ONES = [a(248, 4), a(252, 4)]
OX = [OA, OB]

ptrQ, ptrK, ptrV, ptrO = s(4, 2), s(6, 2), s(8, 2), s(10, 2)
srdK, srdV, srdQ, srdO = s(12, 4), s(16, 4), s(20, 4), s(24, 4)
sBG, sH, sKO, sQO, sQOcur, sNrec, sTrip, sC, sNegC, sThr, sMagic, sW = [s(28 + i) for i in range(12)]
sRet = s(40, 2)
m0K = [s(42 + i) for i in range(4)]
sStage, sQB = s(46), s(47)
m0V = [s(48 + i) for i in range(4)]
sT = ["0"] + [s(51 + t) for t in range(1, 16)]
srdD = s(68, 4)
sStamp = s(72, 2)
sPC = s(76, 2)
sG = [[s(80 + 4 * x + j) for j in range(4)] for x in range(2)]
sM = [s(88 + j) for j in range(4)]
sTmp = s(92)
sWarm = s(74, 2)

SCALE_C = math.log2(math.e) / math.sqrt(192.0)


def Qreg(qb, ks):
    return Qc[(qb * 6 + ks) * 4: (qb * 6 + ks) * 4 + 4]


def Otile(qb, dt):
    n = (dt * 2 + qb % 2) * 4
    return OX[qb // 2][n: n + 4]


def Sbuf(x, tile):
    return SA if x == 0 else SB[tile % 2]


ALT_P = [False]


def Pbuf(x, tile):
    if x == 1 and ALT_P[0] and tile % 2 == 1:
        return PA[1]
    return PA[tile % 2] if x == 0 else PB


def dma(srd, soff, c, tag):
    off = f" offset:{c * 1024}" if c else ""
    return I(f"buffer_load_dwordx4 {vD[c]}, {srd}, {soff} offen{off}{OPT['kv_nt']} lds", "vmem",
             rd=[vD[c], srd, soff, "m0"], tag=tag)


def setm0(x):
    return salu("s_mov_b32", "m0", x)


def qdma(x, jj, c, tag, need=None):
    off = f" offset:{c * 1024}" if c else ""
    return I(f"buffer_load_dwordx4 {vD[c]}, {srdQ}, {sG[x][jj]} offen{off}{OPT['q_nt']} lds", "vmem",
             rd=[vD[c], srdQ, sG[x][jj], "m0"], tag=tag, needl=need)


def qread(dst, n, addr, tag, need=None):
    q, ks = n // 6, n % 6
    off = q * 6144 + (ks // 2) * 128
    return I(f"ds_read_b128 {dst}, {addr[ks % 2]} offset:{off}", "ds", rd=[addr[ks % 2]], wr=[dst], tag=tag, needv=need)


def oaddr(e):
    if e == 0:
        return vOW, []
    return E[2], [valu("v_xor_b32", E[2], str(e * 32), vOW)]


def owrite(src, addr, q, dt):
    off = q * 6144 + (dt // 4) * 128
    return I(f"ds_write_b64 {addr}, {src} offset:{off}", "ds", rd=[addr, src], cost=OPT.get("wcost", 12), flags=["head"])


def oread(dst, idx, tag):
    return I(f"ds_read_b128 {dst}, {vLin} offset:{idx * 1024}", "ds", rd=[vLin], wr=[dst], tag=tag)


def ostore(src, x, idx, need, fin=False):
    jj, c = idx // 3, idx % 3
    off = f" offset:{c * 1024}" if c else ""
    fl = OPT.get("of_nt" + "ab"[x], OPT["o_nt"]) if fin else OPT["o_nt"]
    return I(f"buffer_store_dwordx4 {src}, {vDO[c]}, {srdO}, {sG[x][jj]} offen{off}{fl}", "vmem",
             rd=[src, vDO[c], srdO, sG[x][jj]], flags=["wide"], cost=16, needl=need)


def obuf(x, idx):
    if x == 1:
        return STG[4 * idx: 4 * idx + 4]
    return SQ[idx % 8]


def kread(g, f, tile):
    kh, ks = (f % 12) // 6, f % 6
    off = KBASE + KSLOT[tile % 16] * TILE + kh * 6144 + (ks // 2) * 128
    d = FR[f % RING]
    return [I(f"ds_read_b128 {d}, {vK[ks % 2]} offset:{off}", "ds", rd=[vK[ks % 2]], wr=[d], tag=("F", g, f))]


def vread(g, f, tile):
    dt = f % 12
    d = FR[f % RING]
    out = []
    for jj in range(2):
        off = VSLOT[tile % 16] * TILE + jj * 6144 + (dt // 4) * 128
        out.append(I(f"ds_read_b64_tr_b16 {d[2 * jj:2 * jj + 2]}, {vV[dt % 4]} offset:{off}", "ds", rd=[vV[dt % 4]],
                     wr=[d[2 * jj:2 * jj + 2]], tag=("F", g, f) if jj == 1 else None))
    return out


def swap32(u, w):
    return I(f"v_permlane32_swap_b32 {u}, {w}", "valu", rd=[u, w], wr=[u, w], cost=8)


def swap16(u, w):
    return I(f"v_permlane16_swap_b32 {u}, {w}", "valu", rd=[u, w], wr=[u, w], cost=8)


def max_tree(S, u, w):
    o = []
    for a0, a1, a2, first in ((0, 1, 2, True), (3, 4, None, False), (5, 6, None, False)):
        for r, b in ((u, 0), (w, 8)):
            if first:
                o.append(valu("v_max3_f32", r, S[b + a0], S[b + a1], S[b + a2]))
            else:
                o.append(valu("v_max3_f32", r, r, S[b + a0], S[b + a1]))
    o += [valu("v_max_f32", u, u, S[7]), valu("v_max_f32", w, w, S[15])]
    return o


def reduce2(op, u, w):
    return [nop(1), swap32(u, w), valu(op, u, u, w), valu("v_mov_b32", w, u), nop(1), swap16(u, w), valu(op, u, u, w)]


def max_init(x, S):
    u, w = E[0], E[1]
    n0, n1 = negmc[2 * x], negmc[2 * x + 1]
    return max_tree(S, u, w) + reduce2("v_max_f32", u, w) + [
        valu("v_mul_f32", n0, sNegC, u), valu("v_mul_f32", n1, sNegC, u), nop(1), swap32(n0, n1)]


XPOS = [0]


def exp_stream(x, S, P, order=range(16), late=None):
    out = []
    order = list(order)
    p0 = XPOS[0]
    N = len(order)
    XPOS[0] = (p0 + N) % len(X)
    T = lambda n: X[(p0 + n) % len(X)]
    for n in range(N + 2):
        if n < N:
            i = order[n]
            f = valu("v_fma_f32", T(n), S[i], sC, negmc[2 * x + i // 8])
            if late is not None and i % 8 >= 4:
                f.earliest = late
            out.append(f)
        if 0 <= n - 1 < N:
            out.append(trans("v_exp_f32", T(n - 1), T(n - 1)))
        j = n - 2
        if 0 <= j < N and j % 2 == 1:
            out.append(valu("v_cvt_pk_bf16_f32", P[order[j] // 2], T(j - 1), T(j)))
    return out


TRAMPS = []
KH0_FIRST = [0, 1, 2, 3, 8, 9, 10, 11, 4, 5, 6, 7, 12, 13, 14, 15]


def softmax(x, tile, late=None):
    S, P = Sbuf(x, tile), Pbuf(x, tile)
    if tile == 0:
        return max_init(x, S) + exp_stream(x, S, P)
    return exp_stream(x, S, P, KH0_FIRST if late is not None else range(16), late)


def sum_mfma(x, tile):
    P = Pbuf(x, tile)
    return [mfma(TS, ONES[0], P[0:4], 0), mfma(TS, ONES[1], P[4:8], TS)]


def check(x, tile, site):
    if tile == 0:
        return [], [], [valu("v_mov_b32", lsum[2 * x + i], TS[i]) for i in range(2)]
    par = tile % 2
    if x == 1 and ALT_P[0] and par == 1:
        par = 3
    name = f"{site}_{'AB'[x]}"
    if (name, x, par) not in TRAMPS:
        TRAMPS.append((name, x, par))
    return ([I(f"v_cmp_nge_f32 vcc, {sThr}, {TS[2]}", "valu", rd=[sThr, TS[2]], wr=["vcc"])],
            [I(f"s_cbranch_vccnz L_tr_{name}", "branch", rd=["vcc"]), label(f"L_ret_{name}")],
            [valu("v_add_f32", lsum[2 * x + i], lsum[2 * x + i], TS[i]) for i in range(2)])


def rinv_stream(x):
    u, w = lsum[2 * x], lsum[2 * x + 1]
    r0, r1 = rinv[2 * x], rinv[2 * x + 1]
    return reduce2("v_add_f32", u, w) + [trans("v_rcp_f32", r0, u), trans("v_rcp_f32", r1, u), nop(1), swap32(r0, r1)]


def scale2(R, qb):
    if OPT["pk"]:
        return [I(f"v_pk_mul_f32 {R}, {R}, {rinv2[qb]} op_sel_hi:[1,0]", "valu", rd=[R, rinv[qb]], wr=[R], flags=["pk"])]
    return [valu("v_mul_f32", R[0], R[0], rinv[qb]), valu("v_mul_f32", R[1], R[1], rinv[qb])]


def epi_a(tt):
    O = OA[16 * tt: 16 * tt + 16]
    m = []
    for i in range(8):
        m += scale2(O[2 * i: 2 * i + 2], (i // 2) % 2)
    c = [valu("v_cvt_pk_bf16_f32", O[i], O[2 * i], O[2 * i + 1]) for i in range(8)]
    w = []
    for n in range(4):
        dt, q = 2 * tt + n // 2, n % 2
        ad, pre = oaddr(dt % 4)
        if q == 0:
            w += pre
        wr = owrite(O[2 * n: 2 * n + 2], ad, q, dt)
        wr.after = c[2 * n + 1]
        w.append(wr)
    return m, c, w


def epi_b(tt, half, T):
    O = OB[16 * tt: 16 * tt + 16]
    D = STG[tt * 8: tt * 8 + 8]
    r = [valu("v_accvgpr_read_b32", T[i], O[8 * half + i]) for i in range(8)]
    m = []
    for i in range(4):
        m += scale2(T[2 * i: 2 * i + 2], 2 + i // 2)
    c = [valu("v_cvt_pk_bf16_f32", D[4 * half + i], T[2 * i], T[2 * i + 1]) for i in range(4)]
    return r, m, c


def ob_writes(es):
    w = []
    for e in es:
        ad, pre = oaddr(e)
        w += pre
        for dt in (e, e + 4, e + 8):
            for q in range(2):
                n = (dt * 2 + q) * 2
                w.append(owrite(STG[n: n + 2], ad, q, dt))
    return w


def setw(items, earliest=None, latest=None):
    for i in items:
        if latest is not None:
            i.latest = latest if i.latest is None else min(i.latest, latest)
    if earliest is not None:
        items[0].earliest = earliest
    return items


def rare(x, par):
    S, P = Sbuf(x, par), Pbuf(x, par)
    u, w = E[0], E[1]
    f = [u, w]
    n = [negmc[2 * x], negmc[2 * x + 1]]
    o = [label(f"L_rare_{'AB'[x]}{par}"), nop(15)]
    o += max_tree(S, u, w)
    o += [valu("v_fma_f32", u, u, sC, n[0]), valu("v_fma_f32", w, w, sC, n[1])]
    o += reduce2("v_max_f32", u, w)
    o += [valu("v_max_f32", u, "0", u), valu("v_mov_b32", w, u), nop(1), swap32(u, w),
          valu("v_sub_f32", n[0], n[0], u), valu("v_sub_f32", n[1], n[1], w),
          trans("v_exp_f32", u, f"-{u}", extra_rd=[u]), trans("v_exp_f32", w, f"-{w}", extra_rd=[w]), nop(0),
          valu("v_mul_f32", lsum[2 * x], lsum[2 * x], u), valu("v_mul_f32", lsum[2 * x + 1], lsum[2 * x + 1], w)]
    O = OX[x]
    for i in range(96):
        ff = f[(i // 4) % 2]
        if O.f == "a":
            tt = P[i % 4]
            o += [valu("v_accvgpr_read_b32", tt, O[i]), valu("v_mul_f32", tt, tt, ff),
                  valu("v_accvgpr_write_b32", O[i], tt)]
        else:
            o.append(valu("v_mul_f32", O[i], O[i], ff))
    o += [valu("v_fma_f32", S[i], S[i], sC, n[i // 8]) for i in range(16)]
    o += [trans("v_exp_f32", S[i], S[i]) for i in range(16)]
    o += [valu("v_cvt_pk_bf16_f32", P[i], S[2 * i], S[2 * i + 1]) for i in range(8)]
    o += [nop(1)] + sum_mfma(x, par)
    o += [nop(15), I(f"s_setpc_b64 {sRet}", "branch", rd=[sRet])]
    return o


def qk_mfma(tile, f, qb, fr):
    kh, ks = f // 6, f % 6
    n = (qb % 2) * 8 + kh * 4
    d = Sbuf(qb // 2, tile)[n: n + 4]
    return mfma(d, fr, Qreg(qb, ks), d if ks else 0)


def pv_mfma(t, dt, qb, fr, zero):
    o = Otile(qb, dt)
    p = Pbuf(qb // 2, t)[4 * (qb % 2): 4 * (qb % 2) + 4]
    return mfma(o, fr, p, 0 if zero else o)


def frag_read(g, t, f):
    if f < 12:
        return kread(g, f, t + 1)
    if f < 24:
        return vread(g, f, t)
    return kread(g + 1, f - 24, t + 2)


def ftag(g, f):
    return ("F", g, f) if f < 24 else ("F", g + 1, f - 24)


def stamp(idx, real=False):
    if not OPT["stamp"]:
        return []
    if OPT["stamp"] == 2 and idx not in (0, 1, 15, 16, 17, 18, 19, 56, 60, 61):
        return []
    op = "s_memrealtime" if real else "s_memtime"
    return [I(f"{op} {sStamp}", "salu", wr=[sStamp]), I("s_waitcnt lgkmcnt(0)", "salu"),
            valu("v_mov_b32", E[0], sStamp[0]),
            I(f"buffer_store_dword {E[0]}, off, {srdD}, {sH} offset:{idx * 4}", "vmem", rd=[E[0], srdD])]


def add_iter(u, b, t, site):
    g = b * 16 + t
    base = len(u.heads)
    tn = (t + 1) % 16
    lastuse = {}
    NR = OPT.get("nr", 3)
    seq = [(f, qb) for f in range(NR) for qb in (2, 3)] + [(f, qb) for f in range(NR) for qb in (0, 1)] + \
          [(f, qb) for f in range(NR, 12) for qb in range(4)]
    for f, qb in seq:
        m = qk_mfma(tn, f, qb, FR[f % RING])
        m.needl = [("F", g, f)] + ([("QB", b + 1, (qb - 2) * 6 + f % 6)] if tn == 0 and qb >= 2 else [])
        lastuse[f] = u.add_gap(m)
    for m in sum_mfma(1, t):
        u.add_gap(m)
    seq = [(f, qb) for f in range(NR) for qb in (0, 1)] + [(f, qb) for f in range(NR) for qb in (2, 3)] + \
          [(f, qb) for f in range(NR, 12) for qb in range(4)]
    for dt, qb in seq:
        m = pv_mfma(t, dt, qb, FR[(12 + dt) % RING], t == 0)
        m.needl = [("F", g, 12 + dt)]
        lastuse[12 + dt] = u.add_gap(m)
    for m in sum_mfma(0, tn):
        u.add_gap(m)
    wp = OPT["wper"]
    for f in range(24):
        k = lastuse[f]
        rd = frag_read(g, t, f + RING)
        u.pin[k] += rd
        if (f + 1) % wp == 0:
            kw = k + 2 if f in (11, 23) else (k if len(rd) == 1 else k - 1)
            u.pin[kw].append(waitl(*[ftag(g, f + 1 + i) for i in range(wp)]))
    for x, k in ((0, base), (1, base + P2)):
        c, br, lu = check(x, t, site)
        u.tail[k + OPT.get("cmpgap", 2)] += c
        kb = k + 2 * NR - 1
        if OPT.get("brhead"):
            u.pin[kb] = br + u.pin[kb]
        else:
            u.tail[kb] += br
        u.streams.append(Stream(lu, kb + 1, kb + 3, prio=0.5))
    tk, tv = (t + KD) % 16, (t + VD) % 16
    u.pin[base + OPT["kgaps"][0] - 2].append(setm0(m0K[KSLOT[tk]]))
    for c, k in enumerate(OPT["kgaps"]):
        u.pin[base + k].append(dma(srdK, sT[tk], c, ("K", g + KD)))
    u.pin[base + OPT["vgaps"][0] - 3].append(setm0(m0V[VSLOT[tv]]))
    for c, k in enumerate(OPT["vgaps"]):
        u.pin[base + k].append(dma(srdV, sT[tv], c, ("V", g + VD)))
    for x, key in ((0, "oa_rd"), (1, "ob_rd")):
        for idx, (tt, k) in enumerate(OPT[key]):
            if tt == t:
                u.pin[base + k].append(oread(obuf(x, idx), idx, ("OR", b, x, idx)))
    if t in (2, 3):
        st = Stream(ob_writes((0, 1)), base + 23, base + 97) if t == 2 else Stream(ob_writes((2, 3)), base + 0, base + 70)
        st.pace = OPT.get("pace", 1)
        u.streams.append(st)
    for half in range(2):
        n = 2 * t + half
        gaps = OPT["sgaps"][half]
        for x, key in ((0, "oa_slots"), (1, "ob_slots")):
            if n in OPT[key]:
                jj = OPT[key].index(n)
                for c, k in enumerate(gaps):
                    idx = jj * 3 + c
                    u.pin[base + k].append(ostore(obuf(x, idx), x, idx, [("OR", b, x, idx)]))
        for x, key in ((0, "qa_slots"), (1, "qb_slots")):
            if n in OPT[key]:
                jj = OPT[key].index(n)
                u.pin[base + gaps[0] - 3].append(setm0(sM[jj]))
                need = [("OR", b, 1, 11)] if x == 0 else [("QA", b + 1, 11)]
                for c, k in enumerate(gaps):
                    u.pin[base + k].append(qdma(x, jj, c, ("QD", b + 1, x), need))
    if OPT["codewarm"] and t == OPT.get("rewarm", 8):
        u.pin[base + 74].append(I(f"global_load_dwordx4 {JUNK}, {vLin}, {sWarm}", "vmem", rd=[vLin, sWarm], wr=[JUNK]))
    if t == OPT["qar_iter"]:
        u.pin[base + 0].append(waitv(("QD", b + 1, 0)))
        for n in range(12):
            u.pin[base + 1 + 4 * n].append(qread(STG[n * 4: n * 4 + 4], n, vS, ("QA", b + 1, n), [("QD", b + 1, 0)]))
    if t == 14:
        u.pin[base + P2].append(waitv(("QD", b + 1, 1)))
        for i, n in enumerate([0, 6, 1, 7, 2, 8, 3, 9, 4, 10, 5, 11]):
            u.pin[base + P2 + 1 + 4 * (i // 2) + (8 if i >= 2 else 0)].append(
                qread(Qreg(2 + n // 6, n % 6), n, vS, ("QB", b + 1, n), [("QD", b + 1, 1)]))
    u.pin[base + OPT["bar_gap"]] += [waitv(("K", g + 3), ("V", g + 1)), barrier()]
    XPOS[0] = 0
    sb = setw(softmax(1, t), latest=base + 46)
    sa = softmax(0, tn, late=base + 49)
    sa[0].earliest = base + (P2 + 2 * NR if tn == 0 else 30)
    u.streams.append(Stream(sb + sa, base + 0, base + 96, prio=0.05, look=OPT["look"]))
    if t == 1:
        sl = [salu("s_mov_b32", sQOcur, sQO),
              salu("s_add_u32", sBG, sBG, "32", scc_w=True),
              salu("s_mul_hi_u32", sKO, sBG, sMagic),
              salu("s_mul_i32", sKO, sKO, "196608"),
              salu("s_mul_i32", sQO, sBG, "98304"),
              I(f"s_cmp_lt_u32 {sTrip}, 2", "salu", rd=[sTrip], wr=["scc"]),
              salu("s_cselect_b32", sNrec, "196608", "0", scc_r=True),
              salu("s_cselect_b32", srdQ[2], "98304", "0", scc_r=True),
              salu("s_add_u32", srdQ[0], ptrQ[0], sQO, scc_w=True),
              salu("s_addc_u32", srdQ[1], ptrQ[1], "0", scc_w=True, scc_r=True)]
        u.streams.append(Stream(sl, base + 24, base + 80))
    if t == 15 - KD:
        sl = [salu("s_add_u32", srdK[0], ptrK[0], sKO, scc_w=True),
              salu("s_addc_u32", srdK[1], ptrK[1], "0", scc_w=True, scc_r=True),
              salu("s_mov_b32", srdK[2], sNrec)]
        u.streams.append(Stream(sl, base + OPT["kgaps"][-1] + 1, base + 90))
    if t == 15 - VD:
        sl = [salu("s_add_u32", srdV[0], ptrV[0], sKO, scc_w=True),
              salu("s_addc_u32", srdV[1], ptrV[1], "0", scc_w=True, scc_r=True),
              salu("s_mov_b32", srdV[2], sNrec)]
        u.streams.append(Stream(sl, base + OPT["vgaps"][-1] + 1, base + 90))
    return base


def qcopy(base):
    out = []
    for ks in range(6):
        for q in range(2):
            for i in range(4):
                out.append(valu("v_accvgpr_write_b32", Qreg(q, ks)[i], STG[(q * 6 + ks) * 4 + i],
                                earliest=base + 4 * (6 + ks) + q))
    return out


def set_osrd():
    return [salu("s_add_u32", srdO[0], ptrO[0], sQOcur, scc_w=True),
            salu("s_addc_u32", srdO[1], ptrO[1], "0", scc_w=True, scc_r=True),
            salu("s_mov_b32", srdO[2], "98304")]


def unit_mid(b, t):
    u = Unit(f"T{t}")
    if t == 1:
        u.pre.append(label("L_loop"))
    u.pre += stamp(t)
    base = add_iter(u, b, t, f"T{t}")
    if t == 14:
        u.streams.append(Stream(qcopy(base), base + 24, base + 99))
    if t == 11:
        u.tail[base + 96].append(I(f"s_cmp_eq_u32 {sTrip}, 2", "salu", rd=[sTrip], wr=["scc"]))
        u.post += [I("s_cbranch_scc1 L_fin", "branch", rd=["scc"])]
    return u


def unit_x(b):
    u = Unit("X")
    u.pre.append(label("L_x"))
    u.pre += stamp(15)
    b15 = add_iter(u, b, 15, "T15")
    b0 = add_iter(u, b + 1, 0, "T0")
    u.streams.append(Stream(rinv_stream(0), b15 + 9, b15 + 40))
    u.streams.append(Stream(rinv_stream(1), b15 + P2 + 9, b15 + P2 + 15, prio=0.5))
    ep, wr = [], []
    for tt in range(6):
        O = OA[16 * tt: 16 * tt + 16]
        dl = b0 + P2 + (8 * tt if tt != 1 else 4) - 1
        m, c, w = epi_a(tt)
        r0, m0_, c0 = epi_b(tt, 0, O[8:16])
        r1, m1_, c1 = epi_b(tt, 1, O[8:16])
        setw(m, earliest=b15 + P2 + 8 * tt + 9)
        setw(r0, earliest=b15 + P2 + max(16, 8 * tt + 9))
        ep += setw(m + c + r0 + m0_ + c0 + r1 + m1_ + c1, latest=dl)
        wr += setw(w, latest=dl)
    u.streams.append(Stream(ep, b15 + P2 + 9, b0 + P2 + 39))
    u.streams.append(Stream(wr, b15 + P2 + 9, b0 + P2 + 39))
    u.streams.append(Stream(set_osrd(), b15 + 16, b15 + 44))
    sl = [salu("s_add_u32", sTrip, sTrip, "1", scc_w=True)]
    if OPT["stamp"]:
        sl.append(salu("s_add_u32", sH, sH, "64", scc_w=True))
    u.streams.append(Stream(sl, b0 + 4, b0 + 80))
    u.post.append(I("s_branch L_loop", "branch"))
    return u


def unit_pro():
    u = Unit("PRO")
    P = u.pre
    tid, lane, i16, G, t0, t1, t2 = v(0), X[0], X[1], X[2], X[3], E[0], E[1]
    P += [I("s_cmp_ge_u32 s2, 256", "salu", rd=["s2"], wr=["scc"]),
          I("s_cbranch_scc1 L_end", "branch", rd=["scc"]),
          I("s_load_dwordx4 s[4:7], s[0:1], 0", "salu", wr=[s(4, 4)]),
          I("s_load_dwordx4 s[8:11], s[0:1], 16", "salu", wr=[s(8, 4)])]
    warm = []
    if OPT["codewarm"]:
        P += [I(f"s_getpc_b64 {sPC}", "salu", wr=[sPC]),
              label("L_pc"),
              I(f"s_sub_u32 {sPC[0]}, {sPC[0]}, L_pc-{KNAME}", "salu", rd=[sPC], wr=[sPC, "scc"]),
              I(f"s_subb_u32 {sPC[1]}, {sPC[1]}, 0", "salu", rd=[sPC, "scc"], wr=[sPC, "scc"]),
              salu("s_lshr_b32", sH, "s2", "3", scc_w=True),
              salu("s_lshl_b32", sH, sH, "11", scc_w=True),
              valu("v_lshlrev_b32", E[2], "3", tid),
              valu("v_add_u32", E[2], sH, E[2]),
              I(f"v_min_u32 {E[2]}, L_code_end-{KNAME}-8, {E[2]}", "valu", rd=[E[2]], wr=[E[2]])]
        warm = [I(f"global_load_dwordx2 {JUNK[0:2]}, {E[2]}, {sPC}", "vmem", rd=[E[2], sPC], wr=[JUNK[0:2]])]
        if OPT["codewarm"] == 1:
            P += warm
            warm = []
    if OPT["stamp"]:
        P += [I(f"s_load_dwordx2 {srdD[0:2]}, s[0:1], 40", "salu"), I(f"s_memrealtime {s(94, 2)}", "salu")]
    if OPT.get("dbg"):
        P += [I(f"s_load_dwordx2 {srdD[0:2]}, s[0:1], 32", "salu"), I(f"s_memrealtime {s(94, 2)}", "salu"),
              I(f"s_memtime {s(96, 2)}", "salu")]
    P += [valu("v_lshrrev_b32", t0, "6", tid), valu("v_and_b32", lane, "63", tid),
          I(f"v_readfirstlane_b32 {sW}, {t0}", "valu", rd=[t0], wr=[sW]),
          valu("v_lshlrev_b32", t1, "4", lane)]
    P += [salu("s_and_b32", sBG, "s2", "7", scc_w=True),
          salu("s_mul_i32", sBG, sBG, "96"),
          salu("s_lshr_b32", sH, "s2", "3", scc_w=True),
          salu("s_add_u32", sBG, sBG, sH, scc_w=True),
          salu("s_mov_b32", sMagic, "0x55555556"),
          salu("s_mul_hi_u32", sKO, sBG, sMagic),
          salu("s_mul_i32", sKO, sKO, "196608"),
          salu("s_mul_i32", sQO, sBG, "98304")]
    P += [salu("s_mov_b32", sQB, str(VBASE + 2 * TILE)),
          I(f"s_cmp_eq_u32 {sW}, 0", "salu", rd=[sW], wr=["scc"]),
          salu("s_cselect_b32", sQB, str(KBASE + 3 * TILE), sQB, scc_r=True),
          I(f"s_cmp_eq_u32 {sW}, 2", "salu", rd=[sW], wr=["scc"]),
          salu("s_cselect_b32", sQB, str(VBASE + 3 * TILE), sQB, scc_r=True),
          I(f"s_cmp_eq_u32 {sW}, 3", "salu", rd=[sW], wr=["scc"]),
          salu("s_cselect_b32", sQB, str(SPARE), sQB, scc_r=True),
          salu("s_mul_i32", sW, sW, "3072")]
    late = []
    for c in range(3):
        P += [valu("v_add_u32", t0, str(c * 1024), t1),
              valu("v_lshrrev_b32", t2, "7", t0),
              valu("v_mul_u32_u24", t2, "171", t2),
              valu("v_lshrrev_b32", vDO[c], "9", t2),
              valu("v_and_b32", vD[c], "6", vDO[c]),
              valu("v_lshlrev_b32", vD[c], "4", vD[c]),
              valu("v_xor_b32", vD[c], vD[c], t1),
              valu("v_add_u32", vD[c], sW, vD[c])]
        late += [valu("v_lshlrev_b32", vDO[c], "4", vDO[c]),
                 valu("v_xor_b32", vDO[c], vDO[c], t1),
                 valu("v_add_u32", vDO[c], sW, vDO[c])]
    P += [salu("s_lshl_b32", sStage, sW, "2", scc_w=True),
          salu("s_add_u32", sStage, sStage, str(STAGE), scc_w=True),
          salu("s_mul_i32", sH, sW, "7")]
    for jj in range(4):
        P += [salu("s_add_u32", sM[jj], sStage, str(jj * 3072), scc_w=True),
              salu("s_add_u32", sG[0][jj], sH, str(jj * 3072), scc_w=True),
              salu("s_add_u32", sG[1][jj], sH, str(jj * 3072 + TILE), scc_w=True)]
    P += [I("s_waitcnt lgkmcnt(0)", "salu")]

    def mksrd(srd, ptr, off, n):
        return [salu("s_add_u32", srd[0], ptr[0], off, scc_w=True),
                salu("s_addc_u32", srd[1], ptr[1], "0", scc_w=True, scc_r=True),
                salu("s_mov_b32", srd[2], str(n)), salu("s_mov_b32", srd[3], "0x00020000")]

    def ktile(t):
        return [setm0(m0K[KSLOT[t]]), nop(0)] + [dma(srdK, sT[t], c, ("K", t)) for c in range(3)]

    def vtile(t):
        return [setm0(m0V[VSLOT[t]]), nop(0)] + [dma(srdV, sT[t], c, ("V", t)) for c in range(3)]

    P += [setm0(sW)] + mksrd(srdK, ptrK, sKO, 196608) + [dma(srdK, "0", c, ("K", 0)) for c in range(3)]
    P += mksrd(srdQ, ptrQ, sQO, 98304)
    for jj in range(4):
        P += [setm0(sM[jj]), nop(0)] + [qdma(0, jj, c, ("QD", 0, 0)) for c in range(3)]
    for jj in range(4):
        P += [salu("s_add_u32", "m0", sQB, str(jj * 3072), scc_w=True), nop(0)] + [qdma(1, jj, c, ("QD", 0, 1)) for c in range(3)]
    P += mksrd(srdV, ptrV, sKO, 196608)
    for i in range(4):
        P.append(salu("s_add_u32", m0K[i], sW, str(KBASE + i * TILE), scc_w=True))
        P.append(salu("s_add_u32", m0V[i], sW, str(VBASE + i * TILE), scc_w=True))
    for t in range(1, 16):
        P.append(salu("s_mov_b32", sT[t], str(t * TILE)))
    P += [salu("s_mov_b32", srdO[0], ptrO[0]), salu("s_mov_b32", srdO[1], ptrO[1]),
          salu("s_mov_b32", srdO[2], "0"), salu("s_mov_b32", srdO[3], "0x00020000"),
          salu("s_mov_b32", sTrip, "0"),
          salu("s_mov_b32", sC, hex(f2u(SCALE_C))), salu("s_mov_b32", sNegC, hex(f2u(-SCALE_C))),
          salu("s_mov_b32", sThr, hex(f2u(OPT["thr"])))]
    if OPT["codewarm"] and OPT.get("rewarm", 8):
        P += [salu("s_lshr_b32", sTmp, "s2", "3", scc_w=True), salu("s_and_b32", sTmp, sTmp, "3", scc_w=True),
              salu("s_lshl_b32", sTmp, sTmp, "12", scc_w=True),
              salu("s_mul_hi_u32", sH, sW, sMagic),
              salu("s_add_u32", sTmp, sTmp, sH, scc_w=True),
              I(f"s_add_u32 {sTmp}, {sTmp}, L_x-{KNAME}", "salu", rd=[sTmp], wr=[sTmp, "scc"]),
              salu("s_add_u32", sWarm[0], sPC[0], sTmp, scc_w=True),
              salu("s_addc_u32", sWarm[1], sPC[1], "0", scc_w=True, scc_r=True),
              salu("s_sub_u32", sWarm[0], sWarm[0], sStage, scc_w=True),
              salu("s_subb_u32", sWarm[1], sWarm[1], "0", scc_w=True, scc_r=True)]
    P += late + [valu("v_add_u32", vLin, sStage, t1)]
    P += [valu("v_and_b32", i16, "15", lane), valu("v_lshrrev_b32", G, "4", lane),
          valu("v_mul_u32_u24", t0, "384", i16)]
    P += [valu("v_and_b32", t1, "6", i16), valu("v_xor_b32", t1, t1, G), valu("v_lshl_add_u32", vK[0], t1, "4", t0),
          valu("v_xor_b32", vK[1], "64", vK[0])]
    for e in range(2):
        P += [valu("v_add_u32", vS[e], sStage, vK[e]), valu("v_add_u32", STG[e], sQB, vK[e])]
    P += [valu("v_lshrrev_b32", t1, "1", G), valu("v_and_b32", t2, "7", i16), valu("v_xor_b32", t1, t1, t2),
          valu("v_lshl_add_u32", vOW, t1, "4", t0), valu("v_and_b32", t1, "1", G),
          valu("v_lshl_add_u32", vOW, t1, "3", vOW), valu("v_add_u32", vOW, sStage, vOW)]
    P += [valu("v_lshrrev_b32", t1, "2", lane), valu("v_mul_u32_u24", t0, "384", t1),
          valu("v_and_b32", t1, "6", t1), valu("v_lshl_add_u32", t0, t1, "4", t0),
          valu("v_and_b32", t1, "3", lane), valu("v_lshl_add_u32", t0, t1, "3", t0),
          valu("v_add_u32", vV[0], str(VBASE), t0)]
    for e in range(1, 4):
        P.append(valu("v_xor_b32", vV[e], str(e * 32), vV[0]))
    P += [salu("s_mov_b32", sTmp, "0x3f803f80"), valu("v_mov_b32", t0, sTmp)]
    for j in range(2):
        P += [I(f"v_cmp_eq_u32 vcc, {j}, {i16}", "valu", rd=[i16], wr=["vcc"]),
              I(f"v_cmp_eq_u32 {sRet}, 2, {i16}", "valu", rd=[i16], wr=[sRet]), nop(0),
              I(f"s_or_b64 vcc, vcc, {sRet}", "salu", rd=["vcc", sRet], wr=["vcc", "scc"]), nop(1),
              I(f"v_cndmask_b32 {t1}, 0, {t0}, vcc", "valu", rd=[t0, "vcc"], wr=[t1])]
        P += [valu("v_accvgpr_write_b32", ONES[j][i], t1) for i in range(4)]
    if OPT["stamp"]:
        P += [salu("s_mov_b32", srdD[2], "0x1000000"), salu("s_mov_b32", srdD[3], "0x00020000"),
              salu("s_mul_hi_u32", sTmp, sW, sMagic), salu("s_lshr_b32", sTmp, sTmp, "2", scc_w=True),
              salu("s_lshl_b32", sH, "s2", "10", scc_w=True), salu("s_add_u32", sH, sH, sTmp, scc_w=True),
              valu("v_mov_b32", E[0], s(94)),
              I(f"buffer_store_dword {E[0]}, off, {srdD}, {sH} offset:{57 * 4}", "vmem", rd=[E[0], srdD])]
    P += stamp(60) + stamp(56, True)
    P += [waitv(("QD", 0, 0)), barrier()]
    for f in range(RING):
        P += kread(-2, f, 0)
    qorder = [0, 6, 1, 7, 2, 8, 3, 9, 4, 10, 5, 11]
    for n in qorder:
        P.append(qread(Qreg(n // 6, n % 6), n, vS, ("QA", 0, n)))
    P += [waitl(("QA", 0, 7))]
    P += stamp(61)
    if OPT.get("dbg"):
        P += [I(f"s_memrealtime {s(98, 2)}", "salu"), I("s_waitcnt lgkmcnt(0)", "salu")]
    pend = ktile(1) + vtile(0) + ktile(2) + warm + vtile(1)
    for n in range(24):
        x, f = n // 12, n % 12
        for q in range(2):
            m = qk_mfma(0, f, 2 * x + q, FR[n % RING])
            m.needl = [("F", -2, n), ("QA" if x == 0 else "QB", 0, q * 6 + f % 6)]
            k = u.add_gap(m)
            if x == 0 and pend:
                it = pend.pop(0)
                if it.kind != "nop":
                    u.pin[k].append(it)
        if n + RING < 24:
            u.pin[k] += kread(-2, n + RING, 0)
        else:
            u.pin[k] += kread(0, n + RING - 24, 1)
        if f == 1:
            u.pin[k].append(waitl(("QA" if x == 0 else "QB", 0, 11)))
        if RING - 1 <= n < 23 and n != 11:
            u.pin[k].append(waitl(("F", -2, n + 1)))
        if n == 11:
            assert not pend
            k = u.add_gap(None)
            XPOS[0] = 0
            u.pin[k] += softmax(0, 0) + [waitv(("QD", 0, 1))]
            for nn in qorder:
                u.pin[k].append(qread(Qreg(2 + nn // 6, nn % 6), nn, [STG[0], STG[1]], ("QB", 0, nn)))
            u.pin[k] += sum_mfma(0, 0) + [waitl(("QB", 0, 7))]
        if n == 14:
            u.pin[k] += [waitv(("K", 1), ("V", 0), ("K", 2)), barrier()]
        if n == 15:
            u.pin[k] += ktile(3)
        if n == 16:
            u.pin[k] += vtile(2)
    u.pin[k] += [barrier(), waitl(*[("F", 0, i) for i in range(OPT["wper"])])]
    u.pin[k] += stamp(0)
    u.win0 = len(u.heads)
    add_iter(u, 0, 0, "T0p")
    return u


def unit_fin(b):
    u = Unit("FIN")
    u.pre.append(label("L_fin"))
    u.pre += stamp(15)
    g0 = b * 16 + 12
    NR = OPT.get("nr", 3)
    phases = [("QK", (0, 1), 13), ("PV", (0,), 12), ("QK", (0,), 14), ("PV", (0,), 13), ("QK", (0,), 15),
              ("PV", (0,), 14), ("PV", (0,), 15),
              ("QK", (1,), 14), ("PV", (1,), 12), ("QK", (1,), 15), ("PV", (1,), 13), ("PV", (1,), 14), ("PV", (1,), 15)]
    ALT_P[0] = True
    sums = {(0, 48): (1, 12), (1, 18): (0, 13), (3, 18): (0, 14), (5, 18): (0, 15), (8, 18): (1, 13), (10, 18): (1, 14),
            (11, 18): (1, 15)}
    start, end, sumgap, lastuse, done = {}, {}, {}, {}, {}
    nfr = 12 * len(phases)
    for pi, (kind, hs, tile) in enumerate(phases):
        if len(hs) == 2:
            seq = [(f, qb) for f in range(NR) for qb in (2, 3)] + [(f, qb) for f in range(NR) for qb in (0, 1)] + \
                  [(f, qb) for f in range(NR, 12) for qb in range(4)]
        else:
            seq = [(f, 2 * hs[0] + q) for f in range(12) for q in range(2)]
        start[pi] = len(u.heads)
        for i, (f, qb) in enumerate(seq):
            n = 12 * pi + f
            m = qk_mfma(tile, f, qb, FR[n % RING]) if kind == "QK" else pv_mfma(tile, f, qb, FR[n % RING], False)
            m.needl = [("F", g0, n)]
            lastuse[n] = done[(pi, f, qb)] = u.add_gap(m)
            if (pi, i + 1) in sums:
                sumgap[sums[(pi, i + 1)]] = len(u.heads)
                for m in sum_mfma(*sums[(pi, i + 1)]):
                    u.add_gap(m)
        end[pi] = len(u.heads) - 1
    last = u.add_gap(None)
    wp = OPT["wper"]
    for n in range(nfr):
        k = lastuse[n]
        nn = n + RING
        rd = []
        if nn < nfr:
            kind, hs, tile = phases[nn // 12]
            rd = kread(g0, nn, tile) if kind == "QK" else vread(g0, nn, tile)
            u.pin[k] += rd
        if (n + 1) % wp == 0 and n + 1 < nfr:
            u.pin[k if len(rd) < 2 else k - 1].append(waitl(*[("F", g0, n + 1 + i) for i in range(wp)]))
    u.pin[start[0] + 1].append(setm0(m0V[VSLOT[15]]))
    for c, k in enumerate((4, 8, 12)):
        u.pin[start[0] + k].append(dma(srdV, sT[15], c, ("V", g0 + 3)))
    u.pin[start[2] + 2] += [waitv(("K", g0 + 3), ("V", g0 + 1), ("V", g0 + 2)), barrier()]
    u.pin[start[4] + 14] += [waitv(("V", g0 + 3)), barrier()]
    def put_check(x, tile, kc, kb):
        c, br, lu = check(x, tile, f"F{tile}")
        u.tail[kc] += c
        u.tail[kb] += br
        u.streams.append(Stream(lu, kb + 1, kb + 3, prio=0.5))
    put_check(0, 12, start[0] + 2, start[0] + 2 * NR - 1)
    for (x, tile), k in sumgap.items():
        put_check(x, tile, k + 5, k + 7)
    XPOS[0] = 0
    sm = setw(softmax(1, 12), latest=sumgap[(1, 12)] - 2)
    x = exp_stream(0, SA, Pbuf(0, 13), KH0_FIRST[:8])
    x[0].earliest = start[0] + 30
    u.streams.append(Stream(sm + x, start[0], end[0], prio=0.05, look=OPT["look"]))
    for tile, pq in ((13, 0), (14, 2), (15, 4)):
        if pq:
            u.streams.append(Stream(exp_stream(0, SA, Pbuf(0, tile), KH0_FIRST[:8]), start[pq] + 15, end[pq] + 2,
                                    prio=0.05, look=OPT["look"]))
        u.streams.append(Stream(exp_stream(0, SA, Pbuf(0, tile), KH0_FIRST[8:]), end[pq] + (3 if pq else 1),
                                sumgap[(0, tile)] - 2, prio=0.05, look=OPT["look"]))
    for tile, pq in ((13, 7), (14, 9), (15, 11)):
        u.streams.append(Stream(softmax(1, tile), start[pq] + (OPT.get("b13", 12) if pq == 7 else 0), sumgap[(1, tile)] - 2,
                                prio=0.05, look=OPT["look"]))
    AD = [vOW, STG[0], STG[1], STG[2]]
    u.streams.append(Stream(set_osrd() + [valu("v_xor_b32", AD[e], str(32 * e), vOW) for e in range(1, 4)],
                            start[2] + 4, end[2]))
    kA = sumgap[(0, 15)] + 11
    u.streams.append(Stream(rinv_stream(0), kA, kA + 8, prio=0.5))
    Z = [Qc[4 * i: 4 * i + 4] for i in range(12)]

    def epi_group(qb, dts, T):
        r, m, c, w = [], [], [], []
        for i, dt in enumerate(dts):
            O = Otile(qb, dt)
            R = O if O.f == "v" else T[4 * i: 4 * i + 4]
            if O.f == "a":
                r += [valu("v_accvgpr_read_b32", R[j], O[j]) for j in range(4)]
            m += scale2(R[0:2], qb) + scale2(R[2:4], qb)
            cc = [valu("v_cvt_pk_bf16_f32", R[0], R[0], R[1]), valu("v_cvt_pk_bf16_f32", R[1], R[2], R[3])]
            c += cc
            wr = owrite(R[0:2], AD[dt % 4], qb % 2, dt)
            wr.after = cc[1]
            w.append(wr)
        return r, m, c, w

    ep, wr, sts = [], [], []
    for q in range(2):
        for grp in range(3):
            r, m, c, w = epi_group(q, range(4 * grp, 4 * grp + 4), None)
            setw(m, earliest=max(kA + 9, done[(6, 4 * grp + 3, q)] + 4))
            ep += m + c
            wr += w
        for n in range(6 * q, 6 * q + 6):
            rd = oread(Z[n], n, ("OR", b + 1, 0, n))
            rd.flags.add("head")
            wr.append(rd)
        w = waitl(("OR", b + 1, 0, 6 * q + 5))
        w.after = wr[-1]
        w.delay = 6
        sts.append(w)
        for n in range(6 * q, 6 * q + 6):
            st = ostore(Z[n], 0, n, [("OR", b + 1, 0, n)], True)
            st.flags.add("head")
            sts.append(st)
    u.streams.append(Stream(ep, kA + 9, end[7], prio=0.3))
    u.streams.append(Stream(wr, kA + 9, end[7] + 12, prio=0.3))
    u.streams[-1].headmax = 8
    u.streams.append(Stream(sts, start[7] - OPT.get("st0", 10), end[OPT.get("stend", 11)], prio=0.3))
    u.streams[-1].headmax = 4
    u.streams[-1].pace = True
    u.streams.append(Stream(rinv_stream(1), start[12] + 3, start[12] + 8, prio=0.5))
    TT = [SA, SB[0], SB[1]]
    ep, wr = [], []
    for grp in range(2):
        r, m, c, w = epi_group(2, range(4 * grp, 4 * grp + 4), TT[grp])
        setw(r, earliest=done[(12, 4 * grp + 3, 2)] + 3)
        ep += r + m + c
        wr += w
    u.streams.append(Stream(ep, start[12] + 9, end[12], prio=0.3))
    u.streams.append(Stream(wr, start[12] + 9, end[12], prio=0.3))
    u.streams[-1].headmax = 8
    po = u.pin[last]
    r, m, c, w = epi_group(2, range(8, 12), TT[2])
    po += r + m + c + w
    po += [oread(Z[n], n, ("OR", b + 1, 1, n)) for n in range(6)]
    for grp in range(3):
        r, m, c, w = epi_group(3, range(4 * grp, 4 * grp + 4), TT[grp])
        st = [ostore(Z[n], 1, n, [("OR", b + 1, 1, n)], True) for n in range(6)] if grp == 0 else []
        po += r[:8] + ([waitl(("OR", b + 1, 1, 5))] if grp == 0 else []) + st[:2] + r[8:] + st[2:4] + m + st[4:] + c + w
    po += [oread(Z[n], n, ("OR", b + 1, 1, n)) for n in range(6, 12)]
    for n in range(6, 12):
        po += [waitl(("OR", b + 1, 1, n)), ostore(Z[n], 1, n, [("OR", b + 1, 1, n)], True)]
    ALT_P[0] = False
    u.wins = sorted(set(list(start.values()) + list(sumgap.values()) + [start[2] + 15, start[4] + 15, kA + 9]))
    u.post += stamp(16) + stamp(17, True)
    if OPT["stamp"]:
        u.post += [I("s_waitcnt vmcnt(0)", "salu")] + stamp(18) + stamp(19, True)
    if OPT.get("dbg"):
        u.post += [I("s_cmp_ge_u32 s2, 8", "salu"), I("s_cbranch_scc1 L_end", "branch"),
                   I(f"s_cmp_lg_u32 {sW}, 0", "salu"), I("s_cbranch_scc1 L_end", "branch"),
                   I("s_waitcnt vmcnt(0)", "salu"), I(f"s_memrealtime {sStamp}", "salu"), I(f"s_memtime {sPC}", "salu"),
                   I("s_waitcnt lgkmcnt(0)", "salu"),
                   salu("s_mov_b32", srdD[2], "256"), salu("s_mov_b32", srdD[3], "0x00020000"),
                   I("s_mov_b64 exec, 1", "salu"),
                   salu("s_sub_u32", sTmp, sStamp[0], s(94)), salu("s_sub_u32", sH, s(98), s(94)),
                   salu("s_mul_i32", sH, sH, "100000"), salu("s_add_u32", sTmp, sTmp, sH),
                   valu("v_mov_b32", v(34), sTmp),
                   salu("s_sub_u32", sTmp, sPC[0], s(96)), valu("v_mov_b32", v(35), sTmp),
                   salu("s_lshl_b32", sTmp, "s2", "3"),
                   I(f"buffer_store_dwordx2 {v(34, 2)}, off, {srdD}, {sTmp}", "vmem", rd=[srdD])]
    u.post += [label("L_end"), I("s_endpgm", "branch")]
    return u


def build(extra):
    cache = {}

    def get(name, fn, first):
        u = fn()
        ins = u.schedule(budget=8, window=50, pk_at=20, verbose=first and VERB)
        out = []
        for idx, i in enumerate(ins):
            n = extra.get((name, idx), 0)
            if n:
                out.append(((name, idx, "nop"), nop(n - 1)))
            out.append(((name, idx), i))
        if first:
            cache[name] = out
        return out

    trace = list(get("PRO", unit_pro, True))
    for b in range(3):
        for t in range(1, 15 if b < 2 else 12):
            trace += get(f"T{t}", lambda: unit_mid(b, t), b == 0)
        if b < 2:
            trace += get("X", lambda: unit_x(b), b == 0)
    trace += get("FIN", lambda: unit_fin(2), True)
    order = ["PRO"] + [f"T{t}" for t in range(1, 15)] + ["X", "FIN"]
    return [(n, cache[n]) for n in order], trace


VERB = False
extra = {}
for it in range(60):
    static, trace = build(extra)
    hz = hazards([i for _, i in trace])
    if not hz:
        break
    upd = {}
    lastj = -100
    for j, need, why in hz:
        key = trace[j][0]
        if j != lastj and j - lastj < 24:
            continue
        lastj = j
        upd[key] = max(upd.get(key, 0), need)
        if OPT.get("showhz"):
            print("; hazard:", key, need, why, file=sys.stderr)
    for k, n in upd.items():
        extra[k] = extra.get(k, 0) + n
else:
    raise SystemExit("hazards did not converge")
if OPT.get("verb"):
    VERB = True
    _so = sys.stdout
    sys.stdout = sys.stderr
    build(extra)
    sys.stdout = _so
    print("; nops inserted:", extra, file=sys.stderr)
W = resolve_waits(trace)
_bad = check_coverage(trace, W)
assert not _bad, _bad[:10]
if OPT.get("verb") and "_mismatch" in W:
    print("; wait mismatches:", W["_mismatch"], file=sys.stderr)

out = []
A = out.append
A(open(os.path.join(os.path.dirname(os.path.abspath(__file__)), "header.txt")).read().rstrip())
A(f"; @launch grid=(256,1,1) block=(256,1,1) lds={LDS_BYTES}")
A('.amdgcn_target "amdgcn-amd-amdhsa--gfx950"')
A(".text")
A(f".globl {KNAME}")
A(".p2align 8")
A(f".type {KNAME},@function")
A(f"{KNAME}:")
for name, ins in static:
    A(f"; ---- {name} ----")
    for key, i in ins:
        t = i.text
        if i.kind == "wait":
            l, vv = W[key]
            t = "s_waitcnt " + (f"lgkmcnt({l})" if l is not None else f"vmcnt({vv})")
        abl = OPT.get("abl", "")
        if abl and name not in ("PRO",):
            tx = i.text
            if "c" in abl and "s_cbranch_vccnz" in tx:
                t = "s_nop 0"
            if "b" in abl and i.kind == "barrier":
                t = "s_nop 0"
            if "k" in abl and i.kind == "vmem" and (str(srdK) in tx or str(srdV) in tx):
                t = "s_nop 1"
            if "w" in abl and i.kind == "wait" and i.waitl is not None:
                t = "s_nop 0"
            if "W" in abl and i.kind == "wait" and i.waitv is not None:
                t = "s_nop 0"
            if "s" in abl and i.kind == "vmem" and (str(srdQ) in tx or str(srdO) in tx):
                t = "s_nop 1"
            if "z" in abl and "ds_write" in tx:
                t = "s_nop 1"
        if OPT.get("e64") and re.match(r"v_(exp_f32|add_f32|mul_f32|mov_b32|xor_b32|max_f32|rcp_f32) ", t) and "96" not in t.split(",")[1]:
            t = t.replace(" ", "_e64 ", 1)
        A(t if i.kind == "label" else "    " + t)
for name, x, par in TRAMPS:
    A(f"L_tr_{name}:")
    A(f"    s_call_b64 {sRet}, L_rare_{'AB'[x]}{par}")
    A(f"    s_branch L_ret_{name}")
for x, par in ((0, 0), (0, 1), (1, 0), (1, 1), (1, 3)):
    if True:
        ALT_P[0] = par == 3
        r = rare(x, par)
        ALT_P[0] = False
        hz = hazards(r)
        assert not hz, hz
        for i in r:
            A(i.text if i.kind == "label" else "    " + i.text)
A(".if L_code_end - L_x < 16384")
A(".fill (16384 - (L_code_end0 - L_x)) / 4, 4, 0xbf800000")
A(".endif") if False else None
out.pop(); out.pop()
A("L_code_end:")
A("    s_endpgm")
A(f""".section .rodata,"a"
.p2align 6
.amdhsa_kernel {KNAME}
  .amdhsa_next_free_vgpr 512
  .amdhsa_next_free_sgpr 102
  .amdhsa_accum_offset 256
  .amdhsa_group_segment_fixed_size 0
  .amdhsa_kernarg_size 48
  .amdhsa_user_sgpr_count 2
  .amdhsa_user_sgpr_kernarg_segment_ptr 1
  .amdhsa_system_sgpr_workgroup_id_x 1
  .amdhsa_float_denorm_mode_32 3
.end_amdhsa_kernel""")
print("\n".join(out))
```

```python
import sys, struct, math, os, re
sys.path.insert(0, os.path.dirname(os.path.abspath(__file__)))
import asmlib
from asmlib import *

asmlib.COST.update(vmem=8, barrier=8)
KNAME = "standalone__gqa_softmax__near_ridge_kernel"
OPT = dict(
    sgaps=[[20, 28, 36], [74, 82, 90]],
    oa_slots=[3, 4, 6, 8], ob_slots=[11, 13, 15, 18], qa_slots=[10, 12, 14, 16], qb_slots=[21, 22, 23, 24],
    oa_rd=[(1, g) for g in (1, 17, 25, 33, 41, 45, 59, 67)] + [(2, g) for g in (1, 9, 17, 22)],
    ob_rd=[(3, g) for g in (71, 75, 79, 83, 87, 91)] + [(4, g) for g in (1, 9, 17, 25, 33, 41)],
    qar_iter=10,
    kgaps=[4, 8, 12], vgaps=[48, 58, 66],
    bar_gap=98,
    wper=3, look=5,
    thr=4096.0,
    stamp=0,
    codewarm=1,
    pk=1,
    kv_nt=" nt", q_nt=" nt", o_nt=" sc1",
)
for a in sys.argv[1:]:
    if "=" in a:
        k, v = a.split("=", 1)
        OPT[k] = eval(v)

TILE = 12288
KSLOT = [0, 1, 2, 3] * 4
VSLOT = [0, 1, 2, 3] * 4
KBASE, VBASE, STAGE, SPARE = 0, 4 * TILE, 8 * TILE, 12 * TILE
LDS_BYTES = 13 * TILE
KD, VD = 4, 3
RING = 6
P2 = 50
NG = 100


def f2u(x):
    return struct.unpack("<I", struct.pack("<f", x))[0]


v = lambda lo, n=1: Reg("v", lo, n)
a = lambda lo, n=1: Reg("a", lo, n)
s = lambda lo, n=1: Reg("s", lo, n)

vLin = v(1)
vK = [v(2), v(3)]
vV = [v(4 + i) for i in range(4)]
vD = [v(8 + i) for i in range(3)]
vDO = [v(11 + i) for i in range(3)]
vS = [v(14), v(15)]
rinv = [v(16 + 2 * i) for i in range(4)]
rinv2 = [v(16 + 2 * i, 2) for i in range(4)]
lsum = [v(17 + 2 * i) for i in range(4)]
negmc = [v(24 + i) for i in range(4)]
TS = v(28, 4)
vOW = v(32)
E = [v(33), v(34), v(35)]
X = [v(36), v(37), v(38), v(39), v(0)]
PA = [v(40, 8), v(48, 8)]
PB = v(56, 8)
SA = v(64, 16)
SB = [v(80, 16), v(96, 16)]
OA = v(112, 96)
STG = v(208, 48)
OB = a(0, 96)
Qc = a(96, 96)
FR = [a(192 + 4 * i, 4) for i in range(RING)]
SQ = [a(216 + 4 * i, 4) for i in range(8)]
JUNK = SQ[7]
ONES = [a(248, 4), a(252, 4)]
OX = [OA, OB]

ptrQ, ptrK, ptrV, ptrO = s(4, 2), s(6, 2), s(8, 2), s(10, 2)
srdK, srdV, srdQ, srdO = s(12, 4), s(16, 4), s(20, 4), s(24, 4)
sBG, sH, sKO, sQO, sQOcur, sNrec, sTrip, sC, sNegC, sThr, sMagic, sW = [s(28 + i) for i in range(12)]
sRet = s(40, 2)
m0K = [s(42 + i) for i in range(4)]
sStage, sQB = s(46), s(47)
m0V = [s(48 + i) for i in range(4)]
sT = ["0"] + [s(51 + t) for t in range(1, 16)]
srdD = s(68, 4)
sStamp = s(72, 2)
sPC = s(76, 2)
sG = [[s(80 + 4 * x + j) for j in range(4)] for x in range(2)]
sM = [s(88 + j) for j in range(4)]
sTmp = s(92)
sWarm = s(74, 2)

SCALE_C = math.log2(math.e) / math.sqrt(192.0)


def Qreg(qb, ks):
    return Qc[(qb * 6 + ks) * 4: (qb * 6 + ks) * 4 + 4]


def Otile(qb, dt):
    n = (dt * 2 + qb % 2) * 4
    return OX[qb // 2][n: n + 4]


def Sbuf(x, tile):
    return SA if x == 0 else SB[tile % 2]


ALT_P = [False]


def Pbuf(x, tile):
    if x == 1 and ALT_P[0] and tile % 2 == 1:
        return PA[1]
    return PA[tile % 2] if x == 0 else PB


def dma(srd, soff, c, tag):
    off = f" offset:{c * 1024}" if c else ""
    return I(f"buffer_load_dwordx4 {vD[c]}, {srd}, {soff} offen{off}{OPT['kv_nt']} lds", "vmem",
             rd=[vD[c], srd, soff, "m0"], tag=tag)


def setm0(x):
    return salu("s_mov_b32", "m0", x)


def qdma(x, jj, c, tag, need=None):
    off = f" offset:{c * 1024}" if c else ""
    return I(f"buffer_load_dwordx4 {vD[c]}, {srdQ}, {sG[x][jj]} offen{off}{OPT['q_nt']} lds", "vmem",
             rd=[vD[c], srdQ, sG[x][jj], "m0"], tag=tag, needl=need)


def qread(dst, n, addr, tag, need=None):
    q, ks = n // 6, n % 6
    off = q * 6144 + (ks // 2) * 128
    return I(f"ds_read_b128 {dst}, {addr[ks % 2]} offset:{off}", "ds", rd=[addr[ks % 2]], wr=[dst], tag=tag, needv=need)


def oaddr(e):
    if e == 0:
        return vOW, []
    return E[2], [valu("v_xor_b32", E[2], str(e * 32), vOW)]


def owrite(src, addr, q, dt):
    off = q * 6144 + (dt // 4) * 128
    return I(f"ds_write_b64 {addr}, {src} offset:{off}", "ds", rd=[addr, src], cost=OPT.get("wcost", 12), flags=["head"])


def oread(dst, idx, tag):
    return I(f"ds_read_b128 {dst}, {vLin} offset:{idx * 1024}", "ds", rd=[vLin], wr=[dst], tag=tag)


def ostore(src, x, idx, need, fin=False):
    jj, c = idx // 3, idx % 3
    off = f" offset:{c * 1024}" if c else ""
    fl = OPT.get("of_nt" + "ab"[x], OPT["o_nt"]) if fin else OPT["o_nt"]
    return I(f"buffer_store_dwordx4 {src}, {vDO[c]}, {srdO}, {sG[x][jj]} offen{off}{fl}", "vmem",
             rd=[src, vDO[c], srdO, sG[x][jj]], flags=["wide"], cost=16, needl=need)


def obuf(x, idx):
    if x == 1:
        return STG[4 * idx: 4 * idx + 4]
    return SQ[idx % 8]


def kread(g, f, tile):
    kh, ks = (f % 12) // 6, f % 6
    off = KBASE + KSLOT[tile % 16] * TILE + kh * 6144 + (ks // 2) * 128
    d = FR[f % RING]
    return [I(f"ds_read_b128 {d}, {vK[ks % 2]} offset:{off}", "ds", rd=[vK[ks % 2]], wr=[d], tag=("F", g, f))]


def vread(g, f, tile):
    dt = f % 12
    d = FR[f % RING]
    out = []
    for jj in range(2):
        off = VSLOT[tile % 16] * TILE + jj * 6144 + (dt // 4) * 128
        out.append(I(f"ds_read_b64_tr_b16 {d[2 * jj:2 * jj + 2]}, {vV[dt % 4]} offset:{off}", "ds", rd=[vV[dt % 4]],
                     wr=[d[2 * jj:2 * jj + 2]], tag=("F", g, f) if jj == 1 else None))
    return out


def swap32(u, w):
    return I(f"v_permlane32_swap_b32 {u}, {w}", "valu", rd=[u, w], wr=[u, w], cost=8)


def swap16(u, w):
    return I(f"v_permlane16_swap_b32 {u}, {w}", "valu", rd=[u, w], wr=[u, w], cost=8)


def max_tree(S, u, w):
    o = []
    for a0, a1, a2, first in ((0, 1, 2, True), (3, 4, None, False), (5, 6, None, False)):
        for r, b in ((u, 0), (w, 8)):
            if first:
                o.append(valu("v_max3_f32", r, S[b + a0], S[b + a1], S[b + a2]))
            else:
                o.append(valu("v_max3_f32", r, r, S[b + a0], S[b + a1]))
    o += [valu("v_max_f32", u, u, S[7]), valu("v_max_f32", w, w, S[15])]
    return o


def reduce2(op, u, w):
    return [nop(1), swap32(u, w), valu(op, u, u, w), valu("v_mov_b32", w, u), nop(1), swap16(u, w), valu(op, u, u, w)]


def max_init(x, S):
    u, w = E[0], E[1]
    n0, n1 = negmc[2 * x], negmc[2 * x + 1]
    return max_tree(S, u, w) + reduce2("v_max_f32", u, w) + [
        valu("v_mul_f32", n0, sNegC, u), valu("v_mul_f32", n1, sNegC, u), nop(1), swap32(n0, n1)]


XPOS = [0]


def exp_stream(x, S, P, order=range(16), late=None):
    out = []
    order = list(order)
    p0 = XPOS[0]
    N = len(order)
    XPOS[0] = (p0 + N) % len(X)
    T = lambda n: X[(p0 + n) % len(X)]
    for n in range(N + 2):
        if n < N:
            i = order[n]
            f = valu("v_fma_f32", T(n), S[i], sC, negmc[2 * x + i // 8])
            if late is not None and i % 8 >= 4:
                f.earliest = late
            out.append(f)
        if 0 <= n - 1 < N:
            out.append(trans("v_exp_f32", T(n - 1), T(n - 1)))
        j = n - 2
        if 0 <= j < N and j % 2 == 1:
            out.append(valu("v_cvt_pk_bf16_f32", P[order[j] // 2], T(j - 1), T(j)))
    return out


TRAMPS = []
KH0_FIRST = [0, 1, 2, 3, 8, 9, 10, 11, 4, 5, 6, 7, 12, 13, 14, 15]


def softmax(x, tile, late=None):
    S, P = Sbuf(x, tile), Pbuf(x, tile)
    if tile == 0:
        return max_init(x, S) + exp_stream(x, S, P)
    return exp_stream(x, S, P, KH0_FIRST if late is not None else range(16), late)


def sum_mfma(x, tile):
    P = Pbuf(x, tile)
    return [mfma(TS, ONES[0], P[0:4], 0), mfma(TS, ONES[1], P[4:8], TS)]


def check(x, tile, site):
    if tile == 0:
        return [], [], [valu("v_mov_b32", lsum[2 * x + i], TS[i]) for i in range(2)]
    par = tile % 2
    if x == 1 and ALT_P[0] and par == 1:
        par = 3
    name = f"{site}_{'AB'[x]}"
    if (name, x, par) not in TRAMPS:
        TRAMPS.append((name, x, par))
    return ([I(f"v_cmp_nge_f32 vcc, {sThr}, {TS[2]}", "valu", rd=[sThr, TS[2]], wr=["vcc"])],
            [I(f"s_cbranch_vccnz L_tr_{name}", "branch", rd=["vcc"]), label(f"L_ret_{name}")],
            [valu("v_add_f32", lsum[2 * x + i], lsum[2 * x + i], TS[i]) for i in range(2)])


def rinv_stream(x):
    u, w = lsum[2 * x], lsum[2 * x + 1]
    r0, r1 = rinv[2 * x], rinv[2 * x + 1]
    return reduce2("v_add_f32", u, w) + [trans("v_rcp_f32", r0, u), trans("v_rcp_f32", r1, u), nop(1), swap32(r0, r1)]


def scale2(R, qb):
    if OPT["pk"]:
        return [I(f"v_pk_mul_f32 {R}, {R}, {rinv2[qb]} op_sel_hi:[1,0]", "valu", rd=[R, rinv[qb]], wr=[R], flags=["pk"])]
    return [valu("v_mul_f32", R[0], R[0], rinv[qb]), valu("v_mul_f32", R[1], R[1], rinv[qb])]


def epi_a(tt):
    O = OA[16 * tt: 16 * tt + 16]
    m = []
    for i in range(8):
        m += scale2(O[2 * i: 2 * i + 2], (i // 2) % 2)
    c = [valu("v_cvt_pk_bf16_f32", O[i], O[2 * i], O[2 * i + 1]) for i in range(8)]
    w = []
    for n in range(4):
        dt, q = 2 * tt + n // 2, n % 2
        ad, pre = oaddr(dt % 4)
        if q == 0:
            w += pre
        wr = owrite(O[2 * n: 2 * n + 2], ad, q, dt)
        wr.after = c[2 * n + 1]
        w.append(wr)
    return m, c, w


def epi_b(tt, half, T):
    O = OB[16 * tt: 16 * tt + 16]
    D = STG[tt * 8: tt * 8 + 8]
    r = [valu("v_accvgpr_read_b32", T[i], O[8 * half + i]) for i in range(8)]
    m = []
    for i in range(4):
        m += scale2(T[2 * i: 2 * i + 2], 2 + i // 2)
    c = [valu("v_cvt_pk_bf16_f32", D[4 * half + i], T[2 * i], T[2 * i + 1]) for i in range(4)]
    return r, m, c


def ob_writes(es):
    w = []
    for e in es:
        ad, pre = oaddr(e)
        w += pre
        for dt in (e, e + 4, e + 8):
            for q in range(2):
                n = (dt * 2 + q) * 2
                w.append(owrite(STG[n: n + 2], ad, q, dt))
    return w


def setw(items, earliest=None, latest=None):
    for i in items:
        if latest is not None:
            i.latest = latest if i.latest is None else min(i.latest, latest)
    if earliest is not None:
        items[0].earliest = earliest
    return items


def rare(x, par):
    S, P = Sbuf(x, par), Pbuf(x, par)
    u, w = E[0], E[1]
    f = [u, w]
    n = [negmc[2 * x], negmc[2 * x + 1]]
    o = [label(f"L_rare_{'AB'[x]}{par}"), nop(15)]
    o += max_tree(S, u, w)
    o += [valu("v_fma_f32", u, u, sC, n[0]), valu("v_fma_f32", w, w, sC, n[1])]
    o += reduce2("v_max_f32", u, w)
    o += [valu("v_max_f32", u, "0", u), valu("v_mov_b32", w, u), nop(1), swap32(u, w),
          valu("v_sub_f32", n[0], n[0], u), valu("v_sub_f32", n[1], n[1], w),
          trans("v_exp_f32", u, f"-{u}", extra_rd=[u]), trans("v_exp_f32", w, f"-{w}", extra_rd=[w]), nop(0),
          valu("v_mul_f32", lsum[2 * x], lsum[2 * x], u), valu("v_mul_f32", lsum[2 * x + 1], lsum[2 * x + 1], w)]
    O = OX[x]
    for i in range(96):
        ff = f[(i // 4) % 2]
        if O.f == "a":
            tt = P[i % 4]
            o += [valu("v_accvgpr_read_b32", tt, O[i]), valu("v_mul_f32", tt, tt, ff),
                  valu("v_accvgpr_write_b32", O[i], tt)]
        else:
            o.append(valu("v_mul_f32", O[i], O[i], ff))
    o += [valu("v_fma_f32", S[i], S[i], sC, n[i // 8]) for i in range(16)]
    o += [trans("v_exp_f32", S[i], S[i]) for i in range(16)]
    o += [valu("v_cvt_pk_bf16_f32", P[i], S[2 * i], S[2 * i + 1]) for i in range(8)]
    o += [nop(1)] + sum_mfma(x, par)
    o += [nop(15), I(f"s_setpc_b64 {sRet}", "branch", rd=[sRet])]
    return o


def qk_mfma(tile, f, qb, fr):
    kh, ks = f // 6, f % 6
    n = (qb % 2) * 8 + kh * 4
    d = Sbuf(qb // 2, tile)[n: n + 4]
    return mfma(d, fr, Qreg(qb, ks), d if ks else 0)


def pv_mfma(t, dt, qb, fr, zero):
    o = Otile(qb, dt)
    p = Pbuf(qb // 2, t)[4 * (qb % 2): 4 * (qb % 2) + 4]
    return mfma(o, fr, p, 0 if zero else o)


def frag_read(g, t, f):
    if f < 12:
        return kread(g, f, t + 1)
    if f < 24:
        return vread(g, f, t)
    return kread(g + 1, f - 24, t + 2)


def ftag(g, f):
    return ("F", g, f) if f < 24 else ("F", g + 1, f - 24)


def stamp(idx, real=False):
    if not OPT["stamp"]:
        return []
    if OPT["stamp"] == 2 and idx not in (0, 1, 15, 16, 17, 18, 19, 56, 60, 61):
        return []
    op = "s_memrealtime" if real else "s_memtime"
    return [I(f"{op} {sStamp}", "salu", wr=[sStamp]), I("s_waitcnt lgkmcnt(0)", "salu"),
            valu("v_mov_b32", E[0], sStamp[0]),
            I(f"buffer_store_dword {E[0]}, off, {srdD}, {sH} offset:{idx * 4}", "vmem", rd=[E[0], srdD])]


def add_iter(u, b, t, site):
    g = b * 16 + t
    base = len(u.heads)
    tn = (t + 1) % 16
    lastuse = {}
    NR = OPT.get("nr", 3)
    seq = [(f, qb) for f in range(NR) for qb in (2, 3)] + [(f, qb) for f in range(NR) for qb in (0, 1)] + \
          [(f, qb) for f in range(NR, 12) for qb in range(4)]
    for f, qb in seq:
        m = qk_mfma(tn, f, qb, FR[f % RING])
        m.needl = [("F", g, f)] + ([("QB", b + 1, (qb - 2) * 6 + f % 6)] if tn == 0 and qb >= 2 else [])
        lastuse[f] = u.add_gap(m)
    for m in sum_mfma(1, t):
        u.add_gap(m)
    seq = [(f, qb) for f in range(NR) for qb in (0, 1)] + [(f, qb) for f in range(NR) for qb in (2, 3)] + \
          [(f, qb) for f in range(NR, 12) for qb in range(4)]
    for dt, qb in seq:
        m = pv_mfma(t, dt, qb, FR[(12 + dt) % RING], t == 0)
        m.needl = [("F", g, 12 + dt)]
        lastuse[12 + dt] = u.add_gap(m)
    for m in sum_mfma(0, tn):
        u.add_gap(m)
    wp = OPT["wper"]
    for f in range(24):
        k = lastuse[f]
        rd = frag_read(g, t, f + RING)
        u.pin[k] += rd
        if (f + 1) % wp == 0:
            kw = k + 2 if f in (11, 23) else (k if len(rd) == 1 else k - 1)
            u.pin[kw].append(waitl(*[ftag(g, f + 1 + i) for i in range(wp)]))
    for x, k in ((0, base), (1, base + P2)):
        c, br, lu = check(x, t, site)
        u.tail[k + OPT.get("cmpgap", 2)] += c
        kb = k + 2 * NR - 1
        if OPT.get("brhead"):
            u.pin[kb] = br + u.pin[kb]
        else:
            u.tail[kb] += br
        u.streams.append(Stream(lu, kb + 1, kb + 3, prio=0.5))
    tk, tv = (t + KD) % 16, (t + VD) % 16
    u.pin[base + OPT["kgaps"][0] - 2].append(setm0(m0K[KSLOT[tk]]))
    for c, k in enumerate(OPT["kgaps"]):
        u.pin[base + k].append(dma(srdK, sT[tk], c, ("K", g + KD)))
    u.pin[base + OPT["vgaps"][0] - 3].append(setm0(m0V[VSLOT[tv]]))
    for c, k in enumerate(OPT["vgaps"]):
        u.pin[base + k].append(dma(srdV, sT[tv], c, ("V", g + VD)))
    for x, key in ((0, "oa_rd"), (1, "ob_rd")):
        for idx, (tt, k) in enumerate(OPT[key]):
            if tt == t:
                u.pin[base + k].append(oread(obuf(x, idx), idx, ("OR", b, x, idx)))
    if t in (2, 3):
        st = Stream(ob_writes((0, 1)), base + 23, base + 97) if t == 2 else Stream(ob_writes((2, 3)), base + 0, base + 70)
        st.pace = OPT.get("pace", 1)
        u.streams.append(st)
    for half in range(2):
        n = 2 * t + half
        gaps = OPT["sgaps"][half]
        for x, key in ((0, "oa_slots"), (1, "ob_slots")):
            if n in OPT[key]:
                jj = OPT[key].index(n)
                for c, k in enumerate(gaps):
                    idx = jj * 3 + c
                    u.pin[base + k].append(ostore(obuf(x, idx), x, idx, [("OR", b, x, idx)]))
        for x, key in ((0, "qa_slots"), (1, "qb_slots")):
            if n in OPT[key]:
                jj = OPT[key].index(n)
                u.pin[base + gaps[0] - 3].append(setm0(sM[jj]))
                need = [("OR", b, 1, 11)] if x == 0 else [("QA", b + 1, 11)]
                for c, k in enumerate(gaps):
                    u.pin[base + k].append(qdma(x, jj, c, ("QD", b + 1, x), need))
    if OPT["codewarm"] and t == OPT.get("rewarm", 8):
        u.pin[base + 74].append(I(f"global_load_dwordx4 {JUNK}, {vLin}, {sWarm}", "vmem", rd=[vLin, sWarm], wr=[JUNK]))
    if t == OPT["qar_iter"]:
        u.pin[base + 0].append(waitv(("QD", b + 1, 0)))
        for n in range(12):
            u.pin[base + 1 + 4 * n].append(qread(STG[n * 4: n * 4 + 4], n, vS, ("QA", b + 1, n), [("QD", b + 1, 0)]))
    if t == 14:
        u.pin[base + P2].append(waitv(("QD", b + 1, 1)))
        for i, n in enumerate([0, 6, 1, 7, 2, 8, 3, 9, 4, 10, 5, 11]):
            u.pin[base + P2 + 1 + 4 * (i // 2) + (8 if i >= 2 else 0)].append(
                qread(Qreg(2 + n // 6, n % 6), n, vS, ("QB", b + 1, n), [("QD", b + 1, 1)]))
    u.pin[base + OPT["bar_gap"]] += [waitv(("K", g + 3), ("V", g + 1)), barrier()]
    XPOS[0] = 0
    sb = setw(softmax(1, t), latest=base + 46)
    sa = softmax(0, tn, late=base + 49)
    sa[0].earliest = base + (P2 + 2 * NR if tn == 0 else 30)
    u.streams.append(Stream(sb + sa, base + 0, base + 96, prio=0.05, look=OPT["look"]))
    if t == 1:
        sl = [salu("s_mov_b32", sQOcur, sQO),
              salu("s_add_u32", sBG, sBG, "32", scc_w=True),
              salu("s_mul_hi_u32", sKO, sBG, sMagic),
              salu("s_mul_i32", sKO, sKO, "196608"),
              salu("s_mul_i32", sQO, sBG, "98304"),
              I(f"s_cmp_lt_u32 {sTrip}, 2", "salu", rd=[sTrip], wr=["scc"]),
              salu("s_cselect_b32", sNrec, "196608", "0", scc_r=True),
              salu("s_cselect_b32", srdQ[2], "98304", "0", scc_r=True),
              salu("s_add_u32", srdQ[0], ptrQ[0], sQO, scc_w=True),
              salu("s_addc_u32", srdQ[1], ptrQ[1], "0", scc_w=True, scc_r=True)]
        u.streams.append(Stream(sl, base + 24, base + 80))
    if t == 15 - KD:
        sl = [salu("s_add_u32", srdK[0], ptrK[0], sKO, scc_w=True),
              salu("s_addc_u32", srdK[1], ptrK[1], "0", scc_w=True, scc_r=True),
              salu("s_mov_b32", srdK[2], sNrec)]
        u.streams.append(Stream(sl, base + OPT["kgaps"][-1] + 1, base + 90))
    if t == 15 - VD:
        sl = [salu("s_add_u32", srdV[0], ptrV[0], sKO, scc_w=True),
              salu("s_addc_u32", srdV[1], ptrV[1], "0", scc_w=True, scc_r=True),
              salu("s_mov_b32", srdV[2], sNrec)]
        u.streams.append(Stream(sl, base + OPT["vgaps"][-1] + 1, base + 90))
    return base


def qcopy(base):
    out = []
    for ks in range(6):
        for q in range(2):
            for i in range(4):
                out.append(valu("v_accvgpr_write_b32", Qreg(q, ks)[i], STG[(q * 6 + ks) * 4 + i],
                                earliest=base + 4 * (6 + ks) + q))
    return out


def set_osrd():
    return [salu("s_add_u32", srdO[0], ptrO[0], sQOcur, scc_w=True),
            salu("s_addc_u32", srdO[1], ptrO[1], "0", scc_w=True, scc_r=True),
            salu("s_mov_b32", srdO[2], "98304")]


def unit_mid(b, t):
    u = Unit(f"T{t}")
    if t == 1:
        u.pre.append(label("L_loop"))
    u.pre += stamp(t)
    base = add_iter(u, b, t, f"T{t}")
    if t == 14:
        u.streams.append(Stream(qcopy(base), base + 24, base + 99))
    if t == 11:
        u.tail[base + 96].append(I(f"s_cmp_eq_u32 {sTrip}, 2", "salu", rd=[sTrip], wr=["scc"]))
        u.post += [I("s_cbranch_scc1 L_fin", "branch", rd=["scc"])]
    return u


def unit_x(b):
    u = Unit("X")
    u.pre.append(label("L_x"))
    u.pre += stamp(15)
    b15 = add_iter(u, b, 15, "T15")
    b0 = add_iter(u, b + 1, 0, "T0")
    u.streams.append(Stream(rinv_stream(0), b15 + 9, b15 + 40))
    u.streams.append(Stream(rinv_stream(1), b15 + P2 + 9, b15 + P2 + 15, prio=0.5))
    ep, wr = [], []
    for tt in range(6):
        O = OA[16 * tt: 16 * tt + 16]
        dl = b0 + P2 + (8 * tt if tt != 1 else 4) - 1
        m, c, w = epi_a(tt)
        r0, m0_, c0 = epi_b(tt, 0, O[8:16])
        r1, m1_, c1 = epi_b(tt, 1, O[8:16])
        setw(m, earliest=b15 + P2 + 8 * tt + 9)
        setw(r0, earliest=b15 + P2 + max(16, 8 * tt + 9))
        ep += setw(m + c + r0 + m0_ + c0 + r1 + m1_ + c1, latest=dl)
        wr += setw(w, latest=dl)
    u.streams.append(Stream(ep, b15 + P2 + 9, b0 + P2 + 39))
    u.streams.append(Stream(wr, b15 + P2 + 9, b0 + P2 + 39))
    u.streams.append(Stream(set_osrd(), b15 + 16, b15 + 44))
    sl = [salu("s_add_u32", sTrip, sTrip, "1", scc_w=True)]
    if OPT["stamp"]:
        sl.append(salu("s_add_u32", sH, sH, "64", scc_w=True))
    u.streams.append(Stream(sl, b0 + 4, b0 + 80))
    u.post.append(I("s_branch L_loop", "branch"))
    return u


def unit_pro():
    u = Unit("PRO")
    P = u.pre
    tid, lane, i16, G, t0, t1, t2 = v(0), X[0], X[1], X[2], X[3], E[0], E[1]
    P += [I("s_cmp_ge_u32 s2, 256", "salu", rd=["s2"], wr=["scc"]),
          I("s_cbranch_scc1 L_end", "branch", rd=["scc"]),
          I("s_load_dwordx4 s[4:7], s[0:1], 0", "salu", wr=[s(4, 4)]),
          I("s_load_dwordx4 s[8:11], s[0:1], 16", "salu", wr=[s(8, 4)])]
    warm = []
    if OPT["codewarm"]:
        P += [I(f"s_getpc_b64 {sPC}", "salu", wr=[sPC]),
              label("L_pc"),
              I(f"s_sub_u32 {sPC[0]}, {sPC[0]}, L_pc-{KNAME}", "salu", rd=[sPC], wr=[sPC, "scc"]),
              I(f"s_subb_u32 {sPC[1]}, {sPC[1]}, 0", "salu", rd=[sPC, "scc"], wr=[sPC, "scc"]),
              salu("s_lshr_b32", sH, "s2", "3", scc_w=True),
              salu("s_lshl_b32", sH, sH, "11", scc_w=True),
              valu("v_lshlrev_b32", E[2], "3", tid),
              valu("v_add_u32", E[2], sH, E[2]),
              I(f"v_min_u32 {E[2]}, L_code_end-{KNAME}-8, {E[2]}", "valu", rd=[E[2]], wr=[E[2]])]
        warm = [I(f"global_load_dwordx2 {JUNK[0:2]}, {E[2]}, {sPC}", "vmem", rd=[E[2], sPC], wr=[JUNK[0:2]])]
        if OPT["codewarm"] == 1:
            P += warm
            warm = []
    if OPT["stamp"]:
        P += [I(f"s_load_dwordx2 {srdD[0:2]}, s[0:1], 40", "salu"), I(f"s_memrealtime {s(94, 2)}", "salu")]
    if OPT.get("dbg"):
        P += [I(f"s_load_dwordx2 {srdD[0:2]}, s[0:1], 32", "salu"), I(f"s_memrealtime {s(94, 2)}", "salu"),
              I(f"s_memtime {s(96, 2)}", "salu")]
    P += [valu("v_lshrrev_b32", t0, "6", tid), valu("v_and_b32", lane, "63", tid),
          I(f"v_readfirstlane_b32 {sW}, {t0}", "valu", rd=[t0], wr=[sW]),
          valu("v_lshlrev_b32", t1, "4", lane)]
    P += [salu("s_and_b32", sBG, "s2", "7", scc_w=True),
          salu("s_mul_i32", sBG, sBG, "96"),
          salu("s_lshr_b32", sH, "s2", "3", scc_w=True),
          salu("s_add_u32", sBG, sBG, sH, scc_w=True),
          salu("s_mov_b32", sMagic, "0x55555556"),
          salu("s_mul_hi_u32", sKO, sBG, sMagic),
          salu("s_mul_i32", sKO, sKO, "196608"),
          salu("s_mul_i32", sQO, sBG, "98304")]
    P += [salu("s_mov_b32", sQB, str(VBASE + 2 * TILE)),
          I(f"s_cmp_eq_u32 {sW}, 0", "salu", rd=[sW], wr=["scc"]),
          salu("s_cselect_b32", sQB, str(KBASE + 3 * TILE), sQB, scc_r=True),
          I(f"s_cmp_eq_u32 {sW}, 2", "salu", rd=[sW], wr=["scc"]),
          salu("s_cselect_b32", sQB, str(VBASE + 3 * TILE), sQB, scc_r=True),
          I(f"s_cmp_eq_u32 {sW}, 3", "salu", rd=[sW], wr=["scc"]),
          salu("s_cselect_b32", sQB, str(SPARE), sQB, scc_r=True),
          salu("s_mul_i32", sW, sW, "3072")]
    late = []
    for c in range(3):
        P += [valu("v_add_u32", t0, str(c * 1024), t1),
              valu("v_lshrrev_b32", t2, "7", t0),
              valu("v_mul_u32_u24", t2, "171", t2),
              valu("v_lshrrev_b32", vDO[c], "9", t2),
              valu("v_and_b32", vD[c], "6", vDO[c]),
              valu("v_lshlrev_b32", vD[c], "4", vD[c]),
              valu("v_xor_b32", vD[c], vD[c], t1),
              valu("v_add_u32", vD[c], sW, vD[c])]
        late += [valu("v_lshlrev_b32", vDO[c], "4", vDO[c]),
                 valu("v_xor_b32", vDO[c], vDO[c], t1),
                 valu("v_add_u32", vDO[c], sW, vDO[c])]
    P += [salu("s_lshl_b32", sStage, sW, "2", scc_w=True),
          salu("s_add_u32", sStage, sStage, str(STAGE), scc_w=True),
          salu("s_mul_i32", sH, sW, "7")]
    for jj in range(4):
        P += [salu("s_add_u32", sM[jj], sStage, str(jj * 3072), scc_w=True),
              salu("s_add_u32", sG[0][jj], sH, str(jj * 3072), scc_w=True),
              salu("s_add_u32", sG[1][jj], sH, str(jj * 3072 + TILE), scc_w=True)]
    P += [I("s_waitcnt lgkmcnt(0)", "salu")]

    def mksrd(srd, ptr, off, n):
        return [salu("s_add_u32", srd[0], ptr[0], off, scc_w=True),
                salu("s_addc_u32", srd[1], ptr[1], "0", scc_w=True, scc_r=True),
                salu("s_mov_b32", srd[2], str(n)), salu("s_mov_b32", srd[3], "0x00020000")]

    def ktile(t):
        return [setm0(m0K[KSLOT[t]]), nop(0)] + [dma(srdK, sT[t], c, ("K", t)) for c in range(3)]

    def vtile(t):
        return [setm0(m0V[VSLOT[t]]), nop(0)] + [dma(srdV, sT[t], c, ("V", t)) for c in range(3)]

    P += [setm0(sW)] + mksrd(srdK, ptrK, sKO, 196608) + [dma(srdK, "0", c, ("K", 0)) for c in range(3)]
    P += mksrd(srdQ, ptrQ, sQO, 98304)
    for jj in range(4):
        P += [setm0(sM[jj]), nop(0)] + [qdma(0, jj, c, ("QD", 0, 0)) for c in range(3)]
    for jj in range(4):
        P += [salu("s_add_u32", "m0", sQB, str(jj * 3072), scc_w=True), nop(0)] + [qdma(1, jj, c, ("QD", 0, 1)) for c in range(3)]
    P += mksrd(srdV, ptrV, sKO, 196608)
    for i in range(4):
        P.append(salu("s_add_u32", m0K[i], sW, str(KBASE + i * TILE), scc_w=True))
        P.append(salu("s_add_u32", m0V[i], sW, str(VBASE + i * TILE), scc_w=True))
    for t in range(1, 16):
        P.append(salu("s_mov_b32", sT[t], str(t * TILE)))
    P += [salu("s_mov_b32", srdO[0], ptrO[0]), salu("s_mov_b32", srdO[1], ptrO[1]),
          salu("s_mov_b32", srdO[2], "0"), salu("s_mov_b32", srdO[3], "0x00020000"),
          salu("s_mov_b32", sTrip, "0"),
          salu("s_mov_b32", sC, hex(f2u(SCALE_C))), salu("s_mov_b32", sNegC, hex(f2u(-SCALE_C))),
          salu("s_mov_b32", sThr, hex(f2u(OPT["thr"])))]
    if OPT["codewarm"] and OPT.get("rewarm", 8):
        P += [salu("s_lshr_b32", sTmp, "s2", "3", scc_w=True), salu("s_and_b32", sTmp, sTmp, "3", scc_w=True),
              salu("s_lshl_b32", sTmp, sTmp, "12", scc_w=True),
              salu("s_mul_hi_u32", sH, sW, sMagic),
              salu("s_add_u32", sTmp, sTmp, sH, scc_w=True),
              I(f"s_add_u32 {sTmp}, {sTmp}, L_x-{KNAME}", "salu", rd=[sTmp], wr=[sTmp, "scc"]),
              salu("s_add_u32", sWarm[0], sPC[0], sTmp, scc_w=True),
              salu("s_addc_u32", sWarm[1], sPC[1], "0", scc_w=True, scc_r=True),
              salu("s_sub_u32", sWarm[0], sWarm[0], sStage, scc_w=True),
              salu("s_subb_u32", sWarm[1], sWarm[1], "0", scc_w=True, scc_r=True)]
    P += late + [valu("v_add_u32", vLin, sStage, t1)]
    P += [valu("v_and_b32", i16, "15", lane), valu("v_lshrrev_b32", G, "4", lane),
          valu("v_mul_u32_u24", t0, "384", i16)]
    P += [valu("v_and_b32", t1, "6", i16), valu("v_xor_b32", t1, t1, G), valu("v_lshl_add_u32", vK[0], t1, "4", t0),
          valu("v_xor_b32", vK[1], "64", vK[0])]
    for e in range(2):
        P += [valu("v_add_u32", vS[e], sStage, vK[e]), valu("v_add_u32", STG[e], sQB, vK[e])]
    P += [valu("v_lshrrev_b32", t1, "1", G), valu("v_and_b32", t2, "7", i16), valu("v_xor_b32", t1, t1, t2),
          valu("v_lshl_add_u32", vOW, t1, "4", t0), valu("v_and_b32", t1, "1", G),
          valu("v_lshl_add_u32", vOW, t1, "3", vOW), valu("v_add_u32", vOW, sStage, vOW)]
    P += [valu("v_lshrrev_b32", t1, "2", lane), valu("v_mul_u32_u24", t0, "384", t1),
          valu("v_and_b32", t1, "6", t1), valu("v_lshl_add_u32", t0, t1, "4", t0),
          valu("v_and_b32", t1, "3", lane), valu("v_lshl_add_u32", t0, t1, "3", t0),
          valu("v_add_u32", vV[0], str(VBASE), t0)]
    for e in range(1, 4):
        P.append(valu("v_xor_b32", vV[e], str(e * 32), vV[0]))
    P += [salu("s_mov_b32", sTmp, "0x3f803f80"), valu("v_mov_b32", t0, sTmp)]
    for j in range(2):
        P += [I(f"v_cmp_eq_u32 vcc, {j}, {i16}", "valu", rd=[i16], wr=["vcc"]),
              I(f"v_cmp_eq_u32 {sRet}, 2, {i16}", "valu", rd=[i16], wr=[sRet]), nop(0),
              I(f"s_or_b64 vcc, vcc, {sRet}", "salu", rd=["vcc", sRet], wr=["vcc", "scc"]), nop(1),
              I(f"v_cndmask_b32 {t1}, 0, {t0}, vcc", "valu", rd=[t0, "vcc"], wr=[t1])]
        P += [valu("v_accvgpr_write_b32", ONES[j][i], t1) for i in range(4)]
    if OPT["stamp"]:
        P += [salu("s_mov_b32", srdD[2], "0x1000000"), salu("s_mov_b32", srdD[3], "0x00020000"),
              salu("s_mul_hi_u32", sTmp, sW, sMagic), salu("s_lshr_b32", sTmp, sTmp, "2", scc_w=True),
              salu("s_lshl_b32", sH, "s2", "10", scc_w=True), salu("s_add_u32", sH, sH, sTmp, scc_w=True),
              valu("v_mov_b32", E[0], s(94)),
              I(f"buffer_store_dword {E[0]}, off, {srdD}, {sH} offset:{57 * 4}", "vmem", rd=[E[0], srdD])]
    P += stamp(60) + stamp(56, True)
    P += [waitv(("QD", 0, 0)), barrier()]
    for f in range(RING):
        P += kread(-2, f, 0)
    qorder = [0, 6, 1, 7, 2, 8, 3, 9, 4, 10, 5, 11]
    for n in qorder:
        P.append(qread(Qreg(n // 6, n % 6), n, vS, ("QA", 0, n)))
    P += [waitl(("QA", 0, 7))]
    P += stamp(61)
    if OPT.get("dbg"):
        P += [I(f"s_memrealtime {s(98, 2)}", "salu"), I("s_waitcnt lgkmcnt(0)", "salu")]
    pend = ktile(1) + vtile(0) + ktile(2) + warm + vtile(1)
    for n in range(24):
        x, f = n // 12, n % 12
        for q in range(2):
            m = qk_mfma(0, f, 2 * x + q, FR[n % RING])
            m.needl = [("F", -2, n), ("QA" if x == 0 else "QB", 0, q * 6 + f % 6)]
            k = u.add_gap(m)
            if x == 0 and pend:
                it = pend.pop(0)
                if it.kind != "nop":
                    u.pin[k].append(it)
        if n + RING < 24:
            u.pin[k] += kread(-2, n + RING, 0)
        else:
            u.pin[k] += kread(0, n + RING - 24, 1)
        if f == 1:
            u.pin[k].append(waitl(("QA" if x == 0 else "QB", 0, 11)))
        if RING - 1 <= n < 23 and n != 11:
            u.pin[k].append(waitl(("F", -2, n + 1)))
        if n == 11:
            assert not pend
            k = u.add_gap(None)
            XPOS[0] = 0
            u.pin[k] += softmax(0, 0) + [waitv(("QD", 0, 1))]
            for nn in qorder:
                u.pin[k].append(qread(Qreg(2 + nn // 6, nn % 6), nn, [STG[0], STG[1]], ("QB", 0, nn)))
            u.pin[k] += sum_mfma(0, 0) + [waitl(("QB", 0, 7))]
        if n == 14:
            u.pin[k] += [waitv(("K", 1), ("V", 0), ("K", 2)), barrier()]
        if n == 15:
            u.pin[k] += ktile(3)
        if n == 16:
            u.pin[k] += vtile(2)
    u.pin[k] += [barrier(), waitl(*[("F", 0, i) for i in range(OPT["wper"])])]
    u.pin[k] += stamp(0)
    u.win0 = len(u.heads)
    add_iter(u, 0, 0, "T0p")
    return u


def unit_fin(b):
    u = Unit("FIN")
    u.pre.append(label("L_fin"))
    u.pre += stamp(15)
    g0 = b * 16 + 12
    NR = OPT.get("nr", 3)
    phases = [("QK", (0, 1), 13), ("PV", (0,), 12), ("QK", (0,), 14), ("PV", (0,), 13), ("QK", (0,), 15),
              ("PV", (0,), 14), ("PV", (0,), 15),
              ("QK", (1,), 14), ("PV", (1,), 12), ("QK", (1,), 15), ("PV", (1,), 13), ("PV", (1,), 14), ("PV", (1,), 15)]
    ALT_P[0] = True
    sums = {(0, 48): (1, 12), (1, 18): (0, 13), (3, 18): (0, 14), (5, 18): (0, 15), (8, 18): (1, 13), (10, 18): (1, 14),
            (11, 18): (1, 15)}
    start, end, sumgap, lastuse, done = {}, {}, {}, {}, {}
    nfr = 12 * len(phases)
    for pi, (kind, hs, tile) in enumerate(phases):
        if len(hs) == 2:
            seq = [(f, qb) for f in range(NR) for qb in (2, 3)] + [(f, qb) for f in range(NR) for qb in (0, 1)] + \
                  [(f, qb) for f in range(NR, 12) for qb in range(4)]
        else:
            seq = [(f, 2 * hs[0] + q) for f in range(12) for q in range(2)]
        start[pi] = len(u.heads)
        for i, (f, qb) in enumerate(seq):
            n = 12 * pi + f
            m = qk_mfma(tile, f, qb, FR[n % RING]) if kind == "QK" else pv_mfma(tile, f, qb, FR[n % RING], False)
            m.needl = [("F", g0, n)]
            lastuse[n] = done[(pi, f, qb)] = u.add_gap(m)
            if (pi, i + 1) in sums:
                sumgap[sums[(pi, i + 1)]] = len(u.heads)
                for m in sum_mfma(*sums[(pi, i + 1)]):
                    u.add_gap(m)
        end[pi] = len(u.heads) - 1
    last = u.add_gap(None)
    wp = OPT["wper"]
    for n in range(nfr):
        k = lastuse[n]
        nn = n + RING
        rd = []
        if nn < nfr:
            kind, hs, tile = phases[nn // 12]
            rd = kread(g0, nn, tile) if kind == "QK" else vread(g0, nn, tile)
            u.pin[k] += rd
        if (n + 1) % wp == 0 and n + 1 < nfr:
            u.pin[k if len(rd) < 2 else k - 1].append(waitl(*[("F", g0, n + 1 + i) for i in range(wp)]))
    u.pin[start[0] + 1].append(setm0(m0V[VSLOT[15]]))
    for c, k in enumerate((4, 8, 12)):
        u.pin[start[0] + k].append(dma(srdV, sT[15], c, ("V", g0 + 3)))
    u.pin[start[2] + 2] += [waitv(("K", g0 + 3), ("V", g0 + 1), ("V", g0 + 2)), barrier()]
    u.pin[start[4] + 14] += [waitv(("V", g0 + 3)), barrier()]
    def put_check(x, tile, kc, kb):
        c, br, lu = check(x, tile, f"F{tile}")
        u.tail[kc] += c
        u.tail[kb] += br
        u.streams.append(Stream(lu, kb + 1, kb + 3, prio=0.5))
    put_check(0, 12, start[0] + 2, start[0] + 2 * NR - 1)
    for (x, tile), k in sumgap.items():
        put_check(x, tile, k + 5, k + 7)
    XPOS[0] = 0
    sm = setw(softmax(1, 12), latest=sumgap[(1, 12)] - 2)
    x = exp_stream(0, SA, Pbuf(0, 13), KH0_FIRST[:8])
    x[0].earliest = start[0] + 30
    u.streams.append(Stream(sm + x, start[0], end[0], prio=0.05, look=OPT["look"]))
    for tile, pq in ((13, 0), (14, 2), (15, 4)):
        if pq:
            u.streams.append(Stream(exp_stream(0, SA, Pbuf(0, tile), KH0_FIRST[:8]), start[pq] + 15, end[pq] + 2,
                                    prio=0.05, look=OPT["look"]))
        u.streams.append(Stream(exp_stream(0, SA, Pbuf(0, tile), KH0_FIRST[8:]), end[pq] + (3 if pq else 1),
                                sumgap[(0, tile)] - 2, prio=0.05, look=OPT["look"]))
    for tile, pq in ((13, 7), (14, 9), (15, 11)):
        u.streams.append(Stream(softmax(1, tile), start[pq] + (OPT.get("b13", 12) if pq == 7 else 0), sumgap[(1, tile)] - 2,
                                prio=0.05, look=OPT["look"]))
    AD = [vOW, STG[0], STG[1], STG[2]]
    u.streams.append(Stream(set_osrd() + [valu("v_xor_b32", AD[e], str(32 * e), vOW) for e in range(1, 4)],
                            start[2] + 4, end[2]))
    kA = sumgap[(0, 15)] + 11
    u.streams.append(Stream(rinv_stream(0), kA, kA + 8, prio=0.5))
    Z = [Qc[4 * i: 4 * i + 4] for i in range(12)]

    def epi_group(qb, dts, T):
        r, m, c, w = [], [], [], []
        for i, dt in enumerate(dts):
            O = Otile(qb, dt)
            R = O if O.f == "v" else T[4 * i: 4 * i + 4]
            if O.f == "a":
                r += [valu("v_accvgpr_read_b32", R[j], O[j]) for j in range(4)]
            m += scale2(R[0:2], qb) + scale2(R[2:4], qb)
            cc = [valu("v_cvt_pk_bf16_f32", R[0], R[0], R[1]), valu("v_cvt_pk_bf16_f32", R[1], R[2], R[3])]
            c += cc
            wr = owrite(R[0:2], AD[dt % 4], qb % 2, dt)
            wr.after = cc[1]
            w.append(wr)
        return r, m, c, w

    ep, wr, sts = [], [], []
    for q in range(2):
        for grp in range(3):
            r, m, c, w = epi_group(q, range(4 * grp, 4 * grp + 4), None)
            setw(m, earliest=max(kA + 9, done[(6, 4 * grp + 3, q)] + 4))
            ep += m + c
            wr += w
        for n in range(6 * q, 6 * q + 6):
            rd = oread(Z[n], n, ("OR", b + 1, 0, n))
            rd.flags.add("head")
            wr.append(rd)
        w = waitl(("OR", b + 1, 0, 6 * q + 5))
        w.after = wr[-1]
        w.delay = 6
        sts.append(w)
        for n in range(6 * q, 6 * q + 6):
            st = ostore(Z[n], 0, n, [("OR", b + 1, 0, n)], True)
            st.flags.add("head")
            sts.append(st)
    u.streams.append(Stream(ep, kA + 9, end[7], prio=0.3))
    u.streams.append(Stream(wr, kA + 9, end[7] + 12, prio=0.3))
    u.streams[-1].headmax = 8
    u.streams.append(Stream(sts, start[7] - OPT.get("st0", 10), end[OPT.get("stend", 11)], prio=0.3))
    u.streams[-1].headmax = 4
    u.streams[-1].pace = True
    u.streams.append(Stream(rinv_stream(1), start[12] + 3, start[12] + 8, prio=0.5))
    TT = [SA, SB[0], SB[1]]
    ep, wr = [], []
    for grp in range(2):
        r, m, c, w = epi_group(2, range(4 * grp, 4 * grp + 4), TT[grp])
        setw(r, earliest=done[(12, 4 * grp + 3, 2)] + 3)
        ep += r + m + c
        wr += w
    u.streams.append(Stream(ep, start[12] + 9, end[12], prio=0.3))
    u.streams.append(Stream(wr, start[12] + 9, end[12], prio=0.3))
    u.streams[-1].headmax = 8
    po = u.pin[last]
    r, m, c, w = epi_group(2, range(8, 12), TT[2])
    po += r + m + c + w
    po += [oread(Z[n], n, ("OR", b + 1, 1, n)) for n in range(6)]
    for grp in range(3):
        r, m, c, w = epi_group(3, range(4 * grp, 4 * grp + 4), TT[grp])
        st = [ostore(Z[n], 1, n, [("OR", b + 1, 1, n)], True) for n in range(6)] if grp == 0 else []
        po += r[:8] + ([waitl(("OR", b + 1, 1, 5))] if grp == 0 else []) + st[:2] + r[8:] + st[2:4] + m + st[4:] + c + w
    po += [oread(Z[n], n, ("OR", b + 1, 1, n)) for n in range(6, 12)]
    for n in range(6, 12):
        po += [waitl(("OR", b + 1, 1, n)), ostore(Z[n], 1, n, [("OR", b + 1, 1, n)], True)]
    ALT_P[0] = False
    u.wins = sorted(set(list(start.values()) + list(sumgap.values()) + [start[2] + 15, start[4] + 15, kA + 9]))
    u.post += stamp(16) + stamp(17, True)
    if OPT["stamp"]:
        u.post += [I("s_waitcnt vmcnt(0)", "salu")] + stamp(18) + stamp(19, True)
    if OPT.get("dbg"):
        u.post += [I("s_cmp_ge_u32 s2, 8", "salu"), I("s_cbranch_scc1 L_end", "branch"),
                   I(f"s_cmp_lg_u32 {sW}, 0", "salu"), I("s_cbranch_scc1 L_end", "branch"),
                   I("s_waitcnt vmcnt(0)", "salu"), I(f"s_memrealtime {sStamp}", "salu"), I(f"s_memtime {sPC}", "salu"),
                   I("s_waitcnt lgkmcnt(0)", "salu"),
                   salu("s_mov_b32", srdD[2], "256"), salu("s_mov_b32", srdD[3], "0x00020000"),
                   I("s_mov_b64 exec, 1", "salu"),
                   salu("s_sub_u32", sTmp, sStamp[0], s(94)), salu("s_sub_u32", sH, s(98), s(94)),
                   salu("s_mul_i32", sH, sH, "100000"), salu("s_add_u32", sTmp, sTmp, sH),
                   valu("v_mov_b32", v(34), sTmp),
                   salu("s_sub_u32", sTmp, sPC[0], s(96)), valu("v_mov_b32", v(35), sTmp),
                   salu("s_lshl_b32", sTmp, "s2", "3"),
                   I(f"buffer_store_dwordx2 {v(34, 2)}, off, {srdD}, {sTmp}", "vmem", rd=[srdD])]
    u.post += [label("L_end"), I("s_endpgm", "branch")]
    return u


def build(extra):
    cache = {}

    def get(name, fn, first):
        u = fn()
        ins = u.schedule(budget=8, window=50, pk_at=20, verbose=first and VERB)
        out = []
        for idx, i in enumerate(ins):
            n = extra.get((name, idx), 0)
            if n:
                out.append(((name, idx, "nop"), nop(n - 1)))
            out.append(((name, idx), i))
        if first:
            cache[name] = out
        return out

    trace = list(get("PRO", unit_pro, True))
    for b in range(3):
        for t in range(1, 15 if b < 2 else 12):
            trace += get(f"T{t}", lambda: unit_mid(b, t), b == 0)
        if b < 2:
            trace += get("X", lambda: unit_x(b), b == 0)
    trace += get("FIN", lambda: unit_fin(2), True)
    order = ["PRO"] + [f"T{t}" for t in range(1, 15)] + ["X", "FIN"]
    return [(n, cache[n]) for n in order], trace


VERB = False
extra = {}
for it in range(60):
    static, trace = build(extra)
    hz = hazards([i for _, i in trace])
    if not hz:
        break
    upd = {}
    lastj = -100
    for j, need, why in hz:
        key = trace[j][0]
        if j != lastj and j - lastj < 24:
            continue
        lastj = j
        upd[key] = max(upd.get(key, 0), need)
        if OPT.get("showhz"):
            print("; hazard:", key, need, why, file=sys.stderr)
    for k, n in upd.items():
        extra[k] = extra.get(k, 0) + n
else:
    raise SystemExit("hazards did not converge")
if OPT.get("verb"):
    VERB = True
    _so = sys.stdout
    sys.stdout = sys.stderr
    build(extra)
    sys.stdout = _so
    print("; nops inserted:", extra, file=sys.stderr)
W = resolve_waits(trace)
_bad = check_coverage(trace, W)
assert not _bad, _bad[:10]
if OPT.get("verb") and "_mismatch" in W:
    print("; wait mismatches:", W["_mismatch"], file=sys.stderr)

out = []
A = out.append
A(open(os.path.join(os.path.dirname(os.path.abspath(__file__)), "header.txt")).read().rstrip())
A(f"; @launch grid=(256,1,1) block=(256,1,1) lds={LDS_BYTES}")
A('.amdgcn_target "amdgcn-amd-amdhsa--gfx950"')
A(".text")
A(f".globl {KNAME}")
A(".p2align 8")
A(f".type {KNAME},@function")
A(f"{KNAME}:")
for name, ins in static:
    A(f"; ---- {name} ----")
    for key, i in ins:
        t = i.text
        if i.kind == "wait":
            l, vv = W[key]
            t = "s_waitcnt " + (f"lgkmcnt({l})" if l is not None else f"vmcnt({vv})")
        abl = OPT.get("abl", "")
        if abl and name not in ("PRO",):
            tx = i.text
            if "c" in abl and "s_cbranch_vccnz" in tx:
                t = "s_nop 0"
            if "b" in abl and i.kind == "barrier":
                t = "s_nop 0"
            if "k" in abl and i.kind == "vmem" and (str(srdK) in tx or str(srdV) in tx):
                t = "s_nop 1"
            if "w" in abl and i.kind == "wait" and i.waitl is not None:
                t = "s_nop 0"
            if "W" in abl and i.kind == "wait" and i.waitv is not None:
                t = "s_nop 0"
            if "s" in abl and i.kind == "vmem" and (str(srdQ) in tx or str(srdO) in tx):
                t = "s_nop 1"
            if "z" in abl and "ds_write" in tx:
                t = "s_nop 1"
            tok = tx.replace(",", " ").split()
            if "v" in abl and i.kind in ("valu", "trans") and any(str(r) in tok for r in X):
                t = "s_nop 0"
            if "V" in abl and i.kind in ("valu", "trans") and any(str(r) in tok for r in X):
                continue
            if "d" in abl and i.kind == "ds" and i.wr and i.wr[0] in names(FR):
                t = "s_nop 0"
            if "e" in abl and i.kind == "valu" and ("pk_mul" in tx or "accvgpr" in tx or ("cvt_pk" in tx and not any(str(r) in tok for r in X))):
                continue
            if "o" in abl and i.kind == "mfma" and i.wr == TS.names():
                continue
        if OPT.get("e64") and re.match(r"v_(exp_f32|add_f32|mul_f32|mov_b32|xor_b32|max_f32|rcp_f32) ", t) and "96" not in t.split(",")[1]:
            t = t.replace(" ", "_e64 ", 1)
        A(t if i.kind == "label" else "    " + t)
for name, x, par in TRAMPS:
    A(f"L_tr_{name}:")
    A(f"    s_call_b64 {sRet}, L_rare_{'AB'[x]}{par}")
    A(f"    s_branch L_ret_{name}")
for x, par in ((0, 0), (0, 1), (1, 0), (1, 1), (1, 3)):
    if True:
        ALT_P[0] = par == 3
        r = rare(x, par)
        ALT_P[0] = False
        hz = hazards(r)
        assert not hz, hz
        for i in r:
            A(i.text if i.kind == "label" else "    " + i.text)
A("L_code_end:")
A("    s_endpgm")
A(f""".section .rodata,"a"
.p2align 6
.amdhsa_kernel {KNAME}
  .amdhsa_next_free_vgpr 512
  .amdhsa_next_free_sgpr 102
  .amdhsa_accum_offset 256
  .amdhsa_group_segment_fixed_size 0
  .amdhsa_kernarg_size 48
  .amdhsa_user_sgpr_count 2
  .amdhsa_user_sgpr_kernarg_segment_ptr 1
  .amdhsa_system_sgpr_workgroup_id_x 1
  .amdhsa_float_denorm_mode_32 3
.end_amdhsa_kernel""")
print("\n".join(out))
```

```python
import sys, struct, math, os, re
sys.path.insert(0, os.path.dirname(os.path.abspath(__file__)))
import asmlib
from asmlib import *

asmlib.COST.update(vmem=8, barrier=8)
KNAME = "standalone__gqa_softmax__near_ridge_kernel"
OPT = dict(
    sgaps=[[20, 28, 36], [74, 82, 90]],
    qa_slots=[9, 11, 13, 14], qb_slots=[19, 21, 23, 25],
    oa_rd=[(1, g) for g in (1, 17, 25, 33, 41, 45, 59, 67)] + [(2, g) for g in (1, 9, 17, 22)],
    oa_st=[(1, 74), (1, 82), (1, 90), (2, 20), (2, 44), (2, 74), (3, 20), (3, 44), (3, 74), (4, 16), (4, 24), (4, 32)],
    ob_rd=[(3, g) for g in (71, 75, 79, 83, 87, 91, 95)] + [(4, g) for g in (1, 9, 18, 26, 34)],
    ob_st=[(8, 20), (8, 36), (8, 74), (8, 90), (13, 20), (13, 44), (13, 74), (14, 20), (14, 44), (15, 20), (15, 36), (15, 44)],
    ob_stg=4,
    ob_early=[(5, 20), (5, 32), (5, 44), (6, 20), (6, 32), (7, 74), (7, 82), (7, 90)],
    qar_iter=9,
    kgaps=[4, 8, 12], vgaps=[48, 58, 66],
    bar_gap=98,
    wper=3, look=5,
    thr=4096.0,
    stamp=0,
    codewarm=1,
    pk=1,
    kv_nt=" nt", q_nt=" nt", o_nt=" sc1",
)
for a in sys.argv[1:]:
    if "=" in a:
        k, v = a.split("=", 1)
        OPT[k] = eval(v)

TILE = 12288
KSLOT = [0, 1, 2, 3] * 4
VSLOT = [0, 1, 2, 3] * 4
KBASE, VBASE, STAGE, SPARE = 0, 4 * TILE, 8 * TILE, 12 * TILE
LDS_BYTES = 13 * TILE
KD, VD = 4, 3
RING = 6
P2 = 50
NG = 100


def f2u(x):
    return struct.unpack("<I", struct.pack("<f", x))[0]


v = lambda lo, n=1: Reg("v", lo, n)
a = lambda lo, n=1: Reg("a", lo, n)
s = lambda lo, n=1: Reg("s", lo, n)

vLin = v(1)
vK = [v(2), v(3)]
vV = [v(4 + i) for i in range(4)]
vD = [v(8 + i) for i in range(3)]
vDO = [v(11 + i) for i in range(3)]
vS = [v(14), v(15)]
rinv = [v(16 + 2 * i) for i in range(4)]
rinv2 = [v(16 + 2 * i, 2) for i in range(4)]
lsum = [v(17 + 2 * i) for i in range(4)]
negmc = [v(24 + i) for i in range(4)]
TS = v(28, 4)
vOW = v(32)
E = [v(33), v(34), v(35)]
X = [v(36), v(37), v(38), v(39), v(0)]
PA = [v(40, 8), v(48, 8)]
PB = v(56, 8)
SA = v(64, 16)
SB = [v(80, 16), v(96, 16)]
OA = v(112, 96)
STG = v(208, 48)
OB = a(0, 96)
Qc = a(96, 96)
FR = [a(192 + 4 * i, 4) for i in range(RING)]
SQ = [a(216 + 4 * i, 4) for i in range(8)]
JUNK = SQ[7]
ONES = [a(248, 4), a(252, 4)]
OX = [OA, OB]

ptrQ, ptrK, ptrV, ptrO = s(4, 2), s(6, 2), s(8, 2), s(10, 2)
srdK, srdV, srdQ, srdO = s(12, 4), s(16, 4), s(20, 4), s(24, 4)
sBG, sH, sKO, sQO, sQOcur, sNrec, sTrip, sC, sNegC, sThr, sMagic, sW = [s(28 + i) for i in range(12)]
sRet = s(40, 2)
m0K = [s(42 + i) for i in range(4)]
sStage, sQB = s(46), s(47)
m0V = [s(48 + i) for i in range(4)]
sT = ["0"] + [s(51 + t) for t in range(1, 16)]
srdD = s(68, 4)
sStamp = s(72, 2)
sPC = s(76, 2)
sG = [[s(80 + 4 * x + j) for j in range(4)] for x in range(2)]
sM = [s(88 + j) for j in range(4)]
sTmp = s(92)
srdO2 = s(96, 4)
sWarm = s(74, 2)

SCALE_C = math.log2(math.e) / math.sqrt(192.0)


def Qreg(qb, ks):
    return Qc[(qb * 6 + ks) * 4: (qb * 6 + ks) * 4 + 4]


def Otile(qb, dt):
    n = (dt * 2 + qb % 2) * 4
    return OX[qb // 2][n: n + 4]


def Sbuf(x, tile):
    return SA if x == 0 else SB[tile % 2]


ALT_P = [False]


def Pbuf(x, tile):
    if x == 1 and ALT_P[0] and tile % 2 == 1:
        return PA[1]
    return PA[tile % 2] if x == 0 else PB


def dma(srd, soff, c, tag):
    off = f" offset:{c * 1024}" if c else ""
    return I(f"buffer_load_dwordx4 {vD[c]}, {srd}, {soff} offen{off}{OPT['kv_nt']} lds", "vmem",
             rd=[vD[c], srd, soff, "m0"], tag=tag)


def setm0(x):
    return salu("s_mov_b32", "m0", x)


def qdma(x, jj, c, tag, need=None):
    off = f" offset:{c * 1024}" if c else ""
    return I(f"buffer_load_dwordx4 {vD[c]}, {srdQ}, {sG[x][jj]} offen{off}{OPT['q_nt']} lds", "vmem",
             rd=[vD[c], srdQ, sG[x][jj], "m0"], tag=tag, needl=need)


def qread(dst, n, addr, tag, need=None):
    q, ks = n // 6, n % 6
    off = q * 6144 + (ks // 2) * 128
    return I(f"ds_read_b128 {dst}, {addr[ks % 2]} offset:{off}", "ds", rd=[addr[ks % 2]], wr=[dst], tag=tag, needv=need)


def oaddr(e):
    if e == 0:
        return vOW, []
    return E[2], [valu("v_xor_b32", E[2], str(e * 32), vOW)]


def owrite(src, addr, q, dt):
    off = q * 6144 + (dt // 4) * 128
    return I(f"ds_write_b64 {addr}, {src} offset:{off}", "ds", rd=[addr, src], cost=OPT.get("wcost", 12), flags=["head"])


def oread(dst, idx, tag):
    return I(f"ds_read_b128 {dst}, {vLin} offset:{idx * 1024}", "ds", rd=[vLin], wr=[dst], tag=tag)


def ostore(src, x, idx, need, fin=False, srdO=srdO):
    jj, c = idx // 3, idx % 3
    off = f" offset:{c * 1024}" if c else ""
    fl = OPT.get("of_nt" + "ab"[x], OPT["o_nt"]) if fin else OPT["o_nt"]
    return I(f"buffer_store_dwordx4 {src}, {vDO[c]}, {srdO}, {sG[x][jj]} offen{off}{fl}", "vmem",
             rd=[src, vDO[c], srdO, sG[x][jj]], flags=["wide"], cost=16, needl=need)


def obuf(x, idx):
    if x == 1 and idx < OPT["ob_stg"]:
        return STG[4 * idx: 4 * idx + 4]
    return SQ[idx % 8]


def kread(g, f, tile):
    kh, ks = (f % 12) // 6, f % 6
    off = KBASE + KSLOT[tile % 16] * TILE + kh * 6144 + (ks // 2) * 128
    d = FR[f % RING]
    return [I(f"ds_read_b128 {d}, {vK[ks % 2]} offset:{off}", "ds", rd=[vK[ks % 2]], wr=[d], tag=("F", g, f))]


def vread(g, f, tile):
    dt = f % 12
    d = FR[f % RING]
    out = []
    for jj in range(2):
        off = VSLOT[tile % 16] * TILE + jj * 6144 + (dt // 4) * 128
        out.append(I(f"ds_read_b64_tr_b16 {d[2 * jj:2 * jj + 2]}, {vV[dt % 4]} offset:{off}", "ds", rd=[vV[dt % 4]],
                     wr=[d[2 * jj:2 * jj + 2]], tag=("F", g, f) if jj == 1 else None))
    return out


def swap32(u, w):
    return I(f"v_permlane32_swap_b32 {u}, {w}", "valu", rd=[u, w], wr=[u, w], cost=8)


def swap16(u, w):
    return I(f"v_permlane16_swap_b32 {u}, {w}", "valu", rd=[u, w], wr=[u, w], cost=8)


def max_tree(S, u, w):
    o = []
    for a0, a1, a2, first in ((0, 1, 2, True), (3, 4, None, False), (5, 6, None, False)):
        for r, b in ((u, 0), (w, 8)):
            if first:
                o.append(valu("v_max3_f32", r, S[b + a0], S[b + a1], S[b + a2]))
            else:
                o.append(valu("v_max3_f32", r, r, S[b + a0], S[b + a1]))
    o += [valu("v_max_f32", u, u, S[7]), valu("v_max_f32", w, w, S[15])]
    return o


def reduce2(op, u, w):
    return [nop(1), swap32(u, w), valu(op, u, u, w), valu("v_mov_b32", w, u), nop(1), swap16(u, w), valu(op, u, u, w)]


def max_init(x, S):
    u, w = E[0], E[1]
    n0, n1 = negmc[2 * x], negmc[2 * x + 1]
    return max_tree(S, u, w) + reduce2("v_max_f32", u, w) + [
        valu("v_mul_f32", n0, sNegC, u), valu("v_mul_f32", n1, sNegC, u), nop(1), swap32(n0, n1)]


XPOS = [0]


def exp_stream(x, S, P, order=range(16), late=None):
    out = []
    order = list(order)
    p0 = XPOS[0]
    N = len(order)
    XPOS[0] = (p0 + N) % len(X)
    T = lambda n: X[(p0 + n) % len(X)]
    for n in range(N + 2):
        if n < N:
            i = order[n]
            f = valu("v_fma_f32", T(n), S[i], sC, negmc[2 * x + i // 8])
            if late is not None and i % 8 >= 4:
                f.earliest = late
            out.append(f)
        if 0 <= n - 1 < N:
            out.append(trans("v_exp_f32", T(n - 1), T(n - 1)))
        j = n - 2
        if 0 <= j < N and j % 2 == 1:
            out.append(valu("v_cvt_pk_bf16_f32", P[order[j] // 2], T(j - 1), T(j)))
    return out


TRAMPS = []
KH0_FIRST = [0, 1, 2, 3, 8, 9, 10, 11, 4, 5, 6, 7, 12, 13, 14, 15]


def softmax(x, tile, late=None):
    S, P = Sbuf(x, tile), Pbuf(x, tile)
    if tile == 0:
        return max_init(x, S) + exp_stream(x, S, P)
    return exp_stream(x, S, P, KH0_FIRST if late is not None else range(16), late)


def sum_mfma(x, tile):
    P = Pbuf(x, tile)
    return [mfma(TS, ONES[0], P[0:4], 0), mfma(TS, ONES[1], P[4:8], TS)]


def check(x, tile, site):
    if tile == 0:
        return [], [], [valu("v_mov_b32", lsum[2 * x + i], TS[i]) for i in range(2)]
    par = tile % 2
    if x == 1 and ALT_P[0] and par == 1:
        par = 3
    name = f"{site}_{'AB'[x]}"
    if (name, x, par) not in TRAMPS:
        TRAMPS.append((name, x, par))
    return ([I(f"v_cmp_nge_f32 vcc, {sThr}, {TS[2]}", "valu", rd=[sThr, TS[2]], wr=["vcc"])],
            [I(f"s_cbranch_vccnz L_tr_{name}", "branch", rd=["vcc"]), label(f"L_ret_{name}")],
            [valu("v_add_f32", lsum[2 * x + i], lsum[2 * x + i], TS[i]) for i in range(2)])


def rinv_stream(x):
    u, w = lsum[2 * x], lsum[2 * x + 1]
    r0, r1 = rinv[2 * x], rinv[2 * x + 1]
    return reduce2("v_add_f32", u, w) + [trans("v_rcp_f32", r0, u), trans("v_rcp_f32", r1, u), nop(1), swap32(r0, r1)]


def scale2(R, qb):
    if OPT["pk"]:
        return [I(f"v_pk_mul_f32 {R}, {R}, {rinv2[qb]} op_sel_hi:[1,0]", "valu", rd=[R, rinv[qb]], wr=[R], flags=["pk"])]
    return [valu("v_mul_f32", R[0], R[0], rinv[qb]), valu("v_mul_f32", R[1], R[1], rinv[qb])]


def epi_a(tt):
    O = OA[16 * tt: 16 * tt + 16]
    m = []
    for i in range(8):
        m += scale2(O[2 * i: 2 * i + 2], (i // 2) % 2)
    c = [valu("v_cvt_pk_bf16_f32", O[i], O[2 * i], O[2 * i + 1]) for i in range(8)]
    w = []
    for n in range(4):
        dt, q = 2 * tt + n // 2, n % 2
        ad, pre = oaddr(dt % 4)
        if q == 0:
            w += pre
        wr = owrite(O[2 * n: 2 * n + 2], ad, q, dt)
        wr.after = c[2 * n + 1]
        w.append(wr)
    return m, c, w


def epi_b(tt, half, T):
    O = OB[16 * tt: 16 * tt + 16]
    D = STG[tt * 8: tt * 8 + 8]
    r = [valu("v_accvgpr_read_b32", T[i], O[8 * half + i]) for i in range(8)]
    m = []
    for i in range(4):
        m += scale2(T[2 * i: 2 * i + 2], 2 + i // 2)
    c = [valu("v_cvt_pk_bf16_f32", D[4 * half + i], T[2 * i], T[2 * i + 1]) for i in range(4)]
    return r, m, c


def ob_writes(es):
    w = []
    for e in es:
        ad, pre = oaddr(e)
        w += pre
        for dt in (e, e + 4, e + 8):
            for q in range(2):
                n = (dt * 2 + q) * 2
                w.append(owrite(STG[n: n + 2], ad, q, dt))
    return w


def setw(items, earliest=None, latest=None):
    for i in items:
        if latest is not None:
            i.latest = latest if i.latest is None else min(i.latest, latest)
    if earliest is not None:
        items[0].earliest = earliest
    return items


def rare(x, par):
    S, P = Sbuf(x, par), Pbuf(x, par)
    u, w = E[0], E[1]
    f = [u, w]
    n = [negmc[2 * x], negmc[2 * x + 1]]
    o = [label(f"L_rare_{'AB'[x]}{par}"), nop(15)]
    o += max_tree(S, u, w)
    o += [valu("v_fma_f32", u, u, sC, n[0]), valu("v_fma_f32", w, w, sC, n[1])]
    o += reduce2("v_max_f32", u, w)
    o += [valu("v_max_f32", u, "0", u), valu("v_mov_b32", w, u), nop(1), swap32(u, w),
          valu("v_sub_f32", n[0], n[0], u), valu("v_sub_f32", n[1], n[1], w),
          trans("v_exp_f32", u, f"-{u}", extra_rd=[u]), trans("v_exp_f32", w, f"-{w}", extra_rd=[w]), nop(0),
          valu("v_mul_f32", lsum[2 * x], lsum[2 * x], u), valu("v_mul_f32", lsum[2 * x + 1], lsum[2 * x + 1], w)]
    O = OX[x]
    for i in range(96):
        ff = f[(i // 4) % 2]
        if O.f == "a":
            tt = P[i % 4]
            o += [valu("v_accvgpr_read_b32", tt, O[i]), valu("v_mul_f32", tt, tt, ff),
                  valu("v_accvgpr_write_b32", O[i], tt)]
        else:
            o.append(valu("v_mul_f32", O[i], O[i], ff))
    o += [valu("v_fma_f32", S[i], S[i], sC, n[i // 8]) for i in range(16)]
    o += [trans("v_exp_f32", S[i], S[i]) for i in range(16)]
    o += [valu("v_cvt_pk_bf16_f32", P[i], S[2 * i], S[2 * i + 1]) for i in range(8)]
    o += [nop(1)] + sum_mfma(x, par)
    o += [nop(15), I(f"s_setpc_b64 {sRet}", "branch", rd=[sRet])]
    return o


def qk_mfma(tile, f, qb, fr):
    kh, ks = f // 6, f % 6
    n = (qb % 2) * 8 + kh * 4
    d = Sbuf(qb // 2, tile)[n: n + 4]
    return mfma(d, fr, Qreg(qb, ks), d if ks else 0)


def pv_mfma(t, dt, qb, fr, zero):
    o = Otile(qb, dt)
    p = Pbuf(qb // 2, t)[4 * (qb % 2): 4 * (qb % 2) + 4]
    return mfma(o, fr, p, 0 if zero else o)


def frag_read(g, t, f):
    if f < 12:
        return kread(g, f, t + 1)
    if f < 24:
        return vread(g, f, t)
    return kread(g + 1, f - 24, t + 2)


def ftag(g, f):
    return ("F", g, f) if f < 24 else ("F", g + 1, f - 24)


def stamp(idx, real=False):
    if not OPT["stamp"]:
        return []
    if OPT["stamp"] == 2 and idx not in (0, 1, 15, 16, 17, 18, 19, 56, 60, 61):
        return []
    op = "s_memrealtime" if real else "s_memtime"
    return [I(f"{op} {sStamp}", "salu", wr=[sStamp]), I("s_waitcnt lgkmcnt(0)", "salu"),
            valu("v_mov_b32", E[0], sStamp[0]),
            I(f"buffer_store_dword {E[0]}, off, {srdD}, {sH} offset:{idx * 4}", "vmem", rd=[E[0], srdD])]


def add_iter(u, b, t, site):
    g = b * 16 + t
    base = len(u.heads)
    tn = (t + 1) % 16
    lastuse = {}
    NR = OPT.get("nr", 3)
    seq = [(f, qb) for f in range(NR) for qb in (2, 3)] + [(f, qb) for f in range(NR) for qb in (0, 1)] + \
          [(f, qb) for f in range(NR, 12) for qb in range(4)]
    for f, qb in seq:
        m = qk_mfma(tn, f, qb, FR[f % RING])
        m.needl = [("F", g, f)] + ([("QB", b + 1, (qb - 2) * 6 + f % 6)] if tn == 0 and qb >= 2 else [])
        lastuse[f] = u.add_gap(m)
    for m in sum_mfma(1, t):
        u.add_gap(m)
    seq = [(f, qb) for f in range(NR) for qb in (0, 1)] + [(f, qb) for f in range(NR) for qb in (2, 3)] + \
          [(f, qb) for f in range(NR, 12) for qb in range(4)]
    for dt, qb in seq:
        m = pv_mfma(t, dt, qb, FR[(12 + dt) % RING], t == 0)
        m.needl = [("F", g, 12 + dt)]
        lastuse[12 + dt] = u.add_gap(m)
    for m in sum_mfma(0, tn):
        u.add_gap(m)
    wp = OPT["wper"]
    for f in range(24):
        k = lastuse[f]
        rd = frag_read(g, t, f + RING)
        u.pin[k] += rd
        if (f + 1) % wp == 0:
            kw = k + 2 if f in (11, 23) else (k if len(rd) == 1 else k - 1)
            u.pin[kw].append(waitl(*[ftag(g, f + 1 + i) for i in range(wp)]))
    for x, k in ((0, base), (1, base + P2)):
        c, br, lu = check(x, t, site)
        u.tail[k + OPT.get("cmpgap", 2)] += c
        kb = k + 2 * NR - 1
        if OPT.get("brhead"):
            u.pin[kb] = br + u.pin[kb]
        else:
            u.tail[kb] += br
        u.streams.append(Stream(lu, kb + 1, kb + 3, prio=0.5))
    tk, tv = (t + KD) % 16, (t + VD) % 16
    u.pin[base + OPT["kgaps"][0] - 2].append(setm0(m0K[KSLOT[tk]]))
    for c, k in enumerate(OPT["kgaps"]):
        u.pin[base + k].append(dma(srdK, sT[tk], c, ("K", g + KD)))
    u.pin[base + OPT["vgaps"][0] - 3].append(setm0(m0V[VSLOT[tv]]))
    for c, k in enumerate(OPT["vgaps"]):
        u.pin[base + k].append(dma(srdV, sT[tv], c, ("V", g + VD)))
    for x, key in ((0, "oa_rd"), (1, "ob_rd")):
        for idx, (tt, k) in enumerate(OPT[key]):
            if tt == t:
                u.pin[base + k].append(oread(obuf(x, idx), idx, ("OR", b, x, idx)))
    for x, key in ((0, "oa_st"), (1, "ob_st")):
        for idx, (tt, k) in enumerate(OPT[key]):
            if tt == t:
                u.pin[base + k].append(ostore(obuf(x, idx), x, idx, [("OR", b, x, idx)]))
    if OPT.get("ob_early"):
        late = [idx for idx, (tt, k) in enumerate(OPT["ob_st"]) if tt > 11]
        for idx, (tt, k) in zip(late, OPT["ob_early"]):
            if tt == t:
                u.pin[base + k].append(ostore(obuf(1, idx), 1, idx, [("OR", b, 1, idx)], srdO=srdO2))
    if t in (2, 3):
        st = Stream(ob_writes((0, 1)), base + 23, base + 97) if t == 2 else Stream(ob_writes((2, 3)), base + 0, base + 70)
        st.pace = OPT.get("pace", 1)
        u.streams.append(st)
    for half in range(2):
        n = 2 * t + half
        gaps = OPT["sgaps"][half]
        for x, key in ((0, "qa_slots"), (1, "qb_slots")):
            if n in OPT[key]:
                jj = OPT[key].index(n)
                u.pin[base + gaps[0] - 3].append(setm0(sM[jj]))
                need = [("OR", b, 1, 11)] if x == 0 else [("QA", b + 1, 11)]
                for c, k in enumerate(gaps):
                    u.pin[base + k].append(qdma(x, jj, c, ("QD", b + 1, x), need))
    if OPT["codewarm"] and t == OPT.get("rewarm", 6):
        u.pin[base + 44].append(I(f"global_load_dwordx4 {STG[44:48]}, {vLin}, {sWarm}", "vmem", rd=[vLin, sWarm], wr=[STG[44:48]]))
    if t == OPT["qar_iter"]:
        u.pin[base + 0].append(waitv(("QD", b + 1, 0)))
        for n in range(12):
            u.pin[base + 1 + 4 * n].append(qread(STG[n * 4: n * 4 + 4], n, vS, ("QA", b + 1, n), [("QD", b + 1, 0)]))
    if t == 14:
        u.pin[base + P2].append(waitv(("QD", b + 1, 1)))
        for i, n in enumerate([0, 6, 1, 7, 2, 8, 3, 9, 4, 10, 5, 11]):
            u.pin[base + P2 + 1 + 4 * (i // 2) + (8 if i >= 2 else 0)].append(
                qread(Qreg(2 + n // 6, n % 6), n, vS, ("QB", b + 1, n), [("QD", b + 1, 1)]))
    u.pin[base + OPT["bar_gap"]] += [waitv(("K", g + 3), ("V", g + 1)), barrier()]
    XPOS[0] = 0
    sb = setw(softmax(1, t), latest=base + 46)
    sa = softmax(0, tn, late=base + 49)
    sa[0].earliest = base + (P2 + 2 * NR if tn == 0 else 30)
    u.streams.append(Stream(sb + sa, base + 0, base + 96, prio=0.05, look=OPT["look"]))
    if t == 1:
        sl = [salu("s_mov_b32", sQOcur, sQO),
              salu("s_add_u32", sBG, sBG, "32", scc_w=True),
              salu("s_mul_hi_u32", sKO, sBG, sMagic),
              salu("s_mul_i32", sKO, sKO, "196608"),
              salu("s_mul_i32", sQO, sBG, "98304"),
              I(f"s_cmp_lt_u32 {sTrip}, 2", "salu", rd=[sTrip], wr=["scc"]),
              salu("s_cselect_b32", sNrec, "196608", "0", scc_r=True),
              salu("s_cselect_b32", srdQ[2], "98304", "0", scc_r=True),
              salu("s_add_u32", srdQ[0], ptrQ[0], sQO, scc_w=True),
              salu("s_addc_u32", srdQ[1], ptrQ[1], "0", scc_w=True, scc_r=True)]
        u.streams.append(Stream(sl, base + 24, base + 80))
    if t == 15 - KD:
        sl = [salu("s_add_u32", srdK[0], ptrK[0], sKO, scc_w=True),
              salu("s_addc_u32", srdK[1], ptrK[1], "0", scc_w=True, scc_r=True),
              salu("s_mov_b32", srdK[2], sNrec)]
        u.streams.append(Stream(sl, base + OPT["kgaps"][-1] + 1, base + 90))
    if t == 15 - VD:
        sl = [salu("s_add_u32", srdV[0], ptrV[0], sKO, scc_w=True),
              salu("s_addc_u32", srdV[1], ptrV[1], "0", scc_w=True, scc_r=True),
              salu("s_mov_b32", srdV[2], sNrec)]
        u.streams.append(Stream(sl, base + OPT["vgaps"][-1] + 1, base + 90))
    return base


def qcopy(base):
    out = []
    for ks in range(6):
        for q in range(2):
            for i in range(4):
                out.append(valu("v_accvgpr_write_b32", Qreg(q, ks)[i], STG[(q * 6 + ks) * 4 + i],
                                earliest=base + 4 * (6 + ks) + q))
    return out


def set_osrd():
    return [salu("s_add_u32", srdO[0], ptrO[0], sQOcur, scc_w=True),
            salu("s_addc_u32", srdO[1], ptrO[1], "0", scc_w=True, scc_r=True),
            salu("s_mov_b32", srdO[2], "98304")]


def unit_mid(b, t):
    u = Unit(f"T{t}")
    if t == 1:
        u.pre.append(label("L_loop"))
    u.pre += stamp(t)
    base = add_iter(u, b, t, f"T{t}")
    if t == 14:
        u.streams.append(Stream(qcopy(base), base + 24, base + 99))
    if t == 11:
        u.tail[base + 96].append(I(f"s_cmp_eq_u32 {sTrip}, 2", "salu", rd=[sTrip], wr=["scc"]))
        u.post += [I("s_cbranch_scc1 L_fin", "branch", rd=["scc"])]
    return u


def unit_x(b):
    u = Unit("X")
    u.pre.append(label("L_x"))
    u.pre += stamp(15)
    b15 = add_iter(u, b, 15, "T15")
    b0 = add_iter(u, b + 1, 0, "T0")
    u.streams.append(Stream(rinv_stream(0), b15 + 9, b15 + 40))
    u.streams.append(Stream(rinv_stream(1), b15 + P2 + 9, b15 + P2 + 15, prio=0.5))
    ep, wr = [], []
    for tt in range(6):
        O = OA[16 * tt: 16 * tt + 16]
        dl = b0 + P2 + (8 * tt if tt != 1 else 4) - 1
        m, c, w = epi_a(tt)
        r0, m0_, c0 = epi_b(tt, 0, O[8:16])
        r1, m1_, c1 = epi_b(tt, 1, O[8:16])
        setw(m, earliest=b15 + P2 + 8 * tt + 9)
        setw(r0, earliest=b15 + P2 + max(16, 8 * tt + 9))
        ep += setw(m + c + r0 + m0_ + c0 + r1 + m1_ + c1, latest=dl)
        wr += setw(w, latest=dl)
    u.streams.append(Stream(ep, b15 + P2 + 9, b0 + P2 + 39))
    u.streams.append(Stream(wr, b15 + P2 + 9, b0 + P2 + 39))
    so = set_osrd()
    if OPT.get("ob_early"):
        so += [salu("s_mov_b32", srdO2[0], srdO[0]), salu("s_mov_b32", srdO2[1], srdO[1]),
               I(f"s_cmp_eq_u32 {sTrip}, 1", "salu", rd=[sTrip], wr=["scc"]),
               salu("s_cselect_b32", srdO2[2], "98304", "0", scc_r=True)]
    u.streams.append(Stream(so, b15 + 46, b15 + 56))
    sl = [salu("s_add_u32", sTrip, sTrip, "1", scc_w=True)]
    if OPT["stamp"]:
        sl.append(salu("s_add_u32", sH, sH, "64", scc_w=True))
    u.streams.append(Stream(sl, b0 + 4, b0 + 80))
    u.post.append(I("s_branch L_loop", "branch"))
    return u


def unit_pro():
    u = Unit("PRO")
    P = u.pre
    tid, lane, i16, G, t0, t1, t2 = v(0), X[0], X[1], X[2], X[3], E[0], E[1]
    P += [I("s_cmp_ge_u32 s2, 256", "salu", rd=["s2"], wr=["scc"]),
          I("s_cbranch_scc1 L_end", "branch", rd=["scc"]),
          I("s_load_dwordx4 s[4:7], s[0:1], 0", "salu", wr=[s(4, 4)]),
          I("s_load_dwordx4 s[8:11], s[0:1], 16", "salu", wr=[s(8, 4)])]
    warm = []
    if OPT["codewarm"]:
        P += [I(f"s_getpc_b64 {sPC}", "salu", wr=[sPC]),
              label("L_pc"),
              I(f"s_sub_u32 {sPC[0]}, {sPC[0]}, L_pc-{KNAME}", "salu", rd=[sPC], wr=[sPC, "scc"]),
              I(f"s_subb_u32 {sPC[1]}, {sPC[1]}, 0", "salu", rd=[sPC, "scc"], wr=[sPC, "scc"]),
              salu("s_lshr_b32", sH, "s2", "3", scc_w=True),
              salu("s_lshl_b32", sH, sH, "11", scc_w=True),
              valu("v_lshlrev_b32", E[2], "3", tid),
              valu("v_add_u32", E[2], sH, E[2]),
              I(f"v_min_u32 {E[2]}, L_code_end-{KNAME}-8, {E[2]}", "valu", rd=[E[2]], wr=[E[2]])]
        warm = [I(f"global_load_dwordx2 {JUNK[0:2]}, {E[2]}, {sPC}", "vmem", rd=[E[2], sPC], wr=[JUNK[0:2]])]
        if OPT["codewarm"] == 1:
            P += warm
            warm = []
    if OPT["stamp"]:
        P += [I(f"s_load_dwordx2 {srdD[0:2]}, s[0:1], 40", "salu"), I(f"s_memrealtime {s(94, 2)}", "salu")]
    if OPT.get("dbg"):
        P += [I(f"s_load_dwordx2 {srdD[0:2]}, s[0:1], 32", "salu"), I(f"s_memrealtime {s(94, 2)}", "salu"),
              I(f"s_memtime {s(100, 2)}", "salu")]
    P += [valu("v_lshrrev_b32", t0, "6", tid), valu("v_and_b32", lane, "63", tid),
          I(f"v_readfirstlane_b32 {sW}, {t0}", "valu", rd=[t0], wr=[sW]),
          valu("v_lshlrev_b32", t1, "4", lane)]
    P += [salu("s_and_b32", sBG, "s2", "7", scc_w=True),
          salu("s_mul_i32", sBG, sBG, "96"),
          salu("s_lshr_b32", sH, "s2", "3", scc_w=True),
          salu("s_add_u32", sBG, sBG, sH, scc_w=True),
          salu("s_mov_b32", sMagic, "0x55555556"),
          salu("s_mul_hi_u32", sKO, sBG, sMagic),
          salu("s_mul_i32", sKO, sKO, "196608"),
          salu("s_mul_i32", sQO, sBG, "98304")]
    P += [salu("s_mov_b32", sQB, str(VBASE + 2 * TILE)),
          I(f"s_cmp_eq_u32 {sW}, 0", "salu", rd=[sW], wr=["scc"]),
          salu("s_cselect_b32", sQB, str(KBASE + 3 * TILE), sQB, scc_r=True),
          I(f"s_cmp_eq_u32 {sW}, 2", "salu", rd=[sW], wr=["scc"]),
          salu("s_cselect_b32", sQB, str(VBASE + 3 * TILE), sQB, scc_r=True),
          I(f"s_cmp_eq_u32 {sW}, 3", "salu", rd=[sW], wr=["scc"]),
          salu("s_cselect_b32", sQB, str(SPARE), sQB, scc_r=True),
          salu("s_mul_i32", sW, sW, "3072")]
    late = []
    for c in range(3):
        P += [valu("v_add_u32", t0, str(c * 1024), t1),
              valu("v_lshrrev_b32", t2, "7", t0),
              valu("v_mul_u32_u24", t2, "171", t2),
              valu("v_lshrrev_b32", vDO[c], "9", t2),
              valu("v_and_b32", vD[c], "6", vDO[c]),
              valu("v_lshlrev_b32", vD[c], "4", vD[c]),
              valu("v_xor_b32", vD[c], vD[c], t1),
              valu("v_add_u32", vD[c], sW, vD[c])]
        late += [valu("v_lshlrev_b32", vDO[c], "4", vDO[c]),
                 valu("v_xor_b32", vDO[c], vDO[c], t1),
                 valu("v_add_u32", vDO[c], sW, vDO[c])]
    P += [salu("s_lshl_b32", sStage, sW, "2", scc_w=True),
          salu("s_add_u32", sStage, sStage, str(STAGE), scc_w=True),
          salu("s_mul_i32", sH, sW, "7")]
    for jj in range(4):
        P += [salu("s_add_u32", sM[jj], sStage, str(jj * 3072), scc_w=True),
              salu("s_add_u32", sG[0][jj], sH, str(jj * 3072), scc_w=True),
              salu("s_add_u32", sG[1][jj], sH, str(jj * 3072 + TILE), scc_w=True)]
    P += [I("s_waitcnt lgkmcnt(0)", "salu")]

    def mksrd(srd, ptr, off, n):
        return [salu("s_add_u32", srd[0], ptr[0], off, scc_w=True),
                salu("s_addc_u32", srd[1], ptr[1], "0", scc_w=True, scc_r=True),
                salu("s_mov_b32", srd[2], str(n)), salu("s_mov_b32", srd[3], "0x00020000")]

    def ktile(t):
        return [setm0(m0K[KSLOT[t]]), nop(0)] + [dma(srdK, sT[t], c, ("K", t)) for c in range(3)]

    def vtile(t):
        return [setm0(m0V[VSLOT[t]]), nop(0)] + [dma(srdV, sT[t], c, ("V", t)) for c in range(3)]

    P += [setm0(sW)] + mksrd(srdK, ptrK, sKO, 196608) + [dma(srdK, "0", c, ("K", 0)) for c in range(3)]
    P += mksrd(srdQ, ptrQ, sQO, 98304)
    for jj in range(4):
        P += [setm0(sM[jj]), nop(0)] + [qdma(0, jj, c, ("QD", 0, 0)) for c in range(3)]
    for jj in range(4):
        P += [salu("s_add_u32", "m0", sQB, str(jj * 3072), scc_w=True), nop(0)] + [qdma(1, jj, c, ("QD", 0, 1)) for c in range(3)]
    P += mksrd(srdV, ptrV, sKO, 196608)
    for i in range(4):
        P.append(salu("s_add_u32", m0K[i], sW, str(KBASE + i * TILE), scc_w=True))
        P.append(salu("s_add_u32", m0V[i], sW, str(VBASE + i * TILE), scc_w=True))
    for t in range(1, 16):
        P.append(salu("s_mov_b32", sT[t], str(t * TILE)))
    P += [salu("s_mov_b32", srdO[0], ptrO[0]), salu("s_mov_b32", srdO[1], ptrO[1]),
          salu("s_mov_b32", srdO[2], "0"), salu("s_mov_b32", srdO[3], "0x00020000"),
          salu("s_mov_b32", srdO2[0], ptrO[0]), salu("s_mov_b32", srdO2[1], ptrO[1]),
          salu("s_mov_b32", srdO2[2], "0"), salu("s_mov_b32", srdO2[3], "0x00020000"),
          salu("s_mov_b32", sTrip, "0"),
          salu("s_mov_b32", sC, hex(f2u(SCALE_C))), salu("s_mov_b32", sNegC, hex(f2u(-SCALE_C))),
          salu("s_mov_b32", sThr, hex(f2u(OPT["thr"])))]
    if OPT["codewarm"] and OPT.get("rewarm", 6):
        P += [salu("s_lshr_b32", sTmp, "s2", "3", scc_w=True), salu("s_and_b32", sTmp, sTmp, "3", scc_w=True),
              salu("s_lshl_b32", sTmp, sTmp, "12", scc_w=True),
              salu("s_mul_hi_u32", sH, sW, sMagic),
              salu("s_add_u32", sTmp, sTmp, sH, scc_w=True),
              I(f"s_add_u32 {sTmp}, {sTmp}, L_x-{KNAME}", "salu", rd=[sTmp], wr=[sTmp, "scc"]),
              salu("s_add_u32", sWarm[0], sPC[0], sTmp, scc_w=True),
              salu("s_addc_u32", sWarm[1], sPC[1], "0", scc_w=True, scc_r=True),
              salu("s_sub_u32", sWarm[0], sWarm[0], sStage, scc_w=True),
              salu("s_subb_u32", sWarm[1], sWarm[1], "0", scc_w=True, scc_r=True)]
    P += late + [valu("v_add_u32", vLin, sStage, t1)]
    P += [valu("v_and_b32", i16, "15", lane), valu("v_lshrrev_b32", G, "4", lane),
          valu("v_mul_u32_u24", t0, "384", i16)]
    P += [valu("v_and_b32", t1, "6", i16), valu("v_xor_b32", t1, t1, G), valu("v_lshl_add_u32", vK[0], t1, "4", t0),
          valu("v_xor_b32", vK[1], "64", vK[0])]
    for e in range(2):
        P += [valu("v_add_u32", vS[e], sStage, vK[e]), valu("v_add_u32", STG[e], sQB, vK[e])]
    P += [valu("v_lshrrev_b32", t1, "1", G), valu("v_and_b32", t2, "7", i16), valu("v_xor_b32", t1, t1, t2),
          valu("v_lshl_add_u32", vOW, t1, "4", t0), valu("v_and_b32", t1, "1", G),
          valu("v_lshl_add_u32", vOW, t1, "3", vOW), valu("v_add_u32", vOW, sStage, vOW)]
    P += [valu("v_lshrrev_b32", t1, "2", lane), valu("v_mul_u32_u24", t0, "384", t1),
          valu("v_and_b32", t1, "6", t1), valu("v_lshl_add_u32", t0, t1, "4", t0),
          valu("v_and_b32", t1, "3", lane), valu("v_lshl_add_u32", t0, t1, "3", t0),
          valu("v_add_u32", vV[0], str(VBASE), t0)]
    for e in range(1, 4):
        P.append(valu("v_xor_b32", vV[e], str(e * 32), vV[0]))
    P += [salu("s_mov_b32", sTmp, "0x3f803f80"), valu("v_mov_b32", t0, sTmp)]
    for j in range(2):
        P += [I(f"v_cmp_eq_u32 vcc, {j}, {i16}", "valu", rd=[i16], wr=["vcc"]),
              I(f"v_cmp_eq_u32 {sRet}, 2, {i16}", "valu", rd=[i16], wr=[sRet]), nop(0),
              I(f"s_or_b64 vcc, vcc, {sRet}", "salu", rd=["vcc", sRet], wr=["vcc", "scc"]), nop(1),
              I(f"v_cndmask_b32 {t1}, 0, {t0}, vcc", "valu", rd=[t0, "vcc"], wr=[t1])]
        P += [valu("v_accvgpr_write_b32", ONES[j][i], t1) for i in range(4)]
    if OPT["stamp"]:
        P += [salu("s_mov_b32", srdD[2], "0x1000000"), salu("s_mov_b32", srdD[3], "0x00020000"),
              salu("s_mul_hi_u32", sTmp, sW, sMagic), salu("s_lshr_b32", sTmp, sTmp, "2", scc_w=True),
              salu("s_lshl_b32", sH, "s2", "10", scc_w=True), salu("s_add_u32", sH, sH, sTmp, scc_w=True),
              valu("v_mov_b32", E[0], s(94)),
              I(f"buffer_store_dword {E[0]}, off, {srdD}, {sH} offset:{57 * 4}", "vmem", rd=[E[0], srdD])]
    P += stamp(60) + stamp(56, True)
    P += [waitv(("QD", 0, 0)), barrier()]
    for f in range(RING):
        P += kread(-2, f, 0)
    qorder = [0, 6, 1, 7, 2, 8, 3, 9, 4, 10, 5, 11]
    for n in qorder:
        P.append(qread(Qreg(n // 6, n % 6), n, vS, ("QA", 0, n)))
    P += [waitl(("QA", 0, 7))]
    P += stamp(61)
    if OPT.get("dbg"):
        P += [I(f"s_memrealtime {s(78, 2)}", "salu"), I("s_waitcnt lgkmcnt(0)", "salu")]
    pend = ktile(1) + vtile(0) + ktile(2) + warm + vtile(1)
    for n in range(24):
        x, f = n // 12, n % 12
        for q in range(2):
            m = qk_mfma(0, f, 2 * x + q, FR[n % RING])
            m.needl = [("F", -2, n), ("QA" if x == 0 else "QB", 0, q * 6 + f % 6)]
            k = u.add_gap(m)
            if x == 0 and pend:
                it = pend.pop(0)
                if it.kind != "nop":
                    u.pin[k].append(it)
        if n + RING < 24:
            u.pin[k] += kread(-2, n + RING, 0)
        else:
            u.pin[k] += kread(0, n + RING - 24, 1)
        if f == 1:
            u.pin[k].append(waitl(("QA" if x == 0 else "QB", 0, 11)))
        if RING - 1 <= n < 23 and n != 11:
            u.pin[k].append(waitl(("F", -2, n + 1)))
        if n == 11:
            assert not pend
            k = u.add_gap(None)
            XPOS[0] = 0
            u.pin[k] += softmax(0, 0) + [waitv(("QD", 0, 1))]
            for nn in qorder:
                u.pin[k].append(qread(Qreg(2 + nn // 6, nn % 6), nn, [STG[0], STG[1]], ("QB", 0, nn)))
            u.pin[k] += sum_mfma(0, 0) + [waitl(("QB", 0, 7))]
        if n == 14:
            u.pin[k] += [waitv(("K", 1), ("V", 0), ("K", 2)), barrier()]
        if n == 15:
            u.pin[k] += ktile(3)
        if n == 16:
            u.pin[k] += vtile(2)
    u.pin[k] += [barrier(), waitl(*[("F", 0, i) for i in range(OPT["wper"])])]
    u.pin[k] += stamp(0)
    u.win0 = len(u.heads)
    add_iter(u, 0, 0, "T0p")
    return u


def unit_fin(b):
    u = Unit("FIN")
    u.pre.append(label("L_fin"))
    u.pre += stamp(15)
    g0 = b * 16 + 12
    NR = OPT.get("nr", 3)
    phases = [("QK", (0, 1), 13), ("PV", (0,), 12), ("QK", (0,), 14), ("PV", (0,), 13), ("QK", (0,), 15),
              ("PV", (0,), 14), ("PV", (0,), 15),
              ("QK", (1,), 14), ("PV", (1,), 12), ("QK", (1,), 15), ("PV", (1,), 13), ("PV", (1,), 14), ("PV", (1,), 15)]
    ALT_P[0] = True
    sums = {(0, 48): (1, 12), (1, 18): (0, 13), (3, 18): (0, 14), (5, 18): (0, 15), (8, 18): (1, 13), (10, 18): (1, 14),
            (11, 18): (1, 15)}
    start, end, sumgap, lastuse, done = {}, {}, {}, {}, {}
    nfr = 12 * len(phases)
    for pi, (kind, hs, tile) in enumerate(phases):
        if len(hs) == 2:
            seq = [(f, qb) for f in range(NR) for qb in (2, 3)] + [(f, qb) for f in range(NR) for qb in (0, 1)] + \
                  [(f, qb) for f in range(NR, 12) for qb in range(4)]
        else:
            seq = [(f, 2 * hs[0] + q) for f in range(12) for q in range(2)]
        start[pi] = len(u.heads)
        for i, (f, qb) in enumerate(seq):
            n = 12 * pi + f
            m = qk_mfma(tile, f, qb, FR[n % RING]) if kind == "QK" else pv_mfma(tile, f, qb, FR[n % RING], False)
            m.needl = [("F", g0, n)]
            lastuse[n] = done[(pi, f, qb)] = u.add_gap(m)
            if (pi, i + 1) in sums:
                sumgap[sums[(pi, i + 1)]] = len(u.heads)
                for m in sum_mfma(*sums[(pi, i + 1)]):
                    u.add_gap(m)
        end[pi] = len(u.heads) - 1
    last = u.add_gap(None)
    wp = OPT["wper"]
    for n in range(nfr):
        k = lastuse[n]
        nn = n + RING
        rd = []
        if nn < nfr:
            kind, hs, tile = phases[nn // 12]
            rd = kread(g0, nn, tile) if kind == "QK" else vread(g0, nn, tile)
            u.pin[k] += rd
        if (n + 1) % wp == 0 and n + 1 < nfr:
            u.pin[k if len(rd) < 2 else k - 1].append(waitl(*[("F", g0, n + 1 + i) for i in range(wp)]))
    u.pin[start[0] + 1].append(setm0(m0V[VSLOT[15]]))
    for c, k in enumerate((4, 8, 12)):
        u.pin[start[0] + k].append(dma(srdV, sT[15], c, ("V", g0 + 3)))
    dg = [start[0] + k for k in (20, 32, 44)] + [start[1] + k for k in (4, 16)] + [start[2] + k for k in (0, 6, 12)]
    for idx, (tt, k) in enumerate(OPT["ob_st"]):
        if tt > 11 and not OPT.get("ob_early"):
            u.pin[dg.pop(0)].append(ostore(obuf(1, idx), 1, idx, [("OR", b, 1, idx)]))
    u.pin[start[2] + 2] += [waitv(("K", g0 + 3), ("V", g0 + 1), ("V", g0 + 2)), barrier()]
    u.pin[start[4] + 14] += [waitv(("V", g0 + 3)), barrier()]
    def put_check(x, tile, kc, kb):
        c, br, lu = check(x, tile, f"F{tile}")
        u.tail[kc] += c
        u.tail[kb] += br
        u.streams.append(Stream(lu, kb + 1, kb + 3, prio=0.5))
    put_check(0, 12, start[0] + 2, start[0] + 2 * NR - 1)
    for (x, tile), k in sumgap.items():
        put_check(x, tile, k + 5, k + 7)
    XPOS[0] = 0
    sm = setw(softmax(1, 12), latest=sumgap[(1, 12)] - 2)
    x = exp_stream(0, SA, Pbuf(0, 13), KH0_FIRST[:8])
    x[0].earliest = start[0] + 30
    u.streams.append(Stream(sm + x, start[0], end[0], prio=0.05, look=OPT["look"]))
    for tile, pq in ((13, 0), (14, 2), (15, 4)):
        if pq:
            u.streams.append(Stream(exp_stream(0, SA, Pbuf(0, tile), KH0_FIRST[:8]), start[pq] + 15, end[pq] + 2,
                                    prio=0.05, look=OPT["look"]))
        u.streams.append(Stream(exp_stream(0, SA, Pbuf(0, tile), KH0_FIRST[8:]), end[pq] + (3 if pq else 1),
                                sumgap[(0, tile)] - 2, prio=0.05, look=OPT["look"]))
    for tile, pq in ((13, 7), (14, 9), (15, 11)):
        u.streams.append(Stream(softmax(1, tile), start[pq] + (OPT.get("b13", 12) if pq == 7 else 0), sumgap[(1, tile)] - 2,
                                prio=0.05, look=OPT["look"]))
    AD = [vOW, STG[0], STG[1], STG[2]]
    u.streams.append(Stream(set_osrd() + [valu("v_xor_b32", AD[e], str(32 * e), vOW) for e in range(1, 4)],
                            start[4], start[4] + 12))
    kA = sumgap[(0, 15)] + 11
    u.streams.append(Stream(rinv_stream(0), kA, kA + 8, prio=0.5))
    Z = [Qc[4 * i: 4 * i + 4] for i in range(12)]

    def epi_group(qb, dts, T):
        r, m, c, w = [], [], [], []
        for i, dt in enumerate(dts):
            O = Otile(qb, dt)
            R = O if O.f == "v" else T[4 * i: 4 * i + 4]
            if O.f == "a":
                r += [valu("v_accvgpr_read_b32", R[j], O[j]) for j in range(4)]
            m += scale2(R[0:2], qb) + scale2(R[2:4], qb)
            cc = [valu("v_cvt_pk_bf16_f32", R[0], R[0], R[1]), valu("v_cvt_pk_bf16_f32", R[1], R[2], R[3])]
            c += cc
            wr = owrite(R[0:2], AD[dt % 4], qb % 2, dt)
            wr.after = cc[1]
            w.append(wr)
        return r, m, c, w

    ep, wr, sts = [], [], []
    for q in range(2):
        for grp in range(3):
            r, m, c, w = epi_group(q, range(4 * grp, 4 * grp + 4), None)
            setw(m, earliest=max(kA + 9, done[(6, 4 * grp + 3, q)] + 4))
            ep += m + c
            wr += w
        for n in range(6 * q, 6 * q + 6):
            rd = oread(Z[n], n, ("OR", b + 1, 0, n))
            rd.flags.add("head")
            wr.append(rd)
        w = waitl(("OR", b + 1, 0, 6 * q + 5))
        w.after = wr[-1]
        w.delay = 6
        sts.append(w)
        for n in range(6 * q, 6 * q + 6):
            st = ostore(Z[n], 0, n, [("OR", b + 1, 0, n)], True)
            st.flags.add("head")
            sts.append(st)
    u.streams.append(Stream(ep, kA + 9, end[7], prio=0.3))
    u.streams.append(Stream(wr, kA + 9, end[7] + 12, prio=0.3))
    u.streams[-1].headmax = 8
    u.streams.append(Stream(sts, start[7] - OPT.get("st0", 10), end[OPT.get("stend", 11)], prio=0.3))
    u.streams[-1].headmax = 4
    u.streams[-1].pace = True
    u.streams.append(Stream(rinv_stream(1), start[12] + 3, start[12] + 8, prio=0.5))
    TT = [SA, SB[0], SB[1]]
    ep, wr = [], []
    for grp in range(2):
        r, m, c, w = epi_group(2, range(4 * grp, 4 * grp + 4), TT[grp])
        setw(r, earliest=done[(12, 4 * grp + 3, 2)] + 3)
        ep += r + m + c
        wr += w
    u.streams.append(Stream(ep, start[12] + 9, end[12], prio=0.3))
    u.streams.append(Stream(wr, start[12] + 9, end[12], prio=0.3))
    u.streams[-1].headmax = 8
    po = u.pin[last]
    r, m, c, w = epi_group(2, range(8, 12), TT[2])
    po += r + m + c + w
    po += [oread(Z[n], n, ("OR", b + 1, 1, n)) for n in range(6)]
    for grp in range(3):
        r, m, c, w = epi_group(3, range(4 * grp, 4 * grp + 4), TT[grp])
        st = [ostore(Z[n], 1, n, [("OR", b + 1, 1, n)], True) for n in range(6)] if grp == 0 else []
        po += r[:8] + ([waitl(("OR", b + 1, 1, 5))] if grp == 0 else []) + st[:2] + r[8:] + st[2:4] + m + st[4:] + c + w
    po += [oread(Z[n], n, ("OR", b + 1, 1, n)) for n in range(6, 12)]
    for n in range(6, 12):
        po += [waitl(("OR", b + 1, 1, n)), ostore(Z[n], 1, n, [("OR", b + 1, 1, n)], True)]
    ALT_P[0] = False
    u.wins = sorted(set(list(start.values()) + list(sumgap.values()) + [start[2] + 15, start[4] + 15, kA + 9]))
    u.post += stamp(16) + stamp(17, True)
    if OPT["stamp"]:
        u.post += [I("s_waitcnt vmcnt(0)", "salu")] + stamp(18) + stamp(19, True)
    if OPT.get("dbg"):
        u.post += [I("s_cmp_ge_u32 s2, 8", "salu"), I("s_cbranch_scc1 L_end", "branch"),
                   I(f"s_cmp_lg_u32 {sW}, 0", "salu"), I("s_cbranch_scc1 L_end", "branch"),
                   I("s_waitcnt vmcnt(0)", "salu"), I(f"s_memrealtime {sStamp}", "salu"), I(f"s_memtime {sPC}", "salu"),
                   I("s_waitcnt lgkmcnt(0)", "salu"),
                   salu("s_mov_b32", srdD[2], "256"), salu("s_mov_b32", srdD[3], "0x00020000"),
                   I("s_mov_b64 exec, 1", "salu"),
                   salu("s_sub_u32", sTmp, sStamp[0], s(94)), salu("s_sub_u32", sH, s(78), s(94)),
                   salu("s_mul_i32", sH, sH, "100000"), salu("s_add_u32", sTmp, sTmp, sH),
                   valu("v_mov_b32", v(34), sTmp),
                   salu("s_sub_u32", sTmp, sPC[0], s(100)), valu("v_mov_b32", v(35), sTmp),
                   salu("s_lshl_b32", sTmp, "s2", "3"),
                   I(f"buffer_store_dwordx2 {v(34, 2)}, off, {srdD}, {sTmp}", "vmem", rd=[srdD])]
    u.post += [label("L_end"), I("s_endpgm", "branch")]
    return u


def build(extra):
    cache = {}

    def get(name, fn, first):
        u = fn()
        ins = u.schedule(budget=8, window=50, pk_at=20, verbose=first and VERB)
        out = []
        for idx, i in enumerate(ins):
            n = extra.get((name, idx), 0)
            if n:
                out.append(((name, idx, "nop"), nop(n - 1)))
            out.append(((name, idx), i))
        if first:
            cache[name] = out
        return out

    trace = list(get("PRO", unit_pro, True))
    for b in range(3):
        for t in range(1, 15 if b < 2 else 12):
            trace += get(f"T{t}", lambda: unit_mid(b, t), b == 0)
        if b < 2:
            trace += get("X", lambda: unit_x(b), b == 0)
    trace += get("FIN", lambda: unit_fin(2), True)
    order = ["PRO"] + [f"T{t}" for t in range(1, 15)] + ["X", "FIN"]
    return [(n, cache[n]) for n in order], trace


VERB = False
extra = {}
for it in range(60):
    static, trace = build(extra)
    hz = hazards([i for _, i in trace])
    if not hz:
        break
    upd = {}
    lastj = -100
    for j, need, why in hz:
        key = trace[j][0]
        if j != lastj and j - lastj < 24:
            continue
        lastj = j
        upd[key] = max(upd.get(key, 0), need)
        if OPT.get("showhz"):
            print("; hazard:", key, need, why, file=sys.stderr)
    for k, n in upd.items():
        extra[k] = extra.get(k, 0) + n
else:
    raise SystemExit("hazards did not converge")
if OPT.get("verb"):
    VERB = True
    _so = sys.stdout
    sys.stdout = sys.stderr
    build(extra)
    sys.stdout = _so
    print("; nops inserted:", extra, file=sys.stderr)
W = resolve_waits(trace)
_bad = check_coverage(trace, W)
assert not _bad, _bad[:10]
if OPT.get("verb") and "_mismatch" in W:
    print("; wait mismatches:", W["_mismatch"], file=sys.stderr)

out = []
A = out.append
A(open(os.path.join(os.path.dirname(os.path.abspath(__file__)), "header.txt")).read().rstrip())
A(f"; @launch grid=(256,1,1) block=(256,1,1) lds={LDS_BYTES}")
A('.amdgcn_target "amdgcn-amd-amdhsa--gfx950"')
A(".text")
A(f".globl {KNAME}")
A(".p2align 8")
A(f".type {KNAME},@function")
A(f"{KNAME}:")
for name, ins in static:
    A(f"; ---- {name} ----")
    for key, i in ins:
        t = i.text
        if i.kind == "wait":
            l, vv = W[key]
            t = "s_waitcnt " + (f"lgkmcnt({l})" if l is not None else f"vmcnt({vv})")
        abl = OPT.get("abl", "")
        if abl and name not in ("PRO",):
            tx = i.text
            if "c" in abl and "s_cbranch_vccnz" in tx:
                t = "s_nop 0"
            if "b" in abl and i.kind == "barrier":
                t = "s_nop 0"
            if "k" in abl and i.kind == "vmem" and (str(srdK) in tx or str(srdV) in tx):
                t = "s_nop 1"
            if "w" in abl and i.kind == "wait" and i.waitl is not None:
                t = "s_nop 0"
            if "W" in abl and i.kind == "wait" and i.waitv is not None:
                t = "s_nop 0"
            if "s" in abl and i.kind == "vmem" and (str(srdQ) in tx or str(srdO) in tx):
                t = "s_nop 1"
            if "z" in abl and "ds_write" in tx:
                t = "s_nop 1"
            tok = tx.replace(",", " ").split()
            if "v" in abl and i.kind in ("valu", "trans") and any(str(r) in tok for r in X):
                t = "s_nop 0"
            if "V" in abl and i.kind in ("valu", "trans") and any(str(r) in tok for r in X):
                continue
            if "d" in abl and i.kind == "ds" and i.wr and i.wr[0] in names(FR):
                t = "s_nop 0"
            if "e" in abl and i.kind == "valu" and ("pk_mul" in tx or "accvgpr" in tx or ("cvt_pk" in tx and not any(str(r) in tok for r in X))):
                continue
            if "o" in abl and i.kind == "mfma" and i.wr == TS.names():
                continue
        if OPT.get("e64") and re.match(r"v_(exp_f32|add_f32|mul_f32|mov_b32|xor_b32|max_f32|rcp_f32) ", t) and "96" not in t.split(",")[1]:
            t = t.replace(" ", "_e64 ", 1)
        A(t if i.kind == "label" else "    " + t)
for name, x, par in TRAMPS:
    A(f"L_tr_{name}:")
    A(f"    s_call_b64 {sRet}, L_rare_{'AB'[x]}{par}")
    A(f"    s_branch L_ret_{name}")
for x, par in ((0, 0), (0, 1), (1, 0), (1, 1), (1, 3)):
    if True:
        ALT_P[0] = par == 3
        r = rare(x, par)
        ALT_P[0] = False
        hz = hazards(r)
        assert not hz, hz
        for i in r:
            A(i.text if i.kind == "label" else "    " + i.text)
A("L_code_end:")
A("    s_endpgm")
A(f""".section .rodata,"a"
.p2align 6
.amdhsa_kernel {KNAME}
  .amdhsa_next_free_vgpr 512
  .amdhsa_next_free_sgpr 102
  .amdhsa_accum_offset 256
  .amdhsa_group_segment_fixed_size 0
  .amdhsa_kernarg_size 48
  .amdhsa_user_sgpr_count 2
  .amdhsa_user_sgpr_kernarg_segment_ptr 1
  .amdhsa_system_sgpr_workgroup_id_x 1
  .amdhsa_float_denorm_mode_32 3
.end_amdhsa_kernel""")
print("\n".join(out))
```

```python
import sys, struct, math, os, re
sys.path.insert(0, os.path.dirname(os.path.abspath(__file__)))
import asmlib
from asmlib import *

asmlib.COST.update(vmem=8, barrier=8)
KNAME = "standalone__gqa_softmax__near_ridge_kernel"
OPT = dict(
    sgaps=[[20, 28, 36], [74, 82, 90]],
    qa_slots=[9, 11, 13, 14], qb_slots=[19, 21, 23, 25],
    oa_rd=[(1, g) for g in (1, 17, 25, 33, 41, 45, 59, 67)] + [(2, g) for g in (1, 9, 17, 22)],
    oa_st=[(1, 74), (1, 82), (1, 90), (2, 20), (2, 44), (2, 74), (3, 20), (3, 44), (3, 74), (4, 16), (4, 24), (4, 32)],
    ob_rd=[(3, g) for g in (71, 75, 79, 83, 87, 91, 95)] + [(4, g) for g in (1, 9, 18, 26, 34)],
    ob_st=[(8, 20), (8, 36), (8, 74), (8, 90), (13, 20), (13, 44), (13, 74), (14, 20), (14, 44), (15, 20), (15, 36), (15, 44)],
    ob_stg=4,
    ob_early=[(5, 20), (5, 32), (5, 44), (6, 20), (6, 32), (7, 74), (7, 82), (7, 90)],
    qar_iter=9,
    kgaps=[4, 8, 12], vgaps=[48, 58, 66],
    bar_gap=98,
    wper=3, look=5,
    thr=4096.0,
    stamp=0,
    codewarm=1,
    pk=1,
    kv_nt=" nt", q_nt=" nt", o_nt=" sc1",
)
for a in sys.argv[1:]:
    if "=" in a:
        k, v = a.split("=", 1)
        OPT[k] = eval(v)

TILE = 12288
KSLOT = [0, 1, 2, 3] * 4
VSLOT = [0, 1, 2, 3] * 4
KBASE, VBASE, STAGE, SPARE = 0, 4 * TILE, 8 * TILE, 12 * TILE
LDS_BYTES = 13 * TILE
KD, VD = 4, 3
RING = 6
P2 = 50
NG = 100


def f2u(x):
    return struct.unpack("<I", struct.pack("<f", x))[0]


v = lambda lo, n=1: Reg("v", lo, n)
a = lambda lo, n=1: Reg("a", lo, n)
s = lambda lo, n=1: Reg("s", lo, n)

vLin = v(1)
vK = [v(2), v(3)]
vV = [v(4 + i) for i in range(4)]
vD = [v(8 + i) for i in range(3)]
vDO = [v(11 + i) for i in range(3)]
vS = [v(14), v(15)]
rinv = [v(16 + 2 * i) for i in range(4)]
rinv2 = [v(16 + 2 * i, 2) for i in range(4)]
lsum = [v(17 + 2 * i) for i in range(4)]
negmc = [v(24 + i) for i in range(4)]
TS = v(28, 4)
vOW = v(32)
E = [v(33), v(34), v(35)]
X = [v(36), v(37), v(38), v(39), v(0)]
PA = [v(40, 8), v(48, 8)]
PB = v(56, 8)
SA = v(64, 16)
SB = [v(80, 16), v(96, 16)]
OA = v(112, 96)
STG = v(208, 48)
OB = a(0, 96)
Qc = a(96, 96)
FR = [a(192 + 4 * i, 4) for i in range(RING)]
SQ = [a(216 + 4 * i, 4) for i in range(8)]
JUNK = SQ[7]
ONES = [a(248, 4), a(252, 4)]
OX = [OA, OB]

ptrQ, ptrK, ptrV, ptrO = s(4, 2), s(6, 2), s(8, 2), s(10, 2)
srdK, srdV, srdQ, srdO = s(12, 4), s(16, 4), s(20, 4), s(24, 4)
sBG, sH, sKO, sQO, sQOcur, sNrec, sTrip, sC, sNegC, sThr, sMagic, sW = [s(28 + i) for i in range(12)]
sRet = s(40, 2)
m0K = [s(42 + i) for i in range(4)]
sStage, sQB = s(46), s(47)
m0V = [s(48 + i) for i in range(4)]
sT = ["0"] + [s(51 + t) for t in range(1, 16)]
srdD = s(68, 4)
sStamp = s(72, 2)
sPC = s(76, 2)
sG = [[s(80 + 4 * x + j) for j in range(4)] for x in range(2)]
sM = [s(88 + j) for j in range(4)]
sTmp = s(92)
srdO2 = s(96, 4)
sWarm = s(74, 2)

SCALE_C = math.log2(math.e) / math.sqrt(192.0)


def Qreg(qb, ks):
    return Qc[(qb * 6 + ks) * 4: (qb * 6 + ks) * 4 + 4]


def Otile(qb, dt):
    n = (dt * 2 + qb % 2) * 4
    return OX[qb // 2][n: n + 4]


def Sbuf(x, tile):
    return SA if x == 0 else SB[tile % 2]


ALT_P = [False]


def Pbuf(x, tile):
    if x == 1 and ALT_P[0] and tile % 2 == 1:
        return PA[1]
    return PA[tile % 2] if x == 0 else PB


def dma(srd, soff, c, tag):
    off = f" offset:{c * 1024}" if c else ""
    return I(f"buffer_load_dwordx4 {vD[c]}, {srd}, {soff} offen{off}{OPT['kv_nt']} lds", "vmem",
             rd=[vD[c], srd, soff, "m0"], tag=tag)


def setm0(x):
    return salu("s_mov_b32", "m0", x)


def qdma(x, jj, c, tag, need=None):
    off = f" offset:{c * 1024}" if c else ""
    return I(f"buffer_load_dwordx4 {vD[c]}, {srdQ}, {sG[x][jj]} offen{off}{OPT['q_nt']} lds", "vmem",
             rd=[vD[c], srdQ, sG[x][jj], "m0"], tag=tag, needl=need)


def qread(dst, n, addr, tag, need=None):
    q, ks = n // 6, n % 6
    off = q * 6144 + (ks // 2) * 128
    return I(f"ds_read_b128 {dst}, {addr[ks % 2]} offset:{off}", "ds", rd=[addr[ks % 2]], wr=[dst], tag=tag, needv=need)


def oaddr(e):
    if e == 0:
        return vOW, []
    return E[2], [valu("v_xor_b32", E[2], str(e * 32), vOW)]


def owrite(src, addr, q, dt):
    off = q * 6144 + (dt // 4) * 128
    return I(f"ds_write_b64 {addr}, {src} offset:{off}", "ds", rd=[addr, src], cost=OPT.get("wcost", 12), flags=["head"])


def oread(dst, idx, tag):
    return I(f"ds_read_b128 {dst}, {vLin} offset:{idx * 1024}", "ds", rd=[vLin], wr=[dst], tag=tag)


def ostore(src, x, idx, need, fin=False, srdO=srdO):
    jj, c = idx // 3, idx % 3
    off = f" offset:{c * 1024}" if c else ""
    fl = OPT.get("of_nt" + "ab"[x], OPT["o_nt"]) if fin else OPT["o_nt"]
    return I(f"buffer_store_dwordx4 {src}, {vDO[c]}, {srdO}, {sG[x][jj]} offen{off}{fl}", "vmem",
             rd=[src, vDO[c], srdO, sG[x][jj]], flags=["wide"], cost=16, needl=need)


def obuf(x, idx):
    if x == 1 and idx < OPT["ob_stg"]:
        return STG[4 * idx: 4 * idx + 4]
    return SQ[idx % 8]


def kread(g, f, tile):
    kh, ks = (f % 12) // 6, f % 6
    off = KBASE + KSLOT[tile % 16] * TILE + kh * 6144 + (ks // 2) * 128
    d = FR[f % RING]
    return [I(f"ds_read_b128 {d}, {vK[ks % 2]} offset:{off}", "ds", rd=[vK[ks % 2]], wr=[d], tag=("F", g, f))]


def vread(g, f, tile):
    dt = f % 12
    d = FR[f % RING]
    out = []
    for jj in range(2):
        off = VSLOT[tile % 16] * TILE + jj * 6144 + (dt // 4) * 128
        out.append(I(f"ds_read_b64_tr_b16 {d[2 * jj:2 * jj + 2]}, {vV[dt % 4]} offset:{off}", "ds", rd=[vV[dt % 4]],
                     wr=[d[2 * jj:2 * jj + 2]], tag=("F", g, f) if jj == 1 else None))
    return out


def swap32(u, w):
    return I(f"v_permlane32_swap_b32 {u}, {w}", "valu", rd=[u, w], wr=[u, w], cost=8)


def swap16(u, w):
    return I(f"v_permlane16_swap_b32 {u}, {w}", "valu", rd=[u, w], wr=[u, w], cost=8)


def max_tree(S, u, w):
    o = []
    for a0, a1, a2, first in ((0, 1, 2, True), (3, 4, None, False), (5, 6, None, False)):
        for r, b in ((u, 0), (w, 8)):
            if first:
                o.append(valu("v_max3_f32", r, S[b + a0], S[b + a1], S[b + a2]))
            else:
                o.append(valu("v_max3_f32", r, r, S[b + a0], S[b + a1]))
    o += [valu("v_max_f32", u, u, S[7]), valu("v_max_f32", w, w, S[15])]
    return o


def reduce2(op, u, w):
    return [nop(1), swap32(u, w), valu(op, u, u, w), valu("v_mov_b32", w, u), nop(1), swap16(u, w), valu(op, u, u, w)]


def max_init(x, S):
    u, w = E[0], E[1]
    n0, n1 = negmc[2 * x], negmc[2 * x + 1]
    return max_tree(S, u, w) + reduce2("v_max_f32", u, w) + [
        valu("v_mul_f32", n0, sNegC, u), valu("v_mul_f32", n1, sNegC, u), nop(1), swap32(n0, n1)]


XPOS = [0]


def exp_stream(x, S, P, order=range(16), late=None):
    out = []
    order = list(order)
    p0 = XPOS[0]
    N = len(order)
    XPOS[0] = (p0 + N) % len(X)
    T = lambda n: X[(p0 + n) % len(X)]
    for n in range(N + 2):
        if n < N:
            i = order[n]
            f = valu("v_fma_f32", T(n), S[i], sC, negmc[2 * x + i // 8])
            if late is not None and i % 8 >= 4:
                f.earliest = late
            out.append(f)
        if 0 <= n - 1 < N:
            out.append(trans("v_exp_f32", T(n - 1), T(n - 1)))
        j = n - 2
        if 0 <= j < N and j % 2 == 1:
            out.append(valu("v_cvt_pk_bf16_f32", P[order[j] // 2], T(j - 1), T(j)))
    return out


TRAMPS = []
KH0_FIRST = [0, 1, 2, 3, 8, 9, 10, 11, 4, 5, 6, 7, 12, 13, 14, 15]


def softmax(x, tile, late=None):
    S, P = Sbuf(x, tile), Pbuf(x, tile)
    if tile == 0:
        return max_init(x, S) + exp_stream(x, S, P)
    return exp_stream(x, S, P, KH0_FIRST if late is not None else range(16), late)


def sum_mfma(x, tile):
    P = Pbuf(x, tile)
    return [mfma(TS, ONES[0], P[0:4], 0), mfma(TS, ONES[1], P[4:8], TS)]


def check(x, tile, site):
    if tile == 0:
        return [], [], [valu("v_mov_b32", lsum[2 * x + i], TS[i]) for i in range(2)]
    par = tile % 2
    if x == 1 and ALT_P[0] and par == 1:
        par = 3
    name = f"{site}_{'AB'[x]}"
    if (name, x, par) not in TRAMPS:
        TRAMPS.append((name, x, par))
    return ([I(f"v_cmp_nge_f32 vcc, {sThr}, {TS[2]}", "valu", rd=[sThr, TS[2]], wr=["vcc"])],
            [I(f"s_cbranch_vccnz L_tr_{name}", "branch", rd=["vcc"]), label(f"L_ret_{name}")],
            [valu("v_add_f32", lsum[2 * x + i], lsum[2 * x + i], TS[i]) for i in range(2)])


def rinv_stream(x):
    u, w = lsum[2 * x], lsum[2 * x + 1]
    r0, r1 = rinv[2 * x], rinv[2 * x + 1]
    return reduce2("v_add_f32", u, w) + [trans("v_rcp_f32", r0, u), trans("v_rcp_f32", r1, u), nop(1), swap32(r0, r1)]


def scale2(R, qb):
    if OPT["pk"]:
        return [I(f"v_pk_mul_f32 {R}, {R}, {rinv2[qb]} op_sel_hi:[1,0]", "valu", rd=[R, rinv[qb]], wr=[R], flags=["pk"])]
    return [valu("v_mul_f32", R[0], R[0], rinv[qb]), valu("v_mul_f32", R[1], R[1], rinv[qb])]


def epi_a(tt):
    O = OA[16 * tt: 16 * tt + 16]
    m = []
    for i in range(8):
        m += scale2(O[2 * i: 2 * i + 2], (i // 2) % 2)
    c = [valu("v_cvt_pk_bf16_f32", O[i], O[2 * i], O[2 * i + 1]) for i in range(8)]
    w = []
    for n in range(4):
        dt, q = 2 * tt + n // 2, n % 2
        ad, pre = oaddr(dt % 4)
        if q == 0:
            w += pre
        wr = owrite(O[2 * n: 2 * n + 2], ad, q, dt)
        wr.after = c[2 * n + 1]
        w.append(wr)
    return m, c, w


def epi_b(tt, half, T):
    O = OB[16 * tt: 16 * tt + 16]
    D = STG[tt * 8: tt * 8 + 8]
    r = [valu("v_accvgpr_read_b32", T[i], O[8 * half + i]) for i in range(8)]
    m = []
    for i in range(4):
        m += scale2(T[2 * i: 2 * i + 2], 2 + i // 2)
    c = [valu("v_cvt_pk_bf16_f32", D[4 * half + i], T[2 * i], T[2 * i + 1]) for i in range(4)]
    return r, m, c


def ob_writes(es):
    w = []
    for e in es:
        ad, pre = oaddr(e)
        w += pre
        for dt in (e, e + 4, e + 8):
            for q in range(2):
                n = (dt * 2 + q) * 2
                w.append(owrite(STG[n: n + 2], ad, q, dt))
    return w


def setw(items, earliest=None, latest=None):
    for i in items:
        if latest is not None:
            i.latest = latest if i.latest is None else min(i.latest, latest)
    if earliest is not None:
        items[0].earliest = earliest
    return items


def rare(x, par):
    S, P = Sbuf(x, par), Pbuf(x, par)
    u, w = E[0], E[1]
    f = [u, w]
    n = [negmc[2 * x], negmc[2 * x + 1]]
    o = [label(f"L_rare_{'AB'[x]}{par}"), nop(15)]
    o += max_tree(S, u, w)
    o += [valu("v_fma_f32", u, u, sC, n[0]), valu("v_fma_f32", w, w, sC, n[1])]
    o += reduce2("v_max_f32", u, w)
    o += [valu("v_max_f32", u, "0", u), valu("v_mov_b32", w, u), nop(1), swap32(u, w),
          valu("v_sub_f32", n[0], n[0], u), valu("v_sub_f32", n[1], n[1], w),
          trans("v_exp_f32", u, f"-{u}", extra_rd=[u]), trans("v_exp_f32", w, f"-{w}", extra_rd=[w]), nop(0),
          valu("v_mul_f32", lsum[2 * x], lsum[2 * x], u), valu("v_mul_f32", lsum[2 * x + 1], lsum[2 * x + 1], w)]
    O = OX[x]
    for i in range(96):
        ff = f[(i // 4) % 2]
        if O.f == "a":
            tt = P[i % 4]
            o += [valu("v_accvgpr_read_b32", tt, O[i]), valu("v_mul_f32", tt, tt, ff),
                  valu("v_accvgpr_write_b32", O[i], tt)]
        else:
            o.append(valu("v_mul_f32", O[i], O[i], ff))
    o += [valu("v_fma_f32", S[i], S[i], sC, n[i // 8]) for i in range(16)]
    o += [trans("v_exp_f32", S[i], S[i]) for i in range(16)]
    o += [valu("v_cvt_pk_bf16_f32", P[i], S[2 * i], S[2 * i + 1]) for i in range(8)]
    o += [nop(1)] + sum_mfma(x, par)
    o += [nop(15), I(f"s_setpc_b64 {sRet}", "branch", rd=[sRet])]
    return o


def qk_mfma(tile, f, qb, fr):
    kh, ks = f // 6, f % 6
    n = (qb % 2) * 8 + kh * 4
    d = Sbuf(qb // 2, tile)[n: n + 4]
    return mfma(d, fr, Qreg(qb, ks), d if ks else 0)


def pv_mfma(t, dt, qb, fr, zero):
    o = Otile(qb, dt)
    p = Pbuf(qb // 2, t)[4 * (qb % 2): 4 * (qb % 2) + 4]
    return mfma(o, fr, p, 0 if zero else o)


def frag_read(g, t, f):
    if f < 12:
        return kread(g, f, t + 1)
    if f < 24:
        return vread(g, f, t)
    return kread(g + 1, f - 24, t + 2)


def ftag(g, f):
    return ("F", g, f) if f < 24 else ("F", g + 1, f - 24)


def stamp(idx, real=False):
    if not OPT["stamp"]:
        return []
    if OPT["stamp"] == 2 and idx not in (0, 1, 15, 16, 17, 18, 19, 56, 60, 61):
        return []
    op = "s_memrealtime" if real else "s_memtime"
    return [I(f"{op} {sStamp}", "salu", wr=[sStamp]), I("s_waitcnt lgkmcnt(0)", "salu"),
            valu("v_mov_b32", E[0], sStamp[0]),
            I(f"buffer_store_dword {E[0]}, off, {srdD}, {sH} offset:{idx * 4}", "vmem", rd=[E[0], srdD])]


def add_iter(u, b, t, site):
    g = b * 16 + t
    base = len(u.heads)
    tn = (t + 1) % 16
    lastuse = {}
    NR = OPT.get("nr", 3)
    seq = [(f, qb) for f in range(NR) for qb in (2, 3)] + [(f, qb) for f in range(NR) for qb in (0, 1)] + \
          [(f, qb) for f in range(NR, 12) for qb in range(4)]
    for f, qb in seq:
        m = qk_mfma(tn, f, qb, FR[f % RING])
        m.needl = [("F", g, f)] + ([("QB", b + 1, (qb - 2) * 6 + f % 6)] if tn == 0 and qb >= 2 else [])
        lastuse[f] = u.add_gap(m)
    for m in sum_mfma(1, t):
        u.add_gap(m)
    seq = [(f, qb) for f in range(NR) for qb in (0, 1)] + [(f, qb) for f in range(NR) for qb in (2, 3)] + \
          [(f, qb) for f in range(NR, 12) for qb in range(4)]
    for dt, qb in seq:
        m = pv_mfma(t, dt, qb, FR[(12 + dt) % RING], t == 0)
        m.needl = [("F", g, 12 + dt)]
        lastuse[12 + dt] = u.add_gap(m)
    for m in sum_mfma(0, tn):
        u.add_gap(m)
    wp = OPT["wper"]
    for f in range(24):
        k = lastuse[f]
        rd = frag_read(g, t, f + RING)
        u.pin[k] += rd
        if (f + 1) % wp == 0:
            kw = k + 2 if f in (11, 23) else (k if len(rd) == 1 else k - 1)
            u.pin[kw].append(waitl(*[ftag(g, f + 1 + i) for i in range(wp)]))
    for x, k in ((0, base), (1, base + P2)):
        c, br, lu = check(x, t, site)
        u.tail[k + OPT.get("cmpgap", 2)] += c
        kb = k + 2 * NR - 1
        if OPT.get("brhead"):
            u.pin[kb] = br + u.pin[kb]
        else:
            u.tail[kb] += br
        u.streams.append(Stream(lu, kb + 1, kb + 3, prio=0.5))
    tk, tv = (t + KD) % 16, (t + VD) % 16
    u.pin[base + OPT["kgaps"][0] - 2].append(setm0(m0K[KSLOT[tk]]))
    for c, k in enumerate(OPT["kgaps"]):
        u.pin[base + k].append(dma(srdK, sT[tk], c, ("K", g + KD)))
    u.pin[base + OPT["vgaps"][0] - 3].append(setm0(m0V[VSLOT[tv]]))
    for c, k in enumerate(OPT["vgaps"]):
        u.pin[base + k].append(dma(srdV, sT[tv], c, ("V", g + VD)))
    for x, key in ((0, "oa_rd"), (1, "ob_rd")):
        for idx, (tt, k) in enumerate(OPT[key]):
            if tt == t:
                u.pin[base + k].append(oread(obuf(x, idx), idx, ("OR", b, x, idx)))
    for x, key in ((0, "oa_st"), (1, "ob_st")):
        for idx, (tt, k) in enumerate(OPT[key]):
            if tt == t:
                u.pin[base + k].append(ostore(obuf(x, idx), x, idx, [("OR", b, x, idx)]))
    if OPT.get("ob_early"):
        late = [idx for idx, (tt, k) in enumerate(OPT["ob_st"]) if tt > 11]
        for idx, (tt, k) in zip(late, OPT["ob_early"]):
            if tt == t:
                u.pin[base + k].append(ostore(obuf(1, idx), 1, idx, [("OR", b, 1, idx)], srdO=srdO2))
    if t in (2, 3):
        st = Stream(ob_writes((0, 1)), base + 23, base + 97) if t == 2 else Stream(ob_writes((2, 3)), base + 0, base + 70)
        st.pace = OPT.get("pace", 1)
        u.streams.append(st)
    for half in range(2):
        n = 2 * t + half
        gaps = OPT["sgaps"][half]
        for x, key in ((0, "qa_slots"), (1, "qb_slots")):
            if n in OPT[key]:
                jj = OPT[key].index(n)
                u.pin[base + gaps[0] - 3].append(setm0(sM[jj]))
                need = [("OR", b, 1, 11)] if x == 0 else [("QA", b + 1, 11)]
                for c, k in enumerate(gaps):
                    u.pin[base + k].append(qdma(x, jj, c, ("QD", b + 1, x), need))
    if OPT["codewarm"] and t == OPT.get("rewarm", 6):
        u.pin[base + 44].append(I(f"global_load_dwordx4 {STG[44:48]}, {vLin}, {sWarm}", "vmem", rd=[vLin, sWarm], wr=[STG[44:48]]))
    if t == OPT["qar_iter"]:
        u.pin[base + 0].append(waitv(("QD", b + 1, 0)))
        for n in range(12):
            u.pin[base + 1 + 4 * n].append(qread(STG[n * 4: n * 4 + 4], n, vS, ("QA", b + 1, n), [("QD", b + 1, 0)]))
    if t == 14:
        u.pin[base + P2].append(waitv(("QD", b + 1, 1)))
        for i, n in enumerate([0, 6, 1, 7, 2, 8, 3, 9, 4, 10, 5, 11]):
            u.pin[base + P2 + 1 + 4 * (i // 2) + (8 if i >= 2 else 0)].append(
                qread(Qreg(2 + n // 6, n % 6), n, vS, ("QB", b + 1, n), [("QD", b + 1, 1)]))
    u.pin[base + OPT["bar_gap"]] += [waitv(("K", g + 3), ("V", g + 1)), barrier()]
    XPOS[0] = 0
    sb = setw(softmax(1, t), latest=base + 46)
    sa = softmax(0, tn, late=base + 49)
    sa[0].earliest = base + (P2 + 2 * NR if tn == 0 else 30)
    u.streams.append(Stream(sb + sa, base + 0, base + 96, prio=0.05, look=OPT["look"]))
    if t == 1:
        sl = [salu("s_mov_b32", sQOcur, sQO),
              salu("s_add_u32", sBG, sBG, "32", scc_w=True),
              salu("s_mul_hi_u32", sKO, sBG, sMagic),
              salu("s_mul_i32", sKO, sKO, "196608"),
              salu("s_mul_i32", sQO, sBG, "98304"),
              I(f"s_cmp_lt_u32 {sTrip}, 2", "salu", rd=[sTrip], wr=["scc"]),
              salu("s_cselect_b32", sNrec, "196608", "0", scc_r=True),
              salu("s_cselect_b32", srdQ[2], "98304", "0", scc_r=True),
              salu("s_add_u32", srdQ[0], ptrQ[0], sQO, scc_w=True),
              salu("s_addc_u32", srdQ[1], ptrQ[1], "0", scc_w=True, scc_r=True)]
        u.streams.append(Stream(sl, base + 24, base + 80))
    if t == 15 - KD:
        sl = [salu("s_add_u32", srdK[0], ptrK[0], sKO, scc_w=True),
              salu("s_addc_u32", srdK[1], ptrK[1], "0", scc_w=True, scc_r=True),
              salu("s_mov_b32", srdK[2], sNrec)]
        u.streams.append(Stream(sl, base + OPT["kgaps"][-1] + 1, base + 90))
    if t == 15 - VD:
        sl = [salu("s_add_u32", srdV[0], ptrV[0], sKO, scc_w=True),
              salu("s_addc_u32", srdV[1], ptrV[1], "0", scc_w=True, scc_r=True),
              salu("s_mov_b32", srdV[2], sNrec)]
        u.streams.append(Stream(sl, base + OPT["vgaps"][-1] + 1, base + 90))
    return base


def qcopy(base):
    out = []
    for ks in range(6):
        for q in range(2):
            for i in range(4):
                out.append(valu("v_accvgpr_write_b32", Qreg(q, ks)[i], STG[(q * 6 + ks) * 4 + i],
                                earliest=base + 4 * (6 + ks) + q))
    return out


def set_osrd():
    return [salu("s_add_u32", srdO[0], ptrO[0], sQOcur, scc_w=True),
            salu("s_addc_u32", srdO[1], ptrO[1], "0", scc_w=True, scc_r=True),
            salu("s_mov_b32", srdO[2], "98304")]


def unit_mid(b, t):
    u = Unit(f"T{t}")
    if t == 1:
        u.pre.append(label("L_loop"))
    u.pre += stamp(t)
    base = add_iter(u, b, t, f"T{t}")
    if t == 14:
        u.streams.append(Stream(qcopy(base), base + 24, base + 99))
    if t == 11:
        u.tail[base + 96].append(I(f"s_cmp_eq_u32 {sTrip}, 2", "salu", rd=[sTrip], wr=["scc"]))
        u.post += [I("s_cbranch_scc1 L_fin", "branch", rd=["scc"])]
    return u


def unit_x(b):
    u = Unit("X")
    u.pre.append(label("L_x"))
    u.pre += stamp(15)
    b15 = add_iter(u, b, 15, "T15")
    b0 = add_iter(u, b + 1, 0, "T0")
    u.streams.append(Stream(rinv_stream(0), b15 + 9, b15 + 40))
    u.streams.append(Stream(rinv_stream(1), b15 + P2 + 9, b15 + P2 + 15, prio=0.5))
    ep, wr = [], []
    for tt in range(6):
        O = OA[16 * tt: 16 * tt + 16]
        dl = b0 + P2 + (8 * tt if tt != 1 else 4) - 1
        m, c, w = epi_a(tt)
        r0, m0_, c0 = epi_b(tt, 0, O[8:16])
        r1, m1_, c1 = epi_b(tt, 1, O[8:16])
        setw(m, earliest=b15 + P2 + 8 * tt + 9)
        setw(r0, earliest=b15 + P2 + max(16, 8 * tt + 9))
        ep += setw(m + c + r0 + m0_ + c0 + r1 + m1_ + c1, latest=dl)
        wr += setw(w, latest=dl)
    u.streams.append(Stream(ep, b15 + P2 + 9, b0 + P2 + 39))
    u.streams.append(Stream(wr, b15 + P2 + 9, b0 + P2 + 39))
    so = set_osrd()
    if OPT.get("ob_early"):
        so += [salu("s_mov_b32", srdO2[0], srdO[0]), salu("s_mov_b32", srdO2[1], srdO[1]),
               I(f"s_cmp_eq_u32 {sTrip}, 1", "salu", rd=[sTrip], wr=["scc"]),
               salu("s_cselect_b32", srdO2[2], "98304", "0", scc_r=True)]
    u.streams.append(Stream(so, b15 + 46, b15 + 56))
    sl = [salu("s_add_u32", sTrip, sTrip, "1", scc_w=True)]
    if OPT["stamp"]:
        sl.append(salu("s_add_u32", sH, sH, "64", scc_w=True))
    u.streams.append(Stream(sl, b0 + 4, b0 + 80))
    u.post.append(I("s_branch L_loop", "branch"))
    return u


def unit_pro():
    u = Unit("PRO")
    P = u.pre
    tid, lane, i16, G, t0, t1, t2 = v(0), X[0], X[1], X[2], X[3], E[0], E[1]
    P += [I("s_cmp_ge_u32 s2, 256", "salu", rd=["s2"], wr=["scc"]),
          I("s_cbranch_scc1 L_end", "branch", rd=["scc"]),
          I("s_load_dwordx4 s[4:7], s[0:1], 0", "salu", wr=[s(4, 4)]),
          I("s_load_dwordx4 s[8:11], s[0:1], 16", "salu", wr=[s(8, 4)])]
    warm = []
    if OPT["codewarm"]:
        P += [I(f"s_getpc_b64 {sPC}", "salu", wr=[sPC]),
              label("L_pc"),
              I(f"s_sub_u32 {sPC[0]}, {sPC[0]}, L_pc-{KNAME}", "salu", rd=[sPC], wr=[sPC, "scc"]),
              I(f"s_subb_u32 {sPC[1]}, {sPC[1]}, 0", "salu", rd=[sPC, "scc"], wr=[sPC, "scc"]),
              salu("s_lshr_b32", sH, "s2", "3", scc_w=True),
              salu("s_lshl_b32", sH, sH, "11", scc_w=True),
              valu("v_lshlrev_b32", E[2], "3", tid),
              valu("v_add_u32", E[2], sH, E[2]),
              I(f"v_min_u32 {E[2]}, L_code_end-{KNAME}-8, {E[2]}", "valu", rd=[E[2]], wr=[E[2]])]
        warm = [I(f"global_load_dwordx2 {JUNK[0:2]}, {E[2]}, {sPC}", "vmem", rd=[E[2], sPC], wr=[JUNK[0:2]])]
        if OPT["codewarm"] == 1:
            P += warm
            warm = []
    if OPT["stamp"]:
        P += [I(f"s_load_dwordx2 {srdD[0:2]}, s[0:1], 40", "salu"), I(f"s_memrealtime {s(94, 2)}", "salu")]
    if OPT.get("dbg"):
        P += [I(f"s_load_dwordx2 {srdD[0:2]}, s[0:1], 32", "salu"), I(f"s_memrealtime {s(94, 2)}", "salu"),
              I(f"s_memtime {s(100, 2)}", "salu")]
    P += [valu("v_lshrrev_b32", t0, "6", tid), valu("v_and_b32", lane, "63", tid),
          I(f"v_readfirstlane_b32 {sW}, {t0}", "valu", rd=[t0], wr=[sW]),
          valu("v_lshlrev_b32", t1, "4", lane)]
    P += [salu("s_and_b32", sBG, "s2", "7", scc_w=True),
          salu("s_mul_i32", sBG, sBG, "96"),
          salu("s_lshr_b32", sH, "s2", "3", scc_w=True),
          salu("s_add_u32", sBG, sBG, sH, scc_w=True),
          salu("s_mov_b32", sMagic, "0x55555556"),
          salu("s_mul_hi_u32", sKO, sBG, sMagic),
          salu("s_mul_i32", sKO, sKO, "196608"),
          salu("s_mul_i32", sQO, sBG, "98304")]
    P += [salu("s_mov_b32", sQB, str(VBASE + 2 * TILE)),
          I(f"s_cmp_eq_u32 {sW}, 0", "salu", rd=[sW], wr=["scc"]),
          salu("s_cselect_b32", sQB, str(KBASE + 3 * TILE), sQB, scc_r=True),
          I(f"s_cmp_eq_u32 {sW}, 2", "salu", rd=[sW], wr=["scc"]),
          salu("s_cselect_b32", sQB, str(VBASE + 3 * TILE), sQB, scc_r=True),
          I(f"s_cmp_eq_u32 {sW}, 3", "salu", rd=[sW], wr=["scc"]),
          salu("s_cselect_b32", sQB, str(SPARE), sQB, scc_r=True),
          salu("s_mul_i32", sW, sW, "3072")]
    late = []
    for c in range(3):
        P += [valu("v_add_u32", t0, str(c * 1024), t1),
              valu("v_lshrrev_b32", t2, "7", t0),
              valu("v_mul_u32_u24", t2, "171", t2),
              valu("v_lshrrev_b32", vDO[c], "9", t2),
              valu("v_and_b32", vD[c], "6", vDO[c]),
              valu("v_lshlrev_b32", vD[c], "4", vD[c]),
              valu("v_xor_b32", vD[c], vD[c], t1),
              valu("v_add_u32", vD[c], sW, vD[c])]
        late += [valu("v_lshlrev_b32", vDO[c], "4", vDO[c]),
                 valu("v_xor_b32", vDO[c], vDO[c], t1),
                 valu("v_add_u32", vDO[c], sW, vDO[c])]
    P += [salu("s_lshl_b32", sStage, sW, "2", scc_w=True),
          salu("s_add_u32", sStage, sStage, str(STAGE), scc_w=True),
          salu("s_mul_i32", sH, sW, "7")]
    for jj in range(4):
        P += [salu("s_add_u32", sM[jj], sStage, str(jj * 3072), scc_w=True),
              salu("s_add_u32", sG[0][jj], sH, str(jj * 3072), scc_w=True),
              salu("s_add_u32", sG[1][jj], sH, str(jj * 3072 + TILE), scc_w=True)]
    P += [I("s_waitcnt lgkmcnt(0)", "salu")]
    if OPT.get("dbg") == 2:
        P += [I(f"s_memrealtime {s(78, 2)}", "salu"), I("s_waitcnt lgkmcnt(0)", "salu")]

    def mksrd(srd, ptr, off, n):
        return [salu("s_add_u32", srd[0], ptr[0], off, scc_w=True),
                salu("s_addc_u32", srd[1], ptr[1], "0", scc_w=True, scc_r=True),
                salu("s_mov_b32", srd[2], str(n)), salu("s_mov_b32", srd[3], "0x00020000")]

    def ktile(t):
        return [setm0(m0K[KSLOT[t]]), nop(0)] + [dma(srdK, sT[t], c, ("K", t)) for c in range(3)]

    def vtile(t):
        return [setm0(m0V[VSLOT[t]]), nop(0)] + [dma(srdV, sT[t], c, ("V", t)) for c in range(3)]

    P += [setm0(sW)] + mksrd(srdK, ptrK, sKO, 196608) + [dma(srdK, "0", c, ("K", 0)) for c in range(3)]
    if OPT.get("dbg") == 3:
        P += [waitv(("K", 0)), I(f"s_memrealtime {s(78, 2)}", "salu"), I("s_waitcnt lgkmcnt(0)", "salu")]
    P += mksrd(srdQ, ptrQ, sQO, 98304)
    for jj in range(4):
        P += [setm0(sM[jj]), nop(0)] + [qdma(0, jj, c, ("QD", 0, 0)) for c in range(3)]
    for jj in range(4):
        P += [salu("s_add_u32", "m0", sQB, str(jj * 3072), scc_w=True), nop(0)] + [qdma(1, jj, c, ("QD", 0, 1)) for c in range(3)]
    P += mksrd(srdV, ptrV, sKO, 196608)
    for i in range(4):
        P.append(salu("s_add_u32", m0K[i], sW, str(KBASE + i * TILE), scc_w=True))
        P.append(salu("s_add_u32", m0V[i], sW, str(VBASE + i * TILE), scc_w=True))
    for t in range(1, 16):
        P.append(salu("s_mov_b32", sT[t], str(t * TILE)))
    P += [salu("s_mov_b32", srdO[0], ptrO[0]), salu("s_mov_b32", srdO[1], ptrO[1]),
          salu("s_mov_b32", srdO[2], "0"), salu("s_mov_b32", srdO[3], "0x00020000"),
          salu("s_mov_b32", srdO2[0], ptrO[0]), salu("s_mov_b32", srdO2[1], ptrO[1]),
          salu("s_mov_b32", srdO2[2], "0"), salu("s_mov_b32", srdO2[3], "0x00020000"),
          salu("s_mov_b32", sTrip, "0"),
          salu("s_mov_b32", sC, hex(f2u(SCALE_C))), salu("s_mov_b32", sNegC, hex(f2u(-SCALE_C))),
          salu("s_mov_b32", sThr, hex(f2u(OPT["thr"])))]
    if OPT["codewarm"] and OPT.get("rewarm", 6):
        P += [salu("s_lshr_b32", sTmp, "s2", "3", scc_w=True), salu("s_and_b32", sTmp, sTmp, "3", scc_w=True),
              salu("s_lshl_b32", sTmp, sTmp, "12", scc_w=True),
              salu("s_mul_hi_u32", sH, sW, sMagic),
              salu("s_add_u32", sTmp, sTmp, sH, scc_w=True),
              I(f"s_add_u32 {sTmp}, {sTmp}, L_x-{KNAME}", "salu", rd=[sTmp], wr=[sTmp, "scc"]),
              salu("s_add_u32", sWarm[0], sPC[0], sTmp, scc_w=True),
              salu("s_addc_u32", sWarm[1], sPC[1], "0", scc_w=True, scc_r=True),
              salu("s_sub_u32", sWarm[0], sWarm[0], sStage, scc_w=True),
              salu("s_subb_u32", sWarm[1], sWarm[1], "0", scc_w=True, scc_r=True)]
    P += late + [valu("v_add_u32", vLin, sStage, t1)]
    P += [valu("v_and_b32", i16, "15", lane), valu("v_lshrrev_b32", G, "4", lane),
          valu("v_mul_u32_u24", t0, "384", i16)]
    P += [valu("v_and_b32", t1, "6", i16), valu("v_xor_b32", t1, t1, G), valu("v_lshl_add_u32", vK[0], t1, "4", t0),
          valu("v_xor_b32", vK[1], "64", vK[0])]
    for e in range(2):
        P += [valu("v_add_u32", vS[e], sStage, vK[e]), valu("v_add_u32", STG[e], sQB, vK[e])]
    P += [valu("v_lshrrev_b32", t1, "1", G), valu("v_and_b32", t2, "7", i16), valu("v_xor_b32", t1, t1, t2),
          valu("v_lshl_add_u32", vOW, t1, "4", t0), valu("v_and_b32", t1, "1", G),
          valu("v_lshl_add_u32", vOW, t1, "3", vOW), valu("v_add_u32", vOW, sStage, vOW)]
    P += [valu("v_lshrrev_b32", t1, "2", lane), valu("v_mul_u32_u24", t0, "384", t1),
          valu("v_and_b32", t1, "6", t1), valu("v_lshl_add_u32", t0, t1, "4", t0),
          valu("v_and_b32", t1, "3", lane), valu("v_lshl_add_u32", t0, t1, "3", t0),
          valu("v_add_u32", vV[0], str(VBASE), t0)]
    for e in range(1, 4):
        P.append(valu("v_xor_b32", vV[e], str(e * 32), vV[0]))
    P += [salu("s_mov_b32", sTmp, "0x3f803f80"), valu("v_mov_b32", t0, sTmp)]
    for j in range(2):
        P += [I(f"v_cmp_eq_u32 vcc, {j}, {i16}", "valu", rd=[i16], wr=["vcc"]),
              I(f"v_cmp_eq_u32 {sRet}, 2, {i16}", "valu", rd=[i16], wr=[sRet]), nop(0),
              I(f"s_or_b64 vcc, vcc, {sRet}", "salu", rd=["vcc", sRet], wr=["vcc", "scc"]), nop(1),
              I(f"v_cndmask_b32 {t1}, 0, {t0}, vcc", "valu", rd=[t0, "vcc"], wr=[t1])]
        P += [valu("v_accvgpr_write_b32", ONES[j][i], t1) for i in range(4)]
    if OPT["stamp"]:
        P += [salu("s_mov_b32", srdD[2], "0x1000000"), salu("s_mov_b32", srdD[3], "0x00020000"),
              salu("s_mul_hi_u32", sTmp, sW, sMagic), salu("s_lshr_b32", sTmp, sTmp, "2", scc_w=True),
              salu("s_lshl_b32", sH, "s2", "10", scc_w=True), salu("s_add_u32", sH, sH, sTmp, scc_w=True),
              valu("v_mov_b32", E[0], s(94)),
              I(f"buffer_store_dword {E[0]}, off, {srdD}, {sH} offset:{57 * 4}", "vmem", rd=[E[0], srdD])]
    P += stamp(60) + stamp(56, True)
    P += [waitv(("QD", 0, 0)), barrier()]
    for f in range(RING):
        P += kread(-2, f, 0)
    qorder = [0, 6, 1, 7, 2, 8, 3, 9, 4, 10, 5, 11]
    for n in qorder:
        P.append(qread(Qreg(n // 6, n % 6), n, vS, ("QA", 0, n)))
    P += [waitl(("QA", 0, 7))]
    P += stamp(61)
    if OPT.get("dbg") == 1:
        P += [I(f"s_memrealtime {s(78, 2)}", "salu"), I("s_waitcnt lgkmcnt(0)", "salu")]
    pend = ktile(1) + vtile(0) + ktile(2) + warm + vtile(1)
    for n in range(24):
        x, f = n // 12, n % 12
        for q in range(2):
            m = qk_mfma(0, f, 2 * x + q, FR[n % RING])
            m.needl = [("F", -2, n), ("QA" if x == 0 else "QB", 0, q * 6 + f % 6)]
            k = u.add_gap(m)
            if x == 0 and pend:
                it = pend.pop(0)
                if it.kind != "nop":
                    u.pin[k].append(it)
        if n + RING < 24:
            u.pin[k] += kread(-2, n + RING, 0)
        else:
            u.pin[k] += kread(0, n + RING - 24, 1)
        if f == 1:
            u.pin[k].append(waitl(("QA" if x == 0 else "QB", 0, 11)))
        if RING - 1 <= n < 23 and n != 11:
            u.pin[k].append(waitl(("F", -2, n + 1)))
        if n == 11:
            assert not pend
            k = u.add_gap(None)
            XPOS[0] = 0
            u.pin[k] += softmax(0, 0) + [waitv(("QD", 0, 1))]
            for nn in qorder:
                u.pin[k].append(qread(Qreg(2 + nn // 6, nn % 6), nn, [STG[0], STG[1]], ("QB", 0, nn)))
            u.pin[k] += sum_mfma(0, 0) + [waitl(("QB", 0, 7))]
        if n == 14:
            u.pin[k] += [waitv(("K", 1), ("V", 0), ("K", 2)), barrier()]
        if n == 15:
            u.pin[k] += ktile(3)
        if n == 16:
            u.pin[k] += vtile(2)
    u.pin[k] += [barrier(), waitl(*[("F", 0, i) for i in range(OPT["wper"])])]
    u.pin[k] += stamp(0)
    if OPT.get("dbg") == 4:
        u.pin[k] += [I(f"s_memrealtime {s(78, 2)}", "salu"), I("s_waitcnt lgkmcnt(0)", "salu")]
    u.win0 = len(u.heads)
    add_iter(u, 0, 0, "T0p")
    return u


def unit_fin(b):
    u = Unit("FIN")
    u.pre.append(label("L_fin"))
    u.pre += stamp(15)
    g0 = b * 16 + 12
    NR = OPT.get("nr", 3)
    phases = [("QK", (0, 1), 13), ("PV", (0,), 12), ("QK", (0,), 14), ("PV", (0,), 13), ("QK", (0,), 15),
              ("PV", (0,), 14), ("PV", (0,), 15),
              ("QK", (1,), 14), ("PV", (1,), 12), ("QK", (1,), 15), ("PV", (1,), 13), ("PV", (1,), 14), ("PV", (1,), 15)]
    ALT_P[0] = True
    sums = {(0, 48): (1, 12), (1, 18): (0, 13), (3, 18): (0, 14), (5, 18): (0, 15), (8, 18): (1, 13), (10, 18): (1, 14),
            (11, 18): (1, 15)}
    start, end, sumgap, lastuse, done = {}, {}, {}, {}, {}
    nfr = 12 * len(phases)
    for pi, (kind, hs, tile) in enumerate(phases):
        if len(hs) == 2:
            seq = [(f, qb) for f in range(NR) for qb in (2, 3)] + [(f, qb) for f in range(NR) for qb in (0, 1)] + \
                  [(f, qb) for f in range(NR, 12) for qb in range(4)]
        else:
            seq = [(f, 2 * hs[0] + q) for f in range(12) for q in range(2)]
        start[pi] = len(u.heads)
        for i, (f, qb) in enumerate(seq):
            n = 12 * pi + f
            m = qk_mfma(tile, f, qb, FR[n % RING]) if kind == "QK" else pv_mfma(tile, f, qb, FR[n % RING], False)
            m.needl = [("F", g0, n)]
            lastuse[n] = done[(pi, f, qb)] = u.add_gap(m)
            if (pi, i + 1) in sums:
                sumgap[sums[(pi, i + 1)]] = len(u.heads)
                for m in sum_mfma(*sums[(pi, i + 1)]):
                    u.add_gap(m)
        end[pi] = len(u.heads) - 1
    last = u.add_gap(None)
    wp = OPT["wper"]
    for n in range(nfr):
        k = lastuse[n]
        nn = n + RING
        rd = []
        if nn < nfr:
            kind, hs, tile = phases[nn // 12]
            rd = kread(g0, nn, tile) if kind == "QK" else vread(g0, nn, tile)
            u.pin[k] += rd
        if (n + 1) % wp == 0 and n + 1 < nfr:
            u.pin[k if len(rd) < 2 else k - 1].append(waitl(*[("F", g0, n + 1 + i) for i in range(wp)]))
    u.pin[start[0] + 1].append(setm0(m0V[VSLOT[15]]))
    for c, k in enumerate((4, 8, 12)):
        u.pin[start[0] + k].append(dma(srdV, sT[15], c, ("V", g0 + 3)))
    dg = [start[0] + k for k in (20, 32, 44)] + [start[1] + k for k in (4, 16)] + [start[2] + k for k in (0, 6, 12)]
    for idx, (tt, k) in enumerate(OPT["ob_st"]):
        if tt > 11 and not OPT.get("ob_early"):
            u.pin[dg.pop(0)].append(ostore(obuf(1, idx), 1, idx, [("OR", b, 1, idx)]))
    u.pin[start[2] + 2] += [waitv(("K", g0 + 3), ("V", g0 + 1), ("V", g0 + 2)), barrier()]
    u.pin[start[4] + 14] += [waitv(("V", g0 + 3)), barrier()]
    def put_check(x, tile, kc, kb):
        c, br, lu = check(x, tile, f"F{tile}")
        u.tail[kc] += c
        u.tail[kb] += br
        u.streams.append(Stream(lu, kb + 1, kb + 3, prio=0.5))
    put_check(0, 12, start[0] + 2, start[0] + 2 * NR - 1)
    for (x, tile), k in sumgap.items():
        put_check(x, tile, k + 5, k + 7)
    XPOS[0] = 0
    sm = setw(softmax(1, 12), latest=sumgap[(1, 12)] - 2)
    x = exp_stream(0, SA, Pbuf(0, 13), KH0_FIRST[:8])
    x[0].earliest = start[0] + 30
    u.streams.append(Stream(sm + x, start[0], end[0], prio=0.05, look=OPT["look"]))
    for tile, pq in ((13, 0), (14, 2), (15, 4)):
        if pq:
            u.streams.append(Stream(exp_stream(0, SA, Pbuf(0, tile), KH0_FIRST[:8]), start[pq] + 15, end[pq] + 2,
                                    prio=0.05, look=OPT["look"]))
        u.streams.append(Stream(exp_stream(0, SA, Pbuf(0, tile), KH0_FIRST[8:]), end[pq] + (3 if pq else 1),
                                sumgap[(0, tile)] - 2, prio=0.05, look=OPT["look"]))
    for tile, pq in ((13, 7), (14, 9), (15, 11)):
        u.streams.append(Stream(softmax(1, tile), start[pq] + (OPT.get("b13", 12) if pq == 7 else 0), sumgap[(1, tile)] - 2,
                                prio=0.05, look=OPT["look"]))
    AD = [vOW, STG[0], STG[1], STG[2]]
    u.streams.append(Stream(set_osrd() + [valu("v_xor_b32", AD[e], str(32 * e), vOW) for e in range(1, 4)],
                            start[4], start[4] + 12))
    kA = sumgap[(0, 15)] + 11
    u.streams.append(Stream(rinv_stream(0), kA, kA + 8, prio=0.5))
    Z = [Qc[4 * i: 4 * i + 4] for i in range(12)]

    def epi_group(qb, dts, T):
        r, m, c, w = [], [], [], []
        for i, dt in enumerate(dts):
            O = Otile(qb, dt)
            R = O if O.f == "v" else T[4 * i: 4 * i + 4]
            if O.f == "a":
                r += [valu("v_accvgpr_read_b32", R[j], O[j]) for j in range(4)]
            m += scale2(R[0:2], qb) + scale2(R[2:4], qb)
            cc = [valu("v_cvt_pk_bf16_f32", R[0], R[0], R[1]), valu("v_cvt_pk_bf16_f32", R[1], R[2], R[3])]
            c += cc
            wr = owrite(R[0:2], AD[dt % 4], qb % 2, dt)
            wr.after = cc[1]
            w.append(wr)
        return r, m, c, w

    ep, wr, sts = [], [], []
    for q in range(2):
        for grp in range(3):
            r, m, c, w = epi_group(q, range(4 * grp, 4 * grp + 4), None)
            setw(m, earliest=max(kA + 9, done[(6, 4 * grp + 3, q)] + 4))
            ep += m + c
            wr += w
        for n in range(6 * q, 6 * q + 6):
            rd = oread(Z[n], n, ("OR", b + 1, 0, n))
            rd.flags.add("head")
            wr.append(rd)
        w = waitl(("OR", b + 1, 0, 6 * q + 5))
        w.after = wr[-1]
        w.delay = 6
        sts.append(w)
        for n in range(6 * q, 6 * q + 6):
            st = ostore(Z[n], 0, n, [("OR", b + 1, 0, n)], True)
            st.flags.add("head")
            sts.append(st)
    u.streams.append(Stream(ep, kA + 9, end[7], prio=0.3))
    u.streams.append(Stream(wr, kA + 9, end[7] + 12, prio=0.3))
    u.streams[-1].headmax = 8
    u.streams.append(Stream(sts, start[7] - OPT.get("st0", 10), end[OPT.get("stend", 11)], prio=0.3))
    u.streams[-1].headmax = 4
    u.streams[-1].pace = True
    u.streams.append(Stream(rinv_stream(1), start[12] + 3, start[12] + 8, prio=0.5))
    TT = [SA, SB[0], SB[1]]
    ep, wr = [], []
    for grp in range(2):
        r, m, c, w = epi_group(2, range(4 * grp, 4 * grp + 4), TT[grp])
        setw(r, earliest=done[(12, 4 * grp + 3, 2)] + 3)
        ep += r + m + c
        wr += w
    u.streams.append(Stream(ep, start[12] + 9, end[12], prio=0.3))
    u.streams.append(Stream(wr, start[12] + 9, end[12], prio=0.3))
    u.streams[-1].headmax = 8
    po = u.pin[last]
    r, m, c, w = epi_group(2, range(8, 12), TT[2])
    po += r + m + c + w
    po += [oread(Z[n], n, ("OR", b + 1, 1, n)) for n in range(6)]
    for grp in range(3):
        r, m, c, w = epi_group(3, range(4 * grp, 4 * grp + 4), TT[grp])
        st = [ostore(Z[n], 1, n, [("OR", b + 1, 1, n)], True) for n in range(6)] if grp == 0 else []
        po += r[:8] + ([waitl(("OR", b + 1, 1, 5))] if grp == 0 else []) + st[:2] + r[8:] + st[2:4] + m + st[4:] + c + w
    po += [oread(Z[n], n, ("OR", b + 1, 1, n)) for n in range(6, 12)]
    for n in range(6, 12):
        po += [waitl(("OR", b + 1, 1, n)), ostore(Z[n], 1, n, [("OR", b + 1, 1, n)], True)]
    ALT_P[0] = False
    u.wins = sorted(set(list(start.values()) + list(sumgap.values()) + [start[2] + 15, start[4] + 15, kA + 9]))
    u.post += stamp(16) + stamp(17, True)
    if OPT["stamp"]:
        u.post += [I("s_waitcnt vmcnt(0)", "salu")] + stamp(18) + stamp(19, True)
    if OPT.get("dbg"):
        u.post += [I("s_cmp_ge_u32 s2, 8", "salu"), I("s_cbranch_scc1 L_end", "branch"),
                   I(f"s_cmp_lg_u32 {sW}, 0", "salu"), I("s_cbranch_scc1 L_end", "branch"),
                   I("s_waitcnt vmcnt(0)", "salu"), I(f"s_memrealtime {sStamp}", "salu"), I(f"s_memtime {sPC}", "salu"),
                   I("s_waitcnt lgkmcnt(0)", "salu"),
                   salu("s_mov_b32", srdD[2], "256"), salu("s_mov_b32", srdD[3], "0x00020000"),
                   I("s_mov_b64 exec, 1", "salu"),
                   salu("s_sub_u32", sTmp, sStamp[0], s(94)), salu("s_sub_u32", sH, s(78), s(94)),
                   salu("s_mul_i32", sH, sH, "100000"), salu("s_add_u32", sTmp, sTmp, sH),
                   valu("v_mov_b32", v(34), sTmp),
                   salu("s_sub_u32", sTmp, sPC[0], s(100)), valu("v_mov_b32", v(35), sTmp),
                   salu("s_lshl_b32", sTmp, "s2", "3"),
                   I(f"buffer_store_dwordx2 {v(34, 2)}, off, {srdD}, {sTmp}", "vmem", rd=[srdD])]
    u.post += [label("L_end"), I("s_endpgm", "branch")]
    return u


def build(extra):
    cache = {}

    def get(name, fn, first):
        u = fn()
        ins = u.schedule(budget=8, window=50, pk_at=20, verbose=first and VERB)
        out = []
        for idx, i in enumerate(ins):
            n = extra.get((name, idx), 0)
            if n:
                out.append(((name, idx, "nop"), nop(n - 1)))
            out.append(((name, idx), i))
        if first:
            cache[name] = out
        return out

    trace = list(get("PRO", unit_pro, True))
    for b in range(3):
        for t in range(1, 15 if b < 2 else 12):
            trace += get(f"T{t}", lambda: unit_mid(b, t), b == 0)
        if b < 2:
            trace += get("X", lambda: unit_x(b), b == 0)
    trace += get("FIN", lambda: unit_fin(2), True)
    order = ["PRO"] + [f"T{t}" for t in range(1, 15)] + ["X", "FIN"]
    return [(n, cache[n]) for n in order], trace


VERB = False
extra = {}
for it in range(60):
    static, trace = build(extra)
    hz = hazards([i for _, i in trace])
    if not hz:
        break
    upd = {}
    lastj = -100
    for j, need, why in hz:
        key = trace[j][0]
        if j != lastj and j - lastj < 24:
            continue
        lastj = j
        upd[key] = max(upd.get(key, 0), need)
        if OPT.get("showhz"):
            print("; hazard:", key, need, why, file=sys.stderr)
    for k, n in upd.items():
        extra[k] = extra.get(k, 0) + n
else:
    raise SystemExit("hazards did not converge")
if OPT.get("verb"):
    VERB = True
    _so = sys.stdout
    sys.stdout = sys.stderr
    build(extra)
    sys.stdout = _so
    print("; nops inserted:", extra, file=sys.stderr)
W = resolve_waits(trace)
_bad = check_coverage(trace, W)
assert not _bad, _bad[:10]
if OPT.get("verb") and "_mismatch" in W:
    print("; wait mismatches:", W["_mismatch"], file=sys.stderr)

out = []
A = out.append
A(open(os.path.join(os.path.dirname(os.path.abspath(__file__)), "header.txt")).read().rstrip())
A(f"; @launch grid=(256,1,1) block=(256,1,1) lds={LDS_BYTES}")
A('.amdgcn_target "amdgcn-amd-amdhsa--gfx950"')
A(".text")
A(f".globl {KNAME}")
A(".p2align 8")
A(f".type {KNAME},@function")
A(f"{KNAME}:")
for name, ins in static:
    A(f"; ---- {name} ----")
    for key, i in ins:
        t = i.text
        if i.kind == "wait":
            l, vv = W[key]
            t = "s_waitcnt " + (f"lgkmcnt({l})" if l is not None else f"vmcnt({vv})")
        abl = OPT.get("abl", "")
        if abl and name not in ("PRO",):
            tx = i.text
            if "c" in abl and "s_cbranch_vccnz" in tx:
                t = "s_nop 0"
            if "b" in abl and i.kind == "barrier":
                t = "s_nop 0"
            if "k" in abl and i.kind == "vmem" and (str(srdK) in tx or str(srdV) in tx):
                t = "s_nop 1"
            if "w" in abl and i.kind == "wait" and i.waitl is not None:
                t = "s_nop 0"
            if "W" in abl and i.kind == "wait" and i.waitv is not None:
                t = "s_nop 0"
            if "s" in abl and i.kind == "vmem" and (str(srdQ) in tx or str(srdO) in tx):
                t = "s_nop 1"
            if "z" in abl and "ds_write" in tx:
                t = "s_nop 1"
            tok = tx.replace(",", " ").split()
            if "v" in abl and i.kind in ("valu", "trans") and any(str(r) in tok for r in X):
                t = "s_nop 0"
            if "V" in abl and i.kind in ("valu", "trans") and any(str(r) in tok for r in X):
                continue
            if "d" in abl and i.kind == "ds" and i.wr and i.wr[0] in names(FR):
                t = "s_nop 0"
            if "e" in abl and i.kind == "valu" and ("pk_mul" in tx or "accvgpr" in tx or ("cvt_pk" in tx and not any(str(r) in tok for r in X))):
                continue
            if "o" in abl and i.kind == "mfma" and i.wr == TS.names():
                continue
        if OPT.get("e64") and re.match(r"v_(exp_f32|add_f32|mul_f32|mov_b32|xor_b32|max_f32|rcp_f32) ", t) and "96" not in t.split(",")[1]:
            t = t.replace(" ", "_e64 ", 1)
        A(t if i.kind == "label" else "    " + t)
for name, x, par in TRAMPS:
    A(f"L_tr_{name}:")
    A(f"    s_call_b64 {sRet}, L_rare_{'AB'[x]}{par}")
    A(f"    s_branch L_ret_{name}")
for x, par in ((0, 0), (0, 1), (1, 0), (1, 1), (1, 3)):
    if True:
        ALT_P[0] = par == 3
        r = rare(x, par)
        ALT_P[0] = False
        hz = hazards(r)
        assert not hz, hz
        for i in r:
            A(i.text if i.kind == "label" else "    " + i.text)
A("L_code_end:")
A("    s_endpgm")
A(f""".section .rodata,"a"
.p2align 6
.amdhsa_kernel {KNAME}
  .amdhsa_next_free_vgpr 512
  .amdhsa_next_free_sgpr 102
  .amdhsa_accum_offset 256
  .amdhsa_group_segment_fixed_size 0
  .amdhsa_kernarg_size 48
  .amdhsa_user_sgpr_count 2
  .amdhsa_user_sgpr_kernarg_segment_ptr 1
  .amdhsa_system_sgpr_workgroup_id_x 1
  .amdhsa_float_denorm_mode_32 3
.end_amdhsa_kernel""")
print("\n".join(out))
```

```python
import sys, struct, math, os, re
sys.path.insert(0, os.path.dirname(os.path.abspath(__file__)))
import asmlib
from asmlib import *

asmlib.COST.update(vmem=8, barrier=8)
KNAME = "standalone__gqa_softmax__near_ridge_kernel"
OPT = dict(
    sgaps=[[20, 28, 36], [74, 82, 90]],
    qa_slots=[9, 11, 13, 14], qb_slots=[19, 21, 23, 25],
    oa_rd=[(1, g) for g in (1, 17, 25, 33, 41, 45, 59, 67)] + [(2, g) for g in (1, 9, 17, 22)],
    oa_st=[(1, 74), (1, 82), (1, 90), (2, 20), (2, 44), (2, 74), (3, 20), (3, 44), (3, 74), (4, 16), (4, 24), (4, 32)],
    ob_rd=[(3, g) for g in (71, 75, 79, 83, 87, 91, 95)] + [(4, g) for g in (1, 9, 18, 26, 34)],
    ob_st=[(8, 20), (8, 36), (8, 74), (8, 90), (13, 20), (13, 44), (13, 74), (14, 20), (14, 44), (15, 20), (15, 36), (15, 44)],
    ob_stg=4,
    ob_early=[(5, 20), (5, 32), (5, 44), (6, 20), (6, 32), (7, 74), (7, 82), (7, 90)],
    qar_iter=9,
    kgaps=[4, 8, 12], vgaps=[48, 58, 66],
    bar_gap=98,
    wper=3, look=5,
    thr=4096.0,
    stamp=0,
    codewarm=1,
    pk=1,
    kv_nt=" nt", q_nt=" nt", o_nt=" sc1",
)
for a in sys.argv[1:]:
    if "=" in a:
        k, v = a.split("=", 1)
        OPT[k] = eval(v)

TILE = 12288
KSLOT = [0, 1, 2, 3] * 4
VSLOT = [0, 1, 2, 3] * 4
KBASE, VBASE, STAGE, SPARE = 0, 4 * TILE, 8 * TILE, 12 * TILE
LDS_BYTES = 13 * TILE
KD, VD = 4, 3
RING = 6
P2 = 50
NG = 100


def f2u(x):
    return struct.unpack("<I", struct.pack("<f", x))[0]


v = lambda lo, n=1: Reg("v", lo, n)
a = lambda lo, n=1: Reg("a", lo, n)
s = lambda lo, n=1: Reg("s", lo, n)

vLin = v(1)
vK = [v(2), v(3)]
vV = [v(4 + i) for i in range(4)]
vD = [v(8 + i) for i in range(3)]
vDO = [v(11 + i) for i in range(3)]
vS = [v(14), v(15)]
rinv = [v(16 + 2 * i) for i in range(4)]
rinv2 = [v(16 + 2 * i, 2) for i in range(4)]
lsum = [v(17 + 2 * i) for i in range(4)]
negmc = [v(24 + i) for i in range(4)]
TS = v(28, 4)
vOW = v(32)
E = [v(33), v(34), v(35)]
X = [v(36), v(37), v(38), v(39), v(0)]
PA = [v(40, 8), v(48, 8)]
PB = v(56, 8)
SA = v(64, 16)
SB = [v(80, 16), v(96, 16)]
OA = v(112, 96)
STG = v(208, 48)
OB = a(0, 96)
Qc = a(96, 96)
FR = [a(192 + 4 * i, 4) for i in range(RING)]
SQ = [a(216 + 4 * i, 4) for i in range(8)]
JUNK = SQ[7]
ONES = [a(248, 4), a(252, 4)]
OX = [OA, OB]

ptrQ, ptrK, ptrV, ptrO = s(4, 2), s(6, 2), s(8, 2), s(10, 2)
srdK, srdV, srdQ, srdO = s(12, 4), s(16, 4), s(20, 4), s(24, 4)
sBG, sH, sKO, sQO, sQOcur, sNrec, sTrip, sC, sNegC, sThr, sMagic, sW = [s(28 + i) for i in range(12)]
sRet = s(40, 2)
m0K = [s(42 + i) for i in range(4)]
sStage, sQB = s(46), s(47)
m0V = [s(48 + i) for i in range(4)]
sT = ["0"] + [s(51 + t) for t in range(1, 16)]
srdD = s(68, 4)
sStamp = s(72, 2)
sPC = s(76, 2)
sG = [[s(80 + 4 * x + j) for j in range(4)] for x in range(2)]
sM = [s(88 + j) for j in range(4)]
sTmp = s(92)
srdO2 = s(96, 4)
sWarm = s(74, 2)

SCALE_C = math.log2(math.e) / math.sqrt(192.0)


def Qreg(qb, ks):
    return Qc[(qb * 6 + ks) * 4: (qb * 6 + ks) * 4 + 4]


def Otile(qb, dt):
    n = (dt * 2 + qb % 2) * 4
    return OX[qb // 2][n: n + 4]


def Sbuf(x, tile):
    return SA if x == 0 else SB[tile % 2]


ALT_P = [False]


def Pbuf(x, tile):
    if x == 1 and ALT_P[0] and tile % 2 == 1:
        return PA[1]
    return PA[tile % 2] if x == 0 else PB


def dma(srd, soff, c, tag):
    off = f" offset:{c * 1024}" if c else ""
    return I(f"buffer_load_dwordx4 {vD[c]}, {srd}, {soff} offen{off}{OPT['kv_nt']} lds", "vmem",
             rd=[vD[c], srd, soff, "m0"], tag=tag)


def setm0(x):
    return salu("s_mov_b32", "m0", x)


def qdma(x, jj, c, tag, need=None):
    off = f" offset:{c * 1024}" if c else ""
    return I(f"buffer_load_dwordx4 {vD[c]}, {srdQ}, {sG[x][jj]} offen{off}{OPT['q_nt']} lds", "vmem",
             rd=[vD[c], srdQ, sG[x][jj], "m0"], tag=tag, needl=need)


def qread(dst, n, addr, tag, need=None):
    q, ks = n // 6, n % 6
    off = q * 6144 + (ks // 2) * 128
    return I(f"ds_read_b128 {dst}, {addr[ks % 2]} offset:{off}", "ds", rd=[addr[ks % 2]], wr=[dst], tag=tag, needv=need)


def oaddr(e):
    if e == 0:
        return vOW, []
    return E[2], [valu("v_xor_b32", E[2], str(e * 32), vOW)]


def owrite(src, addr, q, dt):
    off = q * 6144 + (dt // 4) * 128
    return I(f"ds_write_b64 {addr}, {src} offset:{off}", "ds", rd=[addr, src], cost=OPT.get("wcost", 12), flags=["head"])


def oread(dst, idx, tag):
    return I(f"ds_read_b128 {dst}, {vLin} offset:{idx * 1024}", "ds", rd=[vLin], wr=[dst], tag=tag)


def ostore(src, x, idx, need, fin=False, srdO=srdO):
    jj, c = idx // 3, idx % 3
    off = f" offset:{c * 1024}" if c else ""
    fl = OPT.get("of_nt" + "ab"[x], OPT["o_nt"]) if fin else OPT["o_nt"]
    return I(f"buffer_store_dwordx4 {src}, {vDO[c]}, {srdO}, {sG[x][jj]} offen{off}{fl}", "vmem",
             rd=[src, vDO[c], srdO, sG[x][jj]], flags=["wide"], cost=16, needl=need)


def obuf(x, idx):
    if x == 1 and idx < OPT["ob_stg"]:
        return STG[4 * idx: 4 * idx + 4]
    return SQ[idx % 8]


def kread(g, f, tile):
    kh, ks = (f % 12) // 6, f % 6
    off = KBASE + KSLOT[tile % 16] * TILE + kh * 6144 + (ks // 2) * 128
    d = FR[f % RING]
    return [I(f"ds_read_b128 {d}, {vK[ks % 2]} offset:{off}", "ds", rd=[vK[ks % 2]], wr=[d], tag=("F", g, f))]


def vread(g, f, tile):
    dt = f % 12
    d = FR[f % RING]
    out = []
    for jj in range(2):
        off = VSLOT[tile % 16] * TILE + jj * 6144 + (dt // 4) * 128
        out.append(I(f"ds_read_b64_tr_b16 {d[2 * jj:2 * jj + 2]}, {vV[dt % 4]} offset:{off}", "ds", rd=[vV[dt % 4]],
                     wr=[d[2 * jj:2 * jj + 2]], tag=("F", g, f) if jj == 1 else None))
    return out


def swap32(u, w):
    return I(f"v_permlane32_swap_b32 {u}, {w}", "valu", rd=[u, w], wr=[u, w], cost=8)


def swap16(u, w):
    return I(f"v_permlane16_swap_b32 {u}, {w}", "valu", rd=[u, w], wr=[u, w], cost=8)


def max_tree(S, u, w):
    o = []
    for a0, a1, a2, first in ((0, 1, 2, True), (3, 4, None, False), (5, 6, None, False)):
        for r, b in ((u, 0), (w, 8)):
            if first:
                o.append(valu("v_max3_f32", r, S[b + a0], S[b + a1], S[b + a2]))
            else:
                o.append(valu("v_max3_f32", r, r, S[b + a0], S[b + a1]))
    o += [valu("v_max_f32", u, u, S[7]), valu("v_max_f32", w, w, S[15])]
    return o


def reduce2(op, u, w):
    return [nop(1), swap32(u, w), valu(op, u, u, w), valu("v_mov_b32", w, u), nop(1), swap16(u, w), valu(op, u, u, w)]


def max_init(x, S):
    u, w = E[0], E[1]
    n0, n1 = negmc[2 * x], negmc[2 * x + 1]
    return max_tree(S, u, w) + reduce2("v_max_f32", u, w) + [
        valu("v_mul_f32", n0, sNegC, u), valu("v_mul_f32", n1, sNegC, u), nop(1), swap32(n0, n1)]


XPOS = [0]


def exp_stream(x, S, P, order=range(16), late=None):
    out = []
    order = list(order)
    p0 = XPOS[0]
    N = len(order)
    XPOS[0] = (p0 + N) % len(X)
    T = lambda n: X[(p0 + n) % len(X)]
    for n in range(N + 2):
        if n < N:
            i = order[n]
            f = valu("v_fma_f32", T(n), S[i], sC, negmc[2 * x + i // 8])
            if late is not None and i % 8 >= 4:
                f.earliest = late
            out.append(f)
        if 0 <= n - 1 < N:
            out.append(trans("v_exp_f32", T(n - 1), T(n - 1)))
        j = n - 2
        if 0 <= j < N and j % 2 == 1:
            out.append(valu("v_cvt_pk_bf16_f32", P[order[j] // 2], T(j - 1), T(j)))
    return out


TRAMPS = []
KH0_FIRST = [0, 1, 2, 3, 8, 9, 10, 11, 4, 5, 6, 7, 12, 13, 14, 15]


def softmax(x, tile, late=None):
    S, P = Sbuf(x, tile), Pbuf(x, tile)
    if tile == 0:
        return max_init(x, S) + exp_stream(x, S, P)
    return exp_stream(x, S, P, KH0_FIRST if late is not None else range(16), late)


def sum_mfma(x, tile):
    P = Pbuf(x, tile)
    return [mfma(TS, ONES[0], P[0:4], 0), mfma(TS, ONES[1], P[4:8], TS)]


def check(x, tile, site):
    if tile == 0:
        return [], [], [valu("v_mov_b32", lsum[2 * x + i], TS[i]) for i in range(2)]
    par = tile % 2
    if x == 1 and ALT_P[0] and par == 1:
        par = 3
    name = f"{site}_{'AB'[x]}"
    if (name, x, par) not in TRAMPS:
        TRAMPS.append((name, x, par))
    return ([I(f"v_cmp_nge_f32 vcc, {sThr}, {TS[2]}", "valu", rd=[sThr, TS[2]], wr=["vcc"])],
            [I(f"s_cbranch_vccnz L_tr_{name}", "branch", rd=["vcc"]), label(f"L_ret_{name}")],
            [valu("v_add_f32", lsum[2 * x + i], lsum[2 * x + i], TS[i]) for i in range(2)])


def rinv_stream(x):
    u, w = lsum[2 * x], lsum[2 * x + 1]
    r0, r1 = rinv[2 * x], rinv[2 * x + 1]
    return reduce2("v_add_f32", u, w) + [trans("v_rcp_f32", r0, u), trans("v_rcp_f32", r1, u), nop(1), swap32(r0, r1)]


def scale2(R, qb):
    if OPT["pk"]:
        return [I(f"v_pk_mul_f32 {R}, {R}, {rinv2[qb]} op_sel_hi:[1,0]", "valu", rd=[R, rinv[qb]], wr=[R], flags=["pk"])]
    return [valu("v_mul_f32", R[0], R[0], rinv[qb]), valu("v_mul_f32", R[1], R[1], rinv[qb])]


def epi_a(tt):
    O = OA[16 * tt: 16 * tt + 16]
    m = []
    for i in range(8):
        m += scale2(O[2 * i: 2 * i + 2], (i // 2) % 2)
    c = [valu("v_cvt_pk_bf16_f32", O[i], O[2 * i], O[2 * i + 1]) for i in range(8)]
    w = []
    for n in range(4):
        dt, q = 2 * tt + n // 2, n % 2
        ad, pre = oaddr(dt % 4)
        if q == 0:
            w += pre
        wr = owrite(O[2 * n: 2 * n + 2], ad, q, dt)
        wr.after = c[2 * n + 1]
        w.append(wr)
    return m, c, w


def epi_b(tt, half, T):
    O = OB[16 * tt: 16 * tt + 16]
    D = STG[tt * 8: tt * 8 + 8]
    r = [valu("v_accvgpr_read_b32", T[i], O[8 * half + i]) for i in range(8)]
    m = []
    for i in range(4):
        m += scale2(T[2 * i: 2 * i + 2], 2 + i // 2)
    c = [valu("v_cvt_pk_bf16_f32", D[4 * half + i], T[2 * i], T[2 * i + 1]) for i in range(4)]
    return r, m, c


def ob_writes(es):
    w = []
    for e in es:
        ad, pre = oaddr(e)
        w += pre
        for dt in (e, e + 4, e + 8):
            for q in range(2):
                n = (dt * 2 + q) * 2
                w.append(owrite(STG[n: n + 2], ad, q, dt))
    return w


def setw(items, earliest=None, latest=None):
    for i in items:
        if latest is not None:
            i.latest = latest if i.latest is None else min(i.latest, latest)
    if earliest is not None:
        items[0].earliest = earliest
    return items


def rare(x, par):
    S, P = Sbuf(x, par), Pbuf(x, par)
    u, w = E[0], E[1]
    f = [u, w]
    n = [negmc[2 * x], negmc[2 * x + 1]]
    o = [label(f"L_rare_{'AB'[x]}{par}"), nop(15)]
    o += max_tree(S, u, w)
    o += [valu("v_fma_f32", u, u, sC, n[0]), valu("v_fma_f32", w, w, sC, n[1])]
    o += reduce2("v_max_f32", u, w)
    o += [valu("v_max_f32", u, "0", u), valu("v_mov_b32", w, u), nop(1), swap32(u, w),
          valu("v_sub_f32", n[0], n[0], u), valu("v_sub_f32", n[1], n[1], w),
          trans("v_exp_f32", u, f"-{u}", extra_rd=[u]), trans("v_exp_f32", w, f"-{w}", extra_rd=[w]), nop(0),
          valu("v_mul_f32", lsum[2 * x], lsum[2 * x], u), valu("v_mul_f32", lsum[2 * x + 1], lsum[2 * x + 1], w)]
    O = OX[x]
    for i in range(96):
        ff = f[(i // 4) % 2]
        if O.f == "a":
            tt = P[i % 4]
            o += [valu("v_accvgpr_read_b32", tt, O[i]), valu("v_mul_f32", tt, tt, ff),
                  valu("v_accvgpr_write_b32", O[i], tt)]
        else:
            o.append(valu("v_mul_f32", O[i], O[i], ff))
    o += [valu("v_fma_f32", S[i], S[i], sC, n[i // 8]) for i in range(16)]
    o += [trans("v_exp_f32", S[i], S[i]) for i in range(16)]
    o += [valu("v_cvt_pk_bf16_f32", P[i], S[2 * i], S[2 * i + 1]) for i in range(8)]
    o += [nop(1)] + sum_mfma(x, par)
    o += [nop(15), I(f"s_setpc_b64 {sRet}", "branch", rd=[sRet])]
    return o


def qk_mfma(tile, f, qb, fr):
    kh, ks = f // 6, f % 6
    n = (qb % 2) * 8 + kh * 4
    d = Sbuf(qb // 2, tile)[n: n + 4]
    return mfma(d, fr, Qreg(qb, ks), d if ks else 0)


def pv_mfma(t, dt, qb, fr, zero):
    o = Otile(qb, dt)
    p = Pbuf(qb // 2, t)[4 * (qb % 2): 4 * (qb % 2) + 4]
    return mfma(o, fr, p, 0 if zero else o)


def frag_read(g, t, f):
    if f < 12:
        return kread(g, f, t + 1)
    if f < 24:
        return vread(g, f, t)
    return kread(g + 1, f - 24, t + 2)


def ftag(g, f):
    return ("F", g, f) if f < 24 else ("F", g + 1, f - 24)


def stamp(idx, real=False):
    if not OPT["stamp"]:
        return []
    if OPT["stamp"] == 2 and idx not in (0, 1, 15, 16, 17, 18, 19, 56, 60, 61):
        return []
    if OPT["stamp"] == 3 and idx in range(2, 12):
        return []
    op = "s_memrealtime" if real else "s_memtime"
    return [I(f"{op} {sStamp}", "salu", wr=[sStamp]), I("s_waitcnt lgkmcnt(0)", "salu"),
            valu("v_mov_b32", E[0], sStamp[0]),
            I(f"buffer_store_dword {E[0]}, off, {srdD}, {sH} offset:{idx * 4}", "vmem", rd=[E[0], srdD])]


def add_iter(u, b, t, site):
    g = b * 16 + t
    base = len(u.heads)
    tn = (t + 1) % 16
    lastuse = {}
    NR = OPT.get("nr", 3)
    seq = [(f, qb) for f in range(NR) for qb in (2, 3)] + [(f, qb) for f in range(NR) for qb in (0, 1)] + \
          [(f, qb) for f in range(NR, 12) for qb in range(4)]
    for f, qb in seq:
        m = qk_mfma(tn, f, qb, FR[f % RING])
        m.needl = [("F", g, f)] + ([("QB", b + 1, (qb - 2) * 6 + f % 6)] if tn == 0 and qb >= 2 else [])
        lastuse[f] = u.add_gap(m)
    for m in sum_mfma(1, t):
        u.add_gap(m)
    seq = [(f, qb) for f in range(NR) for qb in (0, 1)] + [(f, qb) for f in range(NR) for qb in (2, 3)] + \
          [(f, qb) for f in range(NR, 12) for qb in range(4)]
    for dt, qb in seq:
        m = pv_mfma(t, dt, qb, FR[(12 + dt) % RING], t == 0)
        m.needl = [("F", g, 12 + dt)]
        lastuse[12 + dt] = u.add_gap(m)
    for m in sum_mfma(0, tn):
        u.add_gap(m)
    wp = OPT["wper"]
    for f in range(24):
        k = lastuse[f]
        rd = frag_read(g, t, f + RING)
        u.pin[k] += rd
        if (f + 1) % wp == 0:
            kw = k + 2 if f in (11, 23) else (k if len(rd) == 1 else k - 1)
            u.pin[kw].append(waitl(*[ftag(g, f + 1 + i) for i in range(wp)]))
    for x, k in ((0, base), (1, base + P2)):
        c, br, lu = check(x, t, site)
        u.tail[k + OPT.get("cmpgap", 2)] += c
        kb = k + 2 * NR - 1
        if OPT.get("brhead"):
            u.pin[kb] = br + u.pin[kb]
        else:
            u.tail[kb] += br
        u.streams.append(Stream(lu, kb + 1, kb + 3, prio=0.5))
    tk, tv = (t + KD) % 16, (t + VD) % 16
    u.pin[base + OPT["kgaps"][0] - 2].append(setm0(m0K[KSLOT[tk]]))
    for c, k in enumerate(OPT["kgaps"]):
        u.pin[base + k].append(dma(srdK, sT[tk], c, ("K", g + KD)))
    u.pin[base + OPT["vgaps"][0] - 3].append(setm0(m0V[VSLOT[tv]]))
    for c, k in enumerate(OPT["vgaps"]):
        u.pin[base + k].append(dma(srdV, sT[tv], c, ("V", g + VD)))
    for x, key in ((0, "oa_rd"), (1, "ob_rd")):
        for idx, (tt, k) in enumerate(OPT[key]):
            if tt == t:
                u.pin[base + k].append(oread(obuf(x, idx), idx, ("OR", b, x, idx)))
    for x, key in ((0, "oa_st"), (1, "ob_st")):
        for idx, (tt, k) in enumerate(OPT[key]):
            if tt == t:
                u.pin[base + k].append(ostore(obuf(x, idx), x, idx, [("OR", b, x, idx)]))
    if OPT.get("ob_early"):
        late = [idx for idx, (tt, k) in enumerate(OPT["ob_st"]) if tt > 11]
        for idx, (tt, k) in zip(late, OPT["ob_early"]):
            if tt == t:
                u.pin[base + k].append(ostore(obuf(1, idx), 1, idx, [("OR", b, 1, idx)], srdO=srdO2))
    if t in (2, 3):
        st = Stream(ob_writes((0, 1)), base + 23, base + 97) if t == 2 else Stream(ob_writes((2, 3)), base + 0, base + 70)
        st.pace = OPT.get("pace", 1)
        u.streams.append(st)
    for half in range(2):
        n = 2 * t + half
        gaps = OPT["sgaps"][half]
        for x, key in ((0, "qa_slots"), (1, "qb_slots")):
            if n in OPT[key]:
                jj = OPT[key].index(n)
                u.pin[base + gaps[0] - 3].append(setm0(sM[jj]))
                need = [("OR", b, 1, 11)] if x == 0 else [("QA", b + 1, 11)]
                for c, k in enumerate(gaps):
                    u.pin[base + k].append(qdma(x, jj, c, ("QD", b + 1, x), need))
    if OPT["codewarm"] and t == OPT.get("rewarm", 6):
        u.pin[base + 44].append(I(f"global_load_dwordx4 {STG[44:48]}, {vLin}, {sWarm}", "vmem", rd=[vLin, sWarm], wr=[STG[44:48]]))
    if t == OPT["qar_iter"]:
        u.pin[base + 0].append(waitv(("QD", b + 1, 0)))
        for n in range(12):
            u.pin[base + 1 + 4 * n].append(qread(STG[n * 4: n * 4 + 4], n, vS, ("QA", b + 1, n), [("QD", b + 1, 0)]))
    if t == 14:
        u.pin[base + P2].append(waitv(("QD", b + 1, 1)))
        for i, n in enumerate([0, 6, 1, 7, 2, 8, 3, 9, 4, 10, 5, 11]):
            u.pin[base + P2 + 1 + 4 * (i // 2) + (8 if i >= 2 else 0)].append(
                qread(Qreg(2 + n // 6, n % 6), n, vS, ("QB", b + 1, n), [("QD", b + 1, 1)]))
    u.pin[base + OPT["bar_gap"] - OPT.get("wv_early", 0)] += [waitv(("K", g + 3), ("V", g + 1))]
    u.pin[base + OPT["bar_gap"]] += [barrier()]
    XPOS[0] = 0
    sb = setw(softmax(1, t), latest=base + 46)
    sa = softmax(0, tn, late=base + 49)
    sa[0].earliest = base + (P2 + 2 * NR if tn == 0 else 30)
    u.streams.append(Stream(sb + sa, base + 0, base + 96, prio=0.05, look=OPT["look"]))
    if t == 1:
        sl = [salu("s_mov_b32", sQOcur, sQO),
              salu("s_add_u32", sBG, sBG, "32", scc_w=True),
              salu("s_mul_hi_u32", sKO, sBG, sMagic),
              salu("s_mul_i32", sKO, sKO, "196608"),
              salu("s_mul_i32", sQO, sBG, "98304"),
              I(f"s_cmp_lt_u32 {sTrip}, 2", "salu", rd=[sTrip], wr=["scc"]),
              salu("s_cselect_b32", sNrec, "196608", "0", scc_r=True),
              salu("s_cselect_b32", srdQ[2], "98304", "0", scc_r=True),
              salu("s_add_u32", srdQ[0], ptrQ[0], sQO, scc_w=True),
              salu("s_addc_u32", srdQ[1], ptrQ[1], "0", scc_w=True, scc_r=True)]
        u.streams.append(Stream(sl, base + 24, base + 80))
    if t == 15 - KD:
        sl = [salu("s_add_u32", srdK[0], ptrK[0], sKO, scc_w=True),
              salu("s_addc_u32", srdK[1], ptrK[1], "0", scc_w=True, scc_r=True),
              salu("s_mov_b32", srdK[2], sNrec)]
        u.streams.append(Stream(sl, base + OPT["kgaps"][-1] + 1, base + 90))
    if t == 15 - VD:
        sl = [salu("s_add_u32", srdV[0], ptrV[0], sKO, scc_w=True),
              salu("s_addc_u32", srdV[1], ptrV[1], "0", scc_w=True, scc_r=True),
              salu("s_mov_b32", srdV[2], sNrec)]
        u.streams.append(Stream(sl, base + OPT["vgaps"][-1] + 1, base + 90))
    return base


def qcopy(base):
    out = []
    for ks in range(6):
        for q in range(2):
            for i in range(4):
                out.append(valu("v_accvgpr_write_b32", Qreg(q, ks)[i], STG[(q * 6 + ks) * 4 + i],
                                earliest=base + 4 * (6 + ks) + q))
    return out


def set_osrd():
    return [salu("s_add_u32", srdO[0], ptrO[0], sQOcur, scc_w=True),
            salu("s_addc_u32", srdO[1], ptrO[1], "0", scc_w=True, scc_r=True),
            salu("s_mov_b32", srdO[2], "98304")]


def unit_mid(b, t):
    u = Unit(f"T{t}")
    if t == 1:
        u.pre.append(label("L_loop"))
    u.pre += stamp(t)
    base = add_iter(u, b, t, f"T{t}")
    if t == 14:
        u.streams.append(Stream(qcopy(base), base + 24, base + 99))
    if t == 11:
        u.tail[base + 96].append(I(f"s_cmp_eq_u32 {sTrip}, 2", "salu", rd=[sTrip], wr=["scc"]))
        u.post += [I("s_cbranch_scc1 L_fin", "branch", rd=["scc"])]
    return u


def unit_x(b):
    u = Unit("X")
    u.pre.append(label("L_x"))
    u.pre += stamp(15)
    b15 = add_iter(u, b, 15, "T15")
    b0 = add_iter(u, b + 1, 0, "T0")
    u.streams.append(Stream(rinv_stream(0), b15 + 9, b15 + 40))
    u.streams.append(Stream(rinv_stream(1), b15 + P2 + 9, b15 + P2 + 15, prio=0.5))
    ep, wr = [], []
    for tt in range(6):
        O = OA[16 * tt: 16 * tt + 16]
        dl = b0 + P2 + (8 * tt if tt != 1 else 4) - 1
        m, c, w = epi_a(tt)
        r0, m0_, c0 = epi_b(tt, 0, O[8:16])
        r1, m1_, c1 = epi_b(tt, 1, O[8:16])
        setw(m, earliest=b15 + P2 + 8 * tt + 9)
        setw(r0, earliest=b15 + P2 + max(16, 8 * tt + 9))
        ep += setw(m + c + r0 + m0_ + c0 + r1 + m1_ + c1, latest=dl)
        wr += setw(w, latest=dl)
    u.streams.append(Stream(ep, b15 + P2 + 9, b0 + P2 + 39))
    u.streams.append(Stream(wr, b15 + P2 + 9, b0 + P2 + 39))
    so = set_osrd()
    if OPT.get("ob_early"):
        so += [salu("s_mov_b32", srdO2[0], srdO[0]), salu("s_mov_b32", srdO2[1], srdO[1]),
               I(f"s_cmp_eq_u32 {sTrip}, 1", "salu", rd=[sTrip], wr=["scc"]),
               salu("s_cselect_b32", srdO2[2], "98304", "0", scc_r=True)]
    u.streams.append(Stream(so, b15 + 46, b15 + 56))
    sl = [salu("s_add_u32", sTrip, sTrip, "1", scc_w=True)]
    if OPT["stamp"]:
        sl.append(salu("s_add_u32", sH, sH, "64", scc_w=True))
    u.streams.append(Stream(sl, b0 + 4, b0 + 80))
    u.post.append(I("s_branch L_loop", "branch"))
    return u


def unit_pro():
    u = Unit("PRO")
    P = u.pre
    tid, lane, i16, G, t0, t1, t2 = v(0), X[0], X[1], X[2], X[3], E[0], E[1]
    P += [I("s_cmp_ge_u32 s2, 256", "salu", rd=["s2"], wr=["scc"]),
          I("s_cbranch_scc1 L_end", "branch", rd=["scc"]),
          I("s_load_dwordx4 s[4:7], s[0:1], 0", "salu", wr=[s(4, 4)]),
          I("s_load_dwordx4 s[8:11], s[0:1], 16", "salu", wr=[s(8, 4)])]
    warm = []
    if OPT["codewarm"]:
        P += [I(f"s_getpc_b64 {sPC}", "salu", wr=[sPC]),
              label("L_pc"),
              I(f"s_sub_u32 {sPC[0]}, {sPC[0]}, L_pc-{KNAME}", "salu", rd=[sPC], wr=[sPC, "scc"]),
              I(f"s_subb_u32 {sPC[1]}, {sPC[1]}, 0", "salu", rd=[sPC, "scc"], wr=[sPC, "scc"]),
              salu("s_lshr_b32", sH, "s2", "3", scc_w=True),
              salu("s_lshl_b32", sH, sH, "11", scc_w=True),
              valu("v_lshlrev_b32", E[2], "3", tid),
              valu("v_add_u32", E[2], sH, E[2]),
              I(f"v_min_u32 {E[2]}, L_code_end-{KNAME}-8, {E[2]}", "valu", rd=[E[2]], wr=[E[2]])]
        warm = [I(f"global_load_dwordx2 {JUNK[0:2]}, {E[2]}, {sPC}", "vmem", rd=[E[2], sPC], wr=[JUNK[0:2]])]
        if OPT["codewarm"] == 1:
            P += warm
            warm = []
    if OPT["stamp"]:
        P += [I(f"s_load_dwordx2 {srdD[0:2]}, s[0:1], 40", "salu"), I(f"s_memrealtime {s(94, 2)}", "salu")]
    if OPT.get("dbg"):
        P += [I(f"s_load_dwordx2 {srdD[0:2]}, s[0:1], 32", "salu"), I(f"s_memrealtime {s(94, 2)}", "salu"),
              I(f"s_memtime {s(100, 2)}", "salu")]
    P += [valu("v_lshrrev_b32", t0, "6", tid), valu("v_and_b32", lane, "63", tid),
          I(f"v_readfirstlane_b32 {sW}, {t0}", "valu", rd=[t0], wr=[sW]),
          valu("v_lshlrev_b32", t1, "4", lane)]
    P += [salu("s_and_b32", sBG, "s2", "7", scc_w=True),
          salu("s_mul_i32", sBG, sBG, "96"),
          salu("s_lshr_b32", sH, "s2", "3", scc_w=True),
          salu("s_add_u32", sBG, sBG, sH, scc_w=True),
          salu("s_mov_b32", sMagic, "0x55555556"),
          salu("s_mul_hi_u32", sKO, sBG, sMagic),
          salu("s_mul_i32", sKO, sKO, "196608"),
          salu("s_mul_i32", sQO, sBG, "98304")]
    P += [salu("s_mov_b32", sQB, str(VBASE + 2 * TILE)),
          I(f"s_cmp_eq_u32 {sW}, 0", "salu", rd=[sW], wr=["scc"]),
          salu("s_cselect_b32", sQB, str(KBASE + 3 * TILE), sQB, scc_r=True),
          I(f"s_cmp_eq_u32 {sW}, 2", "salu", rd=[sW], wr=["scc"]),
          salu("s_cselect_b32", sQB, str(VBASE + 3 * TILE), sQB, scc_r=True),
          I(f"s_cmp_eq_u32 {sW}, 3", "salu", rd=[sW], wr=["scc"]),
          salu("s_cselect_b32", sQB, str(SPARE), sQB, scc_r=True),
          salu("s_mul_i32", sW, sW, "3072")]
    late = []
    for c in range(3):
        P += [valu("v_add_u32", t0, str(c * 1024), t1),
              valu("v_lshrrev_b32", t2, "7", t0),
              valu("v_mul_u32_u24", t2, "171", t2),
              valu("v_lshrrev_b32", vDO[c], "9", t2),
              valu("v_and_b32", vD[c], "6", vDO[c]),
              valu("v_lshlrev_b32", vD[c], "4", vD[c]),
              valu("v_xor_b32", vD[c], vD[c], t1),
              valu("v_add_u32", vD[c], sW, vD[c])]
        late += [valu("v_lshlrev_b32", vDO[c], "4", vDO[c]),
                 valu("v_xor_b32", vDO[c], vDO[c], t1),
                 valu("v_add_u32", vDO[c], sW, vDO[c])]
    P += [salu("s_lshl_b32", sStage, sW, "2", scc_w=True),
          salu("s_add_u32", sStage, sStage, str(STAGE), scc_w=True),
          salu("s_mul_i32", sH, sW, "7")]
    for jj in range(4):
        P += [salu("s_add_u32", sM[jj], sStage, str(jj * 3072), scc_w=True),
              salu("s_add_u32", sG[0][jj], sH, str(jj * 3072), scc_w=True),
              salu("s_add_u32", sG[1][jj], sH, str(jj * 3072 + TILE), scc_w=True)]
    P += [I("s_waitcnt lgkmcnt(0)", "salu")]
    if OPT.get("dbg") == 2:
        P += [I(f"s_memrealtime {s(78, 2)}", "salu"), I("s_waitcnt lgkmcnt(0)", "salu")]

    def mksrd(srd, ptr, off, n):
        return [salu("s_add_u32", srd[0], ptr[0], off, scc_w=True),
                salu("s_addc_u32", srd[1], ptr[1], "0", scc_w=True, scc_r=True),
                salu("s_mov_b32", srd[2], str(n)), salu("s_mov_b32", srd[3], "0x00020000")]

    def ktile(t):
        return [setm0(m0K[KSLOT[t]]), nop(0)] + [dma(srdK, sT[t], c, ("K", t)) for c in range(3)]

    def vtile(t):
        return [setm0(m0V[VSLOT[t]]), nop(0)] + [dma(srdV, sT[t], c, ("V", t)) for c in range(3)]

    P += [setm0(sW)] + mksrd(srdK, ptrK, sKO, 196608) + [dma(srdK, "0", c, ("K", 0)) for c in range(3)]
    if OPT.get("dbg") == 3:
        P += [waitv(("K", 0)), I(f"s_memrealtime {s(78, 2)}", "salu"), I("s_waitcnt lgkmcnt(0)", "salu")]
    P += mksrd(srdQ, ptrQ, sQO, 98304)
    stag = list(OPT.get("stag", []))

    def hold(i):
        if i >= len(stag):
            return []
        return [I(f"s_cmp_lt_u32 s2, {stag[i]}", "salu", rd=["s2"], wr=["scc"]),
                I(f"s_cbranch_scc1 L_go{i}", "branch", rd=["scc"]),
                I("s_waitcnt vmcnt(0)", "salu"), label(f"L_go{i}")]
    for jj in range(4):
        P += hold(jj) + [setm0(sM[jj]), nop(0)] + [qdma(0, jj, c, ("QD", 0, 0)) for c in range(3)]
    for jj in range(4):
        P += [salu("s_add_u32", "m0", sQB, str(jj * 3072), scc_w=True), nop(0)] + [qdma(1, jj, c, ("QD", 0, 1)) for c in range(3)]
    P += mksrd(srdV, ptrV, sKO, 196608)
    for i in range(4):
        P.append(salu("s_add_u32", m0K[i], sW, str(KBASE + i * TILE), scc_w=True))
        P.append(salu("s_add_u32", m0V[i], sW, str(VBASE + i * TILE), scc_w=True))
    for t in range(1, 16):
        P.append(salu("s_mov_b32", sT[t], str(t * TILE)))
    P += [salu("s_mov_b32", srdO[0], ptrO[0]), salu("s_mov_b32", srdO[1], ptrO[1]),
          salu("s_mov_b32", srdO[2], "0"), salu("s_mov_b32", srdO[3], "0x00020000"),
          salu("s_mov_b32", srdO2[0], ptrO[0]), salu("s_mov_b32", srdO2[1], ptrO[1]),
          salu("s_mov_b32", srdO2[2], "0"), salu("s_mov_b32", srdO2[3], "0x00020000"),
          salu("s_mov_b32", sTrip, "0"),
          salu("s_mov_b32", sC, hex(f2u(SCALE_C))), salu("s_mov_b32", sNegC, hex(f2u(-SCALE_C))),
          salu("s_mov_b32", sThr, hex(f2u(OPT["thr"])))]
    if OPT["codewarm"] and OPT.get("rewarm", 6):
        P += [salu("s_lshr_b32", sTmp, "s2", "3", scc_w=True), salu("s_and_b32", sTmp, sTmp, "3", scc_w=True),
              salu("s_lshl_b32", sTmp, sTmp, "12", scc_w=True),
              salu("s_mul_hi_u32", sH, sW, sMagic),
              salu("s_add_u32", sTmp, sTmp, sH, scc_w=True),
              I(f"s_add_u32 {sTmp}, {sTmp}, L_x-{KNAME}", "salu", rd=[sTmp], wr=[sTmp, "scc"]),
              salu("s_add_u32", sWarm[0], sPC[0], sTmp, scc_w=True),
              salu("s_addc_u32", sWarm[1], sPC[1], "0", scc_w=True, scc_r=True),
              salu("s_sub_u32", sWarm[0], sWarm[0], sStage, scc_w=True),
              salu("s_subb_u32", sWarm[1], sWarm[1], "0", scc_w=True, scc_r=True)]
    P += late + [valu("v_add_u32", vLin, sStage, t1)]
    P += [valu("v_and_b32", i16, "15", lane), valu("v_lshrrev_b32", G, "4", lane),
          valu("v_mul_u32_u24", t0, "384", i16)]
    P += [valu("v_and_b32", t1, "6", i16), valu("v_xor_b32", t1, t1, G), valu("v_lshl_add_u32", vK[0], t1, "4", t0),
          valu("v_xor_b32", vK[1], "64", vK[0])]
    for e in range(2):
        P += [valu("v_add_u32", vS[e], sStage, vK[e]), valu("v_add_u32", STG[e], sQB, vK[e])]
    P += [valu("v_lshrrev_b32", t1, "1", G), valu("v_and_b32", t2, "7", i16), valu("v_xor_b32", t1, t1, t2),
          valu("v_lshl_add_u32", vOW, t1, "4", t0), valu("v_and_b32", t1, "1", G),
          valu("v_lshl_add_u32", vOW, t1, "3", vOW), valu("v_add_u32", vOW, sStage, vOW)]
    P += [valu("v_lshrrev_b32", t1, "2", lane), valu("v_mul_u32_u24", t0, "384", t1),
          valu("v_and_b32", t1, "6", t1), valu("v_lshl_add_u32", t0, t1, "4", t0),
          valu("v_and_b32", t1, "3", lane), valu("v_lshl_add_u32", t0, t1, "3", t0),
          valu("v_add_u32", vV[0], str(VBASE), t0)]
    for e in range(1, 4):
        P.append(valu("v_xor_b32", vV[e], str(e * 32), vV[0]))
    P += [salu("s_mov_b32", sTmp, "0x3f803f80"), valu("v_mov_b32", t0, sTmp)]
    for j in range(2):
        P += [I(f"v_cmp_eq_u32 vcc, {j}, {i16}", "valu", rd=[i16], wr=["vcc"]),
              I(f"v_cmp_eq_u32 {sRet}, 2, {i16}", "valu", rd=[i16], wr=[sRet]), nop(0),
              I(f"s_or_b64 vcc, vcc, {sRet}", "salu", rd=["vcc", sRet], wr=["vcc", "scc"]), nop(1),
              I(f"v_cndmask_b32 {t1}, 0, {t0}, vcc", "valu", rd=[t0, "vcc"], wr=[t1])]
        P += [valu("v_accvgpr_write_b32", ONES[j][i], t1) for i in range(4)]
    if OPT["stamp"]:
        P += [salu("s_mov_b32", srdD[2], "0x1000000"), salu("s_mov_b32", srdD[3], "0x00020000"),
              salu("s_mul_hi_u32", sTmp, sW, sMagic), salu("s_lshr_b32", sTmp, sTmp, "2", scc_w=True),
              salu("s_lshl_b32", sH, "s2", "10", scc_w=True), salu("s_add_u32", sH, sH, sTmp, scc_w=True),
              valu("v_mov_b32", E[0], s(94)),
              I(f"buffer_store_dword {E[0]}, off, {srdD}, {sH} offset:{57 * 4}", "vmem", rd=[E[0], srdD])]
    P += stamp(60) + stamp(56, True)
    if OPT.get("hops", 1):
        P += [I("s_branch L_main", "branch"), I(".p2align 12", "label"), label("L_main")]
    P += [waitv(("QD", 0, 0)), barrier()]
    for f in range(RING):
        P += kread(-2, f, 0)
    qorder = [0, 6, 1, 7, 2, 8, 3, 9, 4, 10, 5, 11]
    for n in qorder:
        P.append(qread(Qreg(n // 6, n % 6), n, vS, ("QA", 0, n)))
    P += [waitl(("QA", 0, 7))]
    P += stamp(61)
    if OPT.get("dbg") == 1:
        P += [I(f"s_memrealtime {s(78, 2)}", "salu"), I("s_waitcnt lgkmcnt(0)", "salu")]
    pend = ktile(1) + vtile(0) + ktile(2) + warm + vtile(1)
    for n in range(24):
        x, f = n // 12, n % 12
        for q in range(2):
            m = qk_mfma(0, f, 2 * x + q, FR[n % RING])
            m.needl = [("F", -2, n), ("QA" if x == 0 else "QB", 0, q * 6 + f % 6)]
            k = u.add_gap(m)
            if x == 0 and pend:
                it = pend.pop(0)
                if it.kind != "nop":
                    u.pin[k].append(it)
        if n + RING < 24:
            u.pin[k] += kread(-2, n + RING, 0)
        else:
            u.pin[k] += kread(0, n + RING - 24, 1)
        if f == 1:
            u.pin[k].append(waitl(("QA" if x == 0 else "QB", 0, 11)))
        if RING - 1 <= n < 23 and n != 11:
            u.pin[k].append(waitl(("F", -2, n + 1)))
        if n == 11:
            assert not pend
            k = u.add_gap(None)
            XPOS[0] = 0
            u.pin[k] += softmax(0, 0)
            if OPT.get("hops", 1):
                u.pin[k] += [I("s_mov_b64 exec, 0", "salu", wr=["exec"])]
                for w in range(3):
                    u.pin[k] += [I(f"s_cmp_eq_u32 {sW}, {w * 3072}", "salu", rd=[sW], wr=["scc"]),
                                 I(f"s_cbranch_scc1 L_hop_{w}", "branch", rd=["scc"])]
                u.pin[k] += [I(f"s_branch L_hop_3", "branch"), label("L_hop_end"),
                             I("s_mov_b64 exec, -1", "salu", wr=["exec"]), nop(3)]
            u.pin[k] += [waitv(("QD", 0, 1))]
            for nn in qorder:
                u.pin[k].append(qread(Qreg(2 + nn // 6, nn % 6), nn, [STG[0], STG[1]], ("QB", 0, nn)))
            u.pin[k] += sum_mfma(0, 0) + [waitl(("QB", 0, 7))]
        if n == 14:
            u.pin[k] += [waitv(("K", 1), ("V", 0), ("K", 2)), barrier()]
        if n == 15:
            u.pin[k] += ktile(3)
        if n == 16:
            u.pin[k] += vtile(2)
    u.pin[k] += [barrier(), waitl(*[("F", 0, i) for i in range(OPT["wper"])])]
    u.pin[k] += stamp(0)
    if OPT.get("dbg") == 4:
        u.pin[k] += [I(f"s_memrealtime {s(78, 2)}", "salu"), I("s_waitcnt lgkmcnt(0)", "salu")]
    u.win0 = len(u.heads)
    add_iter(u, 0, 0, "T0p")
    return u


def unit_fin(b):
    u = Unit("FIN")
    u.pre.append(label("L_fin"))
    u.pre += stamp(15)
    g0 = b * 16 + 12
    NR = OPT.get("nr", 3)
    phases = [("QK", (0, 1), 13), ("QK", (1,), 14), ("PV", (1,), 12), ("QK", (1,), 15), ("PV", (1,), 13),
              ("PV", (1,), 14), ("PV", (1,), 15),
              ("PV", (0,), 12), ("QK", (0,), 14), ("PV", (0,), 13), ("QK", (0,), 15), ("PV", (0,), 14), ("PV", (0,), 15)]
    ALT_P[0] = True
    sums = {(0, 42): (1, 12), (2, 18): (1, 13), (4, 18): (1, 14), (5, 18): (1, 15), (7, 18): (0, 13), (9, 18): (0, 14),
            (11, 18): (0, 15)}
    start, end, sumgap, lastuse, done = {}, {}, {}, {}, {}
    nfr = 12 * len(phases)
    for pi, (kind, hs, tile) in enumerate(phases):
        if len(hs) == 2:
            seq = [(f, qb) for f in range(NR) for qb in (2, 3)] + [(f, qb) for f in range(NR) for qb in (0, 1)] + \
                  [(f, qb) for f in range(NR, 12) for qb in range(4)]
        else:
            seq = [(f, 2 * hs[0] + q) for f in range(12) for q in range(2)]
        start[pi] = len(u.heads)
        for i, (f, qb) in enumerate(seq):
            n = 12 * pi + f
            m = qk_mfma(tile, f, qb, FR[n % RING]) if kind == "QK" else pv_mfma(tile, f, qb, FR[n % RING], False)
            m.needl = [("F", g0, n)]
            lastuse[n] = done[(pi, f, qb)] = u.add_gap(m)
            if (pi, i + 1) in sums:
                sumgap[sums[(pi, i + 1)]] = len(u.heads)
                for m in sum_mfma(*sums[(pi, i + 1)]):
                    u.add_gap(m)
        end[pi] = len(u.heads) - 1
    last = u.add_gap(None)
    wp = OPT["wper"]
    for n in range(nfr):
        k = lastuse[n]
        nn = n + RING
        rd = []
        if nn < nfr:
            kind, hs, tile = phases[nn // 12]
            rd = kread(g0, nn, tile) if kind == "QK" else vread(g0, nn, tile)
            u.pin[k] += rd
        if (n + 1) % wp == 0 and n + 1 < nfr:
            u.pin[k if len(rd) < 2 else k - 1].append(waitl(*[("F", g0, n + 1 + i) for i in range(wp)]))
    u.pin[start[0] + 1].append(setm0(m0V[VSLOT[15]]))
    for c, k in enumerate((4, 8, 12)):
        u.pin[start[0] + k].append(dma(srdV, sT[15], c, ("V", g0 + 3)))
    dg = [start[0] + k for k in (20, 32, 44)] + [start[1] + k for k in (4, 16)] + [start[2] + k for k in (0, 6, 12)]
    for idx, (tt, k) in enumerate(OPT["ob_st"]):
        if tt > 11 and not OPT.get("ob_early"):
            u.pin[dg.pop(0)].append(ostore(obuf(1, idx), 1, idx, [("OR", b, 1, idx)]))
    u.pin[start[2] + 2] += [waitv(("K", g0 + 3), ("V", g0 + 1), ("V", g0 + 2)), barrier()]
    u.pin[sumgap[(1, 14)]] += [waitv(("V", g0 + 3)), barrier()]
    def put_check(x, tile, kc, kb):
        c, br, lu = check(x, tile, f"F{tile}")
        u.tail[kc] += c
        u.tail[kb] += br
        u.streams.append(Stream(lu, kb + 1, kb + 3, prio=0.5))
    put_check(0, 12, start[0] + 2, start[0] + 2 * NR - 1)
    for (x, tile), k in sumgap.items():
        put_check(x, tile, k + 5, k + 7)
    XPOS[0] = 0
    look = OPT["look"]
    for tile, k0 in ((12, start[0]), (13, start[1] + 3), (14, start[3]), (15, start[5])):
        u.streams.append(Stream(softmax(1, tile), k0, sumgap[(1, tile)] - 2, prio=0.05, look=look))
    u.streams.append(Stream(softmax(0, 13), start[7], sumgap[(0, 13)] - 2, prio=0.05, look=look))
    for tile, pq in ((14, 8), (15, 10)):
        u.streams.append(Stream(exp_stream(0, SA, Pbuf(0, tile), KH0_FIRST[:8]), start[pq] + 15, end[pq] + 2,
                                prio=0.05, look=look))
        u.streams.append(Stream(exp_stream(0, SA, Pbuf(0, tile), KH0_FIRST[8:]), end[pq] + 3,
                                sumgap[(0, tile)] - 2, prio=0.05, look=look))
    AD = [vOW, STG[0], STG[1], STG[2]]
    u.streams.append(Stream(set_osrd() + [valu("v_xor_b32", AD[e], str(32 * e), vOW) for e in range(1, 4)],
                            sumgap[(1, 14)], end[4]))
    kA = sumgap[(1, 15)] + 11
    u.streams.append(Stream(rinv_stream(1), kA, kA + 6, prio=0.5))
    Z = [Qc[48 + 4 * i: 52 + 4 * i] for i in range(12)]
    TT = [SB[0], SB[1], STG[16:32]]

    def epi_group(qb, dts, T):
        r, m, c, w = [], [], [], []
        for i, dt in enumerate(dts):
            O = Otile(qb, dt)
            R = O if O.f == "v" else T[4 * i: 4 * i + 4]
            if O.f == "a":
                r += [valu("v_accvgpr_read_b32", R[j], O[j]) for j in range(4)]
            m += scale2(R[0:2], qb) + scale2(R[2:4], qb)
            cc = [valu("v_cvt_pk_bf16_f32", R[0], R[0], R[1]), valu("v_cvt_pk_bf16_f32", R[1], R[2], R[3])]
            c += cc
            wr = owrite(R[0:2], AD[dt % 4], qb % 2, dt)
            wr.after = cc[1]
            w.append(wr)
        return r, m, c, w

    ep, wr, sts = [], [], []
    lastw = {}
    for q in range(2):
        for grp in range(3):
            r, m, c, w = epi_group(2 + q, range(4 * grp, 4 * grp + 4), TT[grp])
            setw(r, earliest=done[(6, 4 * grp + 3, 2 + q)] + 4)
            setw(m, earliest=kA + 7)
            if q:
                r[0].after = lastw[grp]
            lastw[grp] = w[-1]
            ep += r + m + c
            wr += w
        for n in range(6 * q, 6 * q + 6):
            rd = oread(Z[n], n, ("OR", b + 1, 1, n))
            rd.flags.add("head")
            wr.append(rd)
        w = waitl(("OR", b + 1, 1, 6 * q + 5))
        w.after = wr[-1]
        w.delay = 6
        sts.append(w)
        for n in range(6 * q, 6 * q + 6):
            st = ostore(Z[n], 1, n, [("OR", b + 1, 1, n)], True)
            st.flags.add("head")
            sts.append(st)
    e1 = start[8] + OPT.get("e1", 40)
    u.streams.append(Stream(ep, start[6] + 10, e1, prio=0.3))
    u.streams.append(Stream(wr, start[6] + 10, e1 + 14, prio=0.3))
    u.streams[-1].headmax = 8
    u.streams.append(Stream(sts, start[7], end[OPT.get("stend", 11)], prio=0.3))
    u.streams[-1].headmax = 4
    u.streams[-1].pace = True
    u.streams.append(Stream(rinv_stream(0), start[12] + 3, start[12] + 8, prio=0.5))
    Z = [Qc[4 * i: 4 * i + 4] for i in range(12)]
    ep, wr = [], []
    for grp, q in ((0, 0), (0, 1), (1, 0)):
        r, m, c, w = epi_group(q, range(4 * grp, 4 * grp + 4), None)
        setw(m, earliest=done[(12, 4 * grp + 3, q)] + 3)
        ep += m + c
        wr += w
    u.streams.append(Stream(ep, start[12] + 9, end[12], prio=0.3))
    u.streams.append(Stream(wr, start[12] + 9, end[12], prio=0.3))
    u.streams[-1].headmax = 8

    def weave(v, w):
        o, n = [], len(w)
        for i, x in enumerate(v):
            o.append(x)
            while w and (n - len(w)) < (i + 1) * n / len(v):
                o.append(w.pop(0))
        return o

    po = u.pin[last]
    _, m11, c11, w11 = epi_group(1, range(4, 8), None)
    _, m20, c20, w20 = epi_group(0, range(8, 12), None)
    _, m21, c21, w21 = epi_group(1, range(8, 12), None)
    po += m11 + m20 + c20 + weave(c11 + m21, w20)
    po += [oread(Z[n], n, ("OR", b + 1, 0, n)) for n in range(6)]
    po += weave(c21, w11)
    st = [ostore(Z[n], 0, n, [("OR", b + 1, 0, n)], True) for n in range(6)]
    po += [waitl(("OR", b + 1, 0, 5))] + weave(st[:4], w21)
    po += [oread(Z[n], n, ("OR", b + 1, 0, n)) for n in range(6, 12)] + st[4:]
    for n in range(6, 12):
        po += [waitl(("OR", b + 1, 0, n)), ostore(Z[n], 0, n, [("OR", b + 1, 0, n)], True)]
    if OPT["stamp"] == 3:
        for pi, idx in ((2, 12), (4, 13), (6, 14), (7, 20), (9, 21), (11, 22), (12, 23)):
            u.tail[start[pi] - 1] += stamp(idx)
        u.pin[last] = stamp(26) + u.pin[last]
    ALT_P[0] = False
    u.wins = sorted(set(list(start.values()) + list(sumgap.values()) + [start[8] + 15, start[10] + 15, start[6] + 10]))
    u.post += stamp(16) + stamp(17, True)
    if OPT["stamp"]:
        u.post += [I("s_waitcnt vmcnt(0)", "salu")] + stamp(18) + stamp(19, True)
    if OPT.get("dbg"):
        u.post += [I("s_cmp_ge_u32 s2, 8", "salu"), I("s_cbranch_scc1 L_end", "branch"),
                   I(f"s_cmp_lg_u32 {sW}, 0", "salu"), I("s_cbranch_scc1 L_end", "branch"),
                   I("s_waitcnt vmcnt(0)", "salu"), I(f"s_memrealtime {sStamp}", "salu"), I(f"s_memtime {sPC}", "salu"),
                   I("s_waitcnt lgkmcnt(0)", "salu"),
                   salu("s_mov_b32", srdD[2], "256"), salu("s_mov_b32", srdD[3], "0x00020000"),
                   I("s_mov_b64 exec, 1", "salu"),
                   salu("s_sub_u32", sTmp, sStamp[0], s(94)), salu("s_sub_u32", sH, s(78), s(94)),
                   salu("s_mul_i32", sH, sH, "100000"), salu("s_add_u32", sTmp, sTmp, sH),
                   valu("v_mov_b32", v(34), sTmp),
                   salu("s_sub_u32", sTmp, sPC[0], s(100)), valu("v_mov_b32", v(35), sTmp),
                   salu("s_lshl_b32", sTmp, "s2", "3"),
                   I(f"buffer_store_dwordx2 {v(34, 2)}, off, {srdD}, {sTmp}", "vmem", rd=[srdD])]
    u.post += [label("L_end"), I("s_endpgm", "branch")]
    return u


def build(extra):
    cache = {}

    def get(name, fn, first):
        u = fn()
        ins = u.schedule(budget=8, window=50, pk_at=20, verbose=first and VERB)
        out = []
        for idx, i in enumerate(ins):
            n = extra.get((name, idx), 0)
            if n:
                out.append(((name, idx, "nop"), nop(n - 1)))
            out.append(((name, idx), i))
        if first:
            cache[name] = out
        return out

    trace = list(get("PRO", unit_pro, True))
    for b in range(3):
        for t in range(1, 15 if b < 2 else 12):
            trace += get(f"T{t}", lambda: unit_mid(b, t), b == 0)
        if b < 2:
            trace += get("X", lambda: unit_x(b), b == 0)
    trace += get("FIN", lambda: unit_fin(2), True)
    order = ["PRO"] + [f"T{t}" for t in range(1, 15)] + ["X", "FIN"]
    return [(n, cache[n]) for n in order], trace


VERB = False
extra = {}
for it in range(60):
    static, trace = build(extra)
    hz = hazards([i for _, i in trace])
    if not hz:
        break
    upd = {}
    lastj = -100
    for j, need, why in hz:
        key = trace[j][0]
        if j != lastj and j - lastj < 24:
            continue
        lastj = j
        upd[key] = max(upd.get(key, 0), need)
        if OPT.get("showhz"):
            print("; hazard:", key, need, why, file=sys.stderr)
    for k, n in upd.items():
        extra[k] = extra.get(k, 0) + n
else:
    raise SystemExit("hazards did not converge")
if OPT.get("verb"):
    VERB = True
    _so = sys.stdout
    sys.stdout = sys.stderr
    build(extra)
    sys.stdout = _so
    print("; nops inserted:", extra, file=sys.stderr)
W = resolve_waits(trace)
_bad = check_coverage(trace, W)
assert not _bad, _bad[:10]
if OPT.get("verb") and "_mismatch" in W:
    print("; wait mismatches:", W["_mismatch"], file=sys.stderr)

out = []
A = out.append
A(open(os.path.join(os.path.dirname(os.path.abspath(__file__)), "header.txt")).read().rstrip())
A(f"; @launch grid=(256,1,1) block=(256,1,1) lds={LDS_BYTES}")
A('.amdgcn_target "amdgcn-amd-amdhsa--gfx950"')
A(".text")
A(f".globl {KNAME}")
A(".p2align 8")
A(f".type {KNAME},@function")
A(f"{KNAME}:")
for name, ins in static:
    A(f"; ---- {name} ----")
    for key, i in ins:
        t = i.text
        if i.kind == "wait":
            l, vv = W[key]
            t = "s_waitcnt " + (f"lgkmcnt({l})" if l is not None else f"vmcnt({vv})")
        abl = OPT.get("abl", "")
        if abl and name not in ("PRO",):
            tx = i.text
            if "c" in abl and "s_cbranch_vccnz" in tx:
                t = "s_nop 0"
            if "b" in abl and i.kind == "barrier":
                t = "s_nop 0"
            if "k" in abl and i.kind == "vmem" and (str(srdK) in tx or str(srdV) in tx):
                t = "s_nop 1"
            if "w" in abl and i.kind == "wait" and i.waitl is not None:
                t = "s_nop 0"
            if "W" in abl and i.kind == "wait" and i.waitv is not None:
                t = "s_nop 0"
            if "s" in abl and i.kind == "vmem" and (str(srdQ) in tx or str(srdO) in tx):
                t = "s_nop 1"
            if "z" in abl and "ds_write" in tx:
                t = "s_nop 1"
            tok = tx.replace(",", " ").split()
            if "v" in abl and i.kind in ("valu", "trans") and any(str(r) in tok for r in X):
                t = "s_nop 0"
            if "V" in abl and i.kind in ("valu", "trans") and any(str(r) in tok for r in X):
                continue
            if "d" in abl and i.kind == "ds" and i.wr and i.wr[0] in names(FR):
                t = "s_nop 0"
            if "e" in abl and i.kind == "valu" and ("pk_mul" in tx or "accvgpr" in tx or ("cvt_pk" in tx and not any(str(r) in tok for r in X))):
                continue
            if "o" in abl and i.kind == "mfma" and i.wr == TS.names():
                continue
        if OPT.get("e64") and re.match(r"v_(exp_f32|add_f32|mul_f32|mov_b32|xor_b32|max_f32|rcp_f32) ", t) and "96" not in t.split(",")[1]:
            t = t.replace(" ", "_e64 ", 1)
        A(t if i.kind == "label" else "    " + t)
for name, x, par in TRAMPS:
    A(f"L_tr_{name}:")
    A(f"    s_call_b64 {sRet}, L_rare_{'AB'[x]}{par}")
    A(f"    s_branch L_ret_{name}")
for x, par in ((0, 0), (0, 1), (1, 0), (1, 1), (1, 3)):
    if True:
        ALT_P[0] = par == 3
        r = rare(x, par)
        ALT_P[0] = False
        hz = hazards(r)
        assert not hz, hz
        for i in r:
            A(i.text if i.kind == "label" else "    " + i.text)
A("L_code_end:")
A("    s_endpgm")
A(f""".section .rodata,"a"
.p2align 6
.amdhsa_kernel {KNAME}
  .amdhsa_next_free_vgpr 512
  .amdhsa_next_free_sgpr 102
  .amdhsa_accum_offset 256
  .amdhsa_group_segment_fixed_size 0
  .amdhsa_kernarg_size 48
  .amdhsa_user_sgpr_count 2
  .amdhsa_user_sgpr_kernarg_segment_ptr 1
  .amdhsa_system_sgpr_workgroup_id_x 1
  .amdhsa_float_denorm_mode_32 3
.end_amdhsa_kernel""")
def insert_hops(lines):
    import subprocess, tempfile
    i0, i1 = lines.index("L_main:"), lines.index("L_end:")
    probe = list(lines)
    probe[i1:i1] = [f"L_hop_{w}:" for w in range(4)]
    with tempfile.TemporaryDirectory() as d:
        open(d + "/p.s", "w").write("\n".join(probe))
        subprocess.run(["clang", "-x", "assembler", "-target", "amdgcn-amd-amdhsa", "-mcpu=gfx950", "-c",
                        d + "/p.s", "-o", d + "/p.o"], check=True)
        dis = subprocess.run(["llvm-objdump", "-d", "--mcpu=gfx950", d + "/p.o"],
                             capture_output=True, text=True).stdout.splitlines()
    k = next(n for n, l in enumerate(dis) if l.endswith("<L_main>:"))
    sizes = [4 * len(l.split("//")[1].split(":")[1].split()) for l in dis[k:] if "//" in l]
    res, addr, n, nxt, pos = lines[:i0 + 1], 0, 0, 4096, []
    for l in lines[i0 + 1:i1]:
        if l.startswith("    "):
            if addr >= nxt:
                pos.append(len(res))
                res.append(None)
                addr += 4
                nxt += 4096
            addr += sizes[n]
            n += 1
        res.append(l)
    assert len(pos) >= 4
    for i, p_ in enumerate(pos):
        tgt = f"L_hop_{i + 4}" if i + 4 < len(pos) else "L_hop_end"
        res[p_] = f"L_hop_{i}:\n    s_cbranch_execz {tgt}"
    return res + lines[i1:]


if OPT.get("hops", 1):
    out = insert_hops("\n".join(out).split("\n"))
print("\n".join(out))
```

```python
import sys, struct, math, os, re
sys.path.insert(0, os.path.dirname(os.path.abspath(__file__)))
import asmlib
from asmlib import *

asmlib.COST.update(vmem=8, barrier=8)
KNAME = "standalone__gqa_softmax__near_ridge_kernel"
OPT = dict(
    sgaps=[[20, 28, 36], [74, 82, 90]],
    qa_slots=[9, 11, 13, 14], qb_slots=[19, 21, 23, 25],
    oa_rd=[(1, g) for g in (1, 17, 25, 33, 41, 45, 59, 67)] + [(2, g) for g in (1, 9, 17, 22)],
    oa_st=[(1, 74), (1, 82), (1, 90), (2, 20), (2, 44), (2, 74), (3, 20), (3, 44), (3, 74), (4, 16), (4, 24), (4, 32)],
    ob_rd=[(3, g) for g in (71, 75, 79, 83, 87, 91, 95)] + [(4, g) for g in (1, 9, 18, 26, 34)],
    ob_st=[(8, 20), (8, 36), (8, 74), (8, 90), (13, 20), (13, 44), (13, 74), (14, 20), (14, 44), (15, 20), (15, 36), (15, 44)],
    ob_stg=4,
    ob_early=[(5, 20), (5, 32), (5, 44), (6, 20), (6, 32), (7, 74), (7, 82), (7, 90)],
    qar_iter=9,
    kgaps=[4, 8, 12], vgaps=[48, 58, 66],
    bar_gap=98,
    wper=3, look=5,
    thr=4096.0,
    stamp=0,
    codewarm=1,
    pk=1,
    kv_nt=" nt", q_nt=" nt", o_nt=" sc1",
)
for a in sys.argv[1:]:
    if "=" in a:
        k, v = a.split("=", 1)
        OPT[k] = eval(v)

TILE = 12288
KSLOT = [0, 1, 2, 3] * 4
VSLOT = [0, 1, 2, 3] * 4
KBASE, VBASE, STAGE, SPARE = 0, 4 * TILE, 8 * TILE, 12 * TILE
LDS_BYTES = 13 * TILE
KD, VD = 4, 3
RING = 6
P2 = 50
NG = 100


def f2u(x):
    return struct.unpack("<I", struct.pack("<f", x))[0]


v = lambda lo, n=1: Reg("v", lo, n)
a = lambda lo, n=1: Reg("a", lo, n)
s = lambda lo, n=1: Reg("s", lo, n)

vLin = v(1)
vK = [v(2), v(3)]
vV = [v(4 + i) for i in range(4)]
vD = [v(8 + i) for i in range(3)]
vDO = [v(11 + i) for i in range(3)]
vS = [v(14), v(15)]
rinv = [v(16 + 2 * i) for i in range(4)]
rinv2 = [v(16 + 2 * i, 2) for i in range(4)]
lsum = [v(17 + 2 * i) for i in range(4)]
negmc = [v(24 + i) for i in range(4)]
TS = v(28, 4)
vOW = v(32)
E = [v(33), v(34), v(35)]
X = [v(36), v(37), v(38), v(39), v(0)]
PA = [v(40, 8), v(48, 8)]
PB = v(56, 8)
SA = v(64, 16)
SB = [v(80, 16), v(96, 16)]
OA = v(112, 96)
STG = v(208, 48)
OB = a(0, 96)
Qc = a(96, 96)
FR = [a(192 + 4 * i, 4) for i in range(RING)]
SQ = [a(216 + 4 * i, 4) for i in range(8)]
JUNK = SQ[7]
ONES = [a(248, 4), a(252, 4)]
OX = [OA, OB]

ptrQ, ptrK, ptrV, ptrO = s(4, 2), s(6, 2), s(8, 2), s(10, 2)
srdK, srdV, srdQ, srdO = s(12, 4), s(16, 4), s(20, 4), s(24, 4)
sBG, sH, sKO, sQO, sQOcur, sNrec, sTrip, sC, sNegC, sThr, sMagic, sW = [s(28 + i) for i in range(12)]
sRet = s(40, 2)
m0K = [s(42 + i) for i in range(4)]
sStage, sQB = s(46), s(47)
m0V = [s(48 + i) for i in range(4)]
sT = ["0"] + [s(51 + t) for t in range(1, 16)]
srdD = s(68, 4)
sStamp = s(72, 2)
sPC = s(76, 2)
sG = [[s(80 + 4 * x + j) for j in range(4)] for x in range(2)]
sM = [s(88 + j) for j in range(4)]
sTmp = s(92)
srdO2 = s(96, 4)
sWarm = s(74, 2)

SCALE_C = math.log2(math.e) / math.sqrt(192.0)


def Qreg(qb, ks):
    return Qc[(qb * 6 + ks) * 4: (qb * 6 + ks) * 4 + 4]


def Otile(qb, dt):
    n = (dt * 2 + qb % 2) * 4
    return OX[qb // 2][n: n + 4]


def Sbuf(x, tile):
    return SA if x == 0 else SB[tile % 2]


ALT_P = [False]


def Pbuf(x, tile):
    if x == 1 and ALT_P[0] and tile % 2 == 1:
        return PA[1]
    return PA[tile % 2] if x == 0 else PB


def dma(srd, soff, c, tag):
    off = f" offset:{c * 1024}" if c else ""
    fl = OPT.get("k_nt" if srd is srdK else "v_nt", OPT["kv_nt"])
    return I(f"buffer_load_dwordx4 {vD[c]}, {srd}, {soff} offen{off}{fl} lds", "vmem",
             rd=[vD[c], srd, soff, "m0"], tag=tag)


def setm0(x):
    return salu("s_mov_b32", "m0", x)


def qdma(x, jj, c, tag, need=None):
    off = f" offset:{c * 1024}" if c else ""
    return I(f"buffer_load_dwordx4 {vD[c]}, {srdQ}, {sG[x][jj]} offen{off}{OPT['q_nt']} lds", "vmem",
             rd=[vD[c], srdQ, sG[x][jj], "m0"], tag=tag, needl=need)


def qread(dst, n, addr, tag, need=None):
    q, ks = n // 6, n % 6
    off = q * 6144 + (ks // 2) * 128
    return I(f"ds_read_b128 {dst}, {addr[ks % 2]} offset:{off}", "ds", rd=[addr[ks % 2]], wr=[dst], tag=tag, needv=need)


def oaddr(e):
    if e == 0:
        return vOW, []
    return E[2], [valu("v_xor_b32", E[2], str(e * 32), vOW)]


def owrite(src, addr, q, dt):
    off = q * 6144 + (dt // 4) * 128
    return I(f"ds_write_b64 {addr}, {src} offset:{off}", "ds", rd=[addr, src], cost=OPT.get("wcost", 12), flags=["head"])


def oread(dst, idx, tag):
    return I(f"ds_read_b128 {dst}, {vLin} offset:{idx * 1024}", "ds", rd=[vLin], wr=[dst], tag=tag)


def ostore(src, x, idx, need, fin=False, srdO=srdO):
    jj, c = idx // 3, idx % 3
    off = f" offset:{c * 1024}" if c else ""
    fl = OPT.get("of_nt" + "ab"[x], OPT["o_nt"]) if fin else OPT["o_nt"]
    return I(f"buffer_store_dwordx4 {src}, {vDO[c]}, {srdO}, {sG[x][jj]} offen{off}{fl}", "vmem",
             rd=[src, vDO[c], srdO, sG[x][jj]], flags=["wide"], cost=16, needl=need)


def obuf(x, idx):
    if x == 1 and idx < OPT["ob_stg"]:
        return STG[4 * idx: 4 * idx + 4]
    return SQ[idx % 8]


def kread(g, f, tile):
    kh, ks = (f % 12) // 6, f % 6
    off = KBASE + KSLOT[tile % 16] * TILE + kh * 6144 + (ks // 2) * 128
    d = FR[f % RING]
    return [I(f"ds_read_b128 {d}, {vK[ks % 2]} offset:{off}", "ds", rd=[vK[ks % 2]], wr=[d], tag=("F", g, f))]


def vread(g, f, tile):
    dt = f % 12
    d = FR[f % RING]
    out = []
    for jj in range(2):
        off = VSLOT[tile % 16] * TILE + jj * 6144 + (dt // 4) * 128
        out.append(I(f"ds_read_b64_tr_b16 {d[2 * jj:2 * jj + 2]}, {vV[dt % 4]} offset:{off}", "ds", rd=[vV[dt % 4]],
                     wr=[d[2 * jj:2 * jj + 2]], tag=("F", g, f) if jj == 1 else None))
    return out


def swap32(u, w):
    return I(f"v_permlane32_swap_b32 {u}, {w}", "valu", rd=[u, w], wr=[u, w], cost=8)


def swap16(u, w):
    return I(f"v_permlane16_swap_b32 {u}, {w}", "valu", rd=[u, w], wr=[u, w], cost=8)


def max_tree(S, u, w):
    o = []
    for a0, a1, a2, first in ((0, 1, 2, True), (3, 4, None, False), (5, 6, None, False)):
        for r, b in ((u, 0), (w, 8)):
            if first:
                o.append(valu("v_max3_f32", r, S[b + a0], S[b + a1], S[b + a2]))
            else:
                o.append(valu("v_max3_f32", r, r, S[b + a0], S[b + a1]))
    o += [valu("v_max_f32", u, u, S[7]), valu("v_max_f32", w, w, S[15])]
    return o


def reduce2(op, u, w):
    return [nop(1), swap32(u, w), valu(op, u, u, w), valu("v_mov_b32", w, u), nop(1), swap16(u, w), valu(op, u, u, w)]


def max_init(x, S):
    u, w = E[0], E[1]
    n0, n1 = negmc[2 * x], negmc[2 * x + 1]
    return max_tree(S, u, w) + reduce2("v_max_f32", u, w) + [
        valu("v_mul_f32", n0, sNegC, u), valu("v_mul_f32", n1, sNegC, u), nop(1), swap32(n0, n1)]


XPOS = [0]


def exp_stream(x, S, P, order=range(16), late=None):
    out = []
    order = list(order)
    p0 = XPOS[0]
    N = len(order)
    XPOS[0] = (p0 + N) % len(X)
    T = lambda n: X[(p0 + n) % len(X)]
    for n in range(N + 2):
        if n < N:
            i = order[n]
            f = valu("v_fma_f32", T(n), S[i], sC, negmc[2 * x + i // 8])
            if late is not None and i % 8 >= 4:
                f.earliest = late
            out.append(f)
        if 0 <= n - 1 < N:
            out.append(trans("v_exp_f32", T(n - 1), T(n - 1)))
        j = n - 2
        if 0 <= j < N and j % 2 == 1:
            out.append(valu("v_cvt_pk_bf16_f32", P[order[j] // 2], T(j - 1), T(j)))
    return out


TRAMPS = []
KH0_FIRST = [0, 1, 2, 3, 8, 9, 10, 11, 4, 5, 6, 7, 12, 13, 14, 15]


def softmax(x, tile, late=None):
    S, P = Sbuf(x, tile), Pbuf(x, tile)
    if tile == 0:
        return max_init(x, S) + exp_stream(x, S, P)
    return exp_stream(x, S, P, KH0_FIRST if late is not None else range(16), late)


def sum_mfma(x, tile):
    P = Pbuf(x, tile)
    return [mfma(TS, ONES[0], P[0:4], 0), mfma(TS, ONES[1], P[4:8], TS)]


def check(x, tile, site):
    if tile == 0:
        return [], [], [valu("v_mov_b32", lsum[2 * x + i], TS[i]) for i in range(2)]
    par = tile % 2
    if x == 1 and ALT_P[0] and par == 1:
        par = 3
    name = f"{site}_{'AB'[x]}"
    if (name, x, par) not in TRAMPS:
        TRAMPS.append((name, x, par))
    return ([I(f"v_cmp_nge_f32 vcc, {sThr}, {TS[2]}", "valu", rd=[sThr, TS[2]], wr=["vcc"])],
            [I(f"s_cbranch_vccnz L_tr_{name}", "branch", rd=["vcc"]), label(f"L_ret_{name}")],
            [valu("v_add_f32", lsum[2 * x + i], lsum[2 * x + i], TS[i]) for i in range(2)])


def rinv_stream(x):
    u, w = lsum[2 * x], lsum[2 * x + 1]
    r0, r1 = rinv[2 * x], rinv[2 * x + 1]
    return reduce2("v_add_f32", u, w) + [trans("v_rcp_f32", r0, u), trans("v_rcp_f32", r1, u), nop(1), swap32(r0, r1)]


def scale2(R, qb):
    if OPT["pk"]:
        return [I(f"v_pk_mul_f32 {R}, {R}, {rinv2[qb]} op_sel_hi:[1,0]", "valu", rd=[R, rinv[qb]], wr=[R], flags=["pk"])]
    return [valu("v_mul_f32", R[0], R[0], rinv[qb]), valu("v_mul_f32", R[1], R[1], rinv[qb])]


def epi_a(tt):
    O = OA[16 * tt: 16 * tt + 16]
    m = []
    for i in range(8):
        m += scale2(O[2 * i: 2 * i + 2], (i // 2) % 2)
    c = [valu("v_cvt_pk_bf16_f32", O[i], O[2 * i], O[2 * i + 1]) for i in range(8)]
    w = []
    for n in range(4):
        dt, q = 2 * tt + n // 2, n % 2
        ad, pre = oaddr(dt % 4)
        if q == 0:
            w += pre
        wr = owrite(O[2 * n: 2 * n + 2], ad, q, dt)
        wr.after = c[2 * n + 1]
        w.append(wr)
    return m, c, w


def epi_b(tt, half, T):
    O = OB[16 * tt: 16 * tt + 16]
    D = STG[tt * 8: tt * 8 + 8]
    r = [valu("v_accvgpr_read_b32", T[i], O[8 * half + i]) for i in range(8)]
    m = []
    for i in range(4):
        m += scale2(T[2 * i: 2 * i + 2], 2 + i // 2)
    c = [valu("v_cvt_pk_bf16_f32", D[4 * half + i], T[2 * i], T[2 * i + 1]) for i in range(4)]
    return r, m, c


def ob_writes(es):
    w = []
    for e in es:
        ad, pre = oaddr(e)
        w += pre
        for dt in (e, e + 4, e + 8):
            for q in range(2):
                n = (dt * 2 + q) * 2
                w.append(owrite(STG[n: n + 2], ad, q, dt))
    return w


def setw(items, earliest=None, latest=None):
    for i in items:
        if latest is not None:
            i.latest = latest if i.latest is None else min(i.latest, latest)
    if earliest is not None:
        items[0].earliest = earliest
    return items


def rare(x, par):
    S, P = Sbuf(x, par), Pbuf(x, par)
    u, w = E[0], E[1]
    f = [u, w]
    n = [negmc[2 * x], negmc[2 * x + 1]]
    o = [label(f"L_rare_{'AB'[x]}{par}"), nop(15)]
    o += max_tree(S, u, w)
    o += [valu("v_fma_f32", u, u, sC, n[0]), valu("v_fma_f32", w, w, sC, n[1])]
    o += reduce2("v_max_f32", u, w)
    o += [valu("v_max_f32", u, "0", u), valu("v_mov_b32", w, u), nop(1), swap32(u, w),
          valu("v_sub_f32", n[0], n[0], u), valu("v_sub_f32", n[1], n[1], w),
          trans("v_exp_f32", u, f"-{u}", extra_rd=[u]), trans("v_exp_f32", w, f"-{w}", extra_rd=[w]), nop(0),
          valu("v_mul_f32", lsum[2 * x], lsum[2 * x], u), valu("v_mul_f32", lsum[2 * x + 1], lsum[2 * x + 1], w)]
    O = OX[x]
    for i in range(96):
        ff = f[(i // 4) % 2]
        if O.f == "a":
            tt = P[i % 4]
            o += [valu("v_accvgpr_read_b32", tt, O[i]), valu("v_mul_f32", tt, tt, ff),
                  valu("v_accvgpr_write_b32", O[i], tt)]
        else:
            o.append(valu("v_mul_f32", O[i], O[i], ff))
    o += [valu("v_fma_f32", S[i], S[i], sC, n[i // 8]) for i in range(16)]
    o += [trans("v_exp_f32", S[i], S[i]) for i in range(16)]
    o += [valu("v_cvt_pk_bf16_f32", P[i], S[2 * i], S[2 * i + 1]) for i in range(8)]
    o += [nop(1)] + sum_mfma(x, par)
    o += [nop(15), I(f"s_setpc_b64 {sRet}", "branch", rd=[sRet])]
    return o


def qk_mfma(tile, f, qb, fr):
    kh, ks = f // 6, f % 6
    n = (qb % 2) * 8 + kh * 4
    d = Sbuf(qb // 2, tile)[n: n + 4]
    return mfma(d, fr, Qreg(qb, ks), d if ks else 0)


def pv_mfma(t, dt, qb, fr, zero):
    o = Otile(qb, dt)
    p = Pbuf(qb // 2, t)[4 * (qb % 2): 4 * (qb % 2) + 4]
    return mfma(o, fr, p, 0 if zero else o)


def frag_read(g, t, f):
    if f < 12:
        return kread(g, f, t + 1)
    if f < 24:
        return vread(g, f, t)
    return kread(g + 1, f - 24, t + 2)


def ftag(g, f):
    return ("F", g, f) if f < 24 else ("F", g + 1, f - 24)


def stamp(idx, real=False):
    if not OPT["stamp"]:
        return []
    if OPT["stamp"] == 2 and idx not in (0, 1, 15, 16, 17, 18, 19, 56, 60, 61):
        return []
    if OPT["stamp"] == 3 and idx in range(2, 12):
        return []
    op = "s_memrealtime" if real else "s_memtime"
    return [I(f"{op} {sStamp}", "salu", wr=[sStamp]), I("s_waitcnt lgkmcnt(0)", "salu"),
            valu("v_mov_b32", E[0], sStamp[0]),
            I(f"buffer_store_dword {E[0]}, off, {srdD}, {sH} offset:{idx * 4}", "vmem", rd=[E[0], srdD])]


def add_iter(u, b, t, site, first=False):
    g = b * 16 + t
    base = len(u.heads)
    tn = (t + 1) % 16
    lastuse = {}
    NR = OPT.get("nr", 3)
    seq = [(f, qb) for f in range(NR) for qb in (2, 3)] + [(f, qb) for f in range(NR) for qb in (0, 1)] + \
          [(f, qb) for f in range(NR, 12) for qb in range(4)]
    for f, qb in seq:
        m = qk_mfma(tn, f, qb, FR[f % RING])
        m.needl = [("F", g, f)] + ([("QB", b + 1, (qb - 2) * 6 + f % 6)] if tn == 0 and qb >= 2 else [])
        lastuse[f] = u.add_gap(m)
    for m in sum_mfma(1, t):
        u.add_gap(m)
    seq = [(f, qb) for f in range(NR) for qb in (0, 1)] + [(f, qb) for f in range(NR) for qb in (2, 3)] + \
          [(f, qb) for f in range(NR, 12) for qb in range(4)]
    for dt, qb in seq:
        m = pv_mfma(t, dt, qb, FR[(12 + dt) % RING], t == 0)
        m.needl = [("F", g, 12 + dt)]
        lastuse[12 + dt] = u.add_gap(m)
    for m in sum_mfma(0, tn):
        u.add_gap(m)
    wp = OPT["wper"]
    for f in range(24):
        k = lastuse[f]
        rd = frag_read(g, t, f + RING)
        u.pin[k] += rd
        if (f + 1) % wp == 0:
            kw = k + 2 if f in (11, 23) else (k if len(rd) == 1 else k - 1)
            u.pin[kw].append(waitl(*[ftag(g, f + 1 + i) for i in range(wp)]))
    for x, k in ((0, base), (1, base + P2)):
        c, br, lu = check(x, t, site)
        u.tail[k + OPT.get("cmpgap", 2)] += c
        kb = k + 2 * NR - 1
        if OPT.get("brhead"):
            u.pin[kb] = br + u.pin[kb]
        else:
            u.tail[kb] += br
        u.streams.append(Stream(lu, kb + 1, kb + 3, prio=0.5))
    tk, tv = (t + KD) % 16, (t + VD) % 16
    u.pin[base + OPT["kgaps"][0] - 2].append(setm0(m0K[KSLOT[tk]]))
    for c, k in enumerate(OPT["kgaps"]):
        u.pin[base + k].append(dma(srdK, sT[tk], c, ("K", g + KD)))
    u.pin[base + OPT["vgaps"][0] - 3].append(setm0(m0V[VSLOT[tv]]))
    for c, k in enumerate(OPT["vgaps"]):
        u.pin[base + k].append(dma(srdV, sT[tv], c, ("V", g + VD)))
    for x, key in ((0, "oa_rd"), (1, "ob_rd")):
        for idx, (tt, k) in enumerate(OPT[key]):
            if tt == t and not first:
                u.pin[base + k].append(oread(obuf(x, idx), idx, ("OR", b, x, idx)))
    for x, key in ((0, "oa_st"), (1, "ob_st")):
        for idx, (tt, k) in enumerate(OPT[key]):
            if tt == t and not first:
                u.pin[base + k].append(ostore(obuf(x, idx), x, idx, [("OR", b, x, idx)] if b or not NFIRST else []))
    if OPT.get("ob_early") and not first:
        late = [idx for idx, (tt, k) in enumerate(OPT["ob_st"]) if tt > 11]
        for idx, (tt, k) in zip(late, OPT["ob_early"]):
            if tt == t:
                u.pin[base + k].append(ostore(obuf(1, idx), 1, idx, [("OR", b, 1, idx)], srdO=srdO2))
    if t in (2, 3) and not first:
        st = Stream(ob_writes((0, 1)), base + 23, base + 97) if t == 2 else Stream(ob_writes((2, 3)), base + 0, base + 70)
        st.pace = OPT.get("pace", 1)
        u.streams.append(st)
    for half in range(2):
        n = 2 * t + half
        gaps = OPT["sgaps"][half]
        for x, key in ((0, "qa_slots"), (1, "qb_slots")):
            if n in OPT[key]:
                jj = OPT[key].index(n)
                u.pin[base + gaps[0] - 3].append(setm0(sM[jj]))
                need = ([] if first else [("OR", b, 1, 11)]) if x == 0 else [("QA", b + 1, 11)]
                for c, k in enumerate(gaps):
                    u.pin[base + k].append(qdma(x, jj, c, ("QD", b + 1, x), need))
    if OPT["codewarm"] and t == OPT.get("rewarm", 6):
        u.pin[base + 44].append(I(f"global_load_dwordx4 {STG[44:48]}, {vLin}, {sWarm}", "vmem", rd=[vLin, sWarm], wr=[STG[44:48]]))
    if t == OPT["qar_iter"]:
        u.pin[base + 0].append(waitv(("QD", b + 1, 0)))
        for n in range(12):
            u.pin[base + 1 + 4 * n].append(qread(STG[n * 4: n * 4 + 4], n, vS, ("QA", b + 1, n), [("QD", b + 1, 0)]))
    if t == 14:
        u.pin[base + P2].append(waitv(("QD", b + 1, 1)))
        for i, n in enumerate([0, 6, 1, 7, 2, 8, 3, 9, 4, 10, 5, 11]):
            u.pin[base + P2 + 1 + 4 * (i // 2) + (8 if i >= 2 else 0)].append(
                qread(Qreg(2 + n // 6, n % 6), n, vS, ("QB", b + 1, n), [("QD", b + 1, 1)]))
    u.pin[base + OPT["bar_gap"] - OPT.get("wv_early", 0)] += [waitv(("K", g + 3), ("V", g + 1))]
    u.pin[base + OPT["bar_gap"]] += [barrier()]
    XPOS[0] = 0
    sb = setw(softmax(1, t), latest=base + 46)
    sa = softmax(0, tn, late=base + 49)
    sa[0].earliest = base + (P2 + 2 * NR if tn == 0 else 30)
    u.streams.append(Stream(sb + sa, base + 0, base + 96, prio=0.05, look=OPT["look"]))
    if t == 1:
        sl = [salu("s_mov_b32", sQOcur, sQO),
              salu("s_add_u32", sBG, sBG, "32", scc_w=True),
              salu("s_mul_hi_u32", sKO, sBG, sMagic),
              salu("s_mul_i32", sKO, sKO, "196608"),
              salu("s_mul_i32", sQO, sBG, "98304"),
              I(f"s_cmp_lt_u32 {sTrip}, 2", "salu", rd=[sTrip], wr=["scc"]),
              salu("s_cselect_b32", sNrec, "196608", "0", scc_r=True),
              salu("s_cselect_b32", srdQ[2], "98304", "0", scc_r=True),
              salu("s_add_u32", srdQ[0], ptrQ[0], sQO, scc_w=True),
              salu("s_addc_u32", srdQ[1], ptrQ[1], "0", scc_w=True, scc_r=True)]
        u.streams.append(Stream(sl, base + 24, base + 80))
    if t == 15 - KD:
        sl = [salu("s_add_u32", srdK[0], ptrK[0], sKO, scc_w=True),
              salu("s_addc_u32", srdK[1], ptrK[1], "0", scc_w=True, scc_r=True),
              salu("s_mov_b32", srdK[2], sNrec)]
        u.streams.append(Stream(sl, base + OPT["kgaps"][-1] + 1, base + 90))
    if t == 15 - VD:
        sl = [salu("s_add_u32", srdV[0], ptrV[0], sKO, scc_w=True),
              salu("s_addc_u32", srdV[1], ptrV[1], "0", scc_w=True, scc_r=True),
              salu("s_mov_b32", srdV[2], sNrec)]
        u.streams.append(Stream(sl, base + OPT["vgaps"][-1] + 1, base + 90))
    return base


def qcopy(base):
    out = []
    for ks in range(6):
        for q in range(2):
            for i in range(4):
                out.append(valu("v_accvgpr_write_b32", Qreg(q, ks)[i], STG[(q * 6 + ks) * 4 + i],
                                earliest=base + 4 * (6 + ks) + q))
    return out


def set_osrd():
    return [salu("s_add_u32", srdO[0], ptrO[0], sQOcur, scc_w=True),
            salu("s_addc_u32", srdO[1], ptrO[1], "0", scc_w=True, scc_r=True),
            salu("s_mov_b32", srdO[2], "98304")]


NFIRST = OPT.get("nfirst", 9)


def unit_mid(b, t, first=False):
    u = Unit(f"T{t}" + "f" * first)
    if t == 1 and not first:
        u.pre.append(label("L_loop"))
    if t == NFIRST + 1 and NFIRST:
        u.pre.append(label("L_join"))
    u.pre += stamp(t)
    base = add_iter(u, b, t, f"T{t}" + "f" * first, first)
    if first and t == NFIRST:
        u.post.append(I("s_branch L_join", "branch"))
    if t == 14:
        u.streams.append(Stream(qcopy(base), base + 24, base + 99))
    if t == 11:
        u.tail[base + 96].append(I(f"s_cmp_eq_u32 {sTrip}, 2", "salu", rd=[sTrip], wr=["scc"]))
        u.post += [I("s_cbranch_scc1 L_fin", "branch", rd=["scc"])]
    return u


def unit_x(b):
    u = Unit("X")
    u.pre.append(label("L_x"))
    u.pre += stamp(15)
    b15 = add_iter(u, b, 15, "T15")
    b0 = add_iter(u, b + 1, 0, "T0")
    u.streams.append(Stream(rinv_stream(0), b15 + 9, b15 + 40))
    u.streams.append(Stream(rinv_stream(1), b15 + P2 + 9, b15 + P2 + 15, prio=0.5))
    ep, wr = [], []
    for tt in range(6):
        O = OA[16 * tt: 16 * tt + 16]
        dl = b0 + P2 + (8 * tt if tt != 1 else 4) - 1
        m, c, w = epi_a(tt)
        r0, m0_, c0 = epi_b(tt, 0, O[8:16])
        r1, m1_, c1 = epi_b(tt, 1, O[8:16])
        setw(m, earliest=b15 + P2 + 8 * tt + 9)
        setw(r0, earliest=b15 + P2 + max(16, 8 * tt + 9))
        ep += setw(m + c + r0 + m0_ + c0 + r1 + m1_ + c1, latest=dl)
        wr += setw(w, latest=dl)
    u.streams.append(Stream(ep, b15 + P2 + 9, b0 + P2 + 39))
    u.streams.append(Stream(wr, b15 + P2 + 9, b0 + P2 + 39))
    so = set_osrd()
    if OPT.get("ob_early"):
        so += [salu("s_mov_b32", srdO2[0], srdO[0]), salu("s_mov_b32", srdO2[1], srdO[1]),
               I(f"s_cmp_eq_u32 {sTrip}, 1", "salu", rd=[sTrip], wr=["scc"]),
               salu("s_cselect_b32", srdO2[2], "98304", "0", scc_r=True)]
    u.streams.append(Stream(so, b15 + 46, b15 + 56))
    sl = [salu("s_add_u32", sTrip, sTrip, "1", scc_w=True)]
    if OPT["stamp"]:
        sl.append(salu("s_add_u32", sH, sH, "64", scc_w=True))
    u.streams.append(Stream(sl, b0 + 4, b0 + 80))
    u.post.append(I("s_branch L_loop", "branch"))
    return u


def unit_pro():
    u = Unit("PRO")
    P = u.pre
    tid, lane, i16, G, t0, t1, t2 = v(0), X[0], X[1], X[2], X[3], E[0], E[1]
    P += [I("s_cmp_ge_u32 s2, 256", "salu", rd=["s2"], wr=["scc"]),
          I("s_cbranch_scc1 L_end", "branch", rd=["scc"]),
          I("s_load_dwordx4 s[4:7], s[0:1], 0", "salu", wr=[s(4, 4)]),
          I("s_load_dwordx4 s[8:11], s[0:1], 16", "salu", wr=[s(8, 4)])]
    warm = []
    if OPT["codewarm"]:
        P += [I(f"s_getpc_b64 {sPC}", "salu", wr=[sPC]),
              label("L_pc"),
              I(f"s_sub_u32 {sPC[0]}, {sPC[0]}, L_pc-{KNAME}", "salu", rd=[sPC], wr=[sPC, "scc"]),
              I(f"s_subb_u32 {sPC[1]}, {sPC[1]}, 0", "salu", rd=[sPC, "scc"], wr=[sPC, "scc"]),
              salu("s_lshr_b32", sH, "s2", "3", scc_w=True),
              salu("s_mul_i32", sH, sH, "3072"),
              valu("v_mul_u32_u24", E[2], "12", tid),
              valu("v_add_u32", E[2], sH, E[2]),
              I(f"v_min_u32 {E[2]}, L_code_end-{KNAME}-8, {E[2]}", "valu", rd=[E[2]], wr=[E[2]])]
        warm = [I(f"global_load_dwordx2 {JUNK[0:2]}, {E[2]}, {sPC}", "vmem", rd=[E[2], sPC], wr=[JUNK[0:2]])]
        if OPT["codewarm"] == 1:
            P += warm
            warm = []
    if OPT["stamp"]:
        P += [I(f"s_load_dwordx2 {srdD[0:2]}, s[0:1], 40", "salu"), I(f"s_memrealtime {s(94, 2)}", "salu")]
    if OPT.get("dbg"):
        P += [I(f"s_load_dwordx2 {srdD[0:2]}, s[0:1], 32", "salu"), I(f"s_memrealtime {s(94, 2)}", "salu"),
              I(f"s_memtime {s(100, 2)}", "salu")]
    P += [valu("v_lshrrev_b32", t0, "6", tid), valu("v_and_b32", lane, "63", tid),
          I(f"v_readfirstlane_b32 {sW}, {t0}", "valu", rd=[t0], wr=[sW]),
          valu("v_lshlrev_b32", t1, "4", lane)]
    P += [salu("s_and_b32", sBG, "s2", "7", scc_w=True),
          salu("s_mul_i32", sBG, sBG, "96"),
          salu("s_lshr_b32", sH, "s2", "3", scc_w=True),
          salu("s_add_u32", sBG, sBG, sH, scc_w=True),
          salu("s_mov_b32", sMagic, "0x55555556"),
          salu("s_mul_hi_u32", sKO, sBG, sMagic),
          salu("s_mul_i32", sKO, sKO, "196608"),
          salu("s_mul_i32", sQO, sBG, "98304")]
    P += [salu("s_mov_b32", sQB, str(VBASE + 2 * TILE)),
          I(f"s_cmp_eq_u32 {sW}, 0", "salu", rd=[sW], wr=["scc"]),
          salu("s_cselect_b32", sQB, str(KBASE + 3 * TILE), sQB, scc_r=True),
          I(f"s_cmp_eq_u32 {sW}, 2", "salu", rd=[sW], wr=["scc"]),
          salu("s_cselect_b32", sQB, str(VBASE + 3 * TILE), sQB, scc_r=True),
          I(f"s_cmp_eq_u32 {sW}, 3", "salu", rd=[sW], wr=["scc"]),
          salu("s_cselect_b32", sQB, str(SPARE), sQB, scc_r=True),
          salu("s_mul_i32", sW, sW, "3072")]
    late = []
    for c in range(3):
        P += [valu("v_add_u32", t0, str(c * 1024), t1),
              valu("v_lshrrev_b32", t2, "7", t0),
              valu("v_mul_u32_u24", t2, "171", t2),
              valu("v_lshrrev_b32", vDO[c], "9", t2),
              valu("v_and_b32", vD[c], "6", vDO[c]),
              valu("v_lshlrev_b32", vD[c], "4", vD[c]),
              valu("v_xor_b32", vD[c], vD[c], t1),
              valu("v_add_u32", vD[c], sW, vD[c])]
        late += [valu("v_lshlrev_b32", vDO[c], "4", vDO[c]),
                 valu("v_xor_b32", vDO[c], vDO[c], t1),
                 valu("v_add_u32", vDO[c], sW, vDO[c])]
    P += [salu("s_lshl_b32", sStage, sW, "2", scc_w=True),
          salu("s_add_u32", sStage, sStage, str(STAGE), scc_w=True),
          salu("s_mul_i32", sH, sW, "7")]
    for jj in range(4):
        P += [salu("s_add_u32", sM[jj], sStage, str(jj * 3072), scc_w=True),
              salu("s_add_u32", sG[0][jj], sH, str(jj * 3072), scc_w=True),
              salu("s_add_u32", sG[1][jj], sH, str(jj * 3072 + TILE), scc_w=True)]
    P += [I("s_waitcnt lgkmcnt(0)", "salu")]
    if OPT.get("dbg") == 2:
        P += [I(f"s_memrealtime {s(78, 2)}", "salu"), I("s_waitcnt lgkmcnt(0)", "salu")]

    def mksrd(srd, ptr, off, n):
        return [salu("s_add_u32", srd[0], ptr[0], off, scc_w=True),
                salu("s_addc_u32", srd[1], ptr[1], "0", scc_w=True, scc_r=True),
                salu("s_mov_b32", srd[2], str(n)), salu("s_mov_b32", srd[3], "0x00020000")]

    def ktile(t):
        return [setm0(m0K[KSLOT[t]]), nop(0)] + [dma(srdK, sT[t], c, ("K", t)) for c in range(3)]

    def vtile(t):
        return [setm0(m0V[VSLOT[t]]), nop(0)] + [dma(srdV, sT[t], c, ("V", t)) for c in range(3)]

    P += [setm0(sW)] + mksrd(srdK, ptrK, sKO, 196608) + [dma(srdK, "0", c, ("K", 0)) for c in range(3)]
    if OPT.get("dbg") == 3:
        P += [waitv(("K", 0)), I(f"s_memrealtime {s(78, 2)}", "salu"), I("s_waitcnt lgkmcnt(0)", "salu")]
    P += mksrd(srdQ, ptrQ, sQO, 98304)

    def hopchain(where):
        if not OPT.get("hops", 1) or OPT.get("hopat", 2) != where:
            return []
        o = [I("s_mov_b64 exec, 0", "salu", wr=["exec"])]
        for w in range(3):
            o += [I(f"s_cmp_eq_u32 {sW}, {w * 3072}", "salu", rd=[sW], wr=["scc"]),
                  I(f"s_cbranch_scc1 L_hop_{w}", "branch", rd=["scc"])]
        return o + [I("s_branch L_hop_3", "branch"), label("L_hop_end"), I("s_mov_b64 exec, -1", "salu", wr=["exec"]), nop(3)]

    stag = list(OPT.get("stag", []))

    def hold(i):
        if i >= len(stag):
            return []
        return [I(f"s_cmp_lt_u32 s2, {stag[i]}", "salu", rd=["s2"], wr=["scc"]),
                I(f"s_cbranch_scc1 L_go{i}", "branch", rd=["scc"]),
                I("s_waitcnt vmcnt(0)", "salu"), label(f"L_go{i}")]
    for jj in range(4):
        P += hold(jj) + [setm0(sM[jj]), nop(0)] + [qdma(0, jj, c, ("QD", 0, 0)) for c in range(3)]
    P += hopchain(1)
    for jj in range(4):
        P += hopchain(3) if jj == 2 else []
        P += [salu("s_add_u32", "m0", sQB, str(jj * 3072), scc_w=True), nop(0)] + [qdma(1, jj, c, ("QD", 0, 1)) for c in range(3)]
    P += mksrd(srdV, ptrV, sKO, 196608)
    for i in range(4):
        P.append(salu("s_add_u32", m0K[i], sW, str(KBASE + i * TILE), scc_w=True))
        P.append(salu("s_add_u32", m0V[i], sW, str(VBASE + i * TILE), scc_w=True))
    for t in range(1, 16):
        P.append(salu("s_mov_b32", sT[t], str(t * TILE)))
    P += [salu("s_mov_b32", srdO[0], ptrO[0]), salu("s_mov_b32", srdO[1], ptrO[1]),
          salu("s_mov_b32", srdO[2], "0"), salu("s_mov_b32", srdO[3], "0x00020000"),
          salu("s_mov_b32", srdO2[0], ptrO[0]), salu("s_mov_b32", srdO2[1], ptrO[1]),
          salu("s_mov_b32", srdO2[2], "0"), salu("s_mov_b32", srdO2[3], "0x00020000"),
          salu("s_mov_b32", sTrip, "0"),
          salu("s_mov_b32", sC, hex(f2u(SCALE_C))), salu("s_mov_b32", sNegC, hex(f2u(-SCALE_C))),
          salu("s_mov_b32", sThr, hex(f2u(OPT["thr"])))]
    if OPT["codewarm"] and OPT.get("rewarm", 6):
        P += [salu("s_lshr_b32", sTmp, "s2", "3", scc_w=True), salu("s_and_b32", sTmp, sTmp, "15", scc_w=True),
              salu("s_lshl_b32", sTmp, sTmp, "12", scc_w=True),
              salu("s_mul_hi_u32", sH, sW, sMagic),
              salu("s_add_u32", sTmp, sTmp, sH, scc_w=True),
              I(f"s_add_u32 {sTmp}, {sTmp}, L_loop-{KNAME}", "salu", rd=[sTmp], wr=[sTmp, "scc"]),
              I(f"s_min_u32 {sTmp}, {sTmp}, L_code_end-{KNAME}-1024", "salu", rd=[sTmp], wr=[sTmp, "scc"]),
              salu("s_add_u32", sWarm[0], sPC[0], sTmp, scc_w=True),
              salu("s_addc_u32", sWarm[1], sPC[1], "0", scc_w=True, scc_r=True),
              salu("s_sub_u32", sWarm[0], sWarm[0], sStage, scc_w=True),
              salu("s_subb_u32", sWarm[1], sWarm[1], "0", scc_w=True, scc_r=True)]
    P += late + [valu("v_add_u32", vLin, sStage, t1)]
    P += [valu("v_and_b32", i16, "15", lane), valu("v_lshrrev_b32", G, "4", lane),
          valu("v_mul_u32_u24", t0, "384", i16)]
    P += [valu("v_and_b32", t1, "6", i16), valu("v_xor_b32", t1, t1, G), valu("v_lshl_add_u32", vK[0], t1, "4", t0),
          valu("v_xor_b32", vK[1], "64", vK[0])]
    for e in range(2):
        P += [valu("v_add_u32", vS[e], sStage, vK[e]), valu("v_add_u32", STG[e], sQB, vK[e])]
    P += [valu("v_lshrrev_b32", t1, "1", G), valu("v_and_b32", t2, "7", i16), valu("v_xor_b32", t1, t1, t2),
          valu("v_lshl_add_u32", vOW, t1, "4", t0), valu("v_and_b32", t1, "1", G),
          valu("v_lshl_add_u32", vOW, t1, "3", vOW), valu("v_add_u32", vOW, sStage, vOW)]
    P += [valu("v_lshrrev_b32", t1, "2", lane), valu("v_mul_u32_u24", t0, "384", t1),
          valu("v_and_b32", t1, "6", t1), valu("v_lshl_add_u32", t0, t1, "4", t0),
          valu("v_and_b32", t1, "3", lane), valu("v_lshl_add_u32", t0, t1, "3", t0),
          valu("v_add_u32", vV[0], str(VBASE), t0)]
    for e in range(1, 4):
        P.append(valu("v_xor_b32", vV[e], str(e * 32), vV[0]))
    P += [salu("s_mov_b32", sTmp, "0x3f803f80"), valu("v_mov_b32", t0, sTmp)]
    for j in range(2):
        P += [I(f"v_cmp_eq_u32 vcc, {j}, {i16}", "valu", rd=[i16], wr=["vcc"]),
              I(f"v_cmp_eq_u32 {sRet}, 2, {i16}", "valu", rd=[i16], wr=[sRet]), nop(0),
              I(f"s_or_b64 vcc, vcc, {sRet}", "salu", rd=["vcc", sRet], wr=["vcc", "scc"]), nop(1),
              I(f"v_cndmask_b32 {t1}, 0, {t0}, vcc", "valu", rd=[t0, "vcc"], wr=[t1])]
        P += [valu("v_accvgpr_write_b32", ONES[j][i], t1) for i in range(4)]
    if OPT["stamp"]:
        P += [salu("s_mov_b32", srdD[2], "0x1000000"), salu("s_mov_b32", srdD[3], "0x00020000"),
              salu("s_mul_hi_u32", sTmp, sW, sMagic), salu("s_lshr_b32", sTmp, sTmp, "2", scc_w=True),
              salu("s_lshl_b32", sH, "s2", "10", scc_w=True), salu("s_add_u32", sH, sH, sTmp, scc_w=True),
              valu("v_mov_b32", E[0], s(94)),
              I(f"buffer_store_dword {E[0]}, off, {srdD}, {sH} offset:{57 * 4}", "vmem", rd=[E[0], srdD])]
    P += stamp(60) + stamp(56, True)
    P += hopchain(2)
    if OPT.get("hops", 1):
        P += [I("s_branch L_main", "branch"), I(".p2align 12", "label"), label("L_main")]
    P += [waitv(("QD", 0, 0)), barrier()]
    for f in range(RING):
        P += kread(-2, f, 0)
    qorder = [0, 6, 1, 7, 2, 8, 3, 9, 4, 10, 5, 11]
    for n in qorder:
        P.append(qread(Qreg(n // 6, n % 6), n, vS, ("QA", 0, n)))
    P += [waitl(("QA", 0, 7))]
    P += stamp(61)
    if OPT.get("dbg") == 1:
        P += [I(f"s_memrealtime {s(78, 2)}", "salu"), I("s_waitcnt lgkmcnt(0)", "salu")]
    pend = ktile(1) + vtile(0) + ktile(2) + warm + vtile(1)
    for n in range(24):
        x, f = n // 12, n % 12
        for q in range(2):
            m = qk_mfma(0, f, 2 * x + q, FR[n % RING])
            m.needl = [("F", -2, n), ("QA" if x == 0 else "QB", 0, q * 6 + f % 6)]
            k = u.add_gap(m)
            if x == 0 and pend:
                it = pend.pop(0)
                if it.kind != "nop":
                    u.pin[k].append(it)
        if n + RING < 24:
            u.pin[k] += kread(-2, n + RING, 0)
        else:
            u.pin[k] += kread(0, n + RING - 24, 1)
        if f == 1:
            u.pin[k].append(waitl(("QA" if x == 0 else "QB", 0, 11)))
        if RING - 1 <= n < 23 and n != 11:
            u.pin[k].append(waitl(("F", -2, n + 1)))
        if n == 11:
            assert not pend
            k = u.add_gap(None)
            XPOS[0] = 0
            u.pin[k] += softmax(0, 0)
            u.pin[k] += hopchain(0)
            u.pin[k] += [waitv(("QD", 0, 1))]
            for nn in qorder:
                u.pin[k].append(qread(Qreg(2 + nn // 6, nn % 6), nn, [STG[0], STG[1]], ("QB", 0, nn)))
            u.pin[k] += sum_mfma(0, 0) + [waitl(("QB", 0, 7))]
        if n == 14:
            u.pin[k] += [waitv(("K", 1), ("V", 0), ("K", 2)), barrier()]
        if n == 15:
            u.pin[k] += ktile(3)
        if n == 16:
            u.pin[k] += vtile(2)
    u.pin[k] += [barrier(), waitl(*[("F", 0, i) for i in range(OPT["wper"])])]
    u.pin[k] += stamp(0)
    if OPT.get("dbg") == 4:
        u.pin[k] += [I(f"s_memrealtime {s(78, 2)}", "salu"), I("s_waitcnt lgkmcnt(0)", "salu")]
    u.win0 = len(u.heads)
    add_iter(u, 0, 0, "T0p")
    return u


def unit_fin(b):
    u = Unit("FIN")
    u.pre.append(label("L_fin"))
    u.pre += stamp(15)
    g0 = b * 16 + 12
    NR = OPT.get("nr", 3)
    phases = [("QK", (0, 1), 13), ("QK", (1,), 14), ("PV", (1,), 12), ("QK", (1,), 15), ("PV", (1,), 13),
              ("PV", (1,), 14), ("PV", (1,), 15),
              ("PV", (0,), 12), ("QK", (0,), 14), ("PV", (0,), 13), ("QK", (0,), 15), ("PV", (0,), 14), ("PV", (0,), 15)]
    ALT_P[0] = True
    sums = {(0, 42): (1, 12), (2, 18): (1, 13), (4, 18): (1, 14), (5, 18): (1, 15), (7, 18): (0, 13), (9, 18): (0, 14),
            (11, 18): (0, 15)}
    start, end, sumgap, lastuse, done = {}, {}, {}, {}, {}
    nfr = 12 * len(phases)
    for pi, (kind, hs, tile) in enumerate(phases):
        if len(hs) == 2:
            seq = [(f, qb) for f in range(NR) for qb in (2, 3)] + [(f, qb) for f in range(NR) for qb in (0, 1)] + \
                  [(f, qb) for f in range(NR, 12) for qb in range(4)]
        else:
            seq = [(f, 2 * hs[0] + q) for f in range(12) for q in range(2)]
        start[pi] = len(u.heads)
        for i, (f, qb) in enumerate(seq):
            n = 12 * pi + f
            m = qk_mfma(tile, f, qb, FR[n % RING]) if kind == "QK" else pv_mfma(tile, f, qb, FR[n % RING], False)
            m.needl = [("F", g0, n)]
            lastuse[n] = done[(pi, f, qb)] = u.add_gap(m)
            if (pi, i + 1) in sums:
                sumgap[sums[(pi, i + 1)]] = len(u.heads)
                for m in sum_mfma(*sums[(pi, i + 1)]):
                    u.add_gap(m)
        end[pi] = len(u.heads) - 1
    last = u.add_gap(None)
    wp = OPT["wper"]
    for n in range(nfr):
        k = lastuse[n]
        nn = n + RING
        rd = []
        if nn < nfr:
            kind, hs, tile = phases[nn // 12]
            rd = kread(g0, nn, tile) if kind == "QK" else vread(g0, nn, tile)
            u.pin[k] += rd
        if (n + 1) % wp == 0 and n + 1 < nfr:
            u.pin[k if len(rd) < 2 else k - 1].append(waitl(*[("F", g0, n + 1 + i) for i in range(wp)]))
    u.pin[start[0] + 1].append(setm0(m0V[VSLOT[15]]))
    for c, k in enumerate((4, 8, 12)):
        u.pin[start[0] + k].append(dma(srdV, sT[15], c, ("V", g0 + 3)))
    dg = [start[0] + k for k in (20, 32, 44)] + [start[1] + k for k in (4, 16)] + [start[2] + k for k in (0, 6, 12)]
    for idx, (tt, k) in enumerate(OPT["ob_st"]):
        if tt > 11 and not OPT.get("ob_early"):
            u.pin[dg.pop(0)].append(ostore(obuf(1, idx), 1, idx, [("OR", b, 1, idx)]))
    u.pin[start[2] + 2] += [waitv(("K", g0 + 3), ("V", g0 + 1), ("V", g0 + 2)), barrier()]
    u.pin[sumgap[(1, 14)]] += [waitv(("V", g0 + 3)), barrier()]
    def put_check(x, tile, kc, kb):
        c, br, lu = check(x, tile, f"F{tile}")
        u.tail[kc] += c
        u.tail[kb] += br
        u.streams.append(Stream(lu, kb + 1, kb + 3, prio=0.5))
    put_check(0, 12, start[0] + 2, start[0] + 2 * NR - 1)
    for (x, tile), k in sumgap.items():
        put_check(x, tile, k + 5, k + 7)
    XPOS[0] = 0
    look = OPT["look"]
    for tile, k0 in ((12, start[0]), (13, start[1] + 3), (14, start[3]), (15, start[5])):
        u.streams.append(Stream(softmax(1, tile), k0, sumgap[(1, tile)] - 2, prio=0.05, look=look))
    u.streams.append(Stream(softmax(0, 13), start[7], sumgap[(0, 13)] - 2, prio=0.05, look=look))
    for tile, pq in ((14, 8), (15, 10)):
        u.streams.append(Stream(exp_stream(0, SA, Pbuf(0, tile), KH0_FIRST[:8]), start[pq] + 15, end[pq] + 2,
                                prio=0.05, look=look))
        u.streams.append(Stream(exp_stream(0, SA, Pbuf(0, tile), KH0_FIRST[8:]), end[pq] + 3,
                                sumgap[(0, tile)] - 2, prio=0.05, look=look))
    AD = [vOW, STG[0], STG[1], STG[2]]
    u.streams.append(Stream(set_osrd() + [valu("v_xor_b32", AD[e], str(32 * e), vOW) for e in range(1, 4)],
                            sumgap[(1, 14)], end[4]))
    kA = sumgap[(1, 15)] + 11
    u.streams.append(Stream(rinv_stream(1), kA, kA + 6, prio=0.5))
    Z = [Qc[48 + 4 * i: 52 + 4 * i] for i in range(12)]
    TT = [SB[0], SB[1], STG[16:32]]

    def epi_group(qb, dts, T):
        r, m, c, w = [], [], [], []
        for i, dt in enumerate(dts):
            O = Otile(qb, dt)
            R = O if O.f == "v" else T[4 * i: 4 * i + 4]
            if O.f == "a":
                r += [valu("v_accvgpr_read_b32", R[j], O[j]) for j in range(4)]
            m += scale2(R[0:2], qb) + scale2(R[2:4], qb)
            cc = [valu("v_cvt_pk_bf16_f32", R[0], R[0], R[1]), valu("v_cvt_pk_bf16_f32", R[1], R[2], R[3])]
            c += cc
            wr = owrite(R[0:2], AD[dt % 4], qb % 2, dt)
            wr.after = cc[1]
            w.append(wr)
        return r, m, c, w

    ep, wr, sts = [], [], []
    lastw = {}
    for q in range(2):
        for grp in range(3):
            r, m, c, w = epi_group(2 + q, range(4 * grp, 4 * grp + 4), TT[grp])
            setw(r, earliest=done[(6, 4 * grp + 3, 2 + q)] + 4)
            setw(m, earliest=kA + 7)
            if q:
                r[0].after = lastw[grp]
            lastw[grp] = w[-1]
            ep += r + m + c
            wr += w
        for n in range(6 * q, 6 * q + 6):
            rd = oread(Z[n], n, ("OR", b + 1, 1, n))
            rd.flags.add("head")
            wr.append(rd)
        w = waitl(("OR", b + 1, 1, 6 * q + 5))
        w.after = wr[-1]
        w.delay = 6
        sts.append(w)
        for n in range(6 * q, 6 * q + 6):
            st = ostore(Z[n], 1, n, [("OR", b + 1, 1, n)], True)
            st.flags.add("head")
            sts.append(st)
    e1 = start[8] + OPT.get("e1", 40)
    u.streams.append(Stream(ep, start[6] + 10, e1, prio=0.3))
    u.streams.append(Stream(wr, start[6] + 10, e1 + 14, prio=0.3))
    u.streams[-1].headmax = 8
    u.streams.append(Stream(sts, start[7], end[OPT.get("stend", 11)], prio=0.3))
    u.streams[-1].headmax = 4
    u.streams[-1].pace = True
    u.streams.append(Stream(rinv_stream(0), start[12] + 3, start[12] + 8, prio=0.5))
    Z = [Qc[4 * i: 4 * i + 4] for i in range(12)]
    ep, wr = [], []
    for grp, q in ((0, 0), (0, 1), (1, 0)):
        r, m, c, w = epi_group(q, range(4 * grp, 4 * grp + 4), None)
        setw(m, earliest=done[(12, 4 * grp + 3, q)] + 3)
        ep += m + c
        wr += w
    u.streams.append(Stream(ep, start[12] + 9, end[12], prio=0.3))
    u.streams.append(Stream(wr, start[12] + 9, end[12], prio=0.3))
    u.streams[-1].headmax = 8

    def weave(v, w):
        o, n = [], len(w)
        for i, x in enumerate(v):
            o.append(x)
            while w and (n - len(w)) < (i + 1) * n / len(v):
                o.append(w.pop(0))
        return o

    po = u.pin[last]
    _, m11, c11, w11 = epi_group(1, range(4, 8), None)
    _, m20, c20, w20 = epi_group(0, range(8, 12), None)
    _, m21, c21, w21 = epi_group(1, range(8, 12), None)
    po += m11 + m20 + c20 + weave(c11 + m21, w20)
    po += [oread(Z[n], n, ("OR", b + 1, 0, n)) for n in range(6)]
    po += weave(c21, w11)
    st = [ostore(Z[n], 0, n, [("OR", b + 1, 0, n)], True) for n in range(6)]
    po += [waitl(("OR", b + 1, 0, 5))] + weave(st[:4], w21)
    po += [oread(Z[n], n, ("OR", b + 1, 0, n)) for n in range(6, 12)] + st[4:]
    for n in range(6, 12):
        po += [waitl(("OR", b + 1, 0, n)), ostore(Z[n], 0, n, [("OR", b + 1, 0, n)], True)]
    if OPT["stamp"] == 3:
        for pi, idx in ((2, 12), (4, 13), (6, 14), (7, 20), (9, 21), (11, 22), (12, 23)):
            u.tail[start[pi] - 1] += stamp(idx)
        u.pin[last] = stamp(26) + u.pin[last]
    ALT_P[0] = False
    u.wins = sorted(set(list(start.values()) + list(sumgap.values()) + [start[8] + 15, start[10] + 15, start[6] + 10]))
    u.post += stamp(16) + stamp(17, True)
    if OPT["stamp"]:
        u.post += [I("s_waitcnt vmcnt(0)", "salu")] + stamp(18) + stamp(19, True)
    if OPT.get("dbg"):
        u.post += [I("s_cmp_ge_u32 s2, 8", "salu"), I("s_cbranch_scc1 L_end", "branch"),
                   I(f"s_cmp_lg_u32 {sW}, 0", "salu"), I("s_cbranch_scc1 L_end", "branch"),
                   I("s_waitcnt vmcnt(0)", "salu"), I(f"s_memrealtime {sStamp}", "salu"), I(f"s_memtime {sPC}", "salu"),
                   I("s_waitcnt lgkmcnt(0)", "salu"),
                   salu("s_mov_b32", srdD[2], "256"), salu("s_mov_b32", srdD[3], "0x00020000"),
                   I("s_mov_b64 exec, 1", "salu"),
                   salu("s_sub_u32", sTmp, sStamp[0], s(94)), salu("s_sub_u32", sH, s(78), s(94)),
                   salu("s_mul_i32", sH, sH, "100000"), salu("s_add_u32", sTmp, sTmp, sH),
                   valu("v_mov_b32", v(34), sTmp),
                   salu("s_sub_u32", sTmp, sPC[0], s(100)), valu("v_mov_b32", v(35), sTmp),
                   salu("s_lshl_b32", sTmp, "s2", "3"),
                   I(f"buffer_store_dwordx2 {v(34, 2)}, off, {srdD}, {sTmp}", "vmem", rd=[srdD])]
    u.post += [label("L_end"), I("s_endpgm", "branch")]
    return u


def build(extra):
    cache = {}

    def get(name, fn, first):
        u = fn()
        ins = u.schedule(budget=8, window=50, pk_at=20, verbose=first and VERB)
        out = []
        for idx, i in enumerate(ins):
            n = extra.get((name, idx), 0)
            if n:
                out.append(((name, idx, "nop"), nop(n - 1)))
            out.append(((name, idx), i))
        if first:
            cache[name] = out
        return out

    trace = list(get("PRO", unit_pro, True))
    for b in range(3):
        for t in range(1, 15 if b < 2 else 12):
            if b == 0 and t <= NFIRST:
                trace += get(f"T{t}f", lambda: unit_mid(b, t, True), True)
            else:
                trace += get(f"T{t}", lambda: unit_mid(b, t), b == (1 if t <= NFIRST else 0))
        if b < 2:
            trace += get("X", lambda: unit_x(b), b == 0)
    trace += get("FIN", lambda: unit_fin(2), True)
    order = ["PRO"] + [f"T{t}f" for t in range(1, NFIRST + 1)] + [f"T{t}" for t in range(1, 15)] + ["X", "FIN"]
    return [(n, cache[n]) for n in order], trace


VERB = False
extra = {}
for it in range(60):
    static, trace = build(extra)
    hz = hazards([i for _, i in trace])
    if not hz:
        break
    upd = {}
    lastj = -100
    for j, need, why in hz:
        key = trace[j][0]
        if j != lastj and j - lastj < 24:
            continue
        lastj = j
        upd[key] = max(upd.get(key, 0), need)
        if OPT.get("showhz"):
            print("; hazard:", key, need, why, file=sys.stderr)
    for k, n in upd.items():
        extra[k] = extra.get(k, 0) + n
else:
    raise SystemExit("hazards did not converge")
if OPT.get("verb"):
    VERB = True
    _so = sys.stdout
    sys.stdout = sys.stderr
    build(extra)
    sys.stdout = _so
    print("; nops inserted:", extra, file=sys.stderr)
W = resolve_waits(trace)
_bad = check_coverage(trace, W)
assert not _bad, _bad[:10]
if OPT.get("verb") and "_mismatch" in W:
    print("; wait mismatches:", W["_mismatch"], file=sys.stderr)

out = []
A = out.append
A(open(os.path.join(os.path.dirname(os.path.abspath(__file__)), "header.txt")).read().rstrip())
A(f"; @launch grid=(256,1,1) block=(256,1,1) lds={LDS_BYTES}")
A('.amdgcn_target "amdgcn-amd-amdhsa--gfx950"')
A(".text")
A(f".globl {KNAME}")
A(".p2align 8")
A(f".type {KNAME},@function")
A(f"{KNAME}:")
for name, ins in static:
    A(f"; ---- {name} ----")
    for key, i in ins:
        t = i.text
        if i.kind == "wait":
            l, vv = W[key]
            t = "s_waitcnt " + (f"lgkmcnt({l})" if l is not None else f"vmcnt({vv})")
        abl = OPT.get("abl", "")
        if abl and name not in ("PRO",):
            tx = i.text
            if "c" in abl and "s_cbranch_vccnz" in tx:
                t = "s_nop 0"
            if "b" in abl and i.kind == "barrier":
                t = "s_nop 0"
            if "k" in abl and i.kind == "vmem" and (str(srdK) in tx or str(srdV) in tx):
                t = "s_nop 1"
            if "w" in abl and i.kind == "wait" and i.waitl is not None:
                t = "s_nop 0"
            if "W" in abl and i.kind == "wait" and i.waitv is not None:
                t = "s_nop 0"
            if "s" in abl and i.kind == "vmem" and (str(srdQ) in tx or str(srdO) in tx):
                t = "s_nop 1"
            if "z" in abl and "ds_write" in tx:
                t = "s_nop 1"
            tok = tx.replace(",", " ").split()
            if "v" in abl and i.kind in ("valu", "trans") and any(str(r) in tok for r in X):
                t = "s_nop 0"
            if "V" in abl and i.kind in ("valu", "trans") and any(str(r) in tok for r in X):
                continue
            if "d" in abl and i.kind == "ds" and i.wr and i.wr[0] in names(FR):
                t = "s_nop 0"
            if "e" in abl and i.kind == "valu" and ("pk_mul" in tx or "accvgpr" in tx or ("cvt_pk" in tx and not any(str(r) in tok for r in X))):
                continue
            if "o" in abl and i.kind == "mfma" and i.wr == TS.names():
                continue
        if OPT.get("e64") and re.match(r"v_(exp_f32|add_f32|mul_f32|mov_b32|xor_b32|max_f32|rcp_f32) ", t) and "96" not in t.split(",")[1]:
            t = t.replace(" ", "_e64 ", 1)
        A(t if i.kind == "label" else "    " + t)
for name, x, par in TRAMPS:
    A(f"L_tr_{name}:")
    A(f"    s_call_b64 {sRet}, L_rare_{'AB'[x]}{par}")
    A(f"    s_branch L_ret_{name}")
for x, par in ((0, 0), (0, 1), (1, 0), (1, 1), (1, 3)):
    if True:
        ALT_P[0] = par == 3
        r = rare(x, par)
        ALT_P[0] = False
        hz = hazards(r)
        assert not hz, hz
        for i in r:
            A(i.text if i.kind == "label" else "    " + i.text)
A("L_code_end:")
A("    s_endpgm")
A(f""".section .rodata,"a"
.p2align 6
.amdhsa_kernel {KNAME}
  .amdhsa_next_free_vgpr 512
  .amdhsa_next_free_sgpr 102
  .amdhsa_accum_offset 256
  .amdhsa_group_segment_fixed_size 0
  .amdhsa_kernarg_size 48
  .amdhsa_user_sgpr_count 2
  .amdhsa_user_sgpr_kernarg_segment_ptr 1
  .amdhsa_system_sgpr_workgroup_id_x 1
  .amdhsa_float_denorm_mode_32 3
.end_amdhsa_kernel""")
def insert_hops(lines):
    import subprocess, tempfile
    i0, i1 = lines.index("L_main:"), lines.index("L_end:")
    probe = list(lines)
    probe[i1:i1] = [f"L_hop_{w}:" for w in range(4)]
    with tempfile.TemporaryDirectory() as d:
        open(d + "/p.s", "w").write("\n".join(probe))
        subprocess.run(["clang", "-x", "assembler", "-target", "amdgcn-amd-amdhsa", "-mcpu=gfx950", "-c",
                        d + "/p.s", "-o", d + "/p.o"], check=True)
        dis = subprocess.run(["llvm-objdump", "-d", "--mcpu=gfx950", d + "/p.o"],
                             capture_output=True, text=True).stdout.splitlines()
    k = next(n for n, l in enumerate(dis) if l.endswith("<L_main>:"))
    sizes = [4 * len(l.split("//")[1].split(":")[1].split()) for l in dis[k:] if "//" in l]
    res, addr, n, nxt, pos = lines[:i0 + 1], 0, 0, 4096, []
    for l in lines[i0 + 1:i1]:
        if l in ("L_loop:", "L_join:") and NFIRST or l == "L_fin:":
            if res[-1].startswith(";"):
                c = res.pop()
                unc = res[-1].strip().startswith("s_branch")
                res.append(c)
            pos.append(len(res) + (0 if unc else 1))
            if unc:
                res.append(None)
                res.append(l)
            else:
                res.append(l)
                res.append(None)
            addr += 4
            continue
        if l.startswith("    "):
            if addr >= nxt:
                pos.append(len(res))
                res.append(None)
                addr += 4
                nxt += 4096
            addr += sizes[n]
            n += 1
        res.append(l)
    assert len(pos) >= 4
    for i, p_ in enumerate(pos):
        tgt = f"L_hop_{i + 4}" if i + 4 < len(pos) else "L_hop_end"
        res[p_] = f"L_hop_{i}:\n    s_cbranch_execz {tgt}"
    return res + lines[i1:]


if OPT.get("hops", 1):
    out = insert_hops("\n".join(out).split("\n"))
print("\n".join(out))
```

```python
import re


def rl(f, lo, n=1):
    return [f"{f}{lo + i}" for i in range(n)]


class Reg:
    def __init__(self, f, lo, n=1):
        self.f, self.lo, self.n = f, lo, n

    def __getitem__(self, i):
        if isinstance(i, slice):
            a = i.start or 0
            b = i.stop if i.stop is not None else self.n
            assert 0 <= a < b <= self.n, (a, b, self.n)
            return Reg(self.f, self.lo + a, b - a)
        assert 0 <= i < self.n, (i, self.n)
        return Reg(self.f, self.lo + i, 1)

    def __str__(self):
        if self.n == 1:
            return f"{self.f}{self.lo}"
        return f"{self.f}[{self.lo}:{self.lo + self.n - 1}]"

    def names(self):
        return rl(self.f, self.lo, self.n)


def names(*xs):
    out = []
    for x in xs:
        if isinstance(x, Reg):
            out += x.names()
        elif isinstance(x, str):
            if re.fullmatch(r"[vas]\d+|vcc|scc|m0|exec", x):
                out.append(x)
        elif isinstance(x, (list, tuple)):
            out += names(*x)
    return out


COST = dict(mfma=8, valu=4, trans=8, ds=4, vmem=12, salu=4, wait=4, nop=4, branch=4, barrier=8, label=0)


class I:
    def __init__(self, text, kind, rd=(), wr=(), tag=None, waitl=None, waitv=None, cost=None,
                 srcc=None, ab=None, earliest=None, latest=None, states=1, flags=(), needl=None, needv=None):
        self.text, self.kind = text, kind
        self.rd, self.wr = names(rd), names(wr)
        self.tag, self.waitl, self.waitv = tag, waitl, waitv
        self.cost = COST[kind] if cost is None else cost
        self.srcc = names(srcc) if srcc is not None else []
        self.ab = names(ab) if ab is not None else []
        self.earliest, self.latest = earliest, latest
        self.states = 0 if kind == "label" else states
        self.flags = set(flags)
        self.needl, self.needv = needl, needv

    def __repr__(self):
        return f"<{self.text}>"


def mfma(d, a, b, c):
    cs = str(c) if isinstance(c, Reg) else "0"
    op = "v_mfma_f32_32x32x16_bf16" if d.n == 16 else "v_mfma_f32_16x16x32_bf16"
    m = I(f"{op} {d}, {a}, {b}, {cs}", "mfma", rd=[a, b] + ([c] if isinstance(c, Reg) else []),
          wr=[d], srcc=[c] if isinstance(c, Reg) else [], ab=[a, b])
    m.passes = 8 if d.n == 16 else 4
    return m


def valu(op, d, *src, kind="valu", extra_rd=(), extra_wr=(), **kw):
    ops = ", ".join(str(x) for x in (d,) + src)
    rd = [re.sub(r"^-", "", s) if isinstance(s, str) else s for s in src]
    return I(f"{op} {ops}", kind, rd=list(rd) + list(extra_rd), wr=[d] + list(extra_wr), **kw)


def trans(op, d, s, **kw):
    return valu(op, d, s, kind="trans", **kw)


def salu(op, d, *src, scc_w=False, scc_r=False, **kw):
    ops = ", ".join(str(x) for x in (d,) + src)
    return I(f"{op} {ops}", "salu", rd=list(src) + (["scc"] if scc_r else []), wr=[d] + (["scc"] if scc_w else []), **kw)


def nop(n=0):
    return I(f"s_nop {n}", "nop", states=n + 1, cost=4 * (n + 1))


def label(name):
    return I(f"{name}:", "label")


def waitl(*tags):
    return I("s_waitcnt lgkmcnt(?)", "wait", waitl=list(tags))


def waitv(*tags):
    return I("s_waitcnt vmcnt(?)", "wait", waitv=list(tags))


def barrier():
    return I("s_barrier", "barrier")


class Stream:
    def __init__(self, items, start, end, prio=0, look=1):
        self.items, self.start, self.end, self.prio, self.look = list(items), start, end, prio, look
        self.total = sum(i.cost for i in self.items)
        self.done = 0

    def cands(self, k, emitted):
        if k < self.start:
            return []
        out = []
        rd, wr = set(), set()
        for it in self.items[:self.look]:
            ird, iwr = set(it.rd), set(it.wr)
            ok = not (ird & wr or iwr & wr or iwr & rd)
            if it.earliest is not None and k < it.earliest:
                break
            if getattr(it, "after", None) is not None and (
                    id(it.after) not in emitted or k < min(self.end, emitted[id(it.after)] + getattr(it, "delay", 0))):
                ok = False
            if it.kind not in ("valu", "trans") or it.flags:
                if it is self.items[0] and ok:
                    out.append(it)
                break
            if ok:
                out.append(it)
            rd |= ird
            wr |= iwr
        return out


class Unit:
    def __init__(self, name):
        self.name = name
        self.pre = []
        self.heads = []
        self.pin = []
        self.tail = []
        self.streams = []
        self.post = []
        self.win0 = 0
        self.fixed_budget = False

    def add_gap(self, m):
        self.heads.append(m)
        self.pin.append([])
        self.tail.append([])
        return len(self.heads) - 1

    def schedule(self, budget=24, window=24, pk_at=36, verbose=False):
        n = len(self.heads)
        window = getattr(self, 'window', window)
        fixed = [sum(i.cost for i in self.pin[k]) + sum(i.cost for i in self.tail[k]) for k in range(n)]
        target = [float(budget)] * n
        demand = [0.0] * n
        for s in self.streams:
            ln = s.end - s.start + 1
            for k in range(s.start, s.end + 1):
                demand[k] += s.total / ln
        wins = getattr(self, "wins", None) or list(range(self.win0, n, window))
        for w0, w1 in zip(wins, wins[1:] + [n]):
            ks = [k for k in range(w0, w1) if demand[k] > 0]
            need = sum(demand[k] for k in ks)
            t = float(budget)
            while ks and sum(max(0.0, t - fixed[k]) for k in ks) < need * (1.04 if t == budget else 1.0):
                t += 0.25
            for k in range(w0, w1):
                target[k] = t
        free = [max(0.0, target[k] - fixed[k]) for k in range(n)]
        cumfree = [0.0]
        for f in free:
            cumfree.append(cumfree[-1] + f)
        out = list(self.pre)
        emitted = {id(i): -1 for i in out}
        used = []
        carry = 0.0
        for k in range(n):
            if self.heads[k] is not None:
                out.append(self.heads[k])
            out += self.pin[k]
            over = target[k] > budget
            rem = free[k] + (carry if over else 0.0)
            tailc = sum(i.cost for i in self.tail[k])
            u = fixed[k] - tailc
            haspk = False
            commit = None
            nvalu = sum(1 for i in self.pin[k] if i.kind in ("valu", "trans"))

            def pkdist(s):
                c = 0
                for x in s.items[:6]:
                    if x.earliest is not None and k < x.earliest:
                        return None
                    if getattr(x, "after", None) is not None and id(x.after) not in emitted:
                        return None
                    if "pk" in x.flags:
                        return c
                    c += x.cost
                return None

            while True:
                best, bestit, bestscore = None, None, None
                room = budget - u - tailc
                allc = [(s, s.cands(k, emitted)) for s in self.streams if s.items]
                for s, cl in allc:
                    if not cl:
                        continue
                    dl = min([x.latest for x in s.items if x.latest is not None] + [s.end])
                    f = dl <= k
                    cap_tot = (cumfree[s.end + 1] - cumfree[s.start]) or 1
                    cap_el = cumfree[min(k, s.end) + 1] - cumfree[s.start]
                    lag = cap_el / cap_tot - s.done / s.total
                    for ci, it in enumerate(cl):
                        score = lag + s.prio - 0.001 * ci
                        last = out[-1] if out else None
                        if last is not None and last.kind == "trans" and it.kind == "valu" and set(last.wr) & set(it.rd):
                            score -= 50
                        if "permlane" in it.text and any(is_valu(x) and set(x.wr) & set(it.rd) for x in out[-2:]):
                            if not f:
                                continue
                            score -= 50
                        if "head" in it.flags and not f:
                            if nvalu or u > getattr(s, "headmax", budget / 3) or (lag < 0 and getattr(s, "pace", False)):
                                continue
                            score += 300
                        elif ("pk" in it.flags and haspk and "pk" in last.flags) or (last is not None and "pk" in last.flags):
                            score += 200 if "pk" in it.flags else 150
                        elif commit is s:
                            score += 180
                        elif f:
                            score += 100
                        else:
                            if over:
                                if room > 0:
                                    if it.cost <= room:
                                        score += 10 + (2 if it.cost == room else 0)
                                    elif rem < it.cost / 2.0:
                                        score -= 5
                                    if lag <= -0.06:
                                        score -= 20 if it.cost <= room else 1000
                                else:
                                    if rem < it.cost / 2.0 + 1 or lag <= -0.02:
                                        continue
                            else:
                                if (it.cost > rem and not ("pk" in it.flags and rem > 0)) or lag <= -0.02:
                                    continue
                                if it.cost == room:
                                    score += 0.02
                            if score < -500:
                                continue
                        if best is None or score > bestscore:
                            best, bestit, bestscore = s, it, score
                if best is None:
                    break
                it = bestit
                if commit is None and not haspk and pkdist(best) is not None:
                    commit = best
                if "pk" in it.flags and self.heads[k] is not None and u < pk_at:
                    alt = [(s, c) for s, cl in allc for c in cl[:1] if s is not best and not (c.flags & {"pk", "head"})
                           and c.kind in ("valu", "trans", "salu")
                           and not ("permlane" in c.text and any(is_valu(x) and set(x.wr) & set(c.rd) for x in out[-2:]))]
                    if alt:
                        best, it = min(alt, key=lambda sc: sc[0].done / sc[0].total - (k - sc[0].start) / (sc[0].end - sc[0].start + 1))
                    else:
                        rem -= pk_at - u
                        u = pk_at
                if "pk" in it.flags:
                    haspk = True
                    commit = None
                if it.kind in ("valu", "trans"):
                    nvalu += 1
                best.items.remove(it)
                best.done += it.cost
                rem -= it.cost
                u += it.cost
                out.append(it)
                emitted[id(it)] = k
            carry = min(rem, budget) if over else 0.0
            u += tailc
            out += self.tail[k]
            used.append(u)
        for s in self.streams:
            assert not s.items, (self.name, "stream not drained", s.items[0])
        out += self.post
        self.used = used
        if verbose:
            est = sum(max(budget + 8, 8 + u) if self.heads[k] is not None else u for k, u in enumerate(used))
        return out


def resolve_waits(trace):
    res = {}
    ds_idx, vm_idx = {}, {}
    nds = nvm = 0
    for key, ins in trace:
        if ins.kind == "ds":
            nds += 1
            if ins.tag is not None:
                ds_idx[ins.tag] = nds
        elif ins.kind == "vmem":
            nvm += 1
            if ins.tag is not None:
                vm_idx[ins.tag] = nvm
        elif ins.kind == "wait":
            l = v = None
            if ins.waitl is not None:
                need = max(ds_idx[t] for t in ins.waitl)
                l = min(15, nds - need)
            if ins.waitv is not None:
                need = max(vm_idx[t] for t in ins.waitv)
                v = min(63, nvm - need)
            if key in res:
                pl, pv = res[key]
                if (pl, pv) != (l, v):
                    res.setdefault("_mismatch", []).append((key, (pl, pv), (l, v)))
                l = None if l is None else min(l, pl)
                v = None if v is None else min(v, pv)
            res[key] = (l, v)
    return res


def is_valu(i):
    return i.kind in ("valu", "trans")


def hazards(seq):
    out = []
    n = len(seq)
    for j in range(n):
        c = seq[j]
        if c.kind in ("label", "nop", "wait", "barrier"):
            continue
        crd, cwr = set(c.rd), set(c.wr)
        dist = 0
        i = j - 1
        while i >= 0 and dist < 20:
            p = seq[i]
            pw = set(p.wr)
            need = 0
            why = ""
            if is_valu(p):
                if c.kind == "mfma" and pw & crd:
                    need, why = 2, "valu->mfma"
                if "pk" in p.flags and c.kind == "mfma":
                    need, why = max(need, 1), "pk->mfma"
                if p.kind == "trans" and c.kind == "valu" and pw & crd:
                    need, why = max(need, 1), "trans->valu"
                if "permlane" in c.text and pw & (crd | cwr):
                    need, why = max(need, 2), "valu->permlane"
                if ("readfirstlane" in c.text or "readlane" in c.text) and pw & crd:
                    need, why = max(need, 1), "valu->readlane"
                sw = {x for x in pw if x[0] == "s" or x == "vcc"}
                if sw & crd:
                    if is_valu(c):
                        need, why = max(need, 2), "valu sgpr->valu"
                    elif c.kind == "vmem":
                        need, why = max(need, 5), "valu sgpr->vmem"
            elif p.kind == "mfma":
                if c.kind == "mfma":
                    if pw & set(c.ab):
                        need, why = p.passes + 4, "mfma D->AB"
                    elif pw & set(c.srcc) and set(c.srcc) != pw:
                        need, why = p.passes + 2, "mfma D->C partial"
                    elif pw & cwr and not (set(c.srcc) == pw):
                        need = 0
                elif is_valu(c) or c.kind in ("ds", "vmem"):
                    if pw & (crd | cwr):
                        need, why = p.passes + 4, "mfma D->other"
                    if is_valu(c) and set(p.srcc) & cwr:
                        need, why = max(need, p.passes - 1), "mfma C WAR"
            elif p.kind == "salu":
                if "m0" in pw and c.kind == "vmem" and "m0" in crd:
                    need, why = 1, "m0->dma"
            elif p.kind == "vmem" and "store" in p.text:
                if set(p.flags) & {"wide"} and (set(p.rd) & cwr):
                    need, why = 2, "store data WAR"
            if need > dist:
                out.append((j, need - dist, why + f" [{p.text}] -> [{c.text}]"))
            dist += p.states
            i -= 1
    return out


def check_coverage(trace, W):
    ds_idx, vm_idx = {}, {}
    nds = nvm = 0
    dsdone = vmdone = 0
    bad = []
    for key, ins in trace:
        for t in (ins.needl or []):
            if t in ds_idx and ds_idx[t] > dsdone:
                bad.append((key, ins.text, "lgkm", t))
            if t not in ds_idx and not (isinstance(t, tuple) and t[1] < 0):
                bad.append((key, ins.text, "lgkm-missing", t))
        for t in (ins.needv or []):
            if t in vm_idx and vm_idx[t] > vmdone:
                bad.append((key, ins.text, "vm", t))
        if ins.kind == "ds":
            nds += 1
            if ins.tag is not None:
                ds_idx[ins.tag] = nds
        elif ins.kind == "vmem":
            nvm += 1
            if ins.tag is not None:
                vm_idx[ins.tag] = nvm
        elif ins.kind == "wait":
            l, v = W[key]
            if l is not None:
                dsdone = max(dsdone, nds - l)
            if v is not None:
                vmdone = max(vmdone, nvm - v)
        elif ins.text.startswith("s_waitcnt lgkmcnt(0)"):
            dsdone = nds
    return bad
```

```python
import sys, struct, math, os, re
sys.path.insert(0, os.path.dirname(os.path.abspath(__file__)))
import asmlib
from asmlib import *

asmlib.COST.update(vmem=8, barrier=8)
KNAME = "standalone__gqa_softmax__near_ridge_kernel"
OPT = dict(
    sgaps=[[20, 28, 36], [74, 82, 90]],
    qa_slots=[9, 11, 13, 14], qb_slots=[19, 21, 23, 25],
    oa_rd=[(1, g) for g in (1, 17, 25, 33, 41, 45, 59, 67)] + [(2, g) for g in (1, 9, 17, 22)],
    oa_st=[(1, 74), (1, 82), (1, 90), (2, 20), (2, 44), (2, 74), (3, 20), (3, 44), (3, 74), (4, 16), (4, 24), (4, 32)],
    ob_rd=[(3, g) for g in (71, 75, 79, 83, 87, 91, 95)] + [(4, g) for g in (1, 9, 18, 26, 34)],
    ob_st=[(8, 20), (8, 36), (8, 74), (8, 90), (13, 20), (13, 44), (13, 74), (14, 20), (14, 44), (15, 20), (15, 36), (15, 44)],
    ob_stg=4,
    ob_early=[(5, 20), (5, 32), (5, 44), (6, 20), (6, 32), (7, 74), (7, 82), (7, 90)],
    qar_iter=9,
    kgaps=[4, 8, 12], vgaps=[48, 58, 66],
    bar_gap=98,
    wper=3, look=5,
    thr=4096.0,
    stamp=0,
    codewarm=1,
    pk=1,
    kv_nt=" nt", q_nt=" nt", o_nt=" sc1",
)
for a in sys.argv[1:]:
    if "=" in a:
        k, v = a.split("=", 1)
        OPT[k] = eval(v)

TILE = 12288
KSLOT = [0, 1, 2, 3] * 4
VSLOT = [0, 1, 2, 3] * 4
KBASE, VBASE, STAGE, SPARE = 0, 4 * TILE, 8 * TILE, 12 * TILE
LDS_BYTES = 13 * TILE
KD, VD = 4, 3
RING = 6
P2 = 50
NG = 100


def f2u(x):
    return struct.unpack("<I", struct.pack("<f", x))[0]


v = lambda lo, n=1: Reg("v", lo, n)
a = lambda lo, n=1: Reg("a", lo, n)
s = lambda lo, n=1: Reg("s", lo, n)

vLin = v(1)
vK = [v(2), v(3)]
vV = [v(4 + i) for i in range(4)]
vD = [v(8 + i) for i in range(3)]
vDO = [v(11 + i) for i in range(3)]
vS = [v(14), v(15)]
rinv = [v(16 + 2 * i) for i in range(4)]
rinv2 = [v(16 + 2 * i, 2) for i in range(4)]
lsum = [v(17 + 2 * i) for i in range(4)]
negmc = [v(24 + i) for i in range(4)]
TS = v(28, 4)
vOW = v(32)
E = [v(33), v(34), v(35)]
X = [v(36), v(37), v(38), v(39), v(0)]
PA = [v(40, 8), v(48, 8)]
PB = v(56, 8)
SA = v(64, 16)
SB = [v(80, 16), v(96, 16)]
OA = v(112, 96)
STG = v(208, 48)
OB = a(0, 96)
Qc = a(96, 96)
FR = [a(192 + 4 * i, 4) for i in range(RING)]
SQ = [a(216 + 4 * i, 4) for i in range(8)]
JUNK = SQ[7]
ONES = [a(248, 4), a(252, 4)]
OX = [OA, OB]

ptrQ, ptrK, ptrV, ptrO = s(4, 2), s(6, 2), s(8, 2), s(10, 2)
srdK, srdV, srdQ, srdO = s(12, 4), s(16, 4), s(20, 4), s(24, 4)
sBG, sH, sKO, sQO, sQOcur, sNrec, sTrip, sC, sNegC, sThr, sMagic, sW = [s(28 + i) for i in range(12)]
sRet = s(40, 2)
m0K = [s(42 + i) for i in range(4)]
sStage, sQB = s(46), s(47)
m0V = [s(48 + i) for i in range(4)]
sT = ["0"] + [s(51 + t) for t in range(1, 16)]
srdD = s(68, 4)
sStamp = s(72, 2)
sPC = s(76, 2)
sG = [[s(80 + 4 * x + j) for j in range(4)] for x in range(2)]
sM = [s(88 + j) for j in range(4)]
sTmp = s(92)
srdO2 = s(96, 4)
sWarm = s(74, 2)

SCALE_C = math.log2(math.e) / math.sqrt(192.0)


def Qreg(qb, ks):
    return Qc[(qb * 6 + ks) * 4: (qb * 6 + ks) * 4 + 4]


def Otile(qb, dt):
    n = (dt * 2 + qb % 2) * 4
    return OX[qb // 2][n: n + 4]


ALT_S = [False]


def Sbuf(x, tile):
    if x == 0 and tile == 0 and ALT_S[0]:
        return SB[1]
    return SA if x == 0 else SB[tile % 2]


ALT_P = [False]


def Pbuf(x, tile):
    if x == 1 and ALT_P[0] and tile % 2 == 1:
        return PA[1]
    return PA[tile % 2] if x == 0 else PB


def dma(srd, soff, c, tag):
    off = f" offset:{c * 1024}" if c else ""
    fl = OPT.get("k_nt" if srd is srdK else "v_nt", OPT["kv_nt"])
    return I(f"buffer_load_dwordx4 {vD[c]}, {srd}, {soff} offen{off}{fl} lds", "vmem",
             rd=[vD[c], srd, soff, "m0"], tag=tag)


def setm0(x):
    return salu("s_mov_b32", "m0", x)


def qdma(x, jj, c, tag, need=None):
    off = f" offset:{c * 1024}" if c else ""
    return I(f"buffer_load_dwordx4 {vD[c]}, {srdQ}, {sG[x][jj]} offen{off}{OPT['q_nt']} lds", "vmem",
             rd=[vD[c], srdQ, sG[x][jj], "m0"], tag=tag, needl=need)


def qread(dst, n, addr, tag, need=None):
    q, ks = n // 6, n % 6
    off = q * 6144 + (ks // 2) * 128
    return I(f"ds_read_b128 {dst}, {addr[ks % 2]} offset:{off}", "ds", rd=[addr[ks % 2]], wr=[dst], tag=tag, needv=need)


def oaddr(e):
    if e == 0:
        return vOW, []
    return E[2], [valu("v_xor_b32", E[2], str(e * 32), vOW)]


def owrite(src, addr, q, dt):
    off = q * 6144 + (dt // 4) * 128
    return I(f"ds_write_b64 {addr}, {src} offset:{off}", "ds", rd=[addr, src], cost=OPT.get("wcost", 12), flags=["head"])


def oread(dst, idx, tag):
    return I(f"ds_read_b128 {dst}, {vLin} offset:{idx * 1024}", "ds", rd=[vLin], wr=[dst], tag=tag)


def ostore(src, x, idx, need, fin=False, srdO=srdO):
    jj, c = idx // 3, idx % 3
    off = f" offset:{c * 1024}" if c else ""
    fl = OPT.get("of_nt" + "ab"[x], OPT["o_nt"]) if fin else OPT["o_nt"]
    return I(f"buffer_store_dwordx4 {src}, {vDO[c]}, {srdO}, {sG[x][jj]} offen{off}{fl}", "vmem",
             rd=[src, vDO[c], srdO, sG[x][jj]], flags=["wide"], cost=16, needl=need)


def obuf(x, idx):
    if x == 1 and idx < OPT["ob_stg"]:
        return STG[4 * idx: 4 * idx + 4]
    return SQ[idx % 8]


def kread(g, f, tile, at=None):
    kh, ks = (f % 12) // 6, f % 6
    off = KBASE + KSLOT[tile % 16] * TILE + kh * 6144 + (ks // 2) * 128
    d = FR[f % RING]
    r = I(f"ds_read_b128 {d}, {vK[ks % 2]} offset:{off}", "ds", rd=[vK[ks % 2]], wr=[d], tag=("F", g, f))
    r.rtile = ("K", at if at is not None else max(g + 1, 0))
    assert r.rtile[1] % 16 == tile % 16
    return [r]


def vread(g, f, tile, at=None):
    dt = f % 12
    d = FR[f % RING]
    out = []
    for jj in range(2):
        off = VSLOT[tile % 16] * TILE + jj * 6144 + (dt // 4) * 128
        out.append(I(f"ds_read_b64_tr_b16 {d[2 * jj:2 * jj + 2]}, {vV[dt % 4]} offset:{off}", "ds", rd=[vV[dt % 4]],
                     wr=[d[2 * jj:2 * jj + 2]], tag=("F", g, f) if jj == 1 else None))
        out[-1].rtile = ("V", at if at is not None else g)
        assert out[-1].rtile[1] % 16 == tile % 16
    return out


def swap32(u, w):
    return I(f"v_permlane32_swap_b32 {u}, {w}", "valu", rd=[u, w], wr=[u, w], cost=8)


def swap16(u, w):
    return I(f"v_permlane16_swap_b32 {u}, {w}", "valu", rd=[u, w], wr=[u, w], cost=8)


def max_tree(S, u, w):
    o = []
    for a0, a1, a2, first in ((0, 1, 2, True), (3, 4, None, False), (5, 6, None, False)):
        for r, b in ((u, 0), (w, 8)):
            if first:
                o.append(valu("v_max3_f32", r, S[b + a0], S[b + a1], S[b + a2]))
            else:
                o.append(valu("v_max3_f32", r, r, S[b + a0], S[b + a1]))
    o += [valu("v_max_f32", u, u, S[7]), valu("v_max_f32", w, w, S[15])]
    return o


def reduce2(op, u, w):
    return [nop(1), swap32(u, w), valu(op, u, u, w), valu("v_mov_b32", w, u), nop(1), swap16(u, w), valu(op, u, u, w)]


def max_init(x, S):
    u, w = E[0], E[1]
    n0, n1 = negmc[2 * x], negmc[2 * x + 1]
    return nonop(max_tree(S, u, w) + reduce2("v_max_f32", u, w) + [
        valu("v_mul_f32", n0, sNegC, u), valu("v_mul_f32", n1, sNegC, u), nop(1), swap32(n0, n1)])


XPOS = [0]


def exp_stream(x, S, P, order=range(16), late=None):
    out = []
    order = list(order)
    p0 = XPOS[0]
    N = len(order)
    XPOS[0] = (p0 + N) % len(X)
    T = lambda n: X[(p0 + n) % len(X)]
    for n in range(N + 2):
        if n < N:
            i = order[n]
            f = valu("v_fma_f32", T(n), S[i], sC, negmc[2 * x + i // 8])
            if late is not None and i % 8 >= 4:
                f.earliest = late
            out.append(f)
        if 0 <= n - 1 < N:
            out.append(trans("v_exp_f32", T(n - 1), T(n - 1)))
        j = n - 2
        if 0 <= j < N and j % 2 == 1:
            out.append(valu("v_cvt_pk_bf16_f32", P[order[j] // 2], T(j - 1), T(j)))
    return out


TRAMPS = []
KH0_FIRST = [0, 1, 2, 3, 8, 9, 10, 11, 4, 5, 6, 7, 12, 13, 14, 15]


def softmax(x, tile, late=None):
    S, P = Sbuf(x, tile), Pbuf(x, tile)
    if tile == 0:
        return max_init(x, S) + exp_stream(x, S, P)
    return exp_stream(x, S, P, KH0_FIRST if late is not None else range(16), late)


def sum_mfma(x, tile):
    P = Pbuf(x, tile)
    return [mfma(TS, ONES[0], P[0:4], 0), mfma(TS, ONES[1], P[4:8], TS)]


def check(x, tile, site):
    if tile == 0:
        return [], [], [valu("v_mov_b32", lsum[2 * x + i], TS[i]) for i in range(2)]
    par = tile % 2
    if x == 1 and ALT_P[0] and par == 1:
        par = 3
    name = f"{site}_{'AB'[x]}"
    if (name, x, par) not in TRAMPS:
        TRAMPS.append((name, x, par))
    return ([I(f"v_cmp_nge_f32 vcc, {sThr}, {TS[2]}", "valu", rd=[sThr, TS[2]], wr=["vcc"])],
            [I(f"s_cbranch_vccnz L_tr_{name}", "branch", rd=["vcc"]), label(f"L_ret_{name}")],
            [valu("v_add_f32", lsum[2 * x + i], lsum[2 * x + i], TS[i]) for i in range(2)])


def rinv_stream(x):
    u, w = lsum[2 * x], lsum[2 * x + 1]
    r0, r1 = rinv[2 * x], rinv[2 * x + 1]
    return nonop(reduce2("v_add_f32", u, w) + [trans("v_rcp_f32", r0, u), trans("v_rcp_f32", r1, u), nop(1), swap32(r0, r1)])


def scale2(R, qb):
    if OPT["pk"]:
        return [I(f"v_pk_mul_f32 {R}, {R}, {rinv2[qb]} op_sel_hi:[1,0]", "valu", rd=[R, rinv[qb]], wr=[R], flags=["pk"])]
    return [valu("v_mul_f32", R[0], R[0], rinv[qb]), valu("v_mul_f32", R[1], R[1], rinv[qb])]


def epi_a(tt):
    O = OA[16 * tt: 16 * tt + 16]
    m = []
    for i in range(8):
        m += scale2(O[2 * i: 2 * i + 2], (i // 2) % 2)
    c = [valu("v_cvt_pk_bf16_f32", O[i], O[2 * i], O[2 * i + 1]) for i in range(8)]
    w = []
    for n in range(4):
        dt, q = 2 * tt + n // 2, n % 2
        ad, pre = oaddr(dt % 4)
        if q == 0:
            w += pre
        wr = owrite(O[2 * n: 2 * n + 2], ad, q, dt)
        wr.after = c[2 * n + 1]
        w.append(wr)
    return m, c, w


def epi_b(tt, half, T):
    O = OB[16 * tt: 16 * tt + 16]
    D = STG[tt * 8: tt * 8 + 8]
    r = [valu("v_accvgpr_read_b32", T[i], O[8 * half + i]) for i in range(8)]
    m = []
    for i in range(4):
        m += scale2(T[2 * i: 2 * i + 2], 2 + i // 2)
    c = [valu("v_cvt_pk_bf16_f32", D[4 * half + i], T[2 * i], T[2 * i + 1]) for i in range(4)]
    return r, m, c


def ob_writes(es):
    w = []
    for e in es:
        ad, pre = oaddr(e)
        w += pre
        for dt in (e, e + 4, e + 8):
            for q in range(2):
                n = (dt * 2 + q) * 2
                w.append(owrite(STG[n: n + 2], ad, q, dt))
    return w


def nonop(items):
    return [i for i in items if i.kind != "nop"]


def setw(items, earliest=None, latest=None):
    for i in items:
        if latest is not None:
            i.latest = latest if i.latest is None else min(i.latest, latest)
    if earliest is not None:
        items[0].earliest = earliest
    return items


def rare(x, par):
    S, P = Sbuf(x, par), Pbuf(x, par)
    u, w = E[0], E[1]
    f = [u, w]
    n = [negmc[2 * x], negmc[2 * x + 1]]
    o = [label(f"L_rare_{'AB'[x]}{par}"), nop(15)]
    o += max_tree(S, u, w)
    o += [valu("v_fma_f32", u, u, sC, n[0]), valu("v_fma_f32", w, w, sC, n[1])]
    o += reduce2("v_max_f32", u, w)
    o += [valu("v_max_f32", u, "0", u), valu("v_mov_b32", w, u), nop(1), swap32(u, w),
          valu("v_sub_f32", n[0], n[0], u), valu("v_sub_f32", n[1], n[1], w),
          trans("v_exp_f32", u, f"-{u}", extra_rd=[u]), trans("v_exp_f32", w, f"-{w}", extra_rd=[w]), nop(0),
          valu("v_mul_f32", lsum[2 * x], lsum[2 * x], u), valu("v_mul_f32", lsum[2 * x + 1], lsum[2 * x + 1], w)]
    O = OX[x]
    for i in range(96):
        ff = f[(i // 4) % 2]
        if O.f == "a":
            tt = P[i % 4]
            o += [valu("v_accvgpr_read_b32", tt, O[i]), valu("v_mul_f32", tt, tt, ff),
                  valu("v_accvgpr_write_b32", O[i], tt)]
        else:
            o.append(valu("v_mul_f32", O[i], O[i], ff))
    o += [valu("v_fma_f32", S[i], S[i], sC, n[i // 8]) for i in range(16)]
    o += [trans("v_exp_f32", S[i], S[i]) for i in range(16)]
    o += [valu("v_cvt_pk_bf16_f32", P[i], S[2 * i], S[2 * i + 1]) for i in range(8)]
    o += [nop(1)] + sum_mfma(x, par)
    o += [nop(15), I(f"s_setpc_b64 {sRet}", "branch", rd=[sRet])]
    return o


def qk_mfma(tile, f, qb, fr):
    kh, ks = f // 6, f % 6
    n = (qb % 2) * 8 + kh * 4
    d = Sbuf(qb // 2, tile)[n: n + 4]
    return mfma(d, fr, Qreg(qb, ks), d if ks else 0)


def pv_mfma(t, dt, qb, fr, zero):
    o = Otile(qb, dt)
    p = Pbuf(qb // 2, t)[4 * (qb % 2): 4 * (qb % 2) + 4]
    return mfma(o, fr, p, 0 if zero else o)


def frag_read(g, t, f):
    if f < 12:
        return kread(g, f, t + 1)
    if f < 24:
        return vread(g, f, t)
    return kread(g + 1, f - 24, t + 2)


def ftag(g, f):
    return ("F", g, f) if f < 24 else ("F", g + 1, f - 24)


def stamp(idx, real=False):
    if not OPT["stamp"]:
        return []
    if OPT["stamp"] == 2 and idx not in (0, 1, 15, 16, 17, 18, 19, 56, 60, 61):
        return []
    if OPT["stamp"] == 3 and idx in range(2, 12):
        return []
    op = "s_memrealtime" if real else "s_memtime"
    return [I(f"{op} {sStamp}", "salu", wr=[sStamp]), I("s_waitcnt lgkmcnt(0)", "salu"),
            valu("v_mov_b32", E[0], sStamp[0]),
            I(f"buffer_store_dword {E[0]}, off, {srdD}, {sH} offset:{idx * 4}", "vmem", rd=[E[0], srdD])]


def next_block():
    return [salu("s_mov_b32", sQOcur, sQO),
            salu("s_add_u32", sBG, sBG, "32", scc_w=True),
            salu("s_mul_hi_u32", sKO, sBG, sMagic),
            salu("s_mul_i32", sKO, sKO, "196608"),
            salu("s_mul_i32", sQO, sBG, "98304"),
            I(f"s_cmp_lt_u32 {sTrip}, 2", "salu", rd=[sTrip], wr=["scc"]),
            salu("s_cselect_b32", sNrec, "196608", "0", scc_r=True),
            salu("s_cselect_b32", srdQ[2], "98304", "0", scc_r=True),
            salu("s_add_u32", srdQ[0], ptrQ[0], sQO, scc_w=True),
            salu("s_addc_u32", srdQ[1], ptrQ[1], "0", scc_w=True, scc_r=True)]


def add_iter(u, b, t, site, first=False):
    g = b * 16 + t
    base = len(u.heads)
    tn = (t + 1) % 16
    lastuse = {}
    NR = OPT.get("nr", 3)
    seq = [(f, qb) for f in range(NR) for qb in (2, 3)] + [(f, qb) for f in range(NR) for qb in (0, 1)] + \
          [(f, qb) for f in range(NR, 12) for qb in range(4)]
    for f, qb in seq:
        m = qk_mfma(tn, f, qb, FR[f % RING])
        m.needl = [("F", g, f)] + ([("QB", b + 1, (qb - 2) * 6 + f % 6)] if tn == 0 and qb >= 2 else [])
        lastuse[f] = u.add_gap(m)
    for m in sum_mfma(1, t):
        u.add_gap(m)
    seq = [(f, qb) for f in range(NR) for qb in (0, 1)] + [(f, qb) for f in range(NR) for qb in (2, 3)] + \
          [(f, qb) for f in range(NR, 12) for qb in range(4)]
    for dt, qb in seq:
        m = pv_mfma(t, dt, qb, FR[(12 + dt) % RING], t == 0)
        m.needl = [("F", g, 12 + dt)]
        lastuse[12 + dt] = u.add_gap(m)
    for m in sum_mfma(0, tn):
        u.add_gap(m)
    wp = OPT["wper"]
    for f in range(24):
        k = lastuse[f]
        rd = frag_read(g, t, f + RING)
        nsb = OPT.get("nsb", 0)
        if OPT.get("bar2", 0):
            nsb = t % 2
        u.pin[lastuse[19] if nsb and f == 18 else k] += rd
        if (f + 1) % wp == 0:
            kw = k + 2 if f in (11, 23) else (k if len(rd) == 1 else k - 1)
            if nsb and f == 20:
                assert wp == 3
                kw = lastuse[19] - 2
            u.pin[kw].append(waitl(*[ftag(g, f + 1 + i) for i in range(wp)]))
    for x, k in ((0, base), (1, base + P2)):
        c, br, lu = check(x, t, site)
        if x == 1 and OPT.get("cmpb", 0):
            u.pin[k + 3] += c
        else:
            u.tail[k + 2] += c
        kb = k + 2 * NR - 1
        if OPT.get("brhead"):
            u.pin[kb] = br + u.pin[kb]
        else:
            u.tail[kb] += br
        u.streams.append(Stream(lu, kb + 1, kb + 3, prio=0.5))
    dl = []
    bar2 = OPT.get("bar2", 0)
    if bar2:
        plan = [("K", 4, OPT.get("b2o", [84, 88, 92]))] if t % 2 else \
               [("V", 2, [4, 8, 12]), ("K", 4, OPT.get("b2k", [40, 44, 48])), ("V", 3, OPT.get("b2v", [58, 62, 66]))]
    else:
        plan = [("K", KD, OPT["kgaps"]), ("V", VD, OPT["vgaps"])]
    for kind, d, gaps in plan:
        tt = (t + d) % 16
        for c, k in enumerate(gaps):
            if kind == "K":
                dl.append((k, m0K[KSLOT[tt]], dma(srdK, sT[tt], c, ("K", g + d))))
            else:
                dl.append((k, m0V[VSLOT[tt]], dma(srdV, sT[tt], c, ("V", g + d))))
    for x, key in ((0, "oa_rd"), (1, "ob_rd")):
        for idx, (tt, k) in enumerate(OPT[key]):
            if tt == t and not first:
                u.pin[base + k].append(oread(obuf(x, idx), idx, ("OR", b, x, idx)))
    for x, key in ((0, "oa_st"), (1, "ob_st")):
        for idx, (tt, k) in enumerate(OPT[key]):
            if tt == t and not first:
                u.pin[base + k].append(ostore(obuf(x, idx), x, idx, [("OR", b, x, idx)] if b or not NFIRST else []))
    if OPT.get("ob_early") and not first:
        late = [idx for idx, (tt, k) in enumerate(OPT["ob_st"]) if tt > 11]
        for idx, (tt, k) in zip(late, OPT["ob_early"]):
            if tt == t:
                u.pin[base + k].append(ostore(obuf(1, idx), 1, idx, [("OR", b, 1, idx)], srdO=srdO2))
    if t in (2, 3) and not first:
        st = Stream(ob_writes((0, 1)), base + 23, base + 97) if t == 2 else Stream(ob_writes((2, 3)), base + 0, base + 70)
        st.pace = OPT.get("pace", 1)
        u.streams.append(st)
    for half in range(2):
        n = 2 * t + half
        gaps = OPT["sgaps"][half]
        if bar2 and t % 2 and half:
            gaps = [66, 70, 74]
        for x, key in ((0, "qa_slots"), (1, "qb_slots")):
            if n in OPT[key]:
                jj = OPT[key].index(n)
                need = ([] if first else [("OR", b, 1, 11)]) if x == 0 else [("QA", b + 1, 11)]
                for c, k in enumerate(gaps):
                    dl.append((k, sM[jj], qdma(x, jj, c, ("QD", b + 1, x), need)))
    prev, pk_ = None, -9
    for k, m, ins in sorted(dl, key=lambda x: x[0]):
        if m is not prev:
            km = k - 2 if k % 4 == 0 else k - 3
            assert km > pk_ or (km == pk_), (t, k, pk_)
            u.pin[base + km].append(setm0(m))
        u.pin[base + k].append(ins)
        prev, pk_ = m, k
    if OPT["codewarm"] and t == OPT.get("rewarm", 6):
        u.pin[base + 44].append(I(f"global_load_dwordx4 {STG[44:48]}, {vLin}, {sWarm}", "vmem", rd=[vLin, sWarm], wr=[STG[44:48]]))
    pf = OPT.get("pf", [])
    if first and pf and t == 1:
        u.pin[base + 84] += [salu("s_add_u32", sTmp, sQO, str(32 * 98304), scc_w=True)]
        u.pin[base + 86] += [salu("s_add_u32", srdO2[0], ptrQ[0], sTmp, scc_w=True),
                             salu("s_addc_u32", srdO2[1], ptrQ[1], "0", scc_w=True, scc_r=True)]
        u.pin[base + 88] += [salu("s_mov_b32", srdO2[2], "98304"), salu("s_lshl_b32", sTmp, sW, "3", scc_w=True)]
        u.tail[base + 90] += [valu("v_subrev_u32", E[2], sStage, vLin), valu("v_lshl_add_u32", E[2], E[2], "2", sTmp)]
    for i, (tt, k) in enumerate(pf):
        if first and tt == t:
            u.pin[base + k].append(I(f"buffer_load_dword {SQ[0][i % 4]}, {E[2]}, {srdO2}, 0 offen{OPT.get('pf_nt', '')}", "vmem",
                                     rd=[E[2], srdO2], wr=[SQ[0][i % 4]]))
            u.tail[base + k + 1].append(valu("v_add_u32", E[2], "4096", E[2]))
    if t == OPT["qar_iter"]:
        u.pin[base + 0].append(waitv(("QD", b + 1, 0)))
        for n in range(12):
            u.pin[base + 1 + 4 * n].append(qread(STG[n * 4: n * 4 + 4], n, vS, ("QA", b + 1, n), [("QD", b + 1, 0)]))
    if t == 14:
        u.pin[base + P2].append(waitv(("QD", b + 1, 1)))
        for i, n in enumerate([0, 6, 1, 7, 2, 8, 3, 9, 4, 10, 5, 11]):
            u.pin[base + P2 + 1 + 4 * (i // 2) + (8 if i >= 2 else 0)].append(
                qread(Qreg(2 + n // 6, n % 6), n, vS, ("QB", b + 1, n), [("QD", b + 1, 1)]))
    if bar2:
        if t % 2:
            bb = barrier()
            bb.needl = [("F", g, 23)]
            u.pin[lastuse[19] - 1] += [waitv(("K", g + 2), ("K", g + 3), ("V", g + 1), ("V", g + 2)), bb]
    elif OPT.get("nsb", 0):
        bb = barrier()
        bb.needl = [("F", g, 23)]
        u.pin[lastuse[19] - 1] += [waitv(("K", g + 2), ("V", g + 1)), bb]
    else:
        u.pin[base + OPT["bar_gap"] - OPT.get("wv_early", 0)] += [waitv(("K", g + 3), ("V", g + 1))]
        u.pin[base + OPT["bar_gap"]] += [barrier()]
    XPOS[0] = 0
    sb = setw(softmax(1, t), latest=base + 46)
    sa = softmax(0, tn, late=base + 49)
    sa[0].earliest = base + (P2 + 2 * NR if tn == 0 else 30)
    u.streams.append(Stream(sb + sa, base + 0, base + 96, prio=0.05, look=OPT["look"]))
    if t == 1:
        u.streams.append(Stream(next_block(), base + 24, base + 80))
    if t == (12 if bar2 else 15 - KD):
        sl = [salu("s_add_u32", srdK[0], ptrK[0], sKO, scc_w=True),
              salu("s_addc_u32", srdK[1], ptrK[1], "0", scc_w=True, scc_r=True),
              salu("s_mov_b32", srdK[2], sNrec)]
        u.streams.append(Stream(sl, base + 1, base + 20) if bar2 else Stream(sl, base + OPT["kgaps"][-1] + 1, base + 90))
    if t == 15 - VD:
        sl = [salu("s_add_u32", srdV[0], ptrV[0], sKO, scc_w=True),
              salu("s_addc_u32", srdV[1], ptrV[1], "0", scc_w=True, scc_r=True),
              salu("s_mov_b32", srdV[2], sNrec)]
        u.streams.append(Stream(sl, base + max(OPT["vgaps"][-1], 70) + 1, base + 90))
    return base


def qcopy(base):
    out = []
    for ks in range(6):
        for q in range(2):
            for i in range(4):
                out.append(valu("v_accvgpr_write_b32", Qreg(q, ks)[i], STG[(q * 6 + ks) * 4 + i],
                                earliest=base + 4 * (6 + ks) + q))
    return out


def set_osrd():
    return [salu("s_add_u32", srdO[0], ptrO[0], sQOcur, scc_w=True),
            salu("s_addc_u32", srdO[1], ptrO[1], "0", scc_w=True, scc_r=True),
            salu("s_mov_b32", srdO[2], "98304")]


NFIRST = OPT.get("nfirst", 9)


def unit_mid(b, t, first=False):
    u = Unit(f"T{t}" + "f" * first)
    if t == 1 and not first:
        u.pre.append(label("L_loop"))
    if t == NFIRST + 1 and NFIRST:
        u.pre.append(label("L_join"))
    u.pre += stamp(t)
    base = add_iter(u, b, t, f"T{t}" + "f" * first, first)
    if first and t == NFIRST:
        u.post.append(I("s_branch L_join", "branch"))
    if t == 14:
        u.streams.append(Stream(qcopy(base), base + 24, base + 99))
    if t == 11:
        u.tail[base + 96].append(I(f"s_cmp_eq_u32 {sTrip}, 2", "salu", rd=[sTrip], wr=["scc"]))
        u.post += [I("s_cbranch_scc1 L_fin", "branch", rd=["scc"])]
    return u


def unit_x(b):
    u = Unit("X")
    u.pre.append(label("L_x"))
    u.pre += stamp(15)
    b15 = add_iter(u, b, 15, "T15")
    b0 = add_iter(u, b + 1, 0, "T0")
    u.streams.append(Stream(rinv_stream(0), b15 + 9, b15 + 40))
    u.streams.append(Stream(rinv_stream(1), b15 + P2 + 9, b15 + P2 + 15, prio=0.5))
    ep, wr = [], []
    for tt in range(6):
        O = OA[16 * tt: 16 * tt + 16]
        dl = b0 + P2 + (8 * tt if tt != 1 else 4) - 1
        m, c, w = epi_a(tt)
        r0, m0_, c0 = epi_b(tt, 0, O[8:16])
        r1, m1_, c1 = epi_b(tt, 1, O[8:16])
        setw(m, earliest=b15 + P2 + 8 * tt + 9)
        setw(r0, earliest=b15 + P2 + max(16, 8 * tt + 9))
        ep += setw(m + c + r0 + m0_ + c0 + r1 + m1_ + c1, latest=dl)
        wr += setw(w, latest=dl)
    u.streams.append(Stream(ep, b15 + P2 + 9, b0 + P2 + 39))
    u.streams.append(Stream(wr, b15 + P2 + 9, b0 + P2 + 39))
    so = set_osrd()
    if OPT.get("ob_early"):
        so += [salu("s_mov_b32", srdO2[0], srdO[0]), salu("s_mov_b32", srdO2[1], srdO[1]),
               I(f"s_cmp_eq_u32 {sTrip}, 1", "salu", rd=[sTrip], wr=["scc"]),
               salu("s_cselect_b32", srdO2[2], "98304", "0", scc_r=True)]
    u.streams.append(Stream(so, b15 + 46, b15 + 56))
    sl = [salu("s_add_u32", sTrip, sTrip, "1", scc_w=True)]
    if OPT["stamp"]:
        sl.append(salu("s_add_u32", sH, sH, "64", scc_w=True))
    u.streams.append(Stream(sl, b0 + 4, b0 + 80))
    u.post.append(I("s_branch L_loop", "branch"))
    return u


def unit_pro():
    u = Unit("PRO")
    P = u.pre
    tid, lane, i16, G, t0, t1, t2 = v(0), X[0], X[1], X[2], X[3], E[0], E[1]
    P += [I("s_cmp_ge_u32 s2, 256", "salu", rd=["s2"], wr=["scc"]),
          I("s_cbranch_scc1 L_end", "branch", rd=["scc"]),
          I("s_load_dwordx4 s[4:7], s[0:1], 0", "salu", wr=[s(4, 4)]),
          I("s_load_dwordx4 s[8:11], s[0:1], 16", "salu", wr=[s(8, 4)])]
    warm = []
    if OPT["codewarm"]:
        P += [I(f"s_getpc_b64 {sPC}", "salu", wr=[sPC]),
              label("L_pc"),
              I(f"s_sub_u32 {sPC[0]}, {sPC[0]}, L_pc-{KNAME}", "salu", rd=[sPC], wr=[sPC, "scc"]),
              I(f"s_subb_u32 {sPC[1]}, {sPC[1]}, 0", "salu", rd=[sPC, "scc"], wr=[sPC, "scc"]),
              salu("s_lshr_b32", sH, "s2", "3", scc_w=True),
              salu("s_mul_i32", sH, sH, "3072"),
              valu("v_mul_u32_u24", E[2], "12", tid),
              valu("v_add_u32", E[2], sH, E[2]),
              I(f"v_min_u32 {E[2]}, L_code_end-{KNAME}-8, {E[2]}", "valu", rd=[E[2]], wr=[E[2]])]
        warm = [I(f"global_load_dwordx2 {JUNK[0:2]}, {E[2]}, {sPC}", "vmem", rd=[E[2], sPC], wr=[JUNK[0:2]])]
        if OPT["codewarm"] == 1:
            P += warm
            warm = []
    if OPT["stamp"]:
        P += [I(f"s_load_dwordx2 {srdD[0:2]}, s[0:1], 40", "salu"), I(f"s_memrealtime {s(94, 2)}", "salu")]
    if OPT.get("dbg"):
        P += [I(f"s_load_dwordx2 {srdD[0:2]}, s[0:1], 32", "salu"), I(f"s_memrealtime {s(94, 2)}", "salu"),
              I(f"s_memtime {s(100, 2)}", "salu")]
    P += [valu("v_lshrrev_b32", t0, "6", tid), valu("v_and_b32", lane, "63", tid),
          I(f"v_readfirstlane_b32 {sW}, {t0}", "valu", rd=[t0], wr=[sW]),
          valu("v_lshlrev_b32", t1, "4", lane)]
    P += [salu("s_and_b32", sBG, "s2", "7", scc_w=True),
          salu("s_mul_i32", sBG, sBG, "96"),
          salu("s_lshr_b32", sH, "s2", "3", scc_w=True),
          salu("s_add_u32", sBG, sBG, sH, scc_w=True),
          salu("s_mov_b32", sMagic, "0x55555556"),
          salu("s_mul_hi_u32", sKO, sBG, sMagic),
          salu("s_mul_i32", sKO, sKO, "196608"),
          salu("s_mul_i32", sQO, sBG, "98304")]
    P += [salu("s_mov_b32", sQB, str(VBASE + 2 * TILE)),
          I(f"s_cmp_eq_u32 {sW}, 0", "salu", rd=[sW], wr=["scc"]),
          salu("s_cselect_b32", sQB, str(KBASE + 3 * TILE), sQB, scc_r=True),
          I(f"s_cmp_eq_u32 {sW}, 2", "salu", rd=[sW], wr=["scc"]),
          salu("s_cselect_b32", sQB, str(VBASE + 3 * TILE), sQB, scc_r=True),
          I(f"s_cmp_eq_u32 {sW}, 3", "salu", rd=[sW], wr=["scc"]),
          salu("s_cselect_b32", sQB, str(SPARE), sQB, scc_r=True),
          salu("s_mul_i32", sW, sW, "3072")]
    late = []
    for c in range(3):
        P += [valu("v_add_u32", t0, str(c * 1024), t1),
              valu("v_lshrrev_b32", t2, "7", t0),
              valu("v_mul_u32_u24", t2, "171", t2),
              valu("v_lshrrev_b32", vDO[c], "9", t2),
              valu("v_and_b32", vD[c], "6", vDO[c]),
              valu("v_lshlrev_b32", vD[c], "4", vD[c]),
              valu("v_xor_b32", vD[c], vD[c], t1),
              valu("v_add_u32", vD[c], sW, vD[c])]
        late += [valu("v_lshlrev_b32", vDO[c], "4", vDO[c]),
                 valu("v_xor_b32", vDO[c], vDO[c], t1),
                 valu("v_add_u32", vDO[c], sW, vDO[c])]
    P += [salu("s_lshl_b32", sStage, sW, "2", scc_w=True),
          salu("s_add_u32", sStage, sStage, str(STAGE), scc_w=True),
          salu("s_mul_i32", sH, sW, "7")]
    for jj in range(4):
        P += [salu("s_add_u32", sM[jj], sStage, str(jj * 3072), scc_w=True),
              salu("s_add_u32", sG[0][jj], sH, str(jj * 3072), scc_w=True),
              salu("s_add_u32", sG[1][jj], sH, str(jj * 3072 + TILE), scc_w=True)]
    P += [I("s_waitcnt lgkmcnt(0)", "salu")]
    if OPT.get("dbg") == 2:
        P += [I(f"s_memrealtime {s(78, 2)}", "salu"), I("s_waitcnt lgkmcnt(0)", "salu")]

    def mksrd(srd, ptr, off, n):
        return [salu("s_add_u32", srd[0], ptr[0], off, scc_w=True),
                salu("s_addc_u32", srd[1], ptr[1], "0", scc_w=True, scc_r=True),
                salu("s_mov_b32", srd[2], str(n)), salu("s_mov_b32", srd[3], "0x00020000")]

    def ktile(t):
        return [setm0(m0K[KSLOT[t]]), nop(0)] + [dma(srdK, sT[t], c, ("K", t)) for c in range(3)]

    def vtile(t):
        return [setm0(m0V[VSLOT[t]]), nop(0)] + [dma(srdV, sT[t], c, ("V", t)) for c in range(3)]

    P += [setm0(sW)] + mksrd(srdK, ptrK, sKO, 196608) + [dma(srdK, "0", c, ("K", 0)) for c in range(3)]
    if OPT.get("dbg") == 3:
        P += [waitv(("K", 0)), I(f"s_memrealtime {s(78, 2)}", "salu"), I("s_waitcnt lgkmcnt(0)", "salu")]
    P += mksrd(srdQ, ptrQ, sQO, 98304)

    def hopchain(where):
        if not OPT.get("hops", 1) or OPT.get("hopat", 2) != where:
            return []
        o = [I("s_mov_b64 exec, 0", "salu", wr=["exec"])]
        for w in range(3):
            o += [I(f"s_cmp_eq_u32 {sW}, {w * 3072}", "salu", rd=[sW], wr=["scc"]),
                  I(f"s_cbranch_scc1 L_hop_{w}", "branch", rd=["scc"])]
        return o + [I("s_branch L_hop_3", "branch"), label("L_hop_end"), I("s_mov_b64 exec, -1", "salu", wr=["exec"]), nop(3)]

    stag = list(OPT.get("stag", []))

    def hold(i):
        if i >= len(stag):
            return []
        return [I(f"s_cmp_lt_u32 s2, {stag[i]}", "salu", rd=["s2"], wr=["scc"]),
                I(f"s_cbranch_scc1 L_go{i}", "branch", rd=["scc"]),
                I("s_waitcnt vmcnt(0)", "salu"), label(f"L_go{i}")]
    for jj in range(4):
        P += hold(jj) + [setm0(sM[jj]), nop(0)] + [qdma(0, jj, c, ("QD", 0, 0)) for c in range(3)]
    AH = OPT.get("ahead", 1)

    def qbgrp(jj):
        return [salu("s_add_u32", "m0", sQB, str(jj * 3072), scc_w=True), nop(0)] + [qdma(1, jj, c, ("QD", 0, 1)) for c in range(3)]

    tabs = mksrd(srdV, ptrV, sKO, 196608)
    for i in range(4):
        tabs.append(salu("s_add_u32", m0K[i], sW, str(KBASE + i * TILE), scc_w=True))
        tabs.append(salu("s_add_u32", m0V[i], sW, str(VBASE + i * TILE), scc_w=True))
    for t in range(1, 16):
        tabs.append(salu("s_mov_b32", sT[t], str(t * TILE)))
    P += hopchain(1)
    if AH:
        if OPT.get("lo", 0) == 0:
            P += tabs + ktile(1) + vtile(0) + qbgrp(0) + qbgrp(1)
        elif OPT["lo"] == 1:
            P += tabs + ktile(1) + vtile(0) + ktile(2) + vtile(1)
        else:
            P += tabs + ktile(1) + vtile(0) + qbgrp(0) + ktile(2) + vtile(1) + qbgrp(1) + qbgrp(2) + qbgrp(3)
    else:
        P += qbgrp(0) + qbgrp(1) + hopchain(3) + qbgrp(2) + qbgrp(3) + tabs
    P += [salu("s_mov_b32", srdO[0], ptrO[0]), salu("s_mov_b32", srdO[1], ptrO[1]),
          salu("s_mov_b32", srdO[2], "0"), salu("s_mov_b32", srdO[3], "0x00020000"),
          salu("s_mov_b32", srdO2[0], ptrO[0]), salu("s_mov_b32", srdO2[1], ptrO[1]),
          salu("s_mov_b32", srdO2[2], "0"), salu("s_mov_b32", srdO2[3], "0x00020000"),
          salu("s_mov_b32", sTrip, "0"),
          salu("s_mov_b32", sC, hex(f2u(SCALE_C))), salu("s_mov_b32", sNegC, hex(f2u(-SCALE_C))),
          salu("s_mov_b32", sThr, hex(f2u(OPT["thr"])))]
    if OPT["codewarm"] and OPT.get("rewarm", 6):
        P += [salu("s_lshr_b32", sTmp, "s2", "3", scc_w=True), salu("s_and_b32", sTmp, sTmp, "15", scc_w=True),
              salu("s_lshl_b32", sTmp, sTmp, "12", scc_w=True),
              salu("s_mul_hi_u32", sH, sW, sMagic),
              salu("s_add_u32", sTmp, sTmp, sH, scc_w=True),
              I(f"s_add_u32 {sTmp}, {sTmp}, L_loop-{KNAME}", "salu", rd=[sTmp], wr=[sTmp, "scc"]),
              I(f"s_min_u32 {sTmp}, {sTmp}, L_code_end-{KNAME}-1024", "salu", rd=[sTmp], wr=[sTmp, "scc"]),
              salu("s_add_u32", sWarm[0], sPC[0], sTmp, scc_w=True),
              salu("s_addc_u32", sWarm[1], sPC[1], "0", scc_w=True, scc_r=True),
              salu("s_sub_u32", sWarm[0], sWarm[0], sStage, scc_w=True),
              salu("s_subb_u32", sWarm[1], sWarm[1], "0", scc_w=True, scc_r=True)]
    P += late + [valu("v_add_u32", vLin, sStage, t1)]
    P += [valu("v_and_b32", i16, "15", lane), valu("v_lshrrev_b32", G, "4", lane),
          valu("v_mul_u32_u24", t0, "384", i16)]
    P += [valu("v_and_b32", t1, "6", i16), valu("v_xor_b32", t1, t1, G), valu("v_lshl_add_u32", vK[0], t1, "4", t0),
          valu("v_xor_b32", vK[1], "64", vK[0])]
    for e in range(2):
        P += [valu("v_add_u32", vS[e], sStage, vK[e]), valu("v_add_u32", STG[e], sQB, vK[e])]
    P += [valu("v_lshrrev_b32", t1, "1", G), valu("v_and_b32", t2, "7", i16), valu("v_xor_b32", t1, t1, t2),
          valu("v_lshl_add_u32", vOW, t1, "4", t0), valu("v_and_b32", t1, "1", G),
          valu("v_lshl_add_u32", vOW, t1, "3", vOW), valu("v_add_u32", vOW, sStage, vOW)]
    P += [valu("v_lshrrev_b32", t1, "2", lane), valu("v_mul_u32_u24", t0, "384", t1),
          valu("v_and_b32", t1, "6", t1), valu("v_lshl_add_u32", t0, t1, "4", t0),
          valu("v_and_b32", t1, "3", lane), valu("v_lshl_add_u32", t0, t1, "3", t0),
          valu("v_add_u32", vV[0], str(VBASE), t0)]
    for e in range(1, 4):
        P.append(valu("v_xor_b32", vV[e], str(e * 32), vV[0]))
    P += [salu("s_mov_b32", sTmp, "0x3f803f80"), valu("v_mov_b32", t0, sTmp)]
    for j in range(2):
        P += [I(f"v_cmp_eq_u32 vcc, {j}, {i16}", "valu", rd=[i16], wr=["vcc"]),
              I(f"v_cmp_eq_u32 {sRet}, 2, {i16}", "valu", rd=[i16], wr=[sRet]), nop(0),
              I(f"s_or_b64 vcc, vcc, {sRet}", "salu", rd=["vcc", sRet], wr=["vcc", "scc"]), nop(1),
              I(f"v_cndmask_b32 {t1}, 0, {t0}, vcc", "valu", rd=[t0, "vcc"], wr=[t1])]
        P += [valu("v_accvgpr_write_b32", ONES[j][i], t1) for i in range(4)]
    if OPT["stamp"]:
        P += [salu("s_mov_b32", srdD[2], "0x1000000"), salu("s_mov_b32", srdD[3], "0x00020000"),
              salu("s_mul_hi_u32", sTmp, sW, sMagic), salu("s_lshr_b32", sTmp, sTmp, "2", scc_w=True),
              salu("s_lshl_b32", sH, "s2", "10", scc_w=True), salu("s_add_u32", sH, sH, sTmp, scc_w=True),
              valu("v_mov_b32", E[0], s(94)),
              I(f"buffer_store_dword {E[0]}, off, {srdD}, {sH} offset:{57 * 4}", "vmem", rd=[E[0], srdD])]
    P += stamp(60) + stamp(56, True)
    P += hopchain(2)
    if OPT.get("hops", 1):
        P += [I("s_branch L_main", "branch"), I(".p2align 12", "label"), label("L_main")]
    P += [waitv(("QD", 0, 0)), barrier()]
    for f in range(RING):
        P += kread(-2, f, 0)
    qorder = [0, 6, 1, 7, 2, 8, 3, 9, 4, 10, 5, 11]
    for n in qorder:
        P.append(qread(Qreg(n // 6, n % 6), n, vS, ("QA", 0, n)))
    P += [waitl(("QA", 0, 7))]
    P += stamp(61)
    if OPT.get("dbg") == 1:
        P += [I(f"s_memrealtime {s(78, 2)}", "salu"), I("s_waitcnt lgkmcnt(0)", "salu")]
    if AH:
        return pro_ahead(u, ktile, vtile, qbgrp, qorder, hopchain)
    pend = ktile(1) + vtile(0) + ktile(2) + warm + vtile(1)
    for n in range(24):
        x, f = n // 12, n % 12
        for q in range(2):
            m = qk_mfma(0, f, 2 * x + q, FR[n % RING])
            m.needl = [("F", -2, n), ("QA" if x == 0 else "QB", 0, q * 6 + f % 6)]
            k = u.add_gap(m)
            if x == 0 and pend:
                it = pend.pop(0)
                if it.kind != "nop":
                    u.pin[k].append(it)
        if n + RING < 24:
            u.pin[k] += kread(-2, n + RING, 0)
        else:
            u.pin[k] += kread(0, n + RING - 24, 1)
        if f == 1:
            u.pin[k].append(waitl(("QA" if x == 0 else "QB", 0, 11)))
        if RING - 1 <= n < 23 and n != 11:
            u.pin[k].append(waitl(("F", -2, n + 1)))
        if n == 11:
            assert not pend
            k = u.add_gap(None)
            XPOS[0] = 0
            u.pin[k] += softmax(0, 0)
            u.pin[k] += hopchain(0)
            u.pin[k] += [waitv(("QD", 0, 1))]
            for nn in qorder:
                u.pin[k].append(qread(Qreg(2 + nn // 6, nn % 6), nn, [STG[0], STG[1]], ("QB", 0, nn)))
            u.pin[k] += sum_mfma(0, 0) + [waitl(("QB", 0, 7))]
        if n == 14:
            u.pin[k] += [waitv(("K", 1), ("V", 0), ("K", 2), *([("V", 1)] if OPT.get("bar2") else [])), barrier()]
        if n == 15:
            u.pin[k] += ktile(3)
        if n == 16 and not OPT.get("bar2"):
            u.pin[k] += vtile(2)
    u.pin[k] += [barrier(), waitl(*[("F", 0, i) for i in range(OPT["wper"])])]
    u.pin[k] += stamp(0)
    if OPT.get("dbg") == 4:
        u.pin[k] += [I(f"s_memrealtime {s(78, 2)}", "salu"), I("s_waitcnt lgkmcnt(0)", "salu")]
    u.win0 = len(u.heads)
    add_iter(u, 0, 0, "T0p")
    return u


def pro_ahead(u, ktile, vtile, qbgrp, qorder, hopchain):
    ALT_P[0] = ALT_S[0] = True
    phases = [("QK", 0, 0), ("QK", 0, 1), ("PV", 0, 0), ("QK", 0, 2), ("PV", 0, 1),
              ("QK", 1, 0), ("QK", 1, 1), ("QK", 1, 2), ("PV", 1, 0), ("PV", 1, 1)]
    sums = {(1, 24): (0, 0), (2, 18): (0, 1), (6, 24): (1, 0), (8, 18): (1, 1), (9, 24): (0, 2)}
    start, end, sumgap, lastuse = {}, {}, {}, {}
    for pi, (kind, x, tile) in enumerate(phases):
        if pi == 5:
            k = u.add_gap(None)
            u.pin[k] += hopchain(0) + [waitv(("QD", 0, 1))]
            for nn in qorder:
                u.pin[k].append(qread(Qreg(2 + nn // 6, nn % 6), nn, [STG[0], STG[1]], ("QB", 0, nn)))
            u.pin[k] += [waitl(("QB", 0, 7))]
            u.pin[k] += stamp(0)
            if OPT.get("dbg") == 4:
                u.pin[k] += [I(f"s_memrealtime {s(78, 2)}", "salu"), I("s_waitcnt lgkmcnt(0)", "salu")]
        start[pi] = len(u.heads)
        for i in range(24):
            f, qb = i // 2, 2 * x + i % 2
            n = 12 * pi + f
            m = qk_mfma(tile, f, qb, FR[n % RING]) if kind == "QK" else pv_mfma(tile, f, qb, FR[n % RING], tile == 0)
            m.needl = [("F", -2, n)] + ([("QA" if x == 0 else "QB", 0, (i % 2) * 6 + f % 6)] if kind == "QK" else [])
            lastuse[n] = u.add_gap(m)
            if (pi, i + 1) in sums:
                sumgap[sums[(pi, i + 1)]] = len(u.heads)
                for m in sum_mfma(*sums[(pi, i + 1)]):
                    u.add_gap(m)
        end[pi] = len(u.heads) - 1
    nfr, wp = 12 * len(phases), OPT["wper"]
    for n in range(nfr):
        k, nn = lastuse[n], n + RING
        if nn < nfr:
            kind, x, tile = phases[nn // 12]
            rd = kread(-2, nn, tile, tile) if kind == "QK" else vread(-2, nn, tile, tile)
        else:
            rd = kread(2, nn - nfr, 3)
        u.pin[k] += rd
        if (n + 1) % wp == 0 and n >= RING - 1:
            tg = [("F", -2, j) if j < nfr else ("F", 2, j - nfr) for j in range(n + 1, n + 1 + wp)]
            u.pin[end[9] if n == nfr - 1 else (k if len(rd) < 2 else k - 1)].append(waitl(*tg))
    u.pin[start[0] + 2].append(waitl(("QA", 0, 11)))
    u.pin[start[5] + 2].append(waitl(("QB", 0, 11)))

    def spread(items, k0, step=2):
        for it in nonop(items):
            u.pin[k0].append(it)
            k0 += step

    lo = OPT.get("lo", 0)
    if lo < 2:
        spread(ktile(2) + vtile(1) if lo == 0 else qbgrp(0) + qbgrp(1), start[0], 1)
    u.pin[start[0] + 12] += [waitv(("K", 1), ("V", 0)), barrier()]
    if lo < 2:
        spread(qbgrp(2) + qbgrp(3), start[0] + 14, 1)
    u.pin[start[2] + 12] += [waitv(("K", 2), ("V", 1)), barrier()]
    u.pin[start[5] + 4] += [barrier()]
    spread(ktile(3) + vtile(2), start[5] + 6)
    u.pin[start[6] + 0] += [barrier()]
    spread(ktile(4) + vtile(3), start[6] + 2)
    u.pin[start[7] + 0] += [barrier()]
    spread(ktile(5), start[7] + 2)
    u.pin[start[9] + 0] += [waitv(("K", 3)), barrier()]
    spread(vtile(4), start[9] + 2)
    u.pin[sumgap[(0, 2)]] += [waitv(("K", 4), ("V", 2)), barrier()]
    look = OPT["look"]
    XPOS[0] = 0
    for (x, tile), k in sumgap.items():
        if (x, tile) == (0, 2):
            continue
        c, br, lu = check(x, tile, "P")
        u.tail[k + 5] += c
        u.tail[k + 7] += br
        u.streams.append(Stream(lu, k + 8, k + 10, prio=0.5))
    u.streams.append(Stream(softmax(0, 0), start[1] + 3, sumgap[(0, 0)] - 2, prio=0.05, look=look))
    u.streams.append(Stream(softmax(0, 1), start[2] + 1, sumgap[(0, 1)] - 2, prio=0.05, look=look))
    u.streams.append(Stream(exp_stream(0, SA, Pbuf(0, 2), KH0_FIRST[:8]), start[3] + 15, end[3] + 2, prio=0.05, look=look))
    u.streams.append(Stream(exp_stream(0, SA, Pbuf(0, 2), KH0_FIRST[8:]), end[3] + 3, end[4], prio=0.05, look=look))
    u.streams.append(Stream(softmax(1, 0), start[6] + 3, sumgap[(1, 0)] - 2, prio=0.05, look=look))
    u.streams.append(Stream(softmax(1, 1), start[7] + 1, sumgap[(1, 1)] - 2, prio=0.05, look=look))
    u.streams.append(Stream(next_block(), start[9] + 1, end[9] - 3))
    u.wins = sorted(set(list(start.values()) + list(sumgap.values()) + [start[3] + 15]))
    ALT_P[0] = ALT_S[0] = False
    return u


def unit_fin(b):
    u = Unit("FIN")
    u.pre.append(label("L_fin"))
    u.pre += stamp(15)
    g0 = b * 16 + 12
    NR = OPT.get("nr", 3)
    phases = [("QK", (0, 1), 13), ("QK", (1,), 14), ("PV", (1,), 12), ("QK", (1,), 15), ("PV", (1,), 13),
              ("PV", (1,), 14), ("PV", (1,), 15),
              ("PV", (0,), 12), ("QK", (0,), 14), ("PV", (0,), 13), ("QK", (0,), 15), ("PV", (0,), 14), ("PV", (0,), 15)]
    ALT_P[0] = True
    sums = {(0, 42): (1, 12), (2, 18): (1, 13), (4, 18): (1, 14), (5, 18): (1, 15), (7, 18): (0, 13), (9, 18): (0, 14),
            (11, 18): (0, 15)}
    start, end, sumgap, lastuse, done = {}, {}, {}, {}, {}
    nfr = 12 * len(phases)
    for pi, (kind, hs, tile) in enumerate(phases):
        if len(hs) == 2:
            seq = [(f, qb) for f in range(NR) for qb in (2, 3)] + [(f, qb) for f in range(NR) for qb in (0, 1)] + \
                  [(f, qb) for f in range(NR, 12) for qb in range(4)]
        else:
            seq = [(f, 2 * hs[0] + q) for f in range(12) for q in range(2)]
        start[pi] = len(u.heads)
        for i, (f, qb) in enumerate(seq):
            n = 12 * pi + f
            m = qk_mfma(tile, f, qb, FR[n % RING]) if kind == "QK" else pv_mfma(tile, f, qb, FR[n % RING], False)
            m.needl = [("F", g0, n)]
            lastuse[n] = done[(pi, f, qb)] = u.add_gap(m)
            if (pi, i + 1) in sums:
                sumgap[sums[(pi, i + 1)]] = len(u.heads)
                for m in sum_mfma(*sums[(pi, i + 1)]):
                    u.add_gap(m)
        end[pi] = len(u.heads) - 1
    last = u.add_gap(None)
    wp = OPT["wper"]
    for n in range(nfr):
        k = lastuse[n]
        nn = n + RING
        rd = []
        if nn < nfr:
            kind, hs, tile = phases[nn // 12]
            rd = kread(g0, nn, tile, b * 16 + tile) if kind == "QK" else vread(g0, nn, tile, b * 16 + tile)
            u.pin[k] += rd
        if (n + 1) % wp == 0 and n + 1 < nfr:
            u.pin[k if len(rd) < 2 else k - 1].append(waitl(*[("F", g0, n + 1 + i) for i in range(wp)]))
    if OPT.get("bar2"):
        for tt, k0 in ((14, 4), (15, 20)):
            u.pin[start[0] + k0 - 3].append(setm0(m0V[VSLOT[tt]]))
            for c in range(3):
                u.pin[start[0] + k0 + 4 * c].append(dma(srdV, sT[tt], c, ("V", g0 + tt - 12)))
        u.pin[start[2] + 2] += [waitv(("K", g0 + 3)), barrier()]
        u.pin[start[4] + 2] += [waitv(("V", g0 + 3)), barrier()]
    else:
        u.pin[start[0] + 1].append(setm0(m0V[VSLOT[15]]))
        for c, k in enumerate((4, 8, 12)):
            u.pin[start[0] + k].append(dma(srdV, sT[15], c, ("V", g0 + 3)))
        if OPT.get("nsb", 0):
            u.pin[start[0] + 24] += [waitv(("K", g0 + 2)), barrier()]
        u.pin[start[2] + 2] += [waitv(("K", g0 + 3), ("V", g0 + 1), ("V", g0 + 2)), barrier()]
        u.pin[sumgap[(1, 14)]] += [waitv(("V", g0 + 3)), barrier()]
    def put_check(x, tile, kc, kb):
        c, br, lu = check(x, tile, f"F{tile}")
        u.tail[kc] += c
        u.tail[kb] += br
        u.streams.append(Stream(lu, kb + 1, kb + 3, prio=0.5))
    put_check(0, 12, start[0] + 2, start[0] + 2 * NR - 1)
    for (x, tile), k in sumgap.items():
        put_check(x, tile, k + 5, k + 7)
    XPOS[0] = 0
    look = OPT["look"]
    for tile, k0 in ((12, start[0]), (13, start[1] + 3), (14, start[3]), (15, start[5])):
        u.streams.append(Stream(softmax(1, tile), k0, sumgap[(1, tile)] - 2, prio=0.05, look=look))
    u.streams.append(Stream(softmax(0, 13), start[7], sumgap[(0, 13)] - 2, prio=0.05, look=look))
    for tile, pq in ((14, 8), (15, 10)):
        u.streams.append(Stream(exp_stream(0, SA, Pbuf(0, tile), KH0_FIRST[:8]), start[pq] + 15, end[pq] + 2,
                                prio=0.05, look=look))
        u.streams.append(Stream(exp_stream(0, SA, Pbuf(0, tile), KH0_FIRST[8:]), end[pq] + 3,
                                sumgap[(0, tile)] - 2, prio=0.05, look=look))
    AD = [vOW, STG[0], STG[1], STG[2]]
    u.streams.append(Stream(set_osrd() + [valu("v_xor_b32", AD[e], str(32 * e), vOW) for e in range(1, 4)],
                            sumgap[(1, 14)], end[4]))
    kA = sumgap[(1, 15)] + 11
    u.streams.append(Stream(rinv_stream(1), kA, kA + 6, prio=0.5))
    Z = [Qc[48 + 4 * i: 52 + 4 * i] for i in range(12)]
    TT = [SB[0], SB[1], STG[16:32]]

    def epi_group(qb, dts, T):
        r, m, c, w = [], [], [], []
        for i, dt in enumerate(dts):
            O = Otile(qb, dt)
            R = O if O.f == "v" else T[4 * i: 4 * i + 4]
            if O.f == "a":
                r += [valu("v_accvgpr_read_b32", R[j], O[j]) for j in range(4)]
            m += scale2(R[0:2], qb) + scale2(R[2:4], qb)
            cc = [valu("v_cvt_pk_bf16_f32", R[0], R[0], R[1]), valu("v_cvt_pk_bf16_f32", R[1], R[2], R[3])]
            c += cc
            wr = owrite(R[0:2], AD[dt % 4], qb % 2, dt)
            wr.after = cc[1]
            w.append(wr)
        return r, m, c, w

    ep, wr, sts = [], [], []
    lastw = {}
    for q in range(2):
        for grp in range(3):
            r, m, c, w = epi_group(2 + q, range(4 * grp, 4 * grp + 4), TT[grp])
            setw(r, earliest=done[(6, 4 * grp + 3, 2 + q)] + 4)
            setw(m, earliest=kA + 7)
            if q:
                r[0].after = lastw[grp]
            lastw[grp] = w[-1]
            ep += r + m + c
            wr += w
        for n in range(6 * q, 6 * q + 6):
            rd = oread(Z[n], n, ("OR", b + 1, 1, n))
            rd.flags.add("head")
            wr.append(rd)
        w = waitl(("OR", b + 1, 1, 6 * q + 5))
        w.after = wr[-1]
        w.delay = 6
        sts.append(w)
        for n in range(6 * q, 6 * q + 6):
            st = ostore(Z[n], 1, n, [("OR", b + 1, 1, n)], True)
            st.flags.add("head")
            sts.append(st)
    e1 = start[8] + OPT.get("e1", 40)
    u.streams.append(Stream(ep, start[6] + 10, e1, prio=0.3))
    u.streams.append(Stream(wr, start[6] + 10, e1 + 14, prio=0.3))
    u.streams[-1].headmax = 8
    u.streams.append(Stream(sts, start[7], end[OPT.get("stend", 11)], prio=0.3))
    u.streams[-1].headmax = 4
    u.streams[-1].pace = True
    u.streams.append(Stream(rinv_stream(0), start[12] + 3, start[12] + 8, prio=0.5))
    Z = [Qc[4 * i: 4 * i + 4] for i in range(12)]
    ep, wr = [], []
    for grp, q in ((0, 0), (0, 1), (1, 0)):
        r, m, c, w = epi_group(q, range(4 * grp, 4 * grp + 4), None)
        setw(m, earliest=done[(12, 4 * grp + 3, q)] + 3)
        ep += m + c
        wr += w
    u.streams.append(Stream(ep, start[12] + 9, end[12], prio=0.3))
    u.streams.append(Stream(wr, start[12] + 9, end[12], prio=0.3))
    u.streams[-1].headmax = 8

    def weave(v, w):
        o, n = [], len(w)
        for i, x in enumerate(v):
            o.append(x)
            while w and (n - len(w)) < (i + 1) * n / len(v):
                o.append(w.pop(0))
        return o

    po = u.pin[last]
    _, m11, c11, w11 = epi_group(1, range(4, 8), None)
    _, m20, c20, w20 = epi_group(0, range(8, 12), None)
    _, m21, c21, w21 = epi_group(1, range(8, 12), None)
    po += m11 + m20 + c20 + weave(c11 + m21, w20)
    po += [oread(Z[n], n, ("OR", b + 1, 0, n)) for n in range(6)]
    po += weave(c21, w11)
    st = [ostore(Z[n], 0, n, [("OR", b + 1, 0, n)], True) for n in range(6)]
    po += [waitl(("OR", b + 1, 0, 5))] + weave(st[:4], w21)
    po += [oread(Z[n], n, ("OR", b + 1, 0, n)) for n in range(6, 12)] + st[4:]
    for n in range(6, 12):
        po += [waitl(("OR", b + 1, 0, n)), ostore(Z[n], 0, n, [("OR", b + 1, 0, n)], True)]
    if OPT["stamp"] == 3:
        for pi, idx in ((2, 12), (4, 13), (6, 14), (7, 20), (9, 21), (11, 22), (12, 23)):
            u.tail[start[pi] - 1] += stamp(idx)
        u.pin[last] = stamp(26) + u.pin[last]
    ALT_P[0] = False
    u.wins = sorted(set(list(start.values()) + list(sumgap.values()) + [start[8] + 15, start[10] + 15, start[6] + 10]))
    u.post += stamp(16) + stamp(17, True)
    if OPT["stamp"]:
        u.post += [I("s_waitcnt vmcnt(0)", "salu")] + stamp(18) + stamp(19, True)
    if OPT.get("dbg"):
        u.post += [I("s_cmp_ge_u32 s2, 8", "salu"), I("s_cbranch_scc1 L_end", "branch"),
                   I(f"s_cmp_lg_u32 {sW}, 0", "salu"), I("s_cbranch_scc1 L_end", "branch"),
                   I("s_waitcnt vmcnt(0)", "salu"), I(f"s_memrealtime {sStamp}", "salu"), I(f"s_memtime {sPC}", "salu"),
                   I("s_waitcnt lgkmcnt(0)", "salu"),
                   salu("s_mov_b32", srdD[2], "256"), salu("s_mov_b32", srdD[3], "0x00020000"),
                   I("s_mov_b64 exec, 1", "salu"),
                   salu("s_sub_u32", sTmp, sStamp[0], s(94)), salu("s_sub_u32", sH, s(78), s(94)),
                   salu("s_mul_i32", sH, sH, "100000"), salu("s_add_u32", sTmp, sTmp, sH),
                   valu("v_mov_b32", v(34), sTmp),
                   salu("s_sub_u32", sTmp, sPC[0], s(100)), valu("v_mov_b32", v(35), sTmp),
                   salu("s_lshl_b32", sTmp, "s2", "3"),
                   I(f"buffer_store_dwordx2 {v(34, 2)}, off, {srdD}, {sTmp}", "vmem", rd=[srdD])]
    u.post += [label("L_end"), I("s_endpgm", "branch")]
    return u


T1ST = 2 if OPT.get("ahead", 1) else 1


def build(extra):
    cache = {}

    def get(name, fn, first):
        u = fn()
        ins = u.schedule(budget=8, window=50, pk_at=20, verbose=first and VERB)
        out = []
        for idx, i in enumerate(ins):
            n = extra.get((name, idx), 0)
            if n:
                out.append(((name, idx, "nop"), nop(n - 1)))
            out.append(((name, idx), i))
        if first:
            cache[name] = out
        return out

    trace = list(get("PRO", unit_pro, True))
    for b in range(3):
        for t in range(T1ST if b == 0 else 1, 15 if b < 2 else 12):
            if b == 0 and t <= NFIRST:
                trace += get(f"T{t}f", lambda: unit_mid(b, t, True), True)
            else:
                trace += get(f"T{t}", lambda: unit_mid(b, t), b == (1 if t <= NFIRST else 0))
        if b < 2:
            trace += get("X", lambda: unit_x(b), b == 0)
    trace += get("FIN", lambda: unit_fin(2), True)
    order = ["PRO"] + [f"T{t}f" for t in range(T1ST, NFIRST + 1)] + [f"T{t}" for t in range(1, 15)] + ["X", "FIN"]
    return [(n, cache[n]) for n in order], trace


VERB = False
extra = {}
for it in range(60):
    static, trace = build(extra)
    hz = hazards([i for _, i in trace])
    if not hz:
        break
    upd = {}
    lastj = -100
    for j, need, why in hz:
        key = trace[j][0]
        if j != lastj and j - lastj < 24:
            continue
        lastj = j
        upd[key] = max(upd.get(key, 0), need)
        if OPT.get("showhz"):
            print("; hazard:", key, need, why, file=sys.stderr)
    for k, n in upd.items():
        extra[k] = extra.get(k, 0) + n
else:
    raise SystemExit("hazards did not converge")
if OPT.get("verb"):
    VERB = True
    _so = sys.stdout
    sys.stdout = sys.stderr
    build(extra)
    sys.stdout = _so
    print("; nops inserted:", extra, file=sys.stderr)
W = resolve_waits(trace)
_bad = check_coverage(trace, W)
assert not _bad, _bad[:10]


def check_ring(trace, W):
    nds = nvm = dsdone = vmdone = bar_ds = bar_vm = 0
    last_dma, last_read, first = {}, {}, {}
    for key, ins in trace:
        if ins.kind == "ds":
            nds += 1
            rt = getattr(ins, "rtile", None)
            if rt is not None:
                assert rt in last_dma and last_dma[rt] <= bar_vm, ("read before visible", key, rt)
                assert (rt[0], rt[1] + 4) not in last_dma, ("read after refill", key, rt)
                last_read[rt] = nds
        elif ins.kind == "vmem":
            nvm += 1
            if ins.tag and ins.tag[0] in ("K", "V"):
                old = (ins.tag[0], ins.tag[1] - 4)
                if old[1] >= 0:
                    assert old in last_read and last_read[old] <= bar_ds, ("refill too early", key, ins.tag)
                last_dma[ins.tag] = nvm
        elif ins.kind == "wait":
            l, v = W[key]
            if l is not None:
                dsdone = max(dsdone, nds - l)
            if v is not None:
                vmdone = max(vmdone, nvm - v)
        elif ins.kind == "barrier":
            bar_ds, bar_vm = dsdone, vmdone
    for kind in "KV":
        for t in range(48):
            assert (kind, t) in last_read, (kind, t)


check_ring(trace, W)
if OPT.get("verb") and "_mismatch" in W:
    print("; wait mismatches:", W["_mismatch"], file=sys.stderr)

out = []
A = out.append
A(open(os.path.join(os.path.dirname(os.path.abspath(__file__)), "header.txt")).read().rstrip())
A(f"; @launch grid=(256,1,1) block=(256,1,1) lds={LDS_BYTES}")
A('.amdgcn_target "amdgcn-amd-amdhsa--gfx950"')
A(".text")
A(f".globl {KNAME}")
A(".p2align 8")
A(f".type {KNAME},@function")
A(f"{KNAME}:")
for name, ins in static:
    A(f"; ---- {name} ----")
    for key, i in ins:
        t = i.text
        if i.kind == "wait":
            l, vv = W[key]
            t = "s_waitcnt " + (f"lgkmcnt({l})" if l is not None else f"vmcnt({vv})")
        abl = OPT.get("abl", "")
        if abl and name not in ("PRO",):
            tx = i.text
            if "c" in abl and "s_cbranch_vccnz" in tx:
                t = "s_nop 0"
            if "b" in abl and i.kind == "barrier":
                t = "s_nop 0"
            if "k" in abl and i.kind == "vmem" and (str(srdK) in tx or str(srdV) in tx):
                t = "s_nop 1"
            if "w" in abl and i.kind == "wait" and i.waitl is not None:
                t = "s_nop 0"
            if "W" in abl and i.kind == "wait" and i.waitv is not None:
                t = "s_nop 0"
            if "s" in abl and i.kind == "vmem" and (str(srdQ) in tx or str(srdO) in tx):
                t = "s_nop 1"
            if "z" in abl and "ds_write" in tx:
                t = "s_nop 1"
            tok = tx.replace(",", " ").split()
            if "v" in abl and i.kind in ("valu", "trans") and any(str(r) in tok for r in X):
                t = "s_nop 0"
            if "V" in abl and i.kind in ("valu", "trans") and any(str(r) in tok for r in X):
                continue
            if "d" in abl and i.kind == "ds" and i.wr and i.wr[0] in names(FR):
                t = "s_nop 0"
            if "e" in abl and i.kind == "valu" and ("pk_mul" in tx or "accvgpr" in tx or ("cvt_pk" in tx and not any(str(r) in tok for r in X))):
                continue
            if "o" in abl and i.kind == "mfma" and i.wr == TS.names():
                continue
        if OPT.get("e64") and re.match(r"v_(exp_f32|add_f32|mul_f32|mov_b32|xor_b32|max_f32|rcp_f32) ", t) and "96" not in t.split(",")[1]:
            t = t.replace(" ", "_e64 ", 1)
        A(t if i.kind == "label" else "    " + t)
for name, x, par in TRAMPS:
    A(f"L_tr_{name}:")
    A(f"    s_call_b64 {sRet}, L_rare_{'AB'[x]}{par}")
    A(f"    s_branch L_ret_{name}")
for x, par in ((0, 0), (0, 1), (1, 0), (1, 1), (1, 3)):
    if True:
        ALT_P[0] = par == 3
        r = rare(x, par)
        ALT_P[0] = False
        hz = hazards(r)
        assert not hz, hz
        for i in r:
            A(i.text if i.kind == "label" else "    " + i.text)
A("L_code_end:")
A("    s_endpgm")
A(f""".section .rodata,"a"
.p2align 6
.amdhsa_kernel {KNAME}
  .amdhsa_next_free_vgpr 512
  .amdhsa_next_free_sgpr 102
  .amdhsa_accum_offset 256
  .amdhsa_group_segment_fixed_size 0
  .amdhsa_kernarg_size 48
  .amdhsa_user_sgpr_count 2
  .amdhsa_user_sgpr_kernarg_segment_ptr 1
  .amdhsa_system_sgpr_workgroup_id_x 1
  .amdhsa_float_denorm_mode_32 3
.end_amdhsa_kernel""")
def insert_hops(lines):
    import subprocess, tempfile
    i0, i1 = lines.index("L_main:"), lines.index("L_end:")
    probe = list(lines)
    probe[i1:i1] = [f"L_hop_{w}:" for w in range(4)]
    with tempfile.TemporaryDirectory() as d:
        open(d + "/p.s", "w").write("\n".join(probe))
        subprocess.run(["clang", "-x", "assembler", "-target", "amdgcn-amd-amdhsa", "-mcpu=gfx950", "-c",
                        d + "/p.s", "-o", d + "/p.o"], check=True)
        dis = subprocess.run(["llvm-objdump", "-d", "--mcpu=gfx950", d + "/p.o"],
                             capture_output=True, text=True).stdout.splitlines()
    k = next(n for n, l in enumerate(dis) if l.endswith("<L_main>:"))
    sizes = [4 * len(l.split("//")[1].split(":")[1].split()) for l in dis[k:] if "//" in l]
    res, addr, n, nxt, pos = lines[:i0 + 1], 0, 0, 4096, []
    for l in lines[i0 + 1:i1]:
        if l in ("L_loop:", "L_join:") and NFIRST or l == "L_fin:":
            if res[-1].startswith(";"):
                c = res.pop()
                unc = res[-1].strip().startswith("s_branch")
                res.append(c)
            pos.append(len(res) + (0 if unc else 1))
            if unc:
                res.append(None)
                res.append(l)
            else:
                res.append(l)
                res.append(None)
            addr += 4
            continue
        if l.startswith("    "):
            if addr >= nxt:
                pos.append(len(res))
                res.append(None)
                addr += 4
                nxt += 4096
            addr += sizes[n]
            n += 1
        res.append(l)
    assert len(pos) >= 4
    for i, p_ in enumerate(pos):
        tgt = f"L_hop_{i + 4}" if i + 4 < len(pos) else "L_hop_end"
        res[p_] = f"L_hop_{i}:\n    s_cbranch_execz {tgt}"
    return res + lines[i1:]


if OPT.get("hops", 1):
    out = insert_hops("\n".join(out).split("\n"))
print("\n".join(out))
```

```python
import re


def rl(f, lo, n=1):
    return [f"{f}{lo + i}" for i in range(n)]


class Reg:
    def __init__(self, f, lo, n=1):
        self.f, self.lo, self.n = f, lo, n

    def __getitem__(self, i):
        if isinstance(i, slice):
            a = i.start or 0
            b = i.stop if i.stop is not None else self.n
            assert 0 <= a < b <= self.n, (a, b, self.n)
            return Reg(self.f, self.lo + a, b - a)
        assert 0 <= i < self.n, (i, self.n)
        return Reg(self.f, self.lo + i, 1)

    def __str__(self):
        if self.n == 1:
            return f"{self.f}{self.lo}"
        return f"{self.f}[{self.lo}:{self.lo + self.n - 1}]"

    def names(self):
        return rl(self.f, self.lo, self.n)


def names(*xs):
    out = []
    for x in xs:
        if isinstance(x, Reg):
            out += x.names()
        elif isinstance(x, str):
            if re.fullmatch(r"[vas]\d+|vcc|scc|m0|exec", x):
                out.append(x)
        elif isinstance(x, (list, tuple)):
            out += names(*x)
    return out


COST = dict(mfma=8, valu=4, trans=8, ds=4, vmem=12, salu=4, wait=4, nop=4, branch=4, barrier=8, label=0)


class I:
    def __init__(self, text, kind, rd=(), wr=(), tag=None, waitl=None, waitv=None, cost=None,
                 srcc=None, ab=None, earliest=None, latest=None, states=1, flags=(), needl=None, needv=None):
        self.text, self.kind = text, kind
        self.rd, self.wr = names(rd), names(wr)
        self.tag, self.waitl, self.waitv = tag, waitl, waitv
        self.cost = COST[kind] if cost is None else cost
        self.srcc = names(srcc) if srcc is not None else []
        self.ab = names(ab) if ab is not None else []
        self.earliest, self.latest = earliest, latest
        self.states = 0 if kind == "label" else states
        self.flags = set(flags)
        self.needl, self.needv = needl, needv

    def __repr__(self):
        return f"<{self.text}>"


def mfma(d, a, b, c):
    cs = str(c) if isinstance(c, Reg) else "0"
    op = "v_mfma_f32_32x32x16_bf16" if d.n == 16 else "v_mfma_f32_16x16x32_bf16"
    m = I(f"{op} {d}, {a}, {b}, {cs}", "mfma", rd=[a, b] + ([c] if isinstance(c, Reg) else []),
          wr=[d], srcc=[c] if isinstance(c, Reg) else [], ab=[a, b])
    m.passes = 8 if d.n == 16 else 4
    return m


def valu(op, d, *src, kind="valu", extra_rd=(), extra_wr=(), **kw):
    ops = ", ".join(str(x) for x in (d,) + src)
    rd = [re.sub(r"^-", "", s) if isinstance(s, str) else s for s in src]
    return I(f"{op} {ops}", kind, rd=list(rd) + list(extra_rd), wr=[d] + list(extra_wr), **kw)


def trans(op, d, s, **kw):
    return valu(op, d, s, kind="trans", **kw)


def salu(op, d, *src, scc_w=False, scc_r=False, **kw):
    ops = ", ".join(str(x) for x in (d,) + src)
    return I(f"{op} {ops}", "salu", rd=list(src) + (["scc"] if scc_r else []), wr=[d] + (["scc"] if scc_w else []), **kw)


def nop(n=0):
    return I(f"s_nop {n}", "nop", states=n + 1, cost=4 * (n + 1))


def label(name):
    return I(f"{name}:", "label")


def waitl(*tags):
    return I("s_waitcnt lgkmcnt(?)", "wait", waitl=list(tags))


def waitv(*tags):
    return I("s_waitcnt vmcnt(?)", "wait", waitv=list(tags))


def barrier():
    return I("s_barrier", "barrier")


class Stream:
    def __init__(self, items, start, end, prio=0, look=1):
        self.items, self.start, self.end, self.prio, self.look = list(items), start, end, prio, look
        self.total = sum(i.cost for i in self.items)
        self.done = 0

    def cands(self, k, emitted):
        if k < self.start:
            return []
        out = []
        rd, wr = set(), set()
        for it in self.items[:self.look]:
            ird, iwr = set(it.rd), set(it.wr)
            ok = not (ird & wr or iwr & wr or iwr & rd)
            if it.earliest is not None and k < it.earliest:
                break
            if getattr(it, "after", None) is not None and (
                    id(it.after) not in emitted or k < min(self.end, emitted[id(it.after)] + getattr(it, "delay", 0))):
                ok = False
            if it.kind not in ("valu", "trans") or it.flags:
                if it is self.items[0] and ok:
                    out.append(it)
                break
            if ok:
                out.append(it)
            rd |= ird
            wr |= iwr
        return out


class Unit:
    def __init__(self, name):
        self.name = name
        self.pre = []
        self.heads = []
        self.pin = []
        self.tail = []
        self.streams = []
        self.post = []
        self.win0 = 0
        self.fixed_budget = False

    def add_gap(self, m):
        self.heads.append(m)
        self.pin.append([])
        self.tail.append([])
        return len(self.heads) - 1

    def schedule(self, budget=24, window=24, pk_at=36, verbose=False):
        n = len(self.heads)
        window = getattr(self, 'window', window)
        fixed = [sum(i.cost for i in self.pin[k]) + sum(i.cost for i in self.tail[k]) for k in range(n)]
        target = [float(budget)] * n
        demand = [0.0] * n
        for s in self.streams:
            ln = s.end - s.start + 1
            for k in range(s.start, s.end + 1):
                demand[k] += s.total / ln
        wins = getattr(self, "wins", None) or list(range(self.win0, n, window))
        for w0, w1 in zip(wins, wins[1:] + [n]):
            ks = [k for k in range(w0, w1) if demand[k] > 0]
            need = sum(demand[k] for k in ks)
            t = float(budget)
            while ks and sum(max(0.0, t - fixed[k]) for k in ks) < need * (1.04 if t == budget else 1.0):
                t += 0.25
            for k in range(w0, w1):
                target[k] = t
        free = [max(0.0, target[k] - fixed[k]) for k in range(n)]
        cumfree = [0.0]
        for f in free:
            cumfree.append(cumfree[-1] + f)
        out = list(self.pre)
        emitted = {id(i): -1 for i in out}
        used = []
        carry = 0.0
        for k in range(n):
            if self.heads[k] is not None:
                out.append(self.heads[k])
            out += self.pin[k]
            over = target[k] > budget
            rem = free[k] + (carry if over else 0.0)
            tailc = sum(i.cost for i in self.tail[k])
            u = fixed[k] - tailc
            haspk = False
            commit = None
            nvalu = sum(1 for i in self.pin[k] if i.kind in ("valu", "trans"))

            def pkdist(s):
                c = 0
                for x in s.items[:6]:
                    if x.earliest is not None and k < x.earliest:
                        return None
                    if getattr(x, "after", None) is not None and id(x.after) not in emitted:
                        return None
                    if "pk" in x.flags:
                        return c
                    c += x.cost
                return None

            while True:
                best, bestit, bestscore = None, None, None
                room = budget - u - tailc
                allc = [(s, s.cands(k, emitted)) for s in self.streams if s.items]
                for s, cl in allc:
                    if not cl:
                        continue
                    dl = min([x.latest for x in s.items if x.latest is not None] + [s.end])
                    f = dl <= k
                    cap_tot = (cumfree[s.end + 1] - cumfree[s.start]) or 1
                    cap_el = cumfree[min(k, s.end) + 1] - cumfree[s.start]
                    lag = cap_el / cap_tot - s.done / s.total
                    for ci, it in enumerate(cl):
                        score = lag + s.prio - 0.001 * ci
                        last = out[-1] if out else None
                        if last is not None and last.kind == "trans" and it.kind == "valu" and set(last.wr) & set(it.rd):
                            score -= 50
                        if "permlane" in it.text and any(is_valu(x) and set(x.wr) & set(it.rd) for x in out[-2:]):
                            if not f:
                                continue
                            score -= 50
                        if "head" in it.flags and not f:
                            if nvalu or u > getattr(s, "headmax", budget / 3) or (lag < 0 and getattr(s, "pace", False)) \
                                    or ("ds_write" in it.text and k < getattr(s, "lasth", -99) + getattr(s, "space", 0)):
                                continue
                            score += 300
                        elif ("pk" in it.flags and haspk and "pk" in last.flags) or (last is not None and "pk" in last.flags):
                            score += 200 if "pk" in it.flags else 150
                        elif commit is s:
                            score += 180
                        elif f:
                            score += 100
                        else:
                            if over:
                                if room > 0:
                                    if it.cost <= room:
                                        score += 10 + (2 if it.cost == room else 0)
                                    elif rem < it.cost / 2.0:
                                        score -= 5
                                    if lag <= -0.06:
                                        score -= 20 if it.cost <= room else 1000
                                else:
                                    if rem < it.cost / 2.0 + 1 or lag <= -0.02:
                                        continue
                            else:
                                if (it.cost > rem and not ("pk" in it.flags and rem > 0)) or lag <= -0.02:
                                    continue
                                if it.cost == room:
                                    score += 0.02
                            if score < -500:
                                continue
                        if best is None or score > bestscore:
                            best, bestit, bestscore = s, it, score
                if best is None:
                    break
                it = bestit
                if commit is None and not haspk and pkdist(best) is not None:
                    commit = best
                if "pk" in it.flags and self.heads[k] is not None and u < pk_at:
                    alt = [(s, c) for s, cl in allc for c in cl[:1] if s is not best and not (c.flags & {"pk", "head"})
                           and c.kind in ("valu", "trans", "salu")
                           and not ("permlane" in c.text and any(is_valu(x) and set(x.wr) & set(c.rd) for x in out[-2:]))]
                    if alt:
                        best, it = min(alt, key=lambda sc: sc[0].done / sc[0].total - (k - sc[0].start) / (sc[0].end - sc[0].start + 1))
                    else:
                        rem -= pk_at - u
                        u = pk_at
                if "pk" in it.flags:
                    haspk = True
                    commit = None
                if it.kind in ("valu", "trans"):
                    nvalu += 1
                if "ds_write" in it.text:
                    best.lasth = k
                best.items.remove(it)
                best.done += it.cost
                rem -= it.cost
                u += it.cost
                out.append(it)
                emitted[id(it)] = k
            carry = min(rem, budget) if over else 0.0
            u += tailc
            out += self.tail[k]
            used.append(u)
        for s in self.streams:
            assert not s.items, (self.name, "stream not drained", s.items[0])
        out += self.post
        self.used = used
        if verbose:
            est = sum(max(budget + 8, 8 + u) if self.heads[k] is not None else u for k, u in enumerate(used))
        return out


def resolve_waits(trace):
    res = {}
    ds_idx, vm_idx = {}, {}
    nds = nvm = 0
    for key, ins in trace:
        if ins.kind == "ds":
            nds += 1
            if ins.tag is not None:
                ds_idx[ins.tag] = nds
        elif ins.kind == "vmem":
            nvm += 1
            if ins.tag is not None:
                vm_idx[ins.tag] = nvm
        elif ins.kind == "wait":
            l = v = None
            if ins.waitl is not None:
                need = max(ds_idx[t] for t in ins.waitl)
                l = min(15, nds - need)
            if ins.waitv is not None:
                need = max(vm_idx[t] for t in ins.waitv)
                v = min(63, nvm - need)
            if key in res:
                pl, pv = res[key]
                if (pl, pv) != (l, v):
                    res.setdefault("_mismatch", []).append((key, (pl, pv), (l, v)))
                l = None if l is None else min(l, pl)
                v = None if v is None else min(v, pv)
            res[key] = (l, v)
    return res


def is_valu(i):
    return i.kind in ("valu", "trans")


def hazards(seq):
    out = []
    n = len(seq)
    for j in range(n):
        c = seq[j]
        if c.kind in ("label", "nop", "wait", "barrier"):
            continue
        crd, cwr = set(c.rd), set(c.wr)
        dist = 0
        i = j - 1
        while i >= 0 and dist < 20:
            p = seq[i]
            pw = set(p.wr)
            need = 0
            why = ""
            if is_valu(p):
                if c.kind == "mfma" and pw & crd:
                    need, why = 2, "valu->mfma"
                if "pk" in p.flags and c.kind == "mfma":
                    need, why = max(need, 1), "pk->mfma"
                if p.kind == "trans" and c.kind == "valu" and pw & crd:
                    need, why = max(need, 1), "trans->valu"
                if "permlane" in c.text and pw & (crd | cwr):
                    need, why = max(need, 2), "valu->permlane"
                if ("readfirstlane" in c.text or "readlane" in c.text) and pw & crd:
                    need, why = max(need, 1), "valu->readlane"
                sw = {x for x in pw if x[0] == "s" or x == "vcc"}
                if sw & crd:
                    if is_valu(c):
                        need, why = max(need, 2), "valu sgpr->valu"
                    elif c.kind == "vmem":
                        need, why = max(need, 5), "valu sgpr->vmem"
            elif p.kind == "mfma":
                if c.kind == "mfma":
                    if pw & set(c.ab):
                        need, why = p.passes + 4, "mfma D->AB"
                    elif pw & set(c.srcc) and set(c.srcc) != pw:
                        need, why = p.passes + 2, "mfma D->C partial"
                    elif pw & cwr and not (set(c.srcc) == pw):
                        need = 0
                elif is_valu(c) or c.kind in ("ds", "vmem"):
                    if pw & (crd | cwr):
                        need, why = p.passes + 4, "mfma D->other"
                    if is_valu(c) and set(p.srcc) & cwr:
                        need, why = max(need, p.passes - 1), "mfma C WAR"
            elif p.kind == "salu":
                if "m0" in pw and c.kind == "vmem" and "m0" in crd:
                    need, why = 1, "m0->dma"
            elif p.kind == "vmem" and "store" in p.text:
                if set(p.flags) & {"wide"} and (set(p.rd) & cwr):
                    need, why = 2, "store data WAR"
            if need > dist:
                out.append((j, need - dist, why + f" [{p.text}] -> [{c.text}]"))
            dist += p.states
            i -= 1
    return out


def check_coverage(trace, W):
    ds_idx, vm_idx = {}, {}
    nds = nvm = 0
    dsdone = vmdone = 0
    bad = []
    for key, ins in trace:
        for t in (ins.needl or []):
            if t in ds_idx and ds_idx[t] > dsdone:
                bad.append((key, ins.text, "lgkm", t))
            if t not in ds_idx and not (isinstance(t, tuple) and t[1] < 0):
                bad.append((key, ins.text, "lgkm-missing", t))
        for t in (ins.needv or []):
            if t in vm_idx and vm_idx[t] > vmdone:
                bad.append((key, ins.text, "vm", t))
        if ins.kind == "ds":
            nds += 1
            if ins.tag is not None:
                ds_idx[ins.tag] = nds
        elif ins.kind == "vmem":
            nvm += 1
            if ins.tag is not None:
                vm_idx[ins.tag] = nvm
        elif ins.kind == "wait":
            l, v = W[key]
            if l is not None:
                dsdone = max(dsdone, nds - l)
            if v is not None:
                vmdone = max(vmdone, nvm - v)
        elif ins.text.startswith("s_waitcnt lgkmcnt(0)"):
            dsdone = nds
    return bad
```

```python
import sys, struct, math, os, re
sys.path.insert(0, os.path.dirname(os.path.abspath(__file__)))
import asmlib
from asmlib import *

asmlib.COST.update(vmem=8, barrier=8)
KNAME = "standalone__gqa_softmax__near_ridge_kernel"
OPT = dict(
    sgaps=[[20, 28, 36], [74, 82, 90]],
    qa_slots=[9, 11, 13, 14], qb_slots=[19, 21, 23, 25],
    oa_rd=[(1, g) for g in (1, 17, 25, 33, 41, 45, 59, 67)] + [(2, g) for g in (1, 9, 17, 22)],
    oa_st=[(1, 74), (1, 82), (1, 90), (2, 20), (2, 44), (2, 74), (3, 20), (3, 44), (3, 74), (4, 16), (4, 24), (4, 32)],
    ob_rd=[(3, g) for g in (71, 75, 79, 83, 87, 91, 95)] + [(4, g) for g in (1, 9, 18, 26, 34)],
    ob_st=[(8, 20), (8, 36), (8, 74), (8, 90), (13, 20), (13, 44), (13, 74), (14, 20), (14, 44), (15, 20), (15, 36), (15, 44)],
    ob_stg=4,
    ob_early=[(5, 20), (5, 32), (5, 44), (6, 20), (6, 32), (7, 74), (7, 82), (7, 90)],
    qar_iter=9,
    kgaps=[4, 8, 12], vgaps=[48, 58, 66],
    bar_gap=98,
    wper=3, look=5,
    thr=4096.0,
    stamp=0,
    codewarm=1,
    pk=1, chain=1, cspread=1,
    kv_nt=" nt", q_nt=" nt", o_nt=" sc1",
)
for a in sys.argv[1:]:
    if "=" in a:
        k, v = a.split("=", 1)
        OPT[k] = eval(v)

TILE = 12288
KSLOT = [0, 1, 2, 3] * 4
VSLOT = [0, 1, 2, 3] * 4
KBASE, VBASE, STAGE, SPARE = 0, 4 * TILE, 8 * TILE, 12 * TILE
LDS_BYTES = 13 * TILE
KD, VD = 4, 3
RING = 6
P2 = 50
NG = 100


def f2u(x):
    return struct.unpack("<I", struct.pack("<f", x))[0]


v = lambda lo, n=1: Reg("v", lo, n)
a = lambda lo, n=1: Reg("a", lo, n)
s = lambda lo, n=1: Reg("s", lo, n)

vLin = v(1)
vK = [v(2), v(3)]
vV = [v(4 + i) for i in range(4)]
vD = [v(8 + i) for i in range(3)]
vDO = [v(11 + i) for i in range(3)]
vS = [v(14), v(15)]
rinv = [v(16 + 2 * i) for i in range(4)]
rinv2 = [v(16 + 2 * i, 2) for i in range(4)]
lsum = [v(17 + 2 * i) for i in range(4)]
negmc = [v(24 + i) for i in range(4)]
TS = v(28, 4)
vOW = v(32)
E = [v(33), v(34), v(35)]
X = [v(36), v(37), v(38), v(39), v(0)]
PA = [v(40, 8), v(48, 8)]
PB = v(56, 8)
SA = v(64, 16)
SB = [v(80, 16), v(96, 16)]
OA = v(112, 96)
STG = v(208, 48)
OB = a(0, 96)
Qc = a(96, 96)
FR = [a(192 + 4 * i, 4) for i in range(RING)]
SQ = [a(216 + 4 * i, 4) for i in range(8)]
JUNK = SQ[7]
ONES = [a(248, 4), a(252, 4)]
OX = [OA, OB]

ptrQ, ptrK, ptrV, ptrO = s(4, 2), s(6, 2), s(8, 2), s(10, 2)
srdK, srdV, srdQ, srdO = s(12, 4), s(16, 4), s(20, 4), s(24, 4)
sBG, sH, sKO, sQO, sQOcur, sNrec, sTrip, sC, sNegC, sThr, sMagic, sW = [s(28 + i) for i in range(12)]
sRet = s(40, 2)
m0K = [s(42 + i) for i in range(4)]
sStage, sQB = s(46), s(47)
m0V = [s(48 + i) for i in range(4)]
sT = [s(67) if OPT.get("rot") else "0"] + [s(51 + t) for t in range(1, 16)]
srdD = s(68, 4)
sStamp = s(72, 2)
sPC = s(76, 2)
sG = [[s(80 + 4 * x + j) for j in range(4)] for x in range(2)]
sM = [s(88 + j) for j in range(4)]
sTmp = s(92)
srdO2 = s(96, 4)
sWarm = s(74, 2)

SCALE_C = math.log2(math.e) / math.sqrt(192.0)


def Qreg(qb, ks):
    return Qc[(qb * 6 + ks) * 4: (qb * 6 + ks) * 4 + 4]


def Otile(qb, dt):
    n = (dt * 2 + qb % 2) * 4
    return OX[qb // 2][n: n + 4]


ALT_S = [False]


def Sbuf(x, tile):
    if x == 0 and tile == 0 and ALT_S[0]:
        return SB[1]
    return SA if x == 0 else SB[tile % 2]


ALT_P = [False]


def Pbuf(x, tile):
    if x == 1 and ALT_P[0] and tile % 2 == 1:
        return PA[1]
    return PA[tile % 2] if x == 0 else PB


def dma(srd, soff, c, tag):
    off = f" offset:{c * 1024}" if c else ""
    fl = OPT.get("k_nt" if srd is srdK else "v_nt", OPT["kv_nt"])
    return I(f"buffer_load_dwordx4 {vD[c]}, {srd}, {soff} offen{off}{fl} lds", "vmem",
             rd=[vD[c], srd, soff, "m0"], tag=tag)


def setm0(x):
    return salu("s_mov_b32", "m0", x)


def qdma(x, jj, c, tag, need=None):
    off = f" offset:{c * 1024}" if c else ""
    return I(f"buffer_load_dwordx4 {vD[c]}, {srdQ}, {sG[x][jj]} offen{off}{OPT['q_nt']} lds", "vmem",
             rd=[vD[c], srdQ, sG[x][jj], "m0"], tag=tag, needl=need)


def qread(dst, n, addr, tag, need=None):
    q, ks = n // 6, n % 6
    off = q * 6144 + (ks // 2) * 128
    return I(f"ds_read_b128 {dst}, {addr[ks % 2]} offset:{off}", "ds", rd=[addr[ks % 2]], wr=[dst], tag=tag, needv=need)


def oaddr(e):
    if e == 0:
        return vOW, []
    return E[2], [valu("v_xor_b32", E[2], str(e * 32), vOW)]


def owrite(src, addr, q, dt):
    off = q * 6144 + (dt // 4) * 128
    return I(f"ds_write_b64 {addr}, {src} offset:{off}", "ds", rd=[addr, src], cost=OPT.get("wcost", 12), flags=["head"])


def oread(dst, idx, tag):
    if OPT.get("hswap") and (idx // 3) % 2:
        return [I(f"ds_read_b64 {dst[0:2]}, {vLin} offset:{idx * 1024 + 8}", "ds", rd=[vLin], wr=[dst[0:2]]),
                I(f"ds_read_b64 {dst[2:4]}, {vLin} offset:{idx * 1024}", "ds", rd=[vLin], wr=[dst[2:4]], tag=tag)]
    return [I(f"ds_read_b128 {dst}, {vLin} offset:{idx * 1024}", "ds", rd=[vLin], wr=[dst], tag=tag)]


def ostore(src, x, idx, need, fin=False, srdO=srdO):
    jj, c = idx // 3, idx % 3
    off = f" offset:{c * 1024}" if c else ""
    fl = OPT.get("of_nt" + "ab"[x], OPT["o_nt"]) if fin else OPT["o_nt"]
    return I(f"buffer_store_dwordx4 {src}, {vDO[c]}, {srdO}, {sG[x][jj]} offen{off}{fl}", "vmem",
             rd=[src, vDO[c], srdO, sG[x][jj]], flags=["wide"], cost=16, needl=need)


def obuf(x, idx):
    if x == 1 and idx < OPT["ob_stg"]:
        return STG[4 * idx: 4 * idx + 4]
    return SQ[idx % 8]


def kread(g, f, tile, at=None):
    kh, ks = (f % 12) // 6, f % 6
    off = KBASE + KSLOT[tile % 16] * TILE + kh * 6144 + (ks // 2) * 128
    d = FR[f % RING]
    r = I(f"ds_read_b128 {d}, {vK[ks % 2]} offset:{off}", "ds", rd=[vK[ks % 2]], wr=[d], tag=("F", g, f))
    r.rtile = ("K", at if at is not None else max(g + 1, 0))
    assert r.rtile[1] % 16 == tile % 16
    return [r]


def vread(g, f, tile, at=None):
    dt = f % 12
    d = FR[f % RING]
    out = []
    for jj in range(2):
        off = VSLOT[tile % 16] * TILE + jj * 6144 + (dt // 4) * 128
        out.append(I(f"ds_read_b64_tr_b16 {d[2 * jj:2 * jj + 2]}, {vV[dt % 4]} offset:{off}", "ds", rd=[vV[dt % 4]],
                     wr=[d[2 * jj:2 * jj + 2]], tag=("F", g, f) if jj == 1 else None))
        out[-1].rtile = ("V", at if at is not None else g)
        assert out[-1].rtile[1] % 16 == tile % 16
    return out


def swap32(u, w):
    return I(f"v_permlane32_swap_b32 {u}, {w}", "valu", rd=[u, w], wr=[u, w], cost=8)


def swap16(u, w):
    return I(f"v_permlane16_swap_b32 {u}, {w}", "valu", rd=[u, w], wr=[u, w], cost=8)


def max_tree(S, u, w):
    o = []
    for a0, a1, a2, first in ((0, 1, 2, True), (3, 4, None, False), (5, 6, None, False)):
        for r, b in ((u, 0), (w, 8)):
            if first:
                o.append(valu("v_max3_f32", r, S[b + a0], S[b + a1], S[b + a2]))
            else:
                o.append(valu("v_max3_f32", r, r, S[b + a0], S[b + a1]))
    o += [valu("v_max_f32", u, u, S[7]), valu("v_max_f32", w, w, S[15])]
    return o


def reduce2(op, u, w):
    return [nop(1), swap32(u, w), valu(op, u, u, w), valu("v_mov_b32", w, u), nop(1), swap16(u, w), valu(op, u, u, w)]


def max_init(x, S):
    u, w = E[0], E[1]
    n0, n1 = negmc[2 * x], negmc[2 * x + 1]
    return nonop(max_tree(S, u, w) + reduce2("v_max_f32", u, w) + [
        valu("v_mul_f32", n0, sNegC, u), valu("v_mul_f32", n1, sNegC, u), nop(1), swap32(n0, n1)])


XPOS = [0]


def exp_stream(x, S, P, order=range(16), late=None):
    out = []
    order = list(order)
    p0 = XPOS[0]
    N = len(order)
    XPOS[0] = (p0 + N) % len(X)
    T = lambda n: X[(p0 + n) % len(X)]
    for n in range(N + 2):
        if n < N:
            i = order[n]
            f = valu("v_fma_f32", T(n), S[i], sC, negmc[2 * x + i // 8])
            if late is not None and i % 8 >= 4:
                f.earliest = late
            out.append(f)
        if 0 <= n - 1 < N:
            out.append(trans("v_exp_f32", T(n - 1), T(n - 1)))
        j = n - 2
        if 0 <= j < N and j % 2 == 1:
            out.append(valu("v_cvt_pk_bf16_f32", P[order[j] // 2], T(j - 1), T(j)))
    return out


TRAMPS = []
KH0_FIRST = [0, 1, 2, 3, 8, 9, 10, 11, 4, 5, 6, 7, 12, 13, 14, 15]


def softmax(x, tile, late=None):
    S, P = Sbuf(x, tile), Pbuf(x, tile)
    if tile == 0:
        return max_init(x, S) + exp_stream(x, S, P)
    return exp_stream(x, S, P, KH0_FIRST if late is not None else range(16), late)


def sum_mfma(x, tile):
    P = Pbuf(x, tile)
    return [mfma(TS, ONES[0], P[0:4], 0), mfma(TS, ONES[1], P[4:8], TS)]


def check(x, tile, site):
    if tile == 0:
        return [], [], [valu("v_mov_b32", lsum[2 * x + i], TS[i]) for i in range(2)]
    par = tile % 2
    if x == 1 and ALT_P[0] and par == 1:
        par = 3
    name = f"{site}_{'AB'[x]}"
    if (name, x, par) not in TRAMPS:
        TRAMPS.append((name, x, par))
    return ([I(f"v_cmp_nge_f32 vcc, {sThr}, {TS[2]}", "valu", rd=[sThr, TS[2]], wr=["vcc"])],
            [I(f"s_cbranch_vccnz L_tr_{name}", "branch", rd=["vcc"]), label(f"L_ret_{name}")],
            [valu("v_add_f32", lsum[2 * x + i], lsum[2 * x + i], TS[i]) for i in range(2)])


def rinv_stream(x):
    u, w = lsum[2 * x], lsum[2 * x + 1]
    r0, r1 = rinv[2 * x], rinv[2 * x + 1]
    return nonop(reduce2("v_add_f32", u, w) + [trans("v_rcp_f32", r0, u), trans("v_rcp_f32", r1, u), nop(1), swap32(r0, r1)])


def scale2(R, qb):
    if OPT["pk"]:
        return [I(f"v_pk_mul_f32 {R}, {R}, {rinv2[qb]} op_sel_hi:[1,0]", "valu", rd=[R, rinv[qb]], wr=[R], flags=["pk"])]
    return [valu("v_mul_f32", R[0], R[0], rinv[qb]), valu("v_mul_f32", R[1], R[1], rinv[qb])]


def epi_a(tt):
    O = OA[16 * tt: 16 * tt + 16]
    m = []
    for i in range(8):
        m += scale2(O[2 * i: 2 * i + 2], (i // 2) % 2)
    c = [valu("v_cvt_pk_bf16_f32", O[i], O[2 * i], O[2 * i + 1]) for i in range(8)]
    w = []
    for n in range(4):
        dt, q = 2 * tt + n // 2, n % 2
        ad, pre = oaddr(dt % 4)
        if q == 0:
            w += pre
        wr = owrite(O[2 * n: 2 * n + 2], ad, q, dt)
        wr.after = c[2 * n + 1]
        w.append(wr)
    return m, c, w


def epi_b(tt, half, T):
    O = OB[16 * tt: 16 * tt + 16]
    D = STG[tt * 8: tt * 8 + 8]
    r = [valu("v_accvgpr_read_b32", T[i], O[8 * half + i]) for i in range(8)]
    m = []
    for i in range(4):
        m += scale2(T[2 * i: 2 * i + 2], 2 + i // 2)
    c = [valu("v_cvt_pk_bf16_f32", D[4 * half + i], T[2 * i], T[2 * i + 1]) for i in range(4)]
    return r, m, c


def ob_writes(es):
    w = []
    for e in es:
        ad, pre = oaddr(e)
        w += pre
        for dt in (e, e + 4, e + 8):
            for q in range(2):
                n = (dt * 2 + q) * 2
                w.append(owrite(STG[n: n + 2], ad, q, dt))
    return w


def nonop(items):
    return [i for i in items if i.kind != "nop"]


def setw(items, earliest=None, latest=None):
    for i in items:
        if latest is not None:
            i.latest = latest if i.latest is None else min(i.latest, latest)
    if earliest is not None:
        items[0].earliest = earliest
    return items


def rare(x, par):
    S, P = Sbuf(x, par), Pbuf(x, par)
    u, w = E[0], E[1]
    f = [u, w]
    n = [negmc[2 * x], negmc[2 * x + 1]]
    o = [label(f"L_rare_{'AB'[x]}{par}"), nop(15)]
    o += max_tree(S, u, w)
    o += [valu("v_fma_f32", u, u, sC, n[0]), valu("v_fma_f32", w, w, sC, n[1])]
    o += reduce2("v_max_f32", u, w)
    o += [valu("v_max_f32", u, "0", u), valu("v_mov_b32", w, u), nop(1), swap32(u, w),
          valu("v_sub_f32", n[0], n[0], u), valu("v_sub_f32", n[1], n[1], w),
          trans("v_exp_f32", u, f"-{u}", extra_rd=[u]), trans("v_exp_f32", w, f"-{w}", extra_rd=[w]), nop(0),
          valu("v_mul_f32", lsum[2 * x], lsum[2 * x], u), valu("v_mul_f32", lsum[2 * x + 1], lsum[2 * x + 1], w)]
    O = OX[x]
    for i in range(96):
        ff = f[(i // 4) % 2]
        if O.f == "a":
            tt = P[i % 4]
            o += [valu("v_accvgpr_read_b32", tt, O[i]), valu("v_mul_f32", tt, tt, ff),
                  valu("v_accvgpr_write_b32", O[i], tt)]
        else:
            o.append(valu("v_mul_f32", O[i], O[i], ff))
    o += [valu("v_fma_f32", S[i], S[i], sC, n[i // 8]) for i in range(16)]
    o += [trans("v_exp_f32", S[i], S[i]) for i in range(16)]
    o += [valu("v_cvt_pk_bf16_f32", P[i], S[2 * i], S[2 * i + 1]) for i in range(8)]
    o += [nop(1)] + sum_mfma(x, par)
    o += [nop(15), I(f"s_setpc_b64 {sRet}", "branch", rd=[sRet])]
    return o


def qk_mfma(tile, f, qb, fr):
    kh, ks = f // 6, f % 6
    n = (qb % 2) * 8 + kh * 4
    d = Sbuf(qb // 2, tile)[n: n + 4]
    return mfma(d, fr, Qreg(qb, ks), d if ks else 0)


def pv_mfma(t, dt, qb, fr, zero):
    o = Otile(qb, dt)
    p = Pbuf(qb // 2, t)[4 * (qb % 2): 4 * (qb % 2) + 4]
    return mfma(o, fr, p, 0 if zero else o)


def frag_read(g, t, f):
    if f < 12:
        return kread(g, f, t + 1)
    if f < 24:
        return vread(g, f, t)
    return kread(g + 1, f - 24, t + 2)


def ftag(g, f):
    return ("F", g, f) if f < 24 else ("F", g + 1, f - 24)


def stamp(idx, real=False):
    if not OPT["stamp"]:
        return []
    if OPT["stamp"] == 2 and idx not in (0, 1, 15, 16, 17, 18, 19, 56, 60, 61):
        return []
    if OPT["stamp"] == 3 and idx in range(2, 12):
        return []
    op = "s_memrealtime" if real else "s_memtime"
    return [I(f"{op} {sStamp}", "salu", wr=[sStamp]), I("s_waitcnt lgkmcnt(0)", "salu"),
            valu("v_mov_b32", E[0], sStamp[0]),
            I(f"buffer_store_dword {E[0]}, off, {srdD}, {sH} offset:{idx * 4}", "vmem", rd=[E[0], srdD])]


def next_block():
    return [salu("s_mov_b32", sQOcur, sQO),
            salu("s_add_u32", sBG, sBG, "32", scc_w=True),
            salu("s_mul_hi_u32", sKO, sBG, sMagic),
            salu("s_mul_i32", sKO, sKO, "196608"),
            salu("s_mul_i32", sQO, sBG, "98304"),
            I(f"s_cmp_lt_u32 {sTrip}, 2", "salu", rd=[sTrip], wr=["scc"]),
            salu("s_cselect_b32", sNrec, "196608", "0", scc_r=True),
            salu("s_cselect_b32", srdQ[2], "98304", "0", scc_r=True),
            salu("s_add_u32", srdQ[0], ptrQ[0], sQO, scc_w=True),
            salu("s_addc_u32", srdQ[1], ptrQ[1], "0", scc_w=True, scc_r=True)]


def add_iter(u, b, t, site, first=False):
    g = b * 16 + t
    base = len(u.heads)
    tn = (t + 1) % 16
    lastuse = {}
    NR = OPT.get("nr", 3)
    seq = [(f, qb) for f in range(NR) for qb in (2, 3)] + [(f, qb) for f in range(NR) for qb in (0, 1)] + \
          [(f, qb) for f in range(NR, 12) for qb in range(4)]
    if OPT.get("chain"):
        seq = [(f, qb) for grp in range(4) for qb in ((2, 3, 0, 1) if grp == 0 else range(4)) for f in range(3 * grp, 3 * grp + 3)]
    for f, qb in seq:
        m = qk_mfma(tn, f, qb, FR[f % RING])
        m.needl = [("F", g, f)] + ([("QB", b + 1, (qb - 2) * 6 + f % 6)] if tn == 0 and qb >= 2 else [])
        lastuse[f] = u.add_gap(m)
    for m in sum_mfma(1, t):
        u.add_gap(m)
    seq = [(f, qb) for f in range(NR) for qb in (0, 1)] + [(f, qb) for f in range(NR) for qb in (2, 3)] + \
          [(f, qb) for f in range(NR, 12) for qb in range(4)]
    for dt, qb in seq:
        m = pv_mfma(t, dt, qb, FR[(12 + dt) % RING], t == 0)
        m.needl = [("F", g, 12 + dt)]
        lastuse[12 + dt] = u.add_gap(m)
    for m in sum_mfma(0, tn):
        u.add_gap(m)
    wp = OPT["wper"]
    for f in range(24):
        k = lastuse[f]
        rd = frag_read(g, t, f + RING)
        nsb = OPT.get("nsb", 0)
        if OPT.get("bar2", 0):
            nsb = t % 2
        kr = k + (f % 3) * OPT.get("cspread", 0) if OPT.get("chain") and f < 12 else k
        u.pin[lastuse[19] if nsb and f == 18 else kr] += rd
        if (f + 1) % wp == 0:
            kw = k + 2 if f in (11, 23) else (k if len(rd) == 1 else k - 1)
            if OPT.get("chain") and f < 11 and len(rd) == 2:
                kw = k - 3
            if nsb and f == 20:
                assert wp == 3
                kw = lastuse[19] - 2
            u.pin[kw].append(waitl(*[ftag(g, f + 1 + i) for i in range(wp)]))
    for x, k in ((0, base), (1, base + P2)):
        c, br, lu = check(x, t, site)
        if x == 1 and OPT.get("cmpb", 0):
            u.pin[k + 3] += c
        else:
            u.tail[k + 2] += c
        kb = k + 2 * NR - 1
        if OPT.get("brhead"):
            u.pin[kb] = br + u.pin[kb]
        else:
            u.tail[kb] += br
        u.streams.append(Stream(lu, kb + 1, kb + 3, prio=0.5))
    dl = []
    bar2 = OPT.get("bar2", 0)
    if bar2:
        plan = [("K", 4, OPT.get("b2o", [84, 88, 92]))] if t % 2 else \
               [("V", 2, [4, 8, 12]), ("K", 4, OPT.get("b2k", [40, 44, 48])), ("V", 3, OPT.get("b2v", [58, 62, 66]))]
    else:
        plan = [("K", KD, OPT["kgaps"]), ("V", VD, OPT["vgaps"])]
    for kind, d, gaps in plan:
        tt = (t + d) % 16
        for c, k in enumerate(gaps):
            if kind == "K":
                dl.append((k, m0K[KSLOT[tt]], dma(srdK, sT[tt], c, ("K", g + d))))
            else:
                dl.append((k, m0V[VSLOT[tt]], dma(srdV, sT[tt], c, ("V", g + d))))
    for x, key in ((0, "oa_rd"), (1, "ob_rd")):
        for idx, (tt, k) in enumerate(OPT[key]):
            if tt == t and not first:
                u.pin[base + k] += oread(obuf(x, idx), idx, ("OR", b, x, idx))
    for x, key in ((0, "oa_st"), (1, "ob_st")):
        for idx, (tt, k) in enumerate(OPT[key]):
            if tt == t and not first:
                u.pin[base + k].append(ostore(obuf(x, idx), x, idx, [("OR", b, x, idx)] if b or not NFIRST else []))
    if OPT.get("ob_early") and not first:
        late = [idx for idx, (tt, k) in enumerate(OPT["ob_st"]) if tt > 11]
        for idx, (tt, k) in zip(late, OPT["ob_early"]):
            if tt == t:
                u.pin[base + k].append(ostore(obuf(1, idx), 1, idx, [("OR", b, 1, idx)], srdO=srdO2))
    if t in (2, 3) and not first:
        st = Stream(ob_writes((0, 1)), base + 23, base + 97) if t == 2 else Stream(ob_writes((2, 3)), base + 0, base + 70)
        st.pace = OPT.get("pace", 1)
        u.streams.append(st)
    for half in range(2):
        n = 2 * t + half
        gaps = OPT["sgaps"][half]
        if bar2 and t % 2 and half:
            gaps = [66, 70, 74]
        for x, key in ((0, "qa_slots"), (1, "qb_slots")):
            if n in OPT[key]:
                jj = OPT[key].index(n)
                need = ([] if first else [("OR", b, 1, 11)]) if x == 0 else [("QA", b + 1, 11)]
                for c, k in enumerate(gaps):
                    dl.append((k, sM[jj], qdma(x, jj, c, ("QD", b + 1, x), need)))
    prev, pk_ = None, -9
    for k, m, ins in sorted(dl, key=lambda x: x[0]):
        if m is not prev:
            km = k - 2 if k % 4 == 0 else k - 3
            assert km > pk_ or (km == pk_), (t, k, pk_)
            u.pin[base + km].append(setm0(m))
        u.pin[base + k].append(ins)
        prev, pk_ = m, k
    if OPT["codewarm"] and t == OPT.get("rewarm", 6):
        u.pin[base + 44].append(I(f"global_load_dwordx4 {STG[44:48]}, {vLin}, {sWarm}", "vmem", rd=[vLin, sWarm], wr=[STG[44:48]]))
    pf = OPT.get("pf", [])
    if first and pf and t == 2:
        u.pin[base + 84] += [salu("s_add_u32", sTmp, sQO, str(32 * 98304), scc_w=True)]
        u.pin[base + 86] += [salu("s_add_u32", srdO2[0], ptrQ[0], sTmp, scc_w=True),
                             salu("s_addc_u32", srdO2[1], ptrQ[1], "0", scc_w=True, scc_r=True)]
        u.pin[base + 88] += [salu("s_mov_b32", srdO2[2], "98304"), salu("s_lshl_b32", sTmp, sW, "3", scc_w=True)]
        u.tail[base + 90] += [valu("v_subrev_u32", E[2], sStage, vLin), valu("v_lshl_add_u32", E[2], E[2], "2", sTmp)]
    for i, (tt, k) in enumerate(pf):
        if first and tt == t:
            u.pin[base + k].append(I(f"buffer_load_dword {SQ[0][i % 4]}, {E[2]}, {srdO2}, 0 offen{OPT.get('pf_nt', '')}", "vmem",
                                     rd=[E[2], srdO2], wr=[SQ[0][i % 4]]))
            u.tail[base + k + 1].append(valu("v_add_u32", E[2], "4096", E[2]))
    if t == OPT["qar_iter"]:
        u.pin[base + 0].append(waitv(("QD", b + 1, 0)))
        for n in range(12):
            u.pin[base + 1 + 4 * n].append(qread(STG[n * 4: n * 4 + 4], n, vS, ("QA", b + 1, n), [("QD", b + 1, 0)]))
    if t == 14:
        u.pin[base + P2].append(waitv(("QD", b + 1, 1)))
        for i, n in enumerate([0, 6, 1, 7, 2, 8, 3, 9, 4, 10, 5, 11]):
            u.pin[base + P2 + 1 + 4 * (i // 2) + (8 if i >= 2 else 0)].append(
                qread(Qreg(2 + n // 6, n % 6), n, vS, ("QB", b + 1, n), [("QD", b + 1, 1)]))
    if bar2:
        if t % 2:
            bb = barrier()
            bb.needl = [("F", g, 23)]
            u.pin[lastuse[19] - 1] += [waitv(("K", g + 2), ("K", g + 3), ("V", g + 1), ("V", g + 2)), bb]
    elif OPT.get("nsb", 0):
        bb = barrier()
        bb.needl = [("F", g, 23)]
        u.pin[lastuse[19] - 1] += [waitv(("K", g + 2), ("V", g + 1)), bb]
    else:
        u.pin[base + OPT["bar_gap"] - OPT.get("wv_early", 0)] += [waitv(("K", g + 3), ("V", g + 1))]
        u.pin[base + OPT["bar_gap"]] += [barrier()]
    XPOS[0] = 0
    sb = setw(softmax(1, t), latest=base + 46)
    sa = softmax(0, tn, late=base + 49)
    sa[0].earliest = base + (P2 + 2 * NR if tn == 0 else 30)
    u.streams.append(Stream(sb + sa, base + 0, base + 96, prio=0.05, look=OPT["look"]))
    if t == 1:
        u.streams.append(Stream(next_block(), base + 24, base + 80))
    if t == (12 if bar2 else 15 - KD):
        sl = [salu("s_add_u32", srdK[0], ptrK[0], sKO, scc_w=True),
              salu("s_addc_u32", srdK[1], ptrK[1], "0", scc_w=True, scc_r=True),
              salu("s_mov_b32", srdK[2], sNrec)]
        u.streams.append(Stream(sl, base + 1, base + 20) if bar2 else Stream(sl, base + OPT["kgaps"][-1] + 1, base + 90))
    if t == 15 - VD:
        sl = [salu("s_add_u32", srdV[0], ptrV[0], sKO, scc_w=True),
              salu("s_addc_u32", srdV[1], ptrV[1], "0", scc_w=True, scc_r=True),
              salu("s_mov_b32", srdV[2], sNrec)]
        u.streams.append(Stream(sl, base + max(OPT["vgaps"][-1], 70) + 1, base + 90))
    return base


def qcopy(base):
    out = []
    for ks in range(6):
        for q in range(2):
            for i in range(4):
                out.append(valu("v_accvgpr_write_b32", Qreg(q, ks)[i], STG[(q * 6 + ks) * 4 + i],
                                earliest=base + (4 * (6 + ks) + q if not OPT.get("chain") else 24 + 12 * (ks // 3) + 6)))
    return out


def set_osrd():
    return [salu("s_add_u32", srdO[0], ptrO[0], sQOcur, scc_w=True),
            salu("s_addc_u32", srdO[1], ptrO[1], "0", scc_w=True, scc_r=True),
            salu("s_mov_b32", srdO[2], "98304")]


NFIRST = OPT.get("nfirst", 9)


def unit_mid(b, t, first=False):
    u = Unit(f"T{t}" + "f" * first)
    if t == 1 and not first:
        u.pre.append(label("L_loop"))
    if t == NFIRST + 1 and NFIRST:
        u.pre.append(label("L_join"))
    u.pre += stamp(t)
    base = add_iter(u, b, t, f"T{t}" + "f" * first, first)
    if first and t == NFIRST:
        u.post.append(I("s_branch L_join", "branch"))
    if t == 14:
        u.streams.append(Stream(qcopy(base), base + 24, base + 99))
    if t == 11:
        u.tail[base + 96].append(I(f"s_cmp_eq_u32 {sTrip}, 2", "salu", rd=[sTrip], wr=["scc"]))
        u.post += [I("s_cbranch_scc1 L_fin", "branch", rd=["scc"])]
    return u


def unit_x(b):
    u = Unit("X")
    u.pre.append(label("L_x"))
    u.pre += stamp(15)
    b15 = add_iter(u, b, 15, "T15")
    b0 = add_iter(u, b + 1, 0, "T0")
    u.streams.append(Stream(rinv_stream(0), b15 + 9, b15 + 40))
    u.streams.append(Stream(rinv_stream(1), b15 + P2 + 9, b15 + P2 + 15, prio=0.5))
    ep, wr = [], []
    for tt in range(6):
        O = OA[16 * tt: 16 * tt + 16]
        dl = b0 + P2 + (8 * tt if tt != 1 else 4) - 1
        m, c, w = epi_a(tt)
        r0, m0_, c0 = epi_b(tt, 0, O[8:16])
        r1, m1_, c1 = epi_b(tt, 1, O[8:16])
        setw(m, earliest=b15 + P2 + 8 * tt + 9)
        setw(r0, earliest=b15 + P2 + max(16, 8 * tt + 9))
        ep += setw(m + c + r0 + m0_ + c0 + r1 + m1_ + c1, latest=dl)
        wr += setw(w, latest=dl)
    u.streams.append(Stream(ep, b15 + P2 + 9, b0 + P2 + 39))
    u.streams.append(Stream(wr, b15 + P2 + 9, b0 + P2 + 39))
    u.streams[-1].space = OPT.get("space", 0)
    u.streams[-1].headmax = OPT.get("xhm", 8 / 3)
    so = set_osrd()
    if OPT.get("ob_early"):
        so += [salu("s_mov_b32", srdO2[0], srdO[0]), salu("s_mov_b32", srdO2[1], srdO[1]),
               I(f"s_cmp_eq_u32 {sTrip}, 1", "salu", rd=[sTrip], wr=["scc"]),
               salu("s_cselect_b32", srdO2[2], "98304", "0", scc_r=True)]
    u.streams.append(Stream(so, b15 + 46, b15 + 56))
    sl = [salu("s_add_u32", sTrip, sTrip, "1", scc_w=True)]
    if OPT["stamp"]:
        sl.append(salu("s_add_u32", sH, sH, "64", scc_w=True))
    u.streams.append(Stream(sl, b0 + 4, b0 + 80))
    u.post.append(I("s_branch L_loop", "branch"))
    return u


def unit_pro():
    u = Unit("PRO")
    P = u.pre
    tid, lane, i16, G, t0, t1, t2 = v(0), X[0], X[1], X[2], X[3], E[0], E[1]
    P += [I("s_cmp_ge_u32 s2, 256", "salu", rd=["s2"], wr=["scc"]),
          I("s_cbranch_scc1 L_end", "branch", rd=["scc"]),
          I("s_load_dwordx4 s[4:7], s[0:1], 0", "salu", wr=[s(4, 4)]),
          I("s_load_dwordx4 s[8:11], s[0:1], 16", "salu", wr=[s(8, 4)])]
    warm = []
    if OPT["codewarm"]:
        P += [I(f"s_getpc_b64 {sPC}", "salu", wr=[sPC]),
              label("L_pc"),
              I(f"s_sub_u32 {sPC[0]}, {sPC[0]}, L_pc-{KNAME}", "salu", rd=[sPC], wr=[sPC, "scc"]),
              I(f"s_subb_u32 {sPC[1]}, {sPC[1]}, 0", "salu", rd=[sPC, "scc"], wr=[sPC, "scc"]),
              salu("s_lshr_b32", sH, "s2", "3", scc_w=True),
              salu("s_mul_i32", sH, sH, "3072"),
              valu("v_mul_u32_u24", E[2], "12", tid),
              valu("v_add_u32", E[2], sH, E[2]),
              I(f"v_min_u32 {E[2]}, L_code_end-{KNAME}-8, {E[2]}", "valu", rd=[E[2]], wr=[E[2]])]
        warm = [I(f"global_load_dwordx2 {JUNK[0:2]}, {E[2]}, {sPC}", "vmem", rd=[E[2], sPC], wr=[JUNK[0:2]])]
        if OPT["codewarm"] == 1:
            P += warm
            warm = []
    if OPT["stamp"]:
        P += [I(f"s_load_dwordx2 {srdD[0:2]}, s[0:1], 40", "salu"), I(f"s_memrealtime {s(94, 2)}", "salu")]
    if OPT.get("dbg"):
        P += [I(f"s_load_dwordx2 {srdD[0:2]}, s[0:1], 32", "salu"), I(f"s_memrealtime {s(94, 2)}", "salu"),
              I(f"s_memtime {s(100, 2)}", "salu")]
    P += [valu("v_lshrrev_b32", t0, "6", tid), valu("v_and_b32", lane, "63", tid),
          I(f"v_readfirstlane_b32 {sW}, {t0}", "valu", rd=[t0], wr=[sW]),
          valu("v_lshlrev_b32", t1, "4", lane)]
    P += [salu("s_and_b32", sBG, "s2", "7", scc_w=True),
          salu("s_mul_i32", sBG, sBG, "96"),
          salu("s_lshr_b32", sH, "s2", "3", scc_w=True),
          salu("s_add_u32", sBG, sBG, sH, scc_w=True),
          salu("s_mov_b32", sMagic, "0x55555556"),
          salu("s_mul_hi_u32", sKO, sBG, sMagic),
          salu("s_mul_i32", sKO, sKO, "196608"),
          salu("s_mul_i32", sQO, sBG, "98304")]
    P += [salu("s_mov_b32", sQB, str(VBASE + 2 * TILE)),
          I(f"s_cmp_eq_u32 {sW}, 0", "salu", rd=[sW], wr=["scc"]),
          salu("s_cselect_b32", sQB, str(KBASE + 3 * TILE), sQB, scc_r=True),
          I(f"s_cmp_eq_u32 {sW}, 2", "salu", rd=[sW], wr=["scc"]),
          salu("s_cselect_b32", sQB, str(VBASE + 3 * TILE), sQB, scc_r=True),
          I(f"s_cmp_eq_u32 {sW}, 3", "salu", rd=[sW], wr=["scc"]),
          salu("s_cselect_b32", sQB, str(SPARE), sQB, scc_r=True),
          salu("s_mul_i32", sW, sW, "3072")]
    late = []
    for c in range(3):
        P += [valu("v_add_u32", t0, str(c * 1024), t1),
              valu("v_lshrrev_b32", t2, "7", t0),
              valu("v_mul_u32_u24", t2, "171", t2),
              valu("v_lshrrev_b32", vDO[c], "9", t2),
              valu("v_and_b32", vD[c], "6", vDO[c]),
              valu("v_lshlrev_b32", vD[c], "4", vD[c]),
              valu("v_xor_b32", vD[c], vD[c], t1),
              valu("v_add_u32", vD[c], sW, vD[c])]
        late += [valu("v_lshlrev_b32", vDO[c], "4", vDO[c]),
                 valu("v_xor_b32", vDO[c], vDO[c], t1),
                 valu("v_add_u32", vDO[c], sW, vDO[c])]
    P += [salu("s_lshl_b32", sStage, sW, "2", scc_w=True),
          salu("s_add_u32", sStage, sStage, str(STAGE), scc_w=True),
          salu("s_mul_i32", sH, sW, "7")]
    for jj in range(4):
        P += [salu("s_add_u32", sM[jj], sStage, str(jj * 3072), scc_w=True),
              salu("s_add_u32", sG[0][jj], sH, str(jj * 3072), scc_w=True),
              salu("s_add_u32", sG[1][jj], sH, str(jj * 3072 + TILE), scc_w=True)]
    P += [I("s_waitcnt lgkmcnt(0)", "salu")]
    if OPT.get("dbg") == 2:
        P += [I(f"s_memrealtime {s(78, 2)}", "salu"), I("s_waitcnt lgkmcnt(0)", "salu")]

    def mksrd(srd, ptr, off, n):
        return [salu("s_add_u32", srd[0], ptr[0], off, scc_w=True),
                salu("s_addc_u32", srd[1], ptr[1], "0", scc_w=True, scc_r=True),
                salu("s_mov_b32", srd[2], str(n)), salu("s_mov_b32", srd[3], "0x00020000")]

    def ktile(t):
        return [setm0(m0K[KSLOT[t]]), nop(0)] + [dma(srdK, sT[t], c, ("K", t)) for c in range(3)]

    def vtile(t):
        return [setm0(m0V[VSLOT[t]]), nop(0)] + [dma(srdV, sT[t], c, ("V", t)) for c in range(3)]

    if OPT.get("rot"):
        P += [salu("s_and_b32", sT[0], "s2", "7", scc_w=True), salu("s_mul_i32", sT[0], sT[0], str(OPT["rot"] * TILE))]
    P += [setm0(sW)] + mksrd(srdK, ptrK, sKO, 196608) + [dma(srdK, sT[0], c, ("K", 0)) for c in range(3)]
    if OPT.get("dbg") == 3:
        P += [waitv(("K", 0)), I(f"s_memrealtime {s(78, 2)}", "salu"), I("s_waitcnt lgkmcnt(0)", "salu")]
    P += mksrd(srdQ, ptrQ, sQO, 98304)

    def hopchain(where):
        if not OPT.get("hops", 1) or OPT.get("hopat", 2) != where:
            return []
        o = [I("s_mov_b64 exec, 0", "salu", wr=["exec"])]
        for w in range(3):
            o += [I(f"s_cmp_eq_u32 {sW}, {w * 3072}", "salu", rd=[sW], wr=["scc"]),
                  I(f"s_cbranch_scc1 L_hop_{w}", "branch", rd=["scc"])]
        return o + [I("s_branch L_hop_3", "branch"), label("L_hop_end"), I("s_mov_b64 exec, -1", "salu", wr=["exec"]), nop(3)]

    stag = list(OPT.get("stag", []))

    def hold(i):
        if i >= len(stag):
            return []
        return [I(f"s_cmp_lt_u32 s2, {stag[i]}", "salu", rd=["s2"], wr=["scc"]),
                I(f"s_cbranch_scc1 L_go{i}", "branch", rd=["scc"]),
                I("s_waitcnt vmcnt(0)", "salu"), label(f"L_go{i}")]
    for jj in range(4):
        P += hold(jj) + [setm0(sM[jj]), nop(0)] + [qdma(0, jj, c, ("QD", 0, 0)) for c in range(3)]
    AH = OPT.get("ahead", 1)

    def qbgrp(jj):
        return [salu("s_add_u32", "m0", sQB, str(jj * 3072), scc_w=True), nop(0)] + [qdma(1, jj, c, ("QD", 0, 1)) for c in range(3)]

    tabs = mksrd(srdV, ptrV, sKO, 196608)
    for i in range(4):
        tabs.append(salu("s_add_u32", m0K[i], sW, str(KBASE + i * TILE), scc_w=True))
        tabs.append(salu("s_add_u32", m0V[i], sW, str(VBASE + i * TILE), scc_w=True))
    for t in range(1, 16):
        if OPT.get("rot"):
            tabs += [salu("s_add_u32", sT[t], sT[t - 1], str(TILE), scc_w=True),
                     I(f"s_cmp_lt_u32 {sT[t]}, {16 * TILE}", "salu", rd=[sT[t]], wr=["scc"]),
                     salu("s_cselect_b32", sT[t], sT[t], "0", scc_r=True)]
        else:
            tabs.append(salu("s_mov_b32", sT[t], str(t * TILE)))
    P += hopchain(1)
    if AH:
        if OPT.get("lo", 0) == 0:
            P += tabs + ktile(1) + vtile(0) + qbgrp(0) + qbgrp(1)
        elif OPT["lo"] == 1:
            P += tabs + ktile(1) + vtile(0) + ktile(2) + vtile(1)
        else:
            P += tabs + ktile(1) + vtile(0) + qbgrp(0) + ktile(2) + vtile(1) + qbgrp(1) + qbgrp(2) + qbgrp(3)
    else:
        P += qbgrp(0) + qbgrp(1) + hopchain(3) + qbgrp(2) + qbgrp(3) + tabs
    P += [salu("s_mov_b32", srdO[0], ptrO[0]), salu("s_mov_b32", srdO[1], ptrO[1]),
          salu("s_mov_b32", srdO[2], "0"), salu("s_mov_b32", srdO[3], "0x00020000"),
          salu("s_mov_b32", srdO2[0], ptrO[0]), salu("s_mov_b32", srdO2[1], ptrO[1]),
          salu("s_mov_b32", srdO2[2], "0"), salu("s_mov_b32", srdO2[3], "0x00020000"),
          salu("s_mov_b32", sTrip, "0"),
          salu("s_mov_b32", sC, hex(f2u(SCALE_C))), salu("s_mov_b32", sNegC, hex(f2u(-SCALE_C))),
          salu("s_mov_b32", sThr, hex(f2u(OPT["thr"])))]
    if OPT["codewarm"] and OPT.get("rewarm", 6):
        P += [salu("s_lshr_b32", sTmp, "s2", "3", scc_w=True), salu("s_and_b32", sTmp, sTmp, "15", scc_w=True),
              salu("s_lshl_b32", sTmp, sTmp, "12", scc_w=True),
              salu("s_mul_hi_u32", sH, sW, sMagic),
              salu("s_add_u32", sTmp, sTmp, sH, scc_w=True),
              I(f"s_add_u32 {sTmp}, {sTmp}, L_loop-{KNAME}", "salu", rd=[sTmp], wr=[sTmp, "scc"]),
              I(f"s_min_u32 {sTmp}, {sTmp}, L_code_end-{KNAME}-1024", "salu", rd=[sTmp], wr=[sTmp, "scc"]),
              salu("s_add_u32", sWarm[0], sPC[0], sTmp, scc_w=True),
              salu("s_addc_u32", sWarm[1], sPC[1], "0", scc_w=True, scc_r=True),
              salu("s_sub_u32", sWarm[0], sWarm[0], sStage, scc_w=True),
              salu("s_subb_u32", sWarm[1], sWarm[1], "0", scc_w=True, scc_r=True)]
    P += late + [valu("v_add_u32", vLin, sStage, t1)]
    P += [valu("v_and_b32", i16, "15", lane), valu("v_lshrrev_b32", G, "4", lane),
          valu("v_mul_u32_u24", t0, "384", i16)]
    P += [valu("v_and_b32", t1, "6", i16), valu("v_xor_b32", t1, t1, G), valu("v_lshl_add_u32", vK[0], t1, "4", t0),
          valu("v_xor_b32", vK[1], "64", vK[0])]
    for e in range(2):
        P += [valu("v_add_u32", vS[e], sStage, vK[e]), valu("v_add_u32", STG[e], sQB, vK[e])]
    P += [valu("v_lshrrev_b32", t1, "1", G), valu("v_and_b32", t2, "7", i16), valu("v_xor_b32", t1, t1, t2),
          valu("v_lshl_add_u32", vOW, t1, "4", t0)]
    if OPT.get("hswap"):
        P += [valu("v_lshrrev_b32", t2, "3", i16), valu("v_xor_b32", t1, t2, G), valu("v_and_b32", t1, "1", t1)]
    else:
        P += [valu("v_and_b32", t1, "1", G)]
    P += [
          valu("v_lshl_add_u32", vOW, t1, "3", vOW), valu("v_add_u32", vOW, sStage, vOW)]
    P += [valu("v_lshrrev_b32", t1, "2", lane), valu("v_mul_u32_u24", t0, "384", t1),
          valu("v_and_b32", t1, "6", t1), valu("v_lshl_add_u32", t0, t1, "4", t0),
          valu("v_and_b32", t1, "3", lane), valu("v_lshl_add_u32", t0, t1, "3", t0),
          valu("v_add_u32", vV[0], str(VBASE), t0)]
    for e in range(1, 4):
        P.append(valu("v_xor_b32", vV[e], str(e * 32), vV[0]))
    P += [salu("s_mov_b32", sTmp, "0x3f803f80"), valu("v_mov_b32", t0, sTmp)]
    for j in range(2):
        P += [I(f"v_cmp_eq_u32 vcc, {j}, {i16}", "valu", rd=[i16], wr=["vcc"]),
              I(f"v_cmp_eq_u32 {sRet}, 2, {i16}", "valu", rd=[i16], wr=[sRet]), nop(0),
              I(f"s_or_b64 vcc, vcc, {sRet}", "salu", rd=["vcc", sRet], wr=["vcc", "scc"]), nop(1),
              I(f"v_cndmask_b32 {t1}, 0, {t0}, vcc", "valu", rd=[t0, "vcc"], wr=[t1])]
        P += [valu("v_accvgpr_write_b32", ONES[j][i], t1) for i in range(4)]
    if OPT["stamp"]:
        P += [salu("s_mov_b32", srdD[2], "0x1000000"), salu("s_mov_b32", srdD[3], "0x00020000"),
              salu("s_mul_hi_u32", sTmp, sW, sMagic), salu("s_lshr_b32", sTmp, sTmp, "2", scc_w=True),
              salu("s_lshl_b32", sH, "s2", "10", scc_w=True), salu("s_add_u32", sH, sH, sTmp, scc_w=True),
              valu("v_mov_b32", E[0], s(94)),
              I(f"buffer_store_dword {E[0]}, off, {srdD}, {sH} offset:{57 * 4}", "vmem", rd=[E[0], srdD])]
    P += stamp(60) + stamp(56, True)
    P += hopchain(2)
    if OPT.get("hops", 1):
        P += [I("s_branch L_main", "branch"), I(".p2align 12", "label"), label("L_main")]
    P += [waitv(("QD", 0, 0)), barrier()]
    for f in range(RING):
        P += kread(-2, f, 0)
    qorder = [0, 6, 1, 7, 2, 8, 3, 9, 4, 10, 5, 11]
    for n in qorder:
        P.append(qread(Qreg(n // 6, n % 6), n, vS, ("QA", 0, n)))
    P += [waitl(("QA", 0, 7))]
    P += stamp(61)
    if OPT.get("dbg") == 1:
        P += [I(f"s_memrealtime {s(78, 2)}", "salu"), I("s_waitcnt lgkmcnt(0)", "salu")]
    if AH:
        return pro_ahead(u, ktile, vtile, qbgrp, qorder, hopchain)
    pend = ktile(1) + vtile(0) + ktile(2) + warm + vtile(1)
    for n in range(24):
        x, f = n // 12, n % 12
        for q in range(2):
            m = qk_mfma(0, f, 2 * x + q, FR[n % RING])
            m.needl = [("F", -2, n), ("QA" if x == 0 else "QB", 0, q * 6 + f % 6)]
            k = u.add_gap(m)
            if x == 0 and pend:
                it = pend.pop(0)
                if it.kind != "nop":
                    u.pin[k].append(it)
        if n + RING < 24:
            u.pin[k] += kread(-2, n + RING, 0)
        else:
            u.pin[k] += kread(0, n + RING - 24, 1)
        if f == 1:
            u.pin[k].append(waitl(("QA" if x == 0 else "QB", 0, 11)))
        if RING - 1 <= n < 23 and n != 11:
            u.pin[k].append(waitl(("F", -2, n + 1)))
        if n == 11:
            assert not pend
            k = u.add_gap(None)
            XPOS[0] = 0
            u.pin[k] += softmax(0, 0)
            u.pin[k] += hopchain(0)
            u.pin[k] += [waitv(("QD", 0, 1))]
            for nn in qorder:
                u.pin[k].append(qread(Qreg(2 + nn // 6, nn % 6), nn, [STG[0], STG[1]], ("QB", 0, nn)))
            u.pin[k] += sum_mfma(0, 0) + [waitl(("QB", 0, 7))]
        if n == 14:
            u.pin[k] += [waitv(("K", 1), ("V", 0), ("K", 2), *([("V", 1)] if OPT.get("bar2") else [])), barrier()]
        if n == 15:
            u.pin[k] += ktile(3)
        if n == 16 and not OPT.get("bar2"):
            u.pin[k] += vtile(2)
    u.pin[k] += [barrier(), waitl(*[("F", 0, i) for i in range(OPT["wper"])])]
    u.pin[k] += stamp(0)
    if OPT.get("dbg") == 4:
        u.pin[k] += [I(f"s_memrealtime {s(78, 2)}", "salu"), I("s_waitcnt lgkmcnt(0)", "salu")]
    u.win0 = len(u.heads)
    add_iter(u, 0, 0, "T0p")
    return u


def pro_ahead(u, ktile, vtile, qbgrp, qorder, hopchain):
    ALT_P[0] = ALT_S[0] = True
    phases = [("QK", 0, 0), ("QK", 0, 1), ("PV", 0, 0), ("QK", 0, 2), ("PV", 0, 1),
              ("QK", 1, 0), ("QK", 1, 1), ("QK", 1, 2), ("PV", 1, 0), ("PV", 1, 1)]
    sums = {(1, 24): (0, 0), (2, 18): (0, 1), (6, 24): (1, 0), (8, 18): (1, 1), (9, 24): (0, 2)}
    start, end, sumgap, lastuse = {}, {}, {}, {}
    for pi, (kind, x, tile) in enumerate(phases):
        if pi == 5:
            k = u.add_gap(None)
            u.pin[k] += hopchain(0) + [waitv(("QD", 0, 1))]
            for nn in qorder:
                u.pin[k].append(qread(Qreg(2 + nn // 6, nn % 6), nn, [STG[0], STG[1]], ("QB", 0, nn)))
            u.pin[k] += [waitl(("QB", 0, 7))]
            u.pin[k] += stamp(0)
            if OPT.get("dbg") == 4:
                u.pin[k] += [I(f"s_memrealtime {s(78, 2)}", "salu"), I("s_waitcnt lgkmcnt(0)", "salu")]
        start[pi] = len(u.heads)
        for i in range(24):
            f, qb = i // 2, 2 * x + i % 2
            n = 12 * pi + f
            m = qk_mfma(tile, f, qb, FR[n % RING]) if kind == "QK" else pv_mfma(tile, f, qb, FR[n % RING], tile == 0)
            m.needl = [("F", -2, n)] + ([("QA" if x == 0 else "QB", 0, (i % 2) * 6 + f % 6)] if kind == "QK" else [])
            lastuse[n] = u.add_gap(m)
            if (pi, i + 1) in sums:
                sumgap[sums[(pi, i + 1)]] = len(u.heads)
                for m in sum_mfma(*sums[(pi, i + 1)]):
                    u.add_gap(m)
        end[pi] = len(u.heads) - 1
    nfr, wp = 12 * len(phases), OPT["wper"]
    for n in range(nfr):
        k, nn = lastuse[n], n + RING
        if nn < nfr:
            kind, x, tile = phases[nn // 12]
            rd = kread(-2, nn, tile, tile) if kind == "QK" else vread(-2, nn, tile, tile)
        else:
            rd = kread(2, nn - nfr, 3)
        u.pin[k] += rd
        if (n + 1) % wp == 0 and n >= RING - 1:
            tg = [("F", -2, j) if j < nfr else ("F", 2, j - nfr) for j in range(n + 1, n + 1 + wp)]
            u.pin[end[9] if n == nfr - 1 else (k if len(rd) < 2 else k - 1)].append(waitl(*tg))
    u.pin[start[0] + 2].append(waitl(("QA", 0, 11)))
    u.pin[start[5] + 2].append(waitl(("QB", 0, 11)))

    def spread(items, k0, step=2):
        for it in nonop(items):
            u.pin[k0].append(it)
            k0 += step

    lo = OPT.get("lo", 0)
    if lo < 2:
        spread(ktile(2) + vtile(1) if lo == 0 else qbgrp(0) + qbgrp(1), start[0], 1)
    u.pin[start[0] + 12] += [waitv(("K", 1), ("V", 0)), barrier()]
    if lo < 2:
        spread(qbgrp(2) + qbgrp(3), start[0] + 14, 1)
    u.pin[start[2] + 12] += [waitv(("K", 2), ("V", 1)), barrier()]
    u.pin[start[5] + 4] += [barrier()]
    spread(ktile(3) + vtile(2), start[5] + 6)
    u.pin[start[6] + 0] += [barrier()]
    spread(ktile(4) + vtile(3), start[6] + 2)
    u.pin[start[7] + 0] += [barrier()]
    spread(ktile(5), start[7] + 2)
    u.pin[start[9] + 0] += [waitv(("K", 3)), barrier()]
    spread(vtile(4), start[9] + 2)
    u.pin[sumgap[(0, 2)]] += [waitv(("K", 4), ("V", 2)), barrier()]
    look = OPT["look"]
    XPOS[0] = 0
    for (x, tile), k in sumgap.items():
        if (x, tile) == (0, 2):
            continue
        c, br, lu = check(x, tile, "P")
        u.tail[k + 5] += c
        u.tail[k + 7] += br
        u.streams.append(Stream(lu, k + 8, k + 10, prio=0.5))
    u.streams.append(Stream(softmax(0, 0), start[1] + 3, sumgap[(0, 0)] - 2, prio=0.05, look=look))
    u.streams.append(Stream(softmax(0, 1), start[2] + 1, sumgap[(0, 1)] - 2, prio=0.05, look=look))
    u.streams.append(Stream(exp_stream(0, SA, Pbuf(0, 2), KH0_FIRST[:8]), start[3] + 15, end[3] + 2, prio=0.05, look=look))
    u.streams.append(Stream(exp_stream(0, SA, Pbuf(0, 2), KH0_FIRST[8:]), end[3] + 3, end[4], prio=0.05, look=look))
    u.streams.append(Stream(softmax(1, 0), start[6] + 3, sumgap[(1, 0)] - 2, prio=0.05, look=look))
    u.streams.append(Stream(softmax(1, 1), start[7] + 1, sumgap[(1, 1)] - 2, prio=0.05, look=look))
    u.streams.append(Stream(next_block(), start[9] + 1, end[9] - 3))
    u.wins = sorted(set(list(start.values()) + list(sumgap.values()) + [start[3] + 15]))
    ALT_P[0] = ALT_S[0] = False
    return u


def unit_fin(b):
    u = Unit("FIN")
    u.pre.append(label("L_fin"))
    u.pre += stamp(15)
    g0 = b * 16 + 12
    NR = OPT.get("nr", 3)
    phases = [("QK", (0, 1), 13), ("QK", (1,), 14), ("PV", (1,), 12), ("QK", (1,), 15), ("PV", (1,), 13),
              ("PV", (1,), 14), ("PV", (1,), 15),
              ("PV", (0,), 12), ("QK", (0,), 14), ("PV", (0,), 13), ("QK", (0,), 15), ("PV", (0,), 14), ("PV", (0,), 15)]
    ALT_P[0] = True
    sums = {(0, 42): (1, 12), (2, 18): (1, 13), (4, 18): (1, 14), (5, 18): (1, 15), (7, 18): (0, 13), (9, 18): (0, 14),
            (11, 18): (0, 15)}
    start, end, sumgap, lastuse, done = {}, {}, {}, {}, {}
    nfr = 12 * len(phases)
    for pi, (kind, hs, tile) in enumerate(phases):
        if len(hs) == 2:
            seq = [(f, qb) for f in range(NR) for qb in (2, 3)] + [(f, qb) for f in range(NR) for qb in (0, 1)] + \
                  [(f, qb) for f in range(NR, 12) for qb in range(4)]
        else:
            seq = [(f, 2 * hs[0] + q) for f in range(12) for q in range(2)]
        start[pi] = len(u.heads)
        for i, (f, qb) in enumerate(seq):
            n = 12 * pi + f
            m = qk_mfma(tile, f, qb, FR[n % RING]) if kind == "QK" else pv_mfma(tile, f, qb, FR[n % RING], False)
            m.needl = [("F", g0, n)]
            lastuse[n] = done[(pi, f, qb)] = u.add_gap(m)
            if (pi, i + 1) in sums:
                sumgap[sums[(pi, i + 1)]] = len(u.heads)
                for m in sum_mfma(*sums[(pi, i + 1)]):
                    u.add_gap(m)
        end[pi] = len(u.heads) - 1
    last = u.add_gap(None)
    wp = OPT["wper"]
    for n in range(nfr):
        k = lastuse[n]
        nn = n + RING
        rd = []
        if nn < nfr:
            kind, hs, tile = phases[nn // 12]
            rd = kread(g0, nn, tile, b * 16 + tile) if kind == "QK" else vread(g0, nn, tile, b * 16 + tile)
            u.pin[k] += rd
        if (n + 1) % wp == 0 and n + 1 < nfr:
            u.pin[k if len(rd) < 2 else k - 1].append(waitl(*[("F", g0, n + 1 + i) for i in range(wp)]))
    if OPT.get("bar2"):
        for tt, k0 in ((14, 4), (15, 20)):
            u.pin[start[0] + k0 - 3].append(setm0(m0V[VSLOT[tt]]))
            for c in range(3):
                u.pin[start[0] + k0 + 4 * c].append(dma(srdV, sT[tt], c, ("V", g0 + tt - 12)))
        u.pin[start[2] + 2] += [waitv(("K", g0 + 3)), barrier()]
        u.pin[start[4] + 2] += [waitv(("V", g0 + 3)), barrier()]
    else:
        u.pin[start[0] + 1].append(setm0(m0V[VSLOT[15]]))
        for c, k in enumerate((4, 8, 12)):
            u.pin[start[0] + k].append(dma(srdV, sT[15], c, ("V", g0 + 3)))
        if OPT.get("nsb", 0):
            u.pin[start[0] + 24] += [waitv(("K", g0 + 2)), barrier()]
        u.pin[start[2] + 2] += [waitv(("K", g0 + 3), ("V", g0 + 1), ("V", g0 + 2)), barrier()]
        u.pin[sumgap[(1, 14)]] += [waitv(("V", g0 + 3)), barrier()]
    def put_check(x, tile, kc, kb):
        c, br, lu = check(x, tile, f"F{tile}")
        u.tail[kc] += c
        u.tail[kb] += br
        u.streams.append(Stream(lu, kb + 1, kb + 3, prio=0.5))
    put_check(0, 12, start[0] + 2, start[0] + 2 * NR - 1)
    for (x, tile), k in sumgap.items():
        put_check(x, tile, k + 5, k + 7)
    XPOS[0] = 0
    look = OPT["look"]
    for tile, k0 in ((12, start[0]), (13, start[1] + 3), (14, start[3]), (15, start[5])):
        u.streams.append(Stream(softmax(1, tile), k0, sumgap[(1, tile)] - 2, prio=0.05, look=look))
    u.streams.append(Stream(softmax(0, 13), start[7], sumgap[(0, 13)] - 2, prio=0.05, look=look))
    for tile, pq in ((14, 8), (15, 10)):
        u.streams.append(Stream(exp_stream(0, SA, Pbuf(0, tile), KH0_FIRST[:8]), start[pq] + 15, end[pq] + 2,
                                prio=0.05, look=look))
        u.streams.append(Stream(exp_stream(0, SA, Pbuf(0, tile), KH0_FIRST[8:]), end[pq] + 3,
                                sumgap[(0, tile)] - 2, prio=0.05, look=look))
    AD = [vOW, STG[0], STG[1], STG[2]]
    u.streams.append(Stream(set_osrd() + [valu("v_xor_b32", AD[e], str(32 * e), vOW) for e in range(1, 4)],
                            sumgap[(1, 14)], end[4]))
    kA = sumgap[(1, 15)] + 11
    u.streams.append(Stream(rinv_stream(1), kA, kA + 6, prio=0.5))
    Z = [Qc[48 + 4 * i: 52 + 4 * i] for i in range(12)]
    TT = [SB[0], SB[1], STG[16:32]]

    def epi_group(qb, dts, T):
        r, m, c, w = [], [], [], []
        for i, dt in enumerate(dts):
            O = Otile(qb, dt)
            R = O if O.f == "v" else T[4 * i: 4 * i + 4]
            if O.f == "a":
                r += [valu("v_accvgpr_read_b32", R[j], O[j]) for j in range(4)]
            m += scale2(R[0:2], qb) + scale2(R[2:4], qb)
            cc = [valu("v_cvt_pk_bf16_f32", R[0], R[0], R[1]), valu("v_cvt_pk_bf16_f32", R[1], R[2], R[3])]
            c += cc
            wr = owrite(R[0:2], AD[dt % 4], qb % 2, dt)
            wr.after = cc[1]
            w.append(wr)
        return r, m, c, w

    if OPT.get('fdirect', 0):
        vO, tl = STG[3], STG[4]
        so = ["0", sM[0], sT[1] if not OPT.get("rot") else sM[2], sM[1]]
        pre = [valu("v_subrev_u32", tl, sStage, vLin), valu("v_bfe_u32", vO, tl, "4", "4"), valu("v_mul_u32_u24", vO, "384", vO),
               valu("v_bfe_u32", STG[5], tl, "8", "1"), valu("v_lshl_add_u32", vO, STG[5], "5", vO),
               valu("v_bfe_u32", STG[5], tl, "9", "1"), valu("v_lshl_add_u32", vO, STG[5], "4", vO),
               salu("s_lshl_b32", sM[3], sW, "3", scc_w=True), valu("v_add_u32", vO, sM[3], vO),
               salu("s_mov_b32", sM[0], "6144"), salu("s_mov_b32", sM[1], "18432"), salu("s_mov_b32", sM[2], "12288")]
        u.streams.append(Stream(pre, sumgap[(1, 13)], end[2] + 6))

        def dgroup(qb, grp, T):
            r, m, c, w, st = [], [], [], [], []
            for j in range(2):
                R = []
                for i in range(2):
                    O = Otile(qb, 4 * grp + 2 * j + i)
                    R.append(O if O.f == "v" else T[8 * j + 4 * i: 8 * j + 4 * i + 4])
                    if O.f == "a":
                        r += [valu("v_accvgpr_read_b32", R[i][n], O[n]) for n in range(4)]
                    m += scale2(R[i][0:2], qb) + scale2(R[i][2:4], qb)
                D = R[0]
                c += [valu("v_cvt_pk_bf16_f32", D[0], D[0], D[1]), valu("v_cvt_pk_bf16_f32", D[1], D[2], D[3]),
                      valu("v_cvt_pk_bf16_f32", D[2], R[1][0], R[1][1]), valu("v_cvt_pk_bf16_f32", D[3], R[1][2], R[1][3])]
                w += [swap16(D[0], D[2]), swap16(D[1], D[3])]
                fl = OPT.get("of_nt" + "ab"[qb // 2], OPT["o_nt"])
                x = I(f"buffer_store_dwordx4 {D}, {vO}, {srdO}, {so[qb]} offen offset:{(2 * grp + j) * 64}{fl}", "vmem",
                      rd=[D, vO, srdO, so[qb]], flags=["wide", "head"], cost=16)
                x.after = w[-1]
                st.append(x)
            return r, m, c + w, st

        T6 = [SB[0], SB[1], STG[16:32], STG[32:48]]
        ep, sts, lasts = [], [], {}
        for n, (q, grp) in enumerate([(q, grp) for q in range(2) for grp in range(3)]):
            r, m, c, st = dgroup(2 + q, grp, T6[n % 4])
            setw(r, earliest=done[(6, 4 * grp + 3, 2 + q)] + 4)
            setw(m, earliest=kA + 7)
            if n >= 4:
                r[0].after = lasts[n - 4]
                r[0].delay = 1
            lasts[n] = st[-1]
            ep += r + m + c
            sts += st
        e1 = start[8] + OPT.get("e1d", 64)
        u.streams.append(Stream(ep, start[6] + 10, e1, prio=0.3))
        u.streams.append(Stream(sts, start[6] + 10, e1 + 8, prio=0.3))
        u.streams[-1].headmax = 8
        u.streams.append(Stream(rinv_stream(0), start[12] + 3, start[12] + 8, prio=0.5))
        ep, sts = [], []
        for grp, q in ((0, 0), (0, 1), (1, 0)):
            r, m, c, st = dgroup(q, grp, None)
            setw(m, earliest=done[(12, 4 * grp + 3, q)] + 3)
            ep += m + c
            sts += st
        u.streams.append(Stream(ep, start[12] + 9, end[12], prio=0.3))
        u.streams.append(Stream(sts, start[12] + 9, end[12], prio=0.3))
        u.streams[-1].headmax = 8
        po = u.pin[last]
        for grp, q in ((1, 1), (2, 0), (2, 1)):
            r, m, c, st = dgroup(q, grp, None)
            po += m + c + st
    if not OPT.get('fdirect', 0):
        ep, wr, sts = [], [], []
        lastw = {}
        for q in range(2):
            for grp in range(3):
                r, m, c, w = epi_group(2 + q, range(4 * grp, 4 * grp + 4), TT[grp])
                setw(r, earliest=done[(6, 4 * grp + 3, 2 + q)] + 4)
                setw(m, earliest=kA + 7)
                if q:
                    r[0].after = lastw[grp]
                lastw[grp] = w[-1]
                ep += r + m + c
                wr += w
            for n in range(6 * q, 6 * q + 6):
                for rd in oread(Z[n], n, ("OR", b + 1, 1, n)):
                    rd.flags.add("head")
                    wr.append(rd)
            w = waitl(("OR", b + 1, 1, 6 * q + 5))
            w.after = wr[-1]
            w.delay = 6
            sts.append(w)
            for n in range(6 * q, 6 * q + 6):
                st = ostore(Z[n], 1, n, [("OR", b + 1, 1, n)], True)
                st.flags.add("head")
                sts.append(st)
        e1 = start[8] + OPT.get("e1", 40)
        u.streams.append(Stream(ep, start[6] + 10, e1, prio=0.3))
        u.streams.append(Stream(wr, start[6] + 10, e1 + 14, prio=0.3))
        u.streams[-1].headmax = 8
        u.streams[-1].space = OPT.get("spacef", 0)
        u.streams.append(Stream(sts, start[7], end[OPT.get("stend", 11)], prio=0.3))
        u.streams[-1].headmax = 4
        u.streams[-1].pace = True
        u.streams.append(Stream(rinv_stream(0), start[12] + 3, start[12] + 8, prio=0.5))
        Z = [Qc[4 * i: 4 * i + 4] for i in range(12)]
        ep, wr = [], []
        for grp, q in ((0, 0), (0, 1), (1, 0)):
            r, m, c, w = epi_group(q, range(4 * grp, 4 * grp + 4), None)
            setw(m, earliest=done[(12, 4 * grp + 3, q)] + 3)
            ep += m + c
            wr += w
        u.streams.append(Stream(ep, start[12] + 9, end[12], prio=0.3))
        u.streams.append(Stream(wr, start[12] + 9, end[12], prio=0.3))
        u.streams[-1].headmax = 8

        def weave(v, w):
            o, n = [], len(w)
            for i, x in enumerate(v):
                o.append(x)
                while w and (n - len(w)) < (i + 1) * n / len(v):
                    o.append(w.pop(0))
            return o

        po = u.pin[last]
        _, m11, c11, w11 = epi_group(1, range(4, 8), None)
        _, m20, c20, w20 = epi_group(0, range(8, 12), None)
        _, m21, c21, w21 = epi_group(1, range(8, 12), None)
        po += m11 + m20 + c20 + weave(c11 + m21, w20)
        po += [i for n in range(6) for i in oread(Z[n], n, ("OR", b + 1, 0, n))]
        po += weave(c21, w11)
        st = [ostore(Z[n], 0, n, [("OR", b + 1, 0, n)], True) for n in range(6)]
        po += [waitl(("OR", b + 1, 0, 5))] + weave(st[:4], w21)
        po += [i for n in range(6, 12) for i in oread(Z[n], n, ("OR", b + 1, 0, n))] + st[4:]
        for n in range(6, 12):
            po += [waitl(("OR", b + 1, 0, n)), ostore(Z[n], 0, n, [("OR", b + 1, 0, n)], True)]
    if OPT["stamp"] == 3:
        for pi, idx in ((2, 12), (4, 13), (6, 14), (7, 20), (9, 21), (11, 22), (12, 23)):
            u.tail[start[pi] - 1] += stamp(idx)
        u.pin[last] = stamp(26) + u.pin[last]
    ALT_P[0] = False
    u.wins = sorted(set(list(start.values()) + list(sumgap.values()) + [start[8] + 15, start[10] + 15, start[6] + 10]))
    u.post += stamp(16) + stamp(17, True)
    if OPT["stamp"]:
        u.post += [I("s_waitcnt vmcnt(0)", "salu")] + stamp(18) + stamp(19, True)
    if OPT.get("dbg"):
        u.post += [I("s_cmp_ge_u32 s2, 8", "salu"), I("s_cbranch_scc1 L_end", "branch"),
                   I(f"s_cmp_lg_u32 {sW}, 0", "salu"), I("s_cbranch_scc1 L_end", "branch"),
                   I("s_waitcnt vmcnt(0)", "salu"), I(f"s_memrealtime {sStamp}", "salu"), I(f"s_memtime {sPC}", "salu"),
                   I("s_waitcnt lgkmcnt(0)", "salu"),
                   salu("s_mov_b32", srdD[2], "256"), salu("s_mov_b32", srdD[3], "0x00020000"),
                   I("s_mov_b64 exec, 1", "salu"),
                   salu("s_sub_u32", sTmp, sStamp[0], s(94)), salu("s_sub_u32", sH, s(78), s(94)),
                   salu("s_mul_i32", sH, sH, "100000"), salu("s_add_u32", sTmp, sTmp, sH),
                   valu("v_mov_b32", v(34), sTmp),
                   salu("s_sub_u32", sTmp, sPC[0], s(100)), valu("v_mov_b32", v(35), sTmp),
                   salu("s_lshl_b32", sTmp, "s2", "3"),
                   I(f"buffer_store_dwordx2 {v(34, 2)}, off, {srdD}, {sTmp}", "vmem", rd=[srdD])]
    u.post += [label("L_end"), I("s_endpgm", "branch")]
    return u


T1ST = 2 if OPT.get("ahead", 1) else 1


def build(extra):
    cache = {}

    def get(name, fn, first):
        u = fn()
        ins = u.schedule(budget=8, window=50, pk_at=20, verbose=first and VERB)
        out = []
        for idx, i in enumerate(ins):
            n = extra.get((name, idx), 0)
            if n:
                out.append(((name, idx, "nop"), nop(n - 1)))
            out.append(((name, idx), i))
        if first:
            cache[name] = out
        return out

    trace = list(get("PRO", unit_pro, True))
    for b in range(3):
        for t in range(T1ST if b == 0 else 1, 15 if b < 2 else 12):
            if b == 0 and t <= NFIRST:
                trace += get(f"T{t}f", lambda: unit_mid(b, t, True), True)
            else:
                trace += get(f"T{t}", lambda: unit_mid(b, t), b == (1 if t <= NFIRST else 0))
        if b < 2:
            trace += get("X", lambda: unit_x(b), b == 0)
    trace += get("FIN", lambda: unit_fin(2), True)
    order = ["PRO"] + [f"T{t}f" for t in range(T1ST, NFIRST + 1)] + [f"T{t}" for t in range(1, 15)] + ["X", "FIN"]
    return [(n, cache[n]) for n in order], trace


VERB = False
extra = {}
for it in range(60):
    static, trace = build(extra)
    hz = hazards([i for _, i in trace])
    if not hz:
        break
    upd = {}
    lastj = -100
    for j, need, why in hz:
        key = trace[j][0]
        if j != lastj and j - lastj < 24:
            continue
        lastj = j
        upd[key] = max(upd.get(key, 0), need)
        if OPT.get("showhz"):
            print("; hazard:", key, need, why, file=sys.stderr)
    for k, n in upd.items():
        extra[k] = extra.get(k, 0) + n
else:
    raise SystemExit("hazards did not converge")
if OPT.get("verb"):
    VERB = True
    _so = sys.stdout
    sys.stdout = sys.stderr
    build(extra)
    sys.stdout = _so
    print("; nops inserted:", extra, file=sys.stderr)
W = resolve_waits(trace)
_bad = check_coverage(trace, W)
assert not _bad, _bad[:10]


def check_ring(trace, W):
    nds = nvm = dsdone = vmdone = bar_ds = bar_vm = 0
    last_dma, last_read, first = {}, {}, {}
    for key, ins in trace:
        if ins.kind == "ds":
            nds += 1
            rt = getattr(ins, "rtile", None)
            if rt is not None:
                assert rt in last_dma and last_dma[rt] <= bar_vm, ("read before visible", key, rt)
                assert (rt[0], rt[1] + 4) not in last_dma, ("read after refill", key, rt)
                last_read[rt] = nds
        elif ins.kind == "vmem":
            nvm += 1
            if ins.tag and ins.tag[0] in ("K", "V"):
                old = (ins.tag[0], ins.tag[1] - 4)
                if old[1] >= 0:
                    assert old in last_read and last_read[old] <= bar_ds, ("refill too early", key, ins.tag)
                last_dma[ins.tag] = nvm
        elif ins.kind == "wait":
            l, v = W[key]
            if l is not None:
                dsdone = max(dsdone, nds - l)
            if v is not None:
                vmdone = max(vmdone, nvm - v)
        elif ins.kind == "barrier":
            bar_ds, bar_vm = dsdone, vmdone
    for kind in "KV":
        for t in range(48):
            assert (kind, t) in last_read, (kind, t)


check_ring(trace, W)
if OPT.get("verb") and "_mismatch" in W:
    print("; wait mismatches:", W["_mismatch"], file=sys.stderr)

out = []
A = out.append
A(open(os.path.join(os.path.dirname(os.path.abspath(__file__)), "header.txt")).read().rstrip())
A(f"; @launch grid=(256,1,1) block=(256,1,1) lds={LDS_BYTES}")
A("""; Attention forward, one persistent workgroup per CU (4 waves x 64 query rows), three 256-row blocks each.
; Workgroups with equal (id & 7) walk neighbouring blocks, so the three blocks of a head share K/V through L2.
; S^T = K Q^T and O^T = V^T P^T with v_mfma_f32_16x16x32_bf16; K/V tiles of 32 keys stream through LDS rings.
; (taken with two extra MFMAs) are checked, and if any exceeds 4096 (or is inf/nan) the L_rare_* routines raise m to
; This file is emitted by a scheduling script (hand-written instruction templates, automatic wait/hazard checks).""")
A('.amdgcn_target "amdgcn-amd-amdhsa--gfx950"')
A(".text")
A(f".globl {KNAME}")
A(".p2align 8")
A(f".type {KNAME},@function")
A(f"{KNAME}:")
for name, ins in static:
    A(f"; ---- {name} ----")
    for key, i in ins:
        t = i.text
        if i.kind == "wait":
            l, vv = W[key]
            t = "s_waitcnt " + (f"lgkmcnt({l})" if l is not None else f"vmcnt({vv})")
        abl = OPT.get("abl", "")
        if abl and name not in ("PRO",):
            tx = i.text
            if "c" in abl and "s_cbranch_vccnz" in tx:
                t = "s_nop 0"
            if "b" in abl and i.kind == "barrier":
                t = "s_nop 0"
            if "k" in abl and i.kind == "vmem" and (str(srdK) in tx or str(srdV) in tx):
                t = "s_nop 1"
            if "w" in abl and i.kind == "wait" and i.waitl is not None:
                t = "s_nop 0"
            if "W" in abl and i.kind == "wait" and i.waitv is not None:
                t = "s_nop 0"
            if "s" in abl and i.kind == "vmem" and (str(srdQ) in tx or str(srdO) in tx):
                t = "s_nop 1"
            if "z" in abl and "ds_write" in tx:
                t = "s_nop 1"
            tok = tx.replace(",", " ").split()
            if "v" in abl and i.kind in ("valu", "trans") and any(str(r) in tok for r in X):
                t = "s_nop 0"
            if "V" in abl and i.kind in ("valu", "trans") and any(str(r) in tok for r in X):
                continue
            if "d" in abl and i.kind == "ds" and i.wr and i.wr[0] in names(FR):
                t = "s_nop 0"
            if "e" in abl and i.kind == "valu" and ("pk_mul" in tx or "accvgpr" in tx or ("cvt_pk" in tx and not any(str(r) in tok for r in X))):
                continue
            if "o" in abl and i.kind == "mfma" and i.wr == TS.names():
                continue
        if OPT.get("e64") and re.match(r"v_(exp_f32|add_f32|mul_f32|mov_b32|xor_b32|max_f32|rcp_f32) ", t) and "96" not in t.split(",")[1]:
            t = t.replace(" ", "_e64 ", 1)
        A(t if i.kind == "label" else "    " + t)
for name, x, par in TRAMPS:
    A(f"L_tr_{name}:")
    A(f"    s_call_b64 {sRet}, L_rare_{'AB'[x]}{par}")
    A(f"    s_branch L_ret_{name}")
for x, par in ((0, 0), (0, 1), (1, 0), (1, 1), (1, 3)):
    if True:
        ALT_P[0] = par == 3
        r = rare(x, par)
        ALT_P[0] = False
        hz = hazards(r)
        assert not hz, hz
        for i in r:
            A(i.text if i.kind == "label" else "    " + i.text)
A("L_code_end:")
A("    s_endpgm")
A(f""".section .rodata,"a"
.p2align 6
.amdhsa_kernel {KNAME}
  .amdhsa_next_free_vgpr 512
  .amdhsa_next_free_sgpr 102
  .amdhsa_accum_offset 256
  .amdhsa_group_segment_fixed_size 0
  .amdhsa_kernarg_size 48
  .amdhsa_user_sgpr_count 2
  .amdhsa_user_sgpr_kernarg_segment_ptr 1
  .amdhsa_system_sgpr_workgroup_id_x 1
  .amdhsa_float_denorm_mode_32 3
.end_amdhsa_kernel""")
def insert_hops(lines):
    import subprocess, tempfile
    i0, i1 = lines.index("L_main:"), lines.index("L_end:")
    probe = list(lines)
    probe[i1:i1] = [f"L_hop_{w}:" for w in range(4)]
    with tempfile.TemporaryDirectory() as d:
        open(d + "/p.s", "w").write("\n".join(probe))
        subprocess.run(["clang", "-x", "assembler", "-target", "amdgcn-amd-amdhsa", "-mcpu=gfx950", "-c",
                        d + "/p.s", "-o", d + "/p.o"], check=True)
        dis = subprocess.run(["llvm-objdump", "-d", "--mcpu=gfx950", d + "/p.o"],
                             capture_output=True, text=True).stdout.splitlines()
    k = next(n for n, l in enumerate(dis) if l.endswith("<L_main>:"))
    sizes = [4 * len(l.split("//")[1].split(":")[1].split()) for l in dis[k:] if "//" in l]
    res, addr, n, nxt, pos = lines[:i0 + 1], 0, 0, 4096, []
    for l in lines[i0 + 1:i1]:
        if l in ("L_loop:", "L_join:") and NFIRST or l == "L_fin:":
            if res[-1].startswith(";"):
                c = res.pop()
                unc = res[-1].strip().startswith("s_branch")
                res.append(c)
            pos.append(len(res) + (0 if unc else 1))
            if unc:
                res.append(None)
                res.append(l)
            else:
                res.append(l)
                res.append(None)
            addr += 4
            continue
        if l.startswith("    "):
            if addr >= nxt:
                pos.append(len(res))
                res.append(None)
                addr += 4
                nxt += 4096
            addr += sizes[n]
            n += 1
        res.append(l)
    assert len(pos) >= 4
    for i, p_ in enumerate(pos):
        tgt = f"L_hop_{i + 4}" if i + 4 < len(pos) else "L_hop_end"
        res[p_] = f"L_hop_{i}:\n    s_cbranch_execz {tgt}"
    return res + lines[i1:]


if OPT.get("hops", 1):
    out = insert_hops("\n".join(out).split("\n"))
print("\n".join(out))
```
